```python
import torch

def _softmax(x, axis=-1):
    return torch.softmax(x, dim=axis)
def _gelu(x):
    return torch.nn.functional.gelu(x, approximate="tanh")
def _silu(x):
    return torch.nn.functional.silu(x)
def _sigmoid(x):
    return torch.sigmoid(x)
def _layernorm(x, axis=-1, eps=1e-5):
    m = x.mean(dim=axis, keepdim=True)
    v = x.var(dim=axis, keepdim=True, unbiased=False)
    return (x - m) / torch.sqrt(v + eps)
def _scatter_add(tgt, idx, src, axis=0):
    return tgt.clone().index_add_(axis, idx, src)
def _segment_sum(src, seg, n):
    out = torch.zeros((n,) + src.shape[1:], dtype=src.dtype)
    return out.index_add_(0, seg, src)
def _pad(x, pw):
    flat = tuple(v for pair in reversed(pw) for v in pair)
    return torch.nn.functional.pad(x, flat)

kernel_name = 'standalone__gqa_softmax__near_ridge'

def setup_inputs():

    _w = (lambda a: (lambda t: t.to(torch.bfloat16) if t.is_floating_point() else t)(torch.as_tensor(a)))
    B, Hq, Hkv, Sq, Sk, D = 8, 16, 8, 128, 1024, 256
    return {
        "q": _w((lambda *s: torch.randn(*s, dtype=torch.bfloat16) * 0.8)(B, Hq, Sq, D)),
        "k": _w((lambda *s: torch.randn(*s, dtype=torch.bfloat16) * 0.8)(B, Hkv, Sk, D)),
        "v": _w((lambda *s: torch.randn(*s, dtype=torch.bfloat16) * 0.05)(B, Hkv, Sk, D)),
    }

def reference(q, k, v):
    B, Hq, Sq, D = q.shape
    Hkv = k.shape[1]
    rep = Hq // Hkv
    k = (lambda x, n, axis: torch.repeat_interleave(x, n, dim=axis))(k, rep, axis=1)
    v = (lambda x, n, axis: torch.repeat_interleave(x, n, dim=axis))(v, rep, axis=1)
    scale = D ** -0.5
    scores = torch.einsum("bhqd,bhkd->bhqk", q, k) * scale
    p = _softmax(scores, axis=-1)
    return torch.einsum("bhqk,bhkd->bhqd", p, v)
```

```python
import re
def R(p, b, n=1): return [f"{p}{b+i}" for i in range(n)]
def T(p, b, n=1): return f"{p}{b}" if n == 1 else f"{p}[{b}:{b+n-1}]"
class I:
    __slots__ = ("text","kind","rd","wr","extra","src_c","cost","nopn","lg","vm","tag")
    def __init__(self, text, kind, rd=(), wr=(), extra=(), src_c=(), cost=1, nopn=0, lg=None, vm=None, tag=None):
        self.text=text; self.kind=kind; self.rd=set(rd); self.wr=set(wr); self.extra=set(extra)
        self.src_c=list(src_c); self.cost=cost; self.nopn=nopn; self.lg=lg; self.vm=vm; self.tag=tag
    def __repr__(self): return self.text
_reg = re.compile(r"\b([vas])(\d+)\b|\b([vas])\[(\d+):(\d+)\]|\b(vcc|m0|exec)\b")
def regs_of(op):
    out = []
    for m in _reg.finditer(op):
        if m.group(1): out.append(m.group(1)+m.group(2))
        elif m.group(3): out += [m.group(3)+str(i) for i in range(int(m.group(4)), int(m.group(5))+1)]
        else: out.append(m.group(6))
    return out
TRANS = ("v_exp_f32","v_log_f32","v_rcp_f32","v_rsq_f32","v_sqrt_f32")
def split_ops(s):
    ops=[]; d=0; cur=""
    for ch in s:
        if ch=="[": d+=1
        if ch=="]": d-=1
        if ch=="," and d==0: ops.append(cur.strip()); cur=""
        else: cur+=ch
    if cur.strip(): ops.append(cur.strip())
    return ops
def parse(text, **kw):
    t = text.strip()
    if t.endswith(":"): return I(t, "label", cost=0, **kw)
    mn, _, rest = t.partition(" ")
    ops = split_ops(rest)
    if mn == "s_nop": return I(t, "nop", nopn=int(rest), **kw)
    if mn == "s_waitcnt":
        lg = re.search(r"lgkmcnt\((\d+)\)", t); vm = re.search(r"vmcnt\((\d+)\)", t)
        return I(t, "wait", lg=int(lg.group(1)) if lg else None, vm=int(vm.group(1)) if vm else None, **kw)
    if mn == "s_barrier": return I(t, "barrier", **kw)
    if mn in ("s_branch","s_endpgm","s_sleep","s_setprio") : return I(t, "salu", **kw)
    if mn.startswith("s_cbranch"):
        return I(t, "branch", rd=["vcc"] if "vcc" in mn else [], **kw)
    if mn.startswith("s_load") or mn.startswith("s_mem"):
        return I(t, "smem", wr=regs_of(ops[0]), rd=regs_of(",".join(ops[1:])), **kw)
    if mn.startswith("s_cmp"): return I(t, "salu", rd=regs_of(rest), **kw)
    if mn.startswith("s_"):
        return I(t, "salu", wr=regs_of(ops[0]), rd=regs_of(",".join(ops[1:])), **kw)
    if mn.startswith("v_mfma"):
        return I(t, "mfma", wr=regs_of(ops[0]), rd=regs_of(ops[1])+regs_of(ops[2])+regs_of(ops[3]), src_c=regs_of(ops[3]), cost=2, **kw)
    if mn.startswith("v_permlane"):
        r = regs_of(ops[0])+regs_of(ops[1]); return I(t, "perm", rd=r, wr=r, **kw)
    if mn.startswith("v_readfirstlane") or mn.startswith("v_readlane"):
        return I(t, "rdlane", wr=regs_of(ops[0]), rd=regs_of(",".join(ops[1:])), **kw)
    if mn.startswith("v_"):
        base = mn.replace("_e32","").replace("_e64","").replace("_sdwa","").replace("_dpp","")
        wr = regs_of(ops[0]); rd = regs_of(",".join(ops[1:]))
        if base.startswith("v_fmac") or base.startswith("v_pk_fmac"): rd += wr
        if base.startswith("v_cndmask") and len(ops) == 3: rd.append("vcc")
        if base in ("v_add_co_u32","v_addc_co_u32","v_sub_co_u32"): wr += regs_of(ops[1]); rd = regs_of(",".join(ops[2:]))
        if base in TRANS: return I(t, "trans", rd=rd, wr=wr, cost=2, **kw)
        return I(t, "valu", rd=rd, wr=wr, **kw)
    if mn.startswith("ds_read"): return I(t, "dsr", wr=regs_of(ops[0]), rd=regs_of(ops[1]), **kw)
    if mn.startswith("ds_write"): return I(t, "dsw", rd=regs_of(rest), **kw)
    if mn.startswith("buffer_load"):
        if t.split()[-1] == "lds": return I(t, "dma", rd=regs_of(rest)+["m0"], **kw)
        return I(t, "vld", wr=regs_of(ops[0]), rd=regs_of(",".join(ops[1:])), **kw)
    if mn.startswith("buffer_store") or mn.startswith("buffer_atomic"):
        wide = "x4" in mn or "x3" in mn
        return I(t, "vst", rd=regs_of(rest), extra=regs_of(ops[0]) if wide else (), **kw)
    if mn in ("buffer_wbl2","buffer_inv"): return I(t, "vmisc", **kw)
    raise ValueError("unknown instr "+t)

VAL = ("valu","trans","perm","rdlane")
def need_states(p, c):
    n = 0
    pw = p.wr
    if p.kind in VAL:
        vw = {r for r in pw if r[0] in "va"}
        sw = {r for r in pw if r[0] == "s" or r == "vcc"}
        if c.kind == "mfma" and vw & c.rd: n = max(n, 2)
        if c.kind == "perm" and vw & c.rd: n = max(n, 2)
        if c.kind == "rdlane" and vw & c.rd: n = max(n, 1)
        if p.kind == "trans" and c.kind in ("valu","perm","rdlane") and vw & c.rd: n = max(n, 1)
        if sw and c.kind in VAL and sw & c.rd: n = max(n, 2)
        if sw and c.kind in ("vld","vst","dma") and sw & c.rd: n = max(n, 5)
        if sw and c.kind in ("salu","branch") and sw & c.rd: n = max(n, 2)
        if "exec" in pw and c.kind == "mfma": n = max(n, 4)
    if p.kind == "mfma":
        D = pw
        if c.kind == "mfma":
            ab = c.rd - set(c.src_c)
            if D & ab: n = max(n, 12)
            cs = set(c.src_c)
            if cs & D and cs != D: n = max(n, 10)
            if (c.wr & D) and not (cs == D): n = max(n, 10)
        elif c.kind in VAL:
            if D & (c.rd | c.wr): n = max(n, 12)
            if set(p.src_c) & c.wr: n = max(n, 7)
        elif c.kind in ("dsr","dsw","vld","vst","dma"):
            if D & (c.rd | c.wr): n = max(n, 12)
    if p.kind == "salu" and "m0" in pw and c.kind == "dma": n = max(n, 1)
    if p.kind == "vst" and p.extra:
        if c.kind in VAL and p.extra & c.wr: n = max(n, 2)
        elif p.extra & c.wr: n = max(n, 1)
    return n
def states(i):
    if i.kind == "label": return 0
    if i.kind == "nop": return i.nopn + 1
    return 1

class Seg:
    def __init__(self, name): self.name=name; self.ins=[]
    def a(self, text, **kw):
        for l in text.split("\n"):
            l = l.split(";")[0].strip()
            if l: self.ins.append(parse(l, **kw))
    def add(self, i): self.ins.append(i)

def fix_waits(traces, verbose=False):
    changed = True; rounds = 0
    while changed:
        changed = False; rounds += 1
        for tr in traces:
            lds = []
            vms = []
            hist = []
            for seg in tr:
                k = 0
                while k < len(seg.ins):
                    c = seg.ins[k]
                    if c.kind == "wait":
                        if c.lg is not None: lds = lds[len(lds)-c.lg:] if c.lg < len(lds) else lds; lds = lds if c.lg else []
                        if c.vm is not None: vms = vms[len(vms)-c.vm:] if c.vm < len(vms) else vms; vms = vms if c.vm else []
                    touched = c.rd | c.wr | (c.extra if c.kind == "mfma" else set())
                    needl = None
                    for j in range(len(lds)-1, -1, -1):
                        if lds[j] & touched: needl = len(lds)-1-j; break
                    needv = None
                    for j in range(len(vms)-1, -1, -1):
                        if vms[j] & touched: needv = len(vms)-1-j; break
                    if needl is not None or needv is not None:
                        s = []
                        if needv is not None: s.append(f"vmcnt({min(needv,63)})")
                        if needl is not None: s.append(f"lgkmcnt({min(needl,15)})")
                        seg.ins.insert(k, parse("s_waitcnt " + " ".join(s), tag="auto")); changed = True
                        continue
                    dist = 0; worst = 0
                    for p in reversed(hist):
                        if dist >= 20: break
                        nd = need_states(p, c)
                        if nd > dist: worst = max(worst, nd - dist)
                        dist += states(p)
                    if worst > 0:
                        if verbose: print(f"; hazard nop {worst} in {seg.name} before {c.text}")
                        seg.ins.insert(k, parse(f"s_nop {worst-1}", tag="auto")); changed = True
                        continue
                    if c.kind == "dsr": lds.append(set(c.wr))
                    elif c.kind == "dsw": lds.append(set())
                    elif c.kind == "smem": lds.append(set(c.wr))
                    elif c.kind == "vld": vms.append(set(c.wr))
                    elif c.kind in ("vst","dma","vmisc"): vms.append(set())
                    hist.append(c)
                    if len(hist) > 40: hist = hist[-30:]
                    k += 1
        assert rounds < 50
def merge_waits(seg):
    out = []
    for i in seg.ins:
        if out and i.kind == "wait" and out[-1].kind == "wait":
            p = out[-1]
            lg = min([x for x in (p.lg, i.lg) if x is not None], default=None)
            vm = min([x for x in (p.vm, i.vm) if x is not None], default=None)
            s = []
            if vm is not None: s.append(f"vmcnt({vm})")
            if lg is not None: s.append(f"lgkmcnt({lg})")
            out[-1] = parse("s_waitcnt " + " ".join(s))
        else: out.append(i)
    seg.ins = out
def emit(segs):
    L = []
    for s in segs:
        L.append(f"; ---- {s.name}")
        for i in s.ins: L.append(i.text if i.kind == "label" else "  " + i.text)
    return "\n".join(L)
```

```python
import sys, math, struct
from asmlib import *
KN = "standalone__gqa_softmax__near_ridge_kernel"
def f2u(x): return struct.unpack("<I", struct.pack("<f", x))[0]
KS, VS = 16640, 17408
KB = [i*KS for i in range(4)]
VB = [4*KS + i*VS for i in range(4)]
SPARE = 4*KS + 4*VS
C_SCALE = math.log2(math.e)/16.0
vKa, vVa, vDma, vNeg, vThr, vL, vM, vMx = 16, 17, 18, 19, 20, 21, 22, 23
vP = 24; vS = [32, 48]; vKF = 64; vVF = 96; vO = 128
vOg, vEw, vEr, vSt = 12, 13, 14, 15
sQ, sK, sV, sO, sW, sD = 16, 20, 24, 28, 32, 36
sWv, sOK, sOV, sMK, sMV, sCnt, sC, sDK, sDV, sRet, sKh, sT0, sT1, sOo, sX = 40,41,42,43,44,45,46,47,48,49,50,51,52,53,54
sDK2, sDV2 = 55, 56
sStampBase = 60

def gen(ksplit=2, polK="", polV="", polQ="", polO="", stamps=False, T=8.0, xpol=" sc1", budget=6.0, verbose=False, header=""):
    NB = 32 // ksplit
    nst = [0]
    def stamp(seg):
        if stamps:
            seg.a(f"s_waitcnt lgkmcnt(0)\ns_memtime s[{sStampBase+2*nst[0]}:{sStampBase+2*nst[0]+1}]\ns_waitcnt lgkmcnt(0)"); nst[0] += 1
    pro = Seg("prologue")
    a = pro.a
    a(f"s_cmp_ge_u32 s2, {128*ksplit}\ns_cbranch_scc1 L_end")
    a("s_load_dwordx8 s[4:11], s[0:1], 0\ns_load_dwordx4 s[12:15], s[0:1], 32")
    if stamps: a("s_memrealtime s[96:97]")
    stamp(pro)
    a("v_lshrrev_b32 v1, 6, v0\nv_and_b32 v0, 63, v0")
    a(f"v_readfirstlane_b32 s{sWv}, v1")
    a(f"v_lshlrev_b32 v{vDma}, 4, v0")
    a(f"s_and_b32 s{sT0}, s2, 7\ns_lshr_b32 s{sT1}, s2, 3\ns_lshl_b32 s{sT0}, s{sT0}, 3")
    if ksplit == 2:
        a(f"s_lshr_b32 s3, s{sT1}, 2\ns_add_u32 s{sT0}, s{sT0}, s3")
        a(f"s_bfe_u32 s{sKh}, s{sT1}, 0x10001")
    else:
        a(f"s_lshr_b32 s3, s{sT1}, 1\ns_add_u32 s{sT0}, s{sT0}, s3\ns_mov_b32 s{sKh}, 0")
    a(f"s_and_b32 s{sT1}, s{sT1}, 1\ns_lshl_b32 s3, s{sT0}, 1\ns_add_u32 s{sT1}, s{sT1}, s3")
    a(f"s_lshl_b32 s{sT1}, s{sT1}, 16")
    a(f"s_lshl_b32 s{sT0}, s{sT0}, 19\ns_lshl_b32 s3, s{sKh}, 18\ns_add_u32 s{sT0}, s{sT0}, s3")
    a(f"s_mov_b32 s{sX}, {KB[3]}\ns_cmp_eq_u32 s{sWv}, 1\ns_cselect_b32 s{sX}, {VB[2]}, s{sX}")
    a(f"s_cmp_eq_u32 s{sWv}, 2\ns_cselect_b32 s{sX}, {VB[3]}, s{sX}\ns_cmp_eq_u32 s{sWv}, 3\ns_cselect_b32 s{sX}, {SPARE}, s{sX}")
    a(f"s_lshl_b32 s{sOo}, s{sWv}, 14")
    a(f"s_lshl_b32 s{sOK}, s{sWv}, 12\ns_mov_b32 s{sOV}, s{sOK}")
    a(f"s_mul_i32 s{sMK}, s{sWv}, 4160\ns_mul_i32 s{sMV}, s{sWv}, 4352\ns_add_u32 s{sMV}, s{sMV}, {VB[0]}")
    a("s_waitcnt lgkmcnt(0)")
    a(f"s_add_u32 s{sQ}, s4, s{sT1}\ns_addc_u32 s{sQ+1}, s5, 0\ns_mov_b32 s{sQ+2}, 65536\ns_mov_b32 s{sQ+3}, 0x20000")
    a(f"s_mov_b32 s3, s{sOo}")
    for g in range(4):
        for j in range(4):
            a(f"s_add_u32 m0, s{sX}, {4160*g+16*j}")
            if g == 0 and j == 0:
                a(f"s_add_u32 s{sK}, s6, s{sT0}")
            else: a("s_nop 0")
            a(f"buffer_load_dwordx4 v{vDma}, s[{sQ}:{sQ+3}], s3 offen offset:{1024*j}{polQ} lds")
            if g == 0 and j == 0:
                a(f"s_add_u32 s{sK}, s6, s{sT0}\ns_addc_u32 s{sK+1}, s7, 0\ns_mov_b32 s{sK+2}, {NB*16384}\ns_mov_b32 s{sK+3}, 0x20000")
                a(f"s_add_u32 s{sV}, s8, s{sT0}\ns_addc_u32 s{sV+1}, s9, 0\ns_mov_b32 s{sV+2}, {NB*16384}\ns_mov_b32 s{sV+3}, 0x20000")
                a(f"s_add_u32 s{sO}, s10, s{sT1}\ns_addc_u32 s{sO+1}, s11, 0\ns_mov_b32 s{sO+2}, 65536\ns_mov_b32 s{sO+3}, 0x20000")
                a(f"s_mov_b32 s{sD}, s12\ns_mov_b32 s{sD+1}, s13\ns_mov_b32 s{sD+2}, 256\ns_mov_b32 s{sD+3}, 0x20000")
                a(f"s_mov_b32 s{sW}, s14\ns_mov_b32 s{sW+1}, s15\ns_mov_b32 s{sW+2}, {4<<20}\ns_mov_b32 s{sW+3}, 0x20000")
        a("s_add_u32 s3, s3, 4096")
    def dmaK(n, j):
        return [parse(f"s_add_u32 m0, s{sMK}, {(n%2)*KS+16*j}"),
                parse(f"buffer_load_dwordx4 v{vDma}, s[{sK}:{sK+3}], s{sOK} offen offset:{1024*j}{polK} lds")]
    def dmaV(n, j):
        return [parse(f"s_add_u32 m0, s{sMV}, {(n%2)*VS+64*j}"),
                parse(f"buffer_load_dwordx4 v{vDma}, s[{sV}:{sV+3}], s{sOV} offen offset:{1024*j}{polV} lds")]
    def advK(n):
        L = [parse(f"s_add_u32 s{sOK}, s{sOK}, 16384")]
        if n % 2 == 1: L += [parse(f"s_add_u32 s{sMK}, s{sMK}, s{sDK2}"), parse(f"s_sub_u32 s{sDK2}, 0, s{sDK2}")]
        return L
    def advV(n):
        L = [parse(f"s_add_u32 s{sOV}, s{sOV}, 16384")]
        if n % 2 == 1: L += [parse(f"s_add_u32 s{sMV}, s{sMV}, s{sDV2}"), parse(f"s_sub_u32 s{sDV2}, 0, s{sDV2}")]
        return L
    def blockK(seg, n):
        for j in range(4):
            x = dmaK(n, j); seg.add(x[0]); seg.a("s_nop 0"); seg.add(x[1])
        for x in advK(n): seg.add(x)
    def blockV(seg, n):
        for j in range(4):
            x = dmaV(n, j); seg.add(x[0]); seg.a("s_nop 0"); seg.add(x[1])
        for x in advV(n): seg.add(x)
    a(f"s_mov_b32 s{sDK2}, {2*KS}\ns_mov_b32 s{sDV2}, {2*VS}\ns_mov_b32 s{sDK}, {2*KS}\ns_mov_b32 s{sDV}, {2*VS}")
    blockK(pro, 0)
    if ksplit == 2:
        a(f"s_lshl_b32 s3, s2, 2\ns_add_u32 s3, s3, s{sWv}\ns_lshl_b32 s3, s3, 10\ns_add_u32 s3, s3, {1<<20}")
        a(f"v_mov_b32 v2, 0")
        a(f"s_mov_b64 exec, 1\nbuffer_store_dword v2, v2, s[{sW}:{sW+3}], s3 offen sc0 sc1\ns_mov_b64 exec, -1")
    XS = 1 if ksplit == 2 else 0
    a(f"v_and_b32 v1, 31, v0\nv_lshrrev_b32 v2, 3, v1\nv_lshlrev_b32 v2, 2, v2\nv_and_b32 v3, 3, v0\nv_add_u32 v2, v2, v3")
    a(f"v_mul_u32_u24 v2, 1040, v2\nv_bfe_u32 v3, v0, 2, 1\nv_lshlrev_b32 v3, 9, v3\nv_add_u32 v2, v2, v3")
    a(f"v_lshrrev_b32 v4, 5, v0\nv_lshlrev_b32 v3, 4, v4\nv_add_u32 v{vKa}, v2, v3")
    a(f"v_add_u32 v5, s{sX}, v{vKa}")
    a(f"v_bfe_u32 v2, v0, 2, 2\nv_mul_u32_u24 v2, 1088, v2\nv_lshlrev_b32 v3, 9, v4\nv_add_u32 v2, v2, v3")
    a(f"v_bfe_u32 v3, v0, 4, 1\nv_lshlrev_b32 v3, 5, v3\nv_add_u32 v2, v2, v3\nv_and_b32 v3, 3, v0\nv_lshlrev_b32 v3, 3, v3\nv_add_u32 v2, v2, v3")
    a(f"v_add_u32 v{vVa}, {VB[0]}, v2")
    a(f"s_mul_i32 s3, s{sWv}, 8704")
    a(f"v_mul_u32_u24 v2, 272, v1\nv_lshlrev_b32 v3, 3, v4\nv_add3_u32 v{vEw}, v2, v3, s3")
    a(f"v_lshrrev_b32 v2, 4, v0\nv_and_b32 v3, 15, v0\nv_lshlrev_b32 v3, 4, v3\nv_mul_u32_u24 v6, 272, v2\nv_add3_u32 v{vEr}, v6, v3, s3")
    a(f"v_lshlrev_b32 v2, 10, v2\nv_add_u32 v{vOg}, v2, v3")
    a(f"v_lshlrev_b32 v{vSt}, 3, v0")
    a(f"s_mov_b32 s{sC}, {f2u(C_SCALE):#x}")
    blockK(pro, 1)
    for r in range(128): a(f"v_mov_b32 v{vO+r}, 0")
    blockV(pro, 0)
    a(f"s_waitcnt vmcnt({12+XS})")
    for t in range(16): a(f"ds_read_b128 a[{4*t}:{4*t+3}], v5 offset:{32*t}")
    blockK(pro, 2)
    a(f"s_waitcnt vmcnt(12) lgkmcnt(0)\ns_barrier")
    stamp(pro)
    if ksplit == 2:
        a(f"s_cmp_lg_u32 s{sWv}, 0\ns_cbranch_scc1 L_nonotify")
        a(f"s_getreg_b32 s3, hwreg(HW_REG_XCC_ID)\ns_and_b32 s3, s3, 15\ns_or_b32 s3, s3, 0x80\nv_mov_b32 v2, s3\nv_mov_b32 v3, 0")
        a(f"s_mov_b64 exec, 1\nbuffer_store_byte v2, v3, s[{sD}:{sD+3}], s2 offen sc0 sc1\ns_mov_b64 exec, -1")
        a("L_nonotify:")
    def kread(n, t): return parse(f"ds_read_b128 v[{vKF+4*(t%8)}:{vKF+4*(t%8)+3}], v{vKa} offset:{(n%2)*KS+32*t}")
    def vread(n, g, j):
        s, d = g//8, g%8
        r = vVF + 4*(g%8) + 2*j
        return parse(f"ds_read_b64_tr_b16 v[{r}:{r+1}], v{vVa} offset:{(n%2)*VS+(2*s+j)*4352+64*d}")
    def qk(S, t, nxt=True):
        f = vKF+4*(t%8)
        i = parse(f"v_mfma_f32_32x32x16_bf16 v[{S}:{S+15}], v[{f}:{f+3}], a[{4*t}:{4*t+3}], " + ("0" if t == 0 else f"v[{S}:{S+15}]"))
        if t % 2 == 0: i.extra = set(R("v", vKF+4*((t+1)%8), 4))
        return i
    def pv(g):
        s, d = g//8, g%8
        f = vVF+4*(g%8); o = vO+16*d
        i = parse(f"v_mfma_f32_32x32x16_bf16 v[{o}:{o+15}], v[{f}:{f+3}], v[{vP+4*s}:{vP+4*s+3}], v[{o}:{o+15}]")
        if g % 2 == 0: i.extra = set(R("v", vVF+4*((g+1)%8), 4))
        return i
    def maxops(S):
        L = [parse(f"v_max3_f32 v{vMx}, v{S}, v{S+1}, v{S+2}")]
        for k in range(6): L.append(parse(f"v_max3_f32 v{vMx}, v{vMx}, v{S+3+2*k}, v{S+4+2*k}"))
        L.append(parse(f"v_max_f32 v{vMx}, v{vMx}, v{S+15}"))
        return L
    for t in range(6): pro.add(kread(0, t))
    vq = [x for j in range(4) for x in dmaV(1, j)]
    for t in range(16):
        pro.add(qk(vS[0], t))
        if t+6 < 16: pro.add(kread(0, t+6))
        if t % 4 == 1: pro.add(vq.pop(0))
        if t % 4 == 2: pro.add(vq.pop(0))
    for x in advV(1): pro.add(x)
    a(f"v_mov_b32 v{vL}, 0")
    a(f"s_waitcnt vmcnt(8)\ns_barrier")
    stamp(pro)
    for t in range(4): pro.add(kread(1, t))
    x = dmaK(3, 0); pro.add(x[0]); a(f"s_mov_b32 s{sCnt}, {(NB-2)//2}"); pro.add(x[1])
    for x in maxops(vS[0]): pro.add(x)
    a(f"v_mov_b32 v1, v{vMx}\nv_permlane32_swap_b32 v1, v{vMx}\nv_max_f32 v{vM}, v1, v{vMx}")
    a(f"v_mul_f32 v{vNeg}, s{sC}, v{vM}\nv_add_f32 v{vThr}, {f2u(T/C_SCALE):#x}, v{vM}\nv_sub_f32 v{vNeg}, 0, v{vNeg}")

    def softmax_q(S):
        F = lambda r: parse(f"v_fma_f32 v{S+r}, v{S+r}, s{sC}, v{vNeg}")
        E = lambda r: parse(f"v_exp_f32 v{S+r}, v{S+r}")
        A = lambda r: parse(f"v_add_f32 v{vL}, v{vL}, v{S+r}")
        Cv = lambda p: parse(f"v_cvt_pk_bf16_f32 v{vP+p}, v{S+2*p}, v{S+2*p+1}")
        q = [(F(0), 0)]
        for r in range(16):
            if r+1 < 16: q.append((F(r+1), r+1))
            q.append((E(r), r))
            if r >= 1: q.append((A(r-1), r-1))
            if r >= 2 and r % 2 == 0: q.append((Cv(r//2-1), r-1))
        q.append((parse("s_nop 0"), 15)); q.append((Cv(7), 15)); q.append((A(15), 15))
        return q
    def iteration(seg, i, do_qk=True, do_dma=True, last_bar="vmcnt(8)", next_k=True, ret=None):
        par = i % 2
        Sc, Sn = vS[par], vS[1-par]
        fixed = {g: [] for g in range(-1, 32)}
        if do_dma:
            for j, g in ((1, 1), (2, 5), (3, 9)):
                x = dmaK(i+3, j); fixed[g-1].append(x[0]); fixed[g].insert(0, x[1])
            fixed[10] += advK(i+3)
            for j, g in ((0, 13), (1, 17), (2, 21), (3, 25)):
                x = dmaV(i+2, j); fixed[g-1].append(x[0]); fixed[g].insert(0, x[1])
            fixed[26] += advV(i+2)
            x = dmaK(i+4, 0); fixed[28].append(x[0]); fixed[29].insert(0, x[1])
        if do_qk:
            for t in range(4, 16): fixed[t-4].append(kread(i+1, t))
        vstart = 12 if do_qk else -1
        if i % 2 == 0 and i > 0 or (i == 0 and False): pass
        vre = [vread(i, g, j) for g in range(16) for j in range(2)]
        if do_qk:
            for g in range(16):
                fixed[12+g] += [vre[2*g], vre[2*g+1]]
        else:
            for g in range(4): fixed[-1] += [vre[2*g], vre[2*g+1]]
            for g in range(4, 16): fixed[12+g] += [vre[2*g], vre[2*g+1]]
        if par == 1 and last_bar is not None:
            fixed[28] += [parse(f"v_add_u32 v{vVa}, s{sDV}, v{vVa}"), parse(f"s_sub_u32 s{sDV}, 0, s{sDV}")]
        if last_bar is not None:
            fixed[27] += [parse(f"s_waitcnt {last_bar}"), parse("s_barrier")]
        if next_k:
            if par == 0:
                fixed[12] = [parse(f"v_add_u32 v{vKa}, s{sDK}, v{vKa}"), parse(f"s_sub_u32 s{sDK}, 0, s{sDK}")] + fixed[12]
            for t in range(4): fixed[28+t].append(kread(i+2, t))
        if do_qk:
            mx = maxops(Sn) + [parse(f"v_cmp_gt_f32 vcc, v{vMx}, v{vThr}")]
            for k, x in enumerate(mx): fixed[21+k].append(x)
        sq = softmax_q(Sc)
        gaps = list(range(0, 32)) if do_qk else [-1] + list(range(16, 32))
        out = {g: list(fixed[g]) for g in range(-1, 32)}
        for g in gaps:
            used = sum(x.cost for x in out[g])
            pre = []
            while sq:
                op, r = sq[0]
                dl = 13 if r <= 7 else 21
                must = (g >= dl) or (g == -1)
                if g == -1 and not any(rr <= 7 for _, rr in sq): break
                if used + op.cost <= budget - (1 if g % 2 == 1 else 0) or must:
                    pre.append(op); used += op.cost; sq.pop(0)
                else: break
            f = out[g]
            head = [x for x in f if x.kind == "dma"]
            tailm0 = [x for x in f if ("m0" in x.wr) or x.kind in ("wait","barrier")]
            mid = [x for x in f if x not in head and x not in tailm0]
            out[g] = head + mid + pre + tailm0
        assert not sq
        n_start = len(seg.ins)
        for x in out[-1]: seg.add(x)
        for g in range(32):
            if g < 16:
                if not do_qk: continue
                seg.add(qk(Sn, g))
            else: seg.add(pv(g-16))
            for x in out[g]: seg.add(x)
            if verbose: print(f"; it{i} gap{g}: cost {sum(x.cost for x in out[g])}")
        tx = [x.text for x in seg.ins[n_start:]]
        def pos(p): return [k for k, t in enumerate(tx) if t.startswith(p)][0]
        assert pos(f"v_cvt_pk_bf16_f32 v{vP+3},") < tx.index(pv(0).text) and pos(f"v_cvt_pk_bf16_f32 v{vP+7},") < tx.index(pv(8).text)
        if do_qk:
            seg.a(f"s_cbranch_vccnz L_rare{ret}\nL_back{ret}:")
    body = Seg("loop"); body.a("L_loop:")
    iteration(body, 0, ret=0); iteration(body, 1, ret=1)
    body.a(f"s_sub_u32 s{sCnt}, s{sCnt}, 1\ns_cmp_lg_u32 s{sCnt}, 0\ns_cbranch_scc1 L_loop")
    tail = Seg("tail")
    stamp(tail)
    if ksplit == 2:
        tail.a(f"s_xor_b32 s{sT0}, s2, 16\nv_mov_b32 v3, 0\nbuffer_load_ubyte v2, v3, s[{sD}:{sD+3}], s{sT0} offen sc0 sc1")
    iteration(tail, NB-2, do_dma=False, last_bar="vmcnt(0)", next_k=False, ret=2)
    iteration(tail, NB-1, do_qk=False, do_dma=False, last_bar=None, next_k=False)
    stamp(tail)
    e = tail.a
    e(f"v_mov_b32 v1, v{vL}\nv_permlane32_swap_b32 v1, v{vL}\nv_add_f32 v{vL}, v1, v{vL}")
    def final_store(seg, src_fn, half_s):
        for jp in range(4):
            for ap in range(4):
                r = src_fn(jp, ap)
                seg.a(f"ds_write_b64 v{vEw}, v[{r}:{r+1}] offset:{64*jp+16*ap}")
        for k in range(8):
            seg.a(f"ds_read_b128 v[{64+4*k}:{64+4*k+3}], v{vEr} offset:{1088*k}")
        for k in range(8):
            seg.a(f"buffer_store_dwordx4 v[{64+4*k}:{64+4*k+3}], v{vOg}, s[{sO}:{sO+3}], s{half_s} offen offset:{512*(k%2)}{polO}")
            if k % 2 == 1 and k < 7: seg.a(f"s_add_u32 s{half_s}, s{half_s}, 4096")
    if ksplit == 1:
        e(f"v_rcp_f32 v2, v{vL}")
        for half in range(2):
            def src(jp, ap):
                o = vO + 16*(4*half+jp) + 4*ap
                for x in range(4): e(f"v_mul_f32 v{o+x}, v2, v{o+x}")
                e(f"v_cvt_pk_bf16_f32 v{o}, v{o}, v{o+1}\nv_cvt_pk_bf16_f32 v{o+1}, v{o+2}, v{o+3}")
                return o
            e(f"s_add_u32 s{sT0}, s{sOo}, {256*half}")
            final_store(tail, src, sT0)
    else:
        e(f"v_rcp_f32 v4, v{vL}")
        e(f"s_mov_b32 s{sCnt}, 0x200000")
        e("L_rdy:")
        e(f"v_readfirstlane_b32 s3, v2\ns_cmp_lg_u32 s3, 0\ns_cbranch_scc1 L_rdyok")
        e(f"s_sub_u32 s{sCnt}, s{sCnt}, 1\ns_cbranch_scc1 L_rdyok")
        e(f"s_sleep 2\nbuffer_load_ubyte v2, v3, s[{sD}:{sD+3}], s{sT0} offen sc0 sc1\ns_waitcnt vmcnt(0)\ns_branch L_rdy")
        e("L_rdyok:")
        e(f"s_lshl_b32 s{sT0}, s{sT0}, 2\ns_add_u32 s{sT0}, s{sT0}, s{sWv}\ns_lshl_b32 s{sT0}, s{sT0}, 10\ns_add_u32 s{sT0}, s{sT0}, {1<<20}")
        e(f"s_xor_b32 s{sT1}, s{sT0}, {16*4096}")
        e(f"s_lshl_b32 s3, s{sKh}, 8\ns_add_u32 s{sX}, s{sOo}, s3\ns_xor_b32 s{sOo}, s{sX}, 256")
        e(f"v_mov_b32 v6, v{vNeg}\nv_mov_b32 v7, v{vL}")
        e(f"buffer_store_dwordx2 v[6:7], v{vSt}, s[{sW}:{sW+3}], s{sT0} offen offset:128{xpol}")
        e(f"s_cmp_eq_u32 s{sKh}, 0\ns_cbranch_scc1 L_send0")
        segs_x = []
        def send(seg, base):
            for k in range(8):
                for x in range(4):
                    o = base + 8*k + 2*x
                    seg.a(f"v_mul_f32 v{o}, v4, v{o}\nv_mul_f32 v{o+1}, v4, v{o+1}")
                for x in range(4):
                    o = base + 8*k + 2*x
                    seg.a(f"v_cvt_pk_bf16_f32 v{64+4*k+x}, v{o}, v{o+1}")
                seg.a(f"buffer_store_dwordx4 v[{64+4*k}:{64+4*k+3}], v{vOg}, s[{sO}:{sO+3}], s{sOo} offen offset:{512*(k%2)}{xpol}")
                if k % 2 == 1 and k < 7: seg.a(f"s_add_u32 s{sOo}, s{sOo}, 4096")
        sendA = Seg("send_kh1"); send(sendA, vO)
        for r in range(64): sendA.a(f"v_mov_b32 v{vO+r}, v{vO+64+r}")
        sendA.a("s_branch L_sent")
        sendB = Seg("send_kh0"); sendB.a("L_send0:"); send(sendB, vO+64)
        fin = Seg("final"); e = fin.a
        e("L_sent:")
        e("v_mov_b32 v8, 1\nv_mov_b32 v3, 0\ns_waitcnt vmcnt(0)")
        stamp(fin)
        e(f"s_mov_b64 exec, 1\nbuffer_store_dword v8, v3, s[{sW}:{sW+3}], s{sT0} offen{xpol}\ns_mov_b64 exec, -1")
        e(f"s_mov_b32 s{sCnt}, 0x200000")
        e("L_poll:")
        e(f"s_sub_u32 s{sCnt}, s{sCnt}, 1\ns_cbranch_scc1 L_pollok")
        e(f"buffer_load_dword v2, v3, s[{sW}:{sW+3}], s{sT1} offen{xpol}\ns_waitcnt vmcnt(0)\nv_readfirstlane_b32 s3, v2\ns_cmp_eq_u32 s3, 1\ns_cbranch_scc0 L_poll")
        e("L_pollok:")
        stamp(fin)
        e(f"buffer_load_dwordx2 v[6:7], v{vSt}, s[{sW}:{sW+3}], s{sT1} offen offset:128{xpol}")
        e(f"s_mov_b32 s{sOo}, s{sX}")
        for k in range(8):
            e(f"buffer_load_dwordx4 v[{96+4*k}:{96+4*k+3}], v{vOg}, s[{sO}:{sO+3}], s{sOo} offen offset:{512*(k%2)}{xpol}")
            if k % 2 == 1 and k < 7: e(f"s_add_u32 s{sOo}, s{sOo}, 4096")
        e(f"v_min_f32 v8, v6, v{vNeg}\nv_sub_f32 v9, v8, v{vNeg}\nv_sub_f32 v10, v8, v6\nv_exp_f32 v9, v9\nv_exp_f32 v10, v10")
        e(f"v_mul_f32 v10, v10, v7\nv_fma_f32 v8, v9, v{vL}, v10\nv_rcp_f32 v8, v8\nv_mul_f32 v9, v9, v8\nv_mul_f32 v10, v10, v8")
        def src(jp, ap):
            o = vO + 16*jp + 4*ap; p = 96 + 8*jp + 2*ap
            e(f"v_lshlrev_b32 v32, 16, v{p}\nv_and_b32 v33, 0xffff0000, v{p}\nv_lshlrev_b32 v34, 16, v{p+1}\nv_and_b32 v35, 0xffff0000, v{p+1}")
            for x in range(4): e(f"v_mul_f32 v{o+x}, v9, v{o+x}")
            for x in range(4): e(f"v_fmac_f32 v{o+x}, v10, v{32+x}")
            e(f"v_cvt_pk_bf16_f32 v{o}, v{o}, v{o+1}\nv_cvt_pk_bf16_f32 v{o+1}, v{o+2}, v{o+3}")
            return o
        final_store(fin, src, sX)
    endseg = Seg("end"); e = endseg.a
    if stamps:
        e("s_waitcnt vmcnt(0)")
        stamp(endseg)
        e("s_memrealtime s[98:99]\ns_waitcnt lgkmcnt(0)")
        e(f"s_lshl_b32 s3, s2, 2\ns_add_u32 s3, s3, s{sWv}\ns_lshl_b32 s3, s3, 6")
        for k in range(nst[0]): e(f"v_mov_b32 v{32+k}, s{sStampBase+2*k}")
        e("v_mov_b32 v46, s96\nv_mov_b32 v47, s98\nv_mov_b32 v3, 0\ns_mov_b64 exec, 1")
        for k in range(4): e(f"buffer_store_dwordx4 v[{32+4*k}:{35+4*k}], v3, s[{sW}:{sW+3}], s3 offen offset:{16*k}")
    e("L_end:\ns_endpgm")
    rares = []
    for ret in range(3):
        r = Seg(f"rare{ret}"); e = r.a
        e(f"L_rare{ret}:")
        e(f"v_mov_b32 v1, v{vMx}\nv_permlane32_swap_b32 v1, v{vMx}\nv_max3_f32 v1, v1, v{vMx}, v{vM}")
        e(f"v_sub_f32 v4, v{vM}, v1\nv_mul_f32 v4, s{sC}, v4\nv_exp_f32 v4, v4\nv_mov_b32 v{vM}, v1")
        e(f"v_mul_f32 v{vNeg}, s{sC}, v{vM}\nv_add_f32 v{vThr}, {f2u(T/C_SCALE):#x}, v{vM}\nv_sub_f32 v{vNeg}, 0, v{vNeg}")
        e(f"v_mul_f32 v{vL}, v4, v{vL}\ns_nop 7")
        for k in range(128): e(f"v_mul_f32 v{vO+k}, v4, v{vO+k}")
        e(f"s_nop 1\ns_branch L_back{ret}")
        rares.append(r)
    if ksplit == 1:
        order = [pro, body, tail, endseg] + rares
        traces = [[pro, body, body, body, tail, endseg]]
    else:
        order = [pro, body, tail, sendA, sendB, fin, endseg] + rares
        traces = [[pro, body, body, body, tail, sendA, fin, endseg], [pro, body, body, tail, sendB, fin, endseg]]
    fix_waits(traces, verbose)
    for s in order: merge_waits(s)
    fix_waits(traces, verbose)
    def upto(seg, lab):
        s = Seg(seg.name+"_pre"); k = [i.text for i in seg.ins].index(lab); s.ins = seg.ins[:k];
        s2 = Seg(seg.name+"_post"); s2.ins = seg.ins[k:]; return s, s2
    for ret, seg in ((0, body), (1, body), (2, tail)):
        p, q = upto(seg, f"L_back{ret}:")
        n0 = len(p.ins), len(q.ins)
        fix_waits([[pro, body, p, rares[ret], q]], verbose)
        assert (len(p.ins), len(q.ins)) == n0, "rare path needs extra waits outside"
    lds = SPARE + KS
    txt = header + f"; @launch grid=({128*ksplit},1,1) block=(256,1,1) lds={lds}\n"
    txt += f'.amdgcn_target "amdgcn-amd-amdhsa--gfx950"\n.text\n.globl {KN}\n.p2align 8\n.type {KN},@function\n{KN}:\n'
    txt += emit(order) + "\n"
    txt += f'''.section .rodata,"a"
.p2align 6
.amdhsa_kernel {KN}
  .amdhsa_next_free_vgpr 320
  .amdhsa_next_free_sgpr 102
  .amdhsa_accum_offset 256
  .amdhsa_group_segment_fixed_size 0
  .amdhsa_kernarg_size 48
  .amdhsa_user_sgpr_count 2
  .amdhsa_user_sgpr_kernarg_segment_ptr 1
  .amdhsa_system_sgpr_workgroup_id_x 1
.end_amdhsa_kernel
'''
    return txt
if __name__ == "__main__":
    kw = eval("dict(" + (sys.argv[1] if len(sys.argv) > 1 else "") + ")")
    print(gen(**kw))
```

```python
import re
def R(p, b, n=1): return [f"{p}{b+i}" for i in range(n)]
def T(p, b, n=1): return f"{p}{b}" if n == 1 else f"{p}[{b}:{b+n-1}]"
class I:
    __slots__ = ("text","kind","rd","wr","extra","src_c","cost","nopn","lg","vm","tag")
    def __init__(self, text, kind, rd=(), wr=(), extra=(), src_c=(), cost=1, nopn=0, lg=None, vm=None, tag=None):
        self.text=text; self.kind=kind; self.rd=set(rd); self.wr=set(wr); self.extra=set(extra)
        self.src_c=list(src_c); self.cost=cost; self.nopn=nopn; self.lg=lg; self.vm=vm; self.tag=tag
    def __repr__(self): return self.text
_reg = re.compile(r"\b([vas])(\d+)\b|\b([vas])\[(\d+):(\d+)\]|\b(vcc|m0|exec)\b")
def regs_of(op):
    out = []
    for m in _reg.finditer(op):
        if m.group(1): out.append(m.group(1)+m.group(2))
        elif m.group(3): out += [m.group(3)+str(i) for i in range(int(m.group(4)), int(m.group(5))+1)]
        else: out.append(m.group(6))
    return out
TRANS = ("v_exp_f32","v_log_f32","v_rcp_f32","v_rsq_f32","v_sqrt_f32")
def split_ops(s):
    ops=[]; d=0; cur=""
    for ch in s:
        if ch=="[": d+=1
        if ch=="]": d-=1
        if ch=="," and d==0: ops.append(cur.strip()); cur=""
        else: cur+=ch
    if cur.strip(): ops.append(cur.strip())
    return ops
def parse(text, **kw):
    t = text.strip()
    if t.endswith(":"): return I(t, "label", cost=0, **kw)
    mn, _, rest = t.partition(" ")
    ops = split_ops(rest)
    if mn == "s_nop": return I(t, "nop", nopn=int(rest), **kw)
    if mn == "s_waitcnt":
        lg = re.search(r"lgkmcnt\((\d+)\)", t); vm = re.search(r"vmcnt\((\d+)\)", t)
        return I(t, "wait", lg=int(lg.group(1)) if lg else None, vm=int(vm.group(1)) if vm else None, **kw)
    if mn == "s_barrier": return I(t, "barrier", **kw)
    if mn in ("s_branch","s_endpgm","s_sleep","s_setprio") : return I(t, "salu", **kw)
    if mn == "s_getpc_b64": return I(t, "salu", wr=regs_of(rest), **kw)
    if mn.startswith("s_cbranch"):
        return I(t, "branch", rd=["vcc"] if "vcc" in mn else [], **kw)
    if mn.startswith("s_load") or mn.startswith("s_mem"):
        return I(t, "smem", wr=regs_of(ops[0]), rd=regs_of(",".join(ops[1:])), **kw)
    if mn.startswith("s_cmp") or mn.startswith("s_bitcmp"): return I(t, "salu", rd=regs_of(rest), **kw)
    if mn.startswith("s_"):
        return I(t, "salu", wr=regs_of(ops[0]), rd=regs_of(",".join(ops[1:])), **kw)
    if mn.startswith("v_mfma"):
        return I(t, "mfma", wr=regs_of(ops[0]), rd=regs_of(ops[1])+regs_of(ops[2])+regs_of(ops[3]), src_c=regs_of(ops[3]), cost=2, **kw)
    if mn.startswith("v_permlane"):
        r = regs_of(ops[0])+regs_of(ops[1]); return I(t, "perm", rd=r, wr=r, **kw)
    if mn.startswith("v_readfirstlane") or mn.startswith("v_readlane"):
        return I(t, "rdlane", wr=regs_of(ops[0]), rd=regs_of(",".join(ops[1:])), **kw)
    if mn.startswith("v_"):
        base = mn.replace("_e32","").replace("_e64","").replace("_sdwa","").replace("_dpp","")
        wr = regs_of(ops[0]); rd = regs_of(",".join(ops[1:]))
        if base.startswith("v_fmac") or base.startswith("v_pk_fmac"): rd += wr
        if base.startswith("v_cndmask") and len(ops) == 3: rd.append("vcc")
        if base in ("v_add_co_u32","v_addc_co_u32","v_sub_co_u32"): wr += regs_of(ops[1]); rd = regs_of(",".join(ops[2:]))
        if base in TRANS: return I(t, "trans", rd=rd, wr=wr, cost=2, **kw)
        return I(t, "valu", rd=rd, wr=wr, **kw)
    if mn.startswith("ds_read"): return I(t, "dsr", wr=regs_of(ops[0]), rd=regs_of(ops[1]), **kw)
    if mn.startswith("ds_write"): return I(t, "dsw", rd=regs_of(rest), **kw)
    if mn.startswith("buffer_load"):
        if t.split()[-1] == "lds": return I(t, "dma", rd=regs_of(rest)+["m0"], **kw)
        return I(t, "vld", wr=regs_of(ops[0]), rd=regs_of(",".join(ops[1:])), **kw)
    if mn.startswith("buffer_store") or mn.startswith("buffer_atomic"):
        wide = "x4" in mn or "x3" in mn
        return I(t, "vst", rd=regs_of(rest), extra=regs_of(ops[0]) if wide else (), **kw)
    if mn in ("buffer_wbl2","buffer_inv"): return I(t, "vmisc", **kw)
    raise ValueError("unknown instr "+t)

VAL = ("valu","trans","perm","rdlane")
def need_states(p, c):
    n = 0
    pw = p.wr
    if p.kind in VAL:
        vw = {r for r in pw if r[0] in "va"}
        sw = {r for r in pw if r[0] == "s" or r == "vcc"}
        if c.kind == "mfma" and vw & c.rd: n = max(n, 2)
        if c.kind == "perm" and vw & c.rd: n = max(n, 2)
        if c.kind == "rdlane" and vw & c.rd: n = max(n, 1)
        if p.kind == "trans" and c.kind in ("valu","perm","rdlane") and vw & c.rd: n = max(n, 1)
        if sw and c.kind in VAL and sw & c.rd: n = max(n, 2)
        if sw and c.kind in ("vld","vst","dma") and sw & c.rd: n = max(n, 5)
        if sw and c.kind in ("salu","branch") and sw & c.rd: n = max(n, 2)
        if "exec" in pw and c.kind == "mfma": n = max(n, 4)
    if p.kind == "mfma":
        D = pw
        p4 = "16x16" in p.text
        if c.kind == "mfma":
            ab = c.rd - set(c.src_c)
            if D & ab: n = max(n, 8 if p4 else 12)
            cs = set(c.src_c)
            if cs & D and cs != D: n = max(n, 6 if p4 else 10)
            if (c.wr & D) and not (cs == D): n = max(n, 6 if p4 else 10)
        elif c.kind in VAL:
            if D & (c.rd | c.wr): n = max(n, 8 if p4 else 12)
            if set(p.src_c) & c.wr: n = max(n, 3 if p4 else 7)
        elif c.kind in ("dsr","dsw","vld","vst","dma"):
            if D & (c.rd | c.wr): n = max(n, 8 if p4 else 12)
    if p.kind == "salu" and "m0" in pw and c.kind == "dma": n = max(n, 1)
    if p.kind == "vst" and p.extra:
        if c.kind in VAL and p.extra & c.wr: n = max(n, 2)
        elif p.extra & c.wr: n = max(n, 1)
    return n
def states(i):
    if i.kind == "label": return 0
    if i.kind == "nop": return i.nopn + 1
    return 1

class Seg:
    def __init__(self, name): self.name=name; self.ins=[]
    def a(self, text, **kw):
        for l in text.split("\n"):
            l = l.split(";")[0].strip()
            if l: self.ins.append(parse(l, **kw))
    def add(self, i): self.ins.append(i)

class Restart(Exception): pass
HOIST = True
def fix_waits(traces, verbose=False):
    while True:
        try: return _fix_waits(traces, verbose)
        except Restart: pass
def _fix_waits(traces, verbose=False):
    changed = True; rounds = 0
    while changed:
        changed = False; rounds += 1
        for tr in traces:
            lds = []
            vms = []
            hist = []
            for seg in tr:
                k = 0
                while k < len(seg.ins):
                    c = seg.ins[k]
                    if c.kind == "wait":
                        if c.lg is not None: lds = lds[len(lds)-c.lg:] if c.lg < len(lds) else lds; lds = lds if c.lg else []
                        if c.vm is not None: vms = vms[len(vms)-c.vm:] if c.vm < len(vms) else vms; vms = vms if c.vm else []
                    touched = c.rd | c.wr | (c.extra if c.kind == "mfma" else set())
                    needl = None
                    for j in range(len(lds)-1, -1, -1):
                        if lds[j] & touched: needl = len(lds)-1-j; break
                    needv = None
                    for j in range(len(vms)-1, -1, -1):
                        if vms[j] & touched: needv = len(vms)-1-j; break
                    if needl is not None and needv is None and c.kind == "mfma" and HOIST:
                        p = k-1; m = 0; ok = False
                        while p >= 0:
                            y = seg.ins[p]
                            if y.kind == "mfma": ok = True; break
                            if y.kind in ("label", "branch", "barrier", "smem"): break
                            if y.kind in ("dsr", "dsw"): m += 1
                            p -= 1
                        if ok and needl - m >= 0:
                            seg.ins.insert(p+1, parse(f"s_waitcnt lgkmcnt({min(needl-m,15)})", tag="auto"))
                            raise Restart()
                    if needl is not None or needv is not None:
                        s = []
                        if needv is not None: s.append(f"vmcnt({min(needv,63)})")
                        if needl is not None: s.append(f"lgkmcnt({min(needl,15)})")
                        seg.ins.insert(k, parse("s_waitcnt " + " ".join(s), tag="auto")); changed = True
                        continue
                    dist = 0; worst = 0
                    for p in reversed(hist):
                        if dist >= 20: break
                        nd = need_states(p, c)
                        if nd > dist: worst = max(worst, nd - dist)
                        dist += states(p)
                    if worst > 0:
                        if verbose: print(f"; hazard nop {worst} in {seg.name} before {c.text}")
                        seg.ins.insert(k, parse(f"s_nop {worst-1}", tag="auto")); changed = True
                        continue
                    if c.kind == "dsr": lds.append(set(c.wr))
                    elif c.kind == "dsw": lds.append(set())
                    elif c.kind == "smem": lds.append(set(c.wr))
                    elif c.kind == "vld": vms.append(set(c.wr))
                    elif c.kind in ("vst","dma","vmisc"): vms.append(set())
                    hist.append(c)
                    if len(hist) > 40: hist = hist[-30:]
                    k += 1
        assert rounds < 50
def merge_waits(seg):
    out = []
    for i in seg.ins:
        if out and i.kind == "wait" and out[-1].kind == "wait":
            p = out[-1]
            lg = min([x for x in (p.lg, i.lg) if x is not None], default=None)
            vm = min([x for x in (p.vm, i.vm) if x is not None], default=None)
            s = []
            if vm is not None: s.append(f"vmcnt({vm})")
            if lg is not None: s.append(f"lgkmcnt({lg})")
            out[-1] = parse("s_waitcnt " + " ".join(s))
        else: out.append(i)
    seg.ins = out
def emit(segs):
    L = []
    for s in segs:
        L.append(f"; ---- {s.name}")
        for i in s.ins: L.append(i.text if i.kind == "label" else "  " + i.text)
    return "\n".join(L)
```

```python
import sys, math, struct
from asmlib import *
KN = "standalone__gqa_softmax__near_ridge_kernel"
def f2u(x): return struct.unpack("<I", struct.pack("<f", x))[0]
RS = 1056; KS = VS = 16*RS
KB = [i*KS for i in range(4)]
VB = [4*KS + i*VS for i in range(4)]
SPARE = 8*KS
C_SCALE = math.log2(math.e)/16.0
NB = 16
vOg, vEw, vEr, vSt = 12, 13, 14, 15
vKa, vVa, vDma, vDmaV, vMx = 16, 17, 18, 19, 20
vL = 22
vLb = 8
vPf = 80
vCn = 24
vP = [32, 40]; vS = [48, 64]; vTmp = 96; vO = 128
aQ, aKF, aVF = 0, 64, 128
sQ, sK, sV, sO, sW = 16, 20, 24, 28, 32
sWv, sOK, sOV, sMK, sMV, sCnt, sC, sDK, sDV, sXcc, sKh, sT0, sT1, sOo, sX = 40,41,42,43,44,45,46,47,48,49,50,51,52,53,54
sDK2, sDV2, sPw, sMb, sCh = 55, 56, 57, 58, 59
XBASE = 1 << 20

def gen(polK="", polV="", polQ="", polO="", stamps=False, T=8.0, verbose=False, header="", padto=0, exp=(),
        fast=True, pxor=16, bg=53, dmagaps=(57,1,9,17,25,33,41,49), npre=5, wgrp=2, smend=60, late=1.6, xld=' sc1', xpoll=' sc1', fine=False):
    nst = [0]
    def stamp(seg):
        if stamps:
            seg.a(f"s_waitcnt lgkmcnt(0)\ns_memtime s[60:61]\ns_memrealtime s[62:63]\ns_waitcnt lgkmcnt(0)\nv_writelane_b32 v10, s60, {nst[0]}\nv_writelane_b32 v11, s62, {nst[0]}"); nst[0] += 1
    nf = [32]
    def fstamp(seg, vm=None):
        if stamps and fine:
            if vm is not None: seg.a(f"s_waitcnt vmcnt({vm})")
            sv = nst[0]; nst[0] = nf[0]; stamp(seg); nf[0] += 1; nst[0] = sv
    pro = Seg("prologue"); a = pro.a
    a(f"s_cmp_ge_u32 s2, 256\ns_cbranch_scc1 L_end")
    a("s_load_dwordx8 s[4:11], s[0:1], 0\ns_load_dwordx2 s[14:15], s[0:1], 40")
    if padto: a("s_memrealtime s[96:97]")
    stamp(pro)
    a("v_lshrrev_b32 v1, 6, v0\nv_and_b32 v0, 63, v0")
    a(f"v_readfirstlane_b32 s{sWv}, v1")
    a(f"v_lshlrev_b32 v{vDma}, 4, v0")
    if pxor == 16:
        a(f"s_mov_b32 s{sX}, s2")
    else:
        a(f"s_and_b32 s{sX}, s2, 0xee\ns_bfe_u32 s3, s2, 0x10004\ns_or_b32 s{sX}, s{sX}, s3\ns_and_b32 s3, s2, 1\ns_lshl_b32 s3, s3, 4\ns_or_b32 s{sX}, s{sX}, s3")
    a(f"s_and_b32 s{sT0}, s{sX}, 7\ns_lshr_b32 s{sT1}, s{sX}, 3\ns_lshl_b32 s{sT0}, s{sT0}, 3")
    a(f"s_lshr_b32 s3, s{sT1}, 2\ns_add_u32 s{sT0}, s{sT0}, s3")
    a(f"s_bfe_u32 s{sKh}, s{sT1}, 0x10001")
    a(f"s_and_b32 s{sT1}, s{sT1}, 1\ns_lshl_b32 s3, s{sT0}, 1\ns_add_u32 s{sT1}, s{sT1}, s3")
    a(f"s_lshl_b32 s{sT1}, s{sT1}, 16")
    a(f"s_lshl_b32 s{sT0}, s{sT0}, 19\ns_lshl_b32 s3, s{sKh}, 18\ns_add_u32 s{sT0}, s{sT0}, s3")
    a(f"s_mov_b32 s{sX}, {KB[3]}\ns_cmp_eq_u32 s{sWv}, 1\ns_cselect_b32 s{sX}, {VB[2]}, s{sX}")
    a(f"s_cmp_eq_u32 s{sWv}, 2\ns_cselect_b32 s{sX}, {VB[3]}, s{sX}\ns_cmp_eq_u32 s{sWv}, 3\ns_cselect_b32 s{sX}, {SPARE}, s{sX}")
    a(f"s_lshl_b32 s{sOo}, s{sWv}, 14")
    a(f"s_lshl_b32 s{sOK}, s{sWv}, 12\ns_mov_b32 s{sOV}, s{sOK}")
    a(f"s_mul_i32 s{sMK}, s{sWv}, {4*RS}\ns_add_u32 s{sMV}, s{sMK}, {VB[0]}")
    a(f"s_mov_b32 s{sQ+2}, 65536\ns_mov_b32 s{sQ+3}, 0x20000\ns_mov_b32 s3, s{sOo}\ns_mov_b32 m0, s{sX}")
    a(f"s_lshl_b32 s{sMb}, s2, 2\ns_add_u32 s{sMb}, s{sMb}, s{sWv}\ns_lshl_b32 s{sMb}, s{sMb}, 11\ns_add_u32 s{sMb}, s{sMb}, {XBASE}")
    a(f"s_mov_b32 s{sW+2}, {3*XBASE}\ns_mov_b32 s{sW+3}, 0x20000\nv_lshlrev_b32 v3, 7, v0")
    a("s_waitcnt lgkmcnt(0)")
    fstamp(pro)
    a(f"s_add_u32 s{sQ}, s4, s{sT1}\ns_addc_u32 s{sQ+1}, s5, 0")
    fill = [f"s_mov_b32 s{sW}, s14\ns_mov_b32 s{sW+1}, s15\ns_mov_b64 exec, 3\nbuffer_load_dword v8, v3, s[{sW}:{sW+3}], s{sMb} offen sc1\ns_mov_b64 exec, -1",
            f"s_add_u32 s{sK}, s6, s{sT0}\ns_addc_u32 s{sK+1}, s7, 0", f"s_mov_b32 s{sK+2}, {NB*16384}", f"s_mov_b32 s{sK+3}, 0x20000",
            f"s_add_u32 s{sV}, s8, s{sT0}\ns_addc_u32 s{sV+1}, s9, 0", f"s_mov_b32 s{sV+2}, {NB*16384}", f"s_mov_b32 s{sV+3}, 0x20000",
            f"s_add_u32 s{sO}, s10, s{sT1}\ns_addc_u32 s{sO+1}, s11, 0", f"s_mov_b32 s{sO+2}, 65536", f"s_mov_b32 s{sO+3}, 0x20000",
            f"s_mov_b32 s{sDK2}, {2*KS}", f"s_mov_b32 s{sDV2}, {2*VS}", f"s_mov_b32 s{sDK}, {2*KS}", f"s_mov_b32 s{sDV}, {2*VS}",
            f"s_xor_b32 s{sPw}, s{sMb}, {pxor*8192}"]
    for g in range(4):
        for j in range(4):
            if g or j:
                a(f"s_add_u32 m0, s{sX}, {4*RS*g+32*j}"); a(fill.pop(0))
            a(f"buffer_load_dwordx4 v{vDma}, s[{sQ}:{sQ+3}], s3 offen offset:{1024*j}{polQ} lds")
        a("s_add_u32 s3, s3, 4096")
    assert not fill
    def dmaK(n, j): return [parse(f"s_add_u32 m0, s{sMK}, {(n%2)*KS+32*j}"),
                            parse(f"buffer_load_dwordx4 v{vDma}, s[{sK}:{sK+3}], s{sOK} offen offset:{1024*j}{polK} lds")]
    def dmaV(n, j): return [parse(f"s_add_u32 m0, s{sMV}, {(n%2)*VS+32*j}"),
                            parse(f"buffer_load_dwordx4 v{vDmaV}, s[{sV}:{sV+3}], s{sOV} offen offset:{1024*j}{polV} lds")]
    def advK(n):
        L = [parse(f"s_add_u32 s{sOK}, s{sOK}, 16384")]
        if n % 2 == 1: L += [parse(f"s_add_u32 s{sMK}, s{sMK}, s{sDK2}"), parse(f"s_sub_u32 s{sDK2}, 0, s{sDK2}")]
        return L
    def advV(n):
        L = [parse(f"s_add_u32 s{sOV}, s{sOV}, 16384")]
        if n % 2 == 1: L += [parse(f"s_add_u32 s{sMV}, s{sMV}, s{sDV2}"), parse(f"s_sub_u32 s{sDV2}, 0, s{sDV2}")]
        return L
    def block(seg, f, adv, n):
        for j in range(4):
            x = f(n, j); seg.add(x[0]); seg.a("s_nop 0"); seg.add(x[1])
        for x in adv(n): seg.add(x)
    block(pro, dmaK, advK, 0)
    a(f"s_lshl_b32 s3, s{sKh}, 8\nv_xor_b32 v{vDmaV}, s3, v{vDma}")
    a(f"v_and_b32 v1, 15, v0\nv_lshrrev_b32 v4, 4, v0")
    a(f"v_mul_u32_u24 v2, {RS}, v1\nv_lshl_add_u32 v{vKa}, v4, 4, v2")
    a(f"v_add_u32 v5, s{sX}, v{vKa}")
    a(f"v_lshrrev_b32 v2, 2, v0\nv_mul_u32_u24 v2, {RS}, v2\nv_and_b32 v3, 3, v0\nv_lshl_add_u32 v2, v3, 3, v2\nv_add_u32 v{vVa}, {VB[0]}, v2")
    a(f"s_mul_i32 s3, s{sWv}, 8704")
    a(f"v_mul_u32_u24 v2, 272, v1\nv_lshlrev_b32 v3, 3, v4\nv_add3_u32 v{vEw}, v2, v3, s3")
    a(f"v_lshlrev_b32 v3, 4, v1\nv_mul_u32_u24 v6, 272, v4\nv_add3_u32 v{vEr}, v6, v3, s3")
    a(f"v_lshl_add_u32 v{vOg}, v4, 10, v3")
    a(f"s_mov_b32 s{sC}, {f2u(C_SCALE):#x}")
    a(f"s_getreg_b32 s{sXcc}, hwreg(HW_REG_XCC_ID)\ns_and_b32 s{sXcc}, s{sXcc}, 15")
    fstamp(pro)
    a(f"s_waitcnt vmcnt(19)")
    fstamp(pro)
    a(f"v_readlane_b32 s{sT0}, v8, 0\nv_readlane_b32 s{sT1}, v8, 1\nv_mov_b32 v3, 0")
    a(f"s_and_b32 s{sT1}, s{sT1}, 0xffffff00\ns_add_u32 s{sT1}, s{sT1}, 0x100\ns_or_b32 s{sT1}, s{sT1}, s{sXcc}")
    a(f"s_cmp_eq_u32 s{sT1}, s{sT0}\ns_cselect_b32 s3, 0x100, 0\ns_add_u32 s{sCh}, s{sT1}, s3\nv_mov_b32 v8, s{sCh}")
    a(f"s_mov_b64 exec, 1\nbuffer_store_dword v8, v3, s[{sW}:{sW+3}], s{sMb} offen offset:128 sc1\ns_mov_b64 exec, -1")
    block(pro, dmaK, advK, 1)
    for r in range(128): a(f"v_mov_b32 v{vO+r}, 0")
    a(f"v_mov_b32 v{vL}, 0\nv_mov_b32 v{vL+1}, 0\nv_mov_b32 v2, s{sC}")
    block(pro, dmaK, advK, 2)
    fstamp(pro)
    a(f"s_waitcnt vmcnt(13)")
    fstamp(pro)
    vQr = 64
    for f in range(16): a(f"ds_read_b128 v[{vQr+4*f}:{vQr+4*f+3}], v5 offset:{64*(f//2)+512*(f%2)}")
    def presc(r):
        x = 32 + 2*(r % 8)
        return [parse(t) for t in (f"v_lshlrev_b32 v{x}, 16, v{vQr+r}", f"v_and_b32 v{x+1}, 0xffff0000, v{vQr+r}",
                f"v_pk_mul_f32 v[{x}:{x+1}], v[{x}:{x+1}], v[2:3] op_sel_hi:[1,0]",
                f"v_cvt_pk_bf16_f32 v{x}, v{x}, v{x+1}", f"v_accvgpr_write_b32 a{aQ+r}, v{x}")]
    pq = [x for r in range(64) for x in presc(r)]
    per = npre*20//4
    for j in range(4):
        x = dmaV(0, j)
        pro.add(x[0])
        for _ in range(per): pro.add(pq.pop(0))
        pro.add(x[1])
    for x in advV(0): pro.add(x)
    fstamp(pro); fstamp(pro)
    a(f"s_waitcnt vmcnt(13) lgkmcnt(0)\ns_barrier")
    stamp(pro)
    def kread(n, j): return parse(f"ds_read_b128 a[{aKF+4*j}:{aKF+4*j+3}], v{vKa} offset:{(n%2)*KS+64*(j//2)+512*(j%2)}")
    def vread(n, dt, kt):
        r = aVF + 4*dt + 2*kt
        return parse(f"ds_read_b64_tr_b16 a[{r}:{r+1}], v{vVa} offset:{(n%2)*VS+512*kt+32*dt}")
    def qk(n, g, first0=False):
        j, qt = g//2, g % 2; t, kt = j//2, j % 2
        S = vS[n%2] + 8*qt + 4*kt; f = aKF+4*j; qf = aQ + 4*(2*t+qt)
        c = f"v[{S}:{S+3}]" if t else ("0" if first0 else f"v[{vCn+4*qt}:{vCn+4*qt+3}]")
        i = parse(f"v_mfma_f32_16x16x32_bf16 v[{S}:{S+3}], a[{f}:{f+3}], a[{qf}:{qf+3}], {c}")
        if g % (2*wgrp) == 0: i.extra = set(R("a", f, 4*wgrp))
        return i
    def pv(n, dt, qt, grp=None):
        f = aVF+4*dt; o = vO+8*dt+4*qt; p = vP[n%2]+4*qt
        i = parse(f"v_mfma_f32_16x16x32_bf16 v[{o}:{o+3}], a[{f}:{f+3}], v[{p}:{p+3}], v[{o}:{o+3}]")
        for d2 in (grp or ()): i.extra |= set(R("a", aVF+4*d2, 4))
        return i
    def pvlist(n, dts):
        L = []
        for k, dt in enumerate(dts):
            L.append(pv(n, dt, 0, dts[k:k+wgrp] if k % wgrp == 0 else None)); L.append(pv(n, dt, 1))
        return L
    def checkops():
        return [parse(f"v_max_f32 v{vMx}, v{vLb}, v{vLb+1}"), parse(f"v_cmp_lt_f32 vcc, {f2u(2.0**T):#x}, v{vMx}")]
    def mergeops(): return [parse(f"v_add_f32 v{vL+qt}, v{vL+qt}, v{vLb+qt}") for qt in range(2)]
    def softmax_q(n, merge=True):
        S = vS[n%2]; P = vP[n%2]
        E = lambda r: parse(f"v_exp_f32 v{vPf+r}, v{S+r}")
        def A(r):
            if r % 8 == 1: return parse(f"v_add_f32 v{vLb+r//8}, v{vPf+r-1}, v{vPf+r}")
            return parse(f"v_add_f32 v{vLb+r//8}, v{vLb+r//8}, v{vPf+r}")
        Cv = lambda p: parse(f"v_cvt_pk_bf16_f32 v{P+p}, v{vPf+2*p}, v{vPf+2*p+1}")
        q = []
        mg = mergeops() if merge else []
        for r in range(16):
            q.append(E(r))
            if r % 8 == 0:
                if mg: q.append(mg.pop(0))
            else: q.append(A(r))
            if r % 2 == 1: q.append(Cv(r//2))
        return q
    def spread(ops, g0, g1):
        tot = sum(x.cost for x in ops); c = 0; out = []
        for x in ops:
            out.append((x, g0 + (g1-g0)*c/max(tot-ops[-1].cost, 1), g0)); c += x.cost
        return out
    def post(x): x.tag = "post"; return x
    def schedule(seg, mf, streams, sca, label="", cap=2, lastempty=False):
        n = len(mf); streams = [list(s) for s in streams if s]
        nm = n
        if lastempty: n -= 1
        for g in range(nm):
            seg.add(mf[g])
            s_ = sca.get(g, [])
            pre = [x for x in s_ if x.tag != "post"]; pst = [x for x in s_ if x.tag == "post"]
            wsh = 1 if (g+1 < nm and mf[g+1].extra) else 0
            free = cap - max(0, len(pre)+wsh-1) - len([x for x in pst if x.kind != "label"])
            mem = []; val = []
            while True:
                cands = [s for s in streams if s and s[0][2] <= g]
                if val: cands = [s for s in cands if s[0][0].kind not in ("dsr","dsw","dma","vst","vld")] + [s for s in cands if s[0][0].kind in ("dsr","dsw","dma","vst","vld")]
                cands.sort(key=lambda s: s[0][1])
                pick = None
                for s in cands:
                    x, tg, _ = s[0]
                    if g < n-1 and tg > g + 1.0 and (mem or val): continue
                    if g < n-1 and tg > g + 2.0: continue
                    if val and val[-1].kind == "trans" and (x.rd & val[-1].wr) and g < n-1: continue
                    if x.cost <= free or tg <= g - late or g == n-1: pick = s; break
                if pick is None: break
                x = pick.pop(0)[0]; free -= x.cost
                (mem if x.kind in ("dsr","dsw","dma","vld") else val).append(x)
            row = pre + mem + val + pst
            for x in row: seg.add(x)
            if verbose: print(f"; {label} gap{g}: " + "".join({"dsr":"t","dma":"d","trans":"e","valu":"v","salu":"s","wait":"w","barrier":"B","vst":"S"}.get(x.kind, "?") for x in row))
        assert not any(streams)
    def addf(d, g, *xs): d.setdefault(g, []).extend(xs)
    if exp:
        for k in range(16): a(f"ds_read_b128 a[{aVF+4*k}:{aVF+4*k+3}], v{vKa} offset:{32*k}")
        for k in range(4): a(f"ds_read_b128 v[{vP[0]+4*k}:{vP[0]+4*k+3}], v{vKa} offset:{32*k+256}")
        a("s_waitcnt lgkmcnt(0)")
    for j in range(6): pro.add(kread(0, j))
    rd = [(kread(0, j), 2*(j-6), 0) for j in range(6, 16)]
    pl = []; sca = {}; dm = []
    for f in range(npre, 16):
        need = 4*(f//2) + (f % 2) - 2
        g0 = max(0, min(need, (f-npre)*28//(16-npre)))
        for x in pq[:20]: pl.append((x, g0 - 5, g0))
        pq = pq[20:]
    for k, g in enumerate((6, 13, 21, 29)):
        x = dmaK(3, k); addf(sca, g-1, x[0]); dm.append((x[1], g-3, g))
    addf(sca, 30, *advK(3))
    schedule(pro, [qk(0, g, True) for g in range(32)], [rd, pl, dm], sca, label="qk0")
    a(f"s_waitcnt vmcnt(12)\ns_barrier")
    stamp(pro)
    for j in range(6): pro.add(kread(1, j))
    a(f"s_mov_b32 s{sCnt}, {(NB-4)//2}")
    def rowmax(seg, S, zero):
        for qt, d, t in ((0, 1, 6), (1, 4, 7)):
            b = S + 8*qt
            seg.a(f"v_max3_f32 v{d}, v{b}, v{b+1}, v{b+2}\nv_max3_f32 v{d}, v{d}, v{b+3}, v{b+4}\nv_max3_f32 v{d}, v{d}, v{b+5}, v{b+6}")
            seg.a(f"v_max3_f32 v{d}, v{d}, v{b+7}, 0" if zero else f"v_max_f32 v{d}, v{d}, v{b+7}")
        seg.a("v_mov_b32 v6, v1\nv_mov_b32 v7, v4\nv_permlane16_swap_b32 v6, v1\nv_permlane16_swap_b32 v7, v4\nv_max_f32 v1, v1, v6\nv_max_f32 v4, v4, v7")
        seg.a("v_mov_b32 v6, v1\nv_mov_b32 v7, v4\nv_permlane32_swap_b32 v6, v1\nv_permlane32_swap_b32 v7, v4\nv_max_f32 v1, v1, v6\nv_max_f32 v4, v4, v7")
    rowmax(pro, vS[0], False)
    for qt, d in ((0, 1), (1, 4)):
        for r in range(4): a(f"v_sub_f32 v{vCn+4*qt+r}, 0, v{d}")
        for r in range(8): a(f"v_sub_f32 v{vS[0]+8*qt+r}, v{vS[0]+8*qt+r}, v{d}")
    NV0 = 3
    NK0 = 6
    def nosh(g):
        while g % (2*wgrp) == 2*wgrp-1: g += 1
        return g
    def iteration(seg, i, ret, do_pv=True, loopend=False, pref=False):
        sca = {}; dm = []
        mf = [qk(i+2, g) for g in range(32)]
        tK = [parse(f"v_add_u32 v{vKa}, s{sDK}, v{vKa}"), parse(f"s_sub_u32 s{sDK}, 0, s{sDK}")]
        tV = [parse(f"v_add_u32 v{vVa}, s{sDV}, v{vVa}"), parse(f"s_sub_u32 s{sDV}, 0, s{sDV}")]
        def place(g, xs):
            for x in xs:
                g = nosh(g)
                while g in sca: g = nosh(g+1)
                addf(sca, g, x); g += 1
            return g
        if do_pv:
            mf += pvlist(i, list(range(16)))
            mf[63].extra = set(R("a", aKF, 4*wgrp))
            mf[0].extra = set()
            dp = dmagaps
            addf(sca, bg, parse("s_waitcnt vmcnt(12)"), parse("s_barrier"))
            if loopend:
                addf(sca, 60, parse(f"s_sub_u32 s{sCnt}, s{sCnt}, 1")); addf(sca, 61, parse(f"s_cmp_lg_u32 s{sCnt}, 0"))
            last = i == NB-3
            for k in range(1, 8):
                if pref and k >= 4:
                    kk = 4*(i % 2) + k - 4
                    y = parse(f"buffer_load_dwordx4 a[192:195], v{vOg}, s[{sO}:{sO+3}], s{sT0} offen offset:{512*(kk%2)}"); y.wr = set()
                    dm.append((y, dp[k]-3, dp[k]))
                    if kk % 2 == 1: addf(sca, dp[k]+1, parse(f"s_add_u32 s{sT0}, s{sT0}, 4096"))
                    continue
                x = dmaV(i+2, k) if k < 4 else dmaK(i+5, k-4)
                addf(sca, dp[k]-1, x[0]); dm.append((x[1], dp[k]-3, dp[k]))
            if last:
                y = parse(f"buffer_load_dwordx4 a[192:195], v{vDma}, s[{sW}:{sW+3}], s{sMb} offen offset:256"); y.wr = set()
                dm.append((y, dp[0]-3, dp[0]))
            else:
                x = dmaV(i+3, 0); addf(sca, dp[0]-1, x[0]); dm.append((x[1], dp[0]-3, dp[0]))
            if not last: assert place(dp[3]+1, advV(i+2)) < dp[0]
            if not pref: assert place(dp[7]+1, advK(i+5)) <= 60
            r1 = [kread(i+2, j) for j in range(NK0, 16)] + [vread(i, dt, kt) for dt in range(16) for kt in range(2)]
            nxt = [vread(i+1, dt, kt) for dt in range(NV0) for kt in range(2)] if last else [kread(i+3, j) for j in range(NK0)]
            if last: mf[63].extra = set(R("a", aVF, 4*wgrp))
            rd = spread(r1, 0, bg-1) + [(y, t, bg+(2 if last else 1)) for (y, t, _) in spread(nxt, bg+1, 61)]
            tg = []
            if i % 2 == 1:
                tg = [(tK[0], 16, 16), (tV[0], bg-1, bg+1)]; place(21, [tK[1]]); assert place(bg+4, [tV[1]]) <= 60
            n0 = len(seg.ins)
            schedule(seg, mf, [dm, rd, tg, spread(softmax_q(i+1) + checkops(), 0, smend)], sca, label=f"it{i}", lastempty=True)
            tx = [x.text for x in seg.ins[n0:]]
            if i % 2 == 1:
                assert tx.index(kread(i+2, 15).text) < tx.index(tK[0].text) < tx.index(tK[1].text) < tx.index(nxt[0].text)
                assert tx.index(vread(i, 15, 1).text) < tx.index(tV[0].text) < tx.index(tV[1].text)
                if last: assert tx.index(tV[0].text) < tx.index(nxt[0].text)
            assert tx.index("s_barrier") < len(tx) - 1 - tx[::-1].index(nxt[0].text)
            seg.a(f"s_cbranch_vccnz L_rare{ret}\nL_back{ret}:")
        else:
            for k, g in enumerate((1, 5, 9, 13, 17, 21, 25, 29)):
                x = dmaV(i+2, k) if k < 4 else dmaK(i+5, k-4)
                addf(sca, g-1, x[0]); dm.append((x[1], g-3, g))
            place(14, advV(i+2)); place(30, advK(i+5))
            rd = spread([kread(i+2, j) for j in range(NK0, 16)], 0, 16)
            schedule(seg, mf, [dm, rd, spread(softmax_q(i+1, merge=False), 0, 31)], sca, label=f"it{i}")
            seg.add(tK[0]); seg.add(tK[1])
            seg.a("s_waitcnt vmcnt(12)\ns_barrier")
            for j in range(NK0): seg.add(kread(i+3, j))
            x = dmaV(i+3, 0); seg.add(x[0]); seg.a(f"buffer_load_dword v2, v3, s[{sW}:{sW+3}], s{sPw} offen offset:128 sc1"); seg.add(x[1])
            seg.a(f"s_waitcnt lgkmcnt({NK0-wgrp})")
    iteration(pro, -1, None, do_pv=False)
    stamp(pro)
    body = Seg("loop"); body.a("L_loop:")
    iteration(body, 0, 0); iteration(body, 1, 1, loopend=True)
    if stamps == 2:
        body.a(f"s_waitcnt lgkmcnt(0)\ns_memtime s[60:61]\ns_memrealtime s[62:63]\ns_sub_u32 m0, 21, s{sCnt}\ns_cmp_lg_u32 s{sCnt}, 0\ns_waitcnt lgkmcnt(0)\nv_writelane_b32 v10, s60, m0\nv_writelane_b32 v11, s62, m0")
    body.a(f"s_cbranch_scc1 L_loop")
    tail = Seg("tail"); e = tail.a
    e(f"s_lshl_b32 s{sX}, s{sKh}, 8\ns_add_u32 s{sX}, s{sOo}, s{sX}\ns_xor_b32 s{sOo}, s{sX}, 256\ns_mov_b32 s{sT0}, s{sX}")
    iteration(tail, NB-4, 3, pref=True); iteration(tail, NB-3, 4, pref=True)
    stamp(tail)
    i = NB-2
    sq = softmax_q(i+1)
    o14 = list(range(16))
    o15 = [8,9,10,11,12,13,14,15,0,1,2,3,4,5,6,7]
    rd = spread([vread(i, dt, kt) for dt in range(NV0, 16) for kt in range(2)], 0, 21)
    bt = 25
    n15 = 3
    rd += [(vread(i+1, dt, kt), max(bt+1, 2*dt+2) , max(bt+1, 2*dt+2)) for dt in o15[:n15] for kt in range(2)]
    sca = {bt: [parse("s_waitcnt vmcnt(5)"), parse("s_barrier")]}
    schedule(tail, pvlist(i, o14), [rd, spread(sq + checkops(), 0, 29)], sca, label="it14", cap=3, lastempty=True)
    e("s_cbranch_vccnz L_rare2\nL_back2:")
    fstamp(tail)
    rem = [vread(i+1, dt, kt) for dt in o15[n15:] for kt in range(2)]
    for x in rem[:4]: tail.add(x)
    rem = rem[4:]
    for x in mergeops(): tail.add(x)
    e(f"v_mov_b32 v6, v{vL}\nv_mov_b32 v7, v{vL+1}\nv_readfirstlane_b32 s{sT1}, v2\nv_permlane16_swap_b32 v6, v{vL}\nv_permlane16_swap_b32 v7, v{vL+1}")
    e(f"v_add_f32 v{vL}, v6, v{vL}\nv_add_f32 v{vL+1}, v7, v{vL+1}\nv_mov_b32 v6, v{vL}\nv_mov_b32 v7, v{vL+1}\nv_mov_b32 v4, v{vCn}\nv_mov_b32 v5, v{vCn+4}")
    e(f"v_permlane32_swap_b32 v6, v{vL}\nv_permlane32_swap_b32 v7, v{vL+1}\nv_add_f32 v6, v6, v{vL}\nv_add_f32 v7, v7, v{vL+1}")
    e(f"s_and_b32 s3, s{sT1}, 0xff")
    sends = []
    if fast: e(f"s_cmp_eq_u32 s3, s{sXcc}\ns_cbranch_scc1 L_sendfast")
    for var in (("slow", " sc1"), ("fast", "")) if fast else (("slow", " sc1"),):
        sg = Seg("send_"+var[0]); sends.append(sg)
        if var[0] == "fast": sg.a("L_sendfast:")
        rd = spread([parse(x.text) for x in rem], 0, 16)
        q = [(parse(f"buffer_store_dwordx4 v[4:7], v{vDma}, s[{sW}:{sW+3}], s{sPw} offen offset:256{var[1]}"), 0, 0)]
        for k in range(8):
            o = vO + 8*(8+k); g0 = 2*k + 1 + 3
            for x in range(4): q.append((parse(f"v_cvt_pk_bf16_f32 v{vTmp+4*k+x}, v{o+2*x}, v{o+2*x+1}"), g0-2, g0))
            q.append((parse(f"buffer_store_dwordx4 v[{vTmp+4*k}:{vTmp+4*k+3}], v{vOg}, s[{sO}:{sO+3}], s{sOo} offen offset:{512*(k%2)}{var[1]}"), g0-2, g0))
            if k % 2 == 1 and k < 7: q.append((parse(f"s_add_u32 s{sOo}, s{sOo}, 4096"), g0-2, g0))
        schedule(sg, pvlist(i+1, o15), [rd, q], {}, label="it15", cap=3)
        if var[0] == "slow": nf0 = nf[0]
        nf[0] = nf0
        fstamp(sg)
        sg.a("s_waitcnt vmcnt(0)")
        if var[0] == "slow": st0 = nst[0]
        nst[0] = st0
        stamp(sg)
        sg.a(f"s_mov_b64 exec, 1\nbuffer_store_dword v2, v3, s[{sW}:{sW+3}], s{sPw} offen{var[1]}")
        if var[0] == "slow" and fast: sg.a("s_branch L_sent")
    fin = Seg("final"); e = fin.a
    e("L_sent:")
    e(f"s_mov_b32 s{sCnt}, 0x200000")
    e("L_poll:")
    e(f"s_sub_u32 s{sCnt}, s{sCnt}, 1\ns_cbranch_scc1 L_pollok")
    e(f"buffer_load_dword v8, v3, s[{sW}:{sW+3}], s{sMb} offen{xpoll}\ns_waitcnt vmcnt(0)\nv_readfirstlane_b32 s3, v8\ns_cmp_lg_u32 s3, s{sCh}\ns_cbranch_scc1 L_poll")
    e("L_pollok:")
    e("s_mov_b64 exec, -1")
    stamp(fin)
    e(f"s_mov_b32 s{sOo}, s{sX}")
    def xloads(pol):
        e(f"buffer_load_dwordx4 v[32:35], v{vDma}, s[{sW}:{sW+3}], s{sMb} offen offset:256{pol}")
        for k in range(8):
            e(f"buffer_load_dwordx4 v[{vTmp+4*k}:{vTmp+4*k+3}], v{vOg}, s[{sO}:{sO+3}], s{sOo} offen offset:{512*(k%2)}{pol}")
            if k % 2 == 1 and k < 7: e(f"s_add_u32 s{sOo}, s{sOo}, 4096")
    xloads(xld)
    e(f"buffer_load_dword v2, v3, s[{sW}:{sW+3}], s{sPw} offen offset:128 sc1")
    fstamp(fin, 9); fstamp(fin, 0)
    for qt in range(2):
        fo, fx, t = 36+2*qt, 40+2*qt, 44+qt
        e(f"v_min_f32 v{t}, v{4+qt}, v{32+qt}\nv_sub_f32 v{fo}, v{t}, v{4+qt}\nv_sub_f32 v{fx}, v{t}, v{32+qt}\nv_exp_f32 v{fo}, v{fo}\nv_exp_f32 v{fx}, v{fx}")
    for qt in range(2):
        fo, fx, t = 36+2*qt, 40+2*qt, 44+qt
        e(f"v_mul_f32 v{t}, v{fo}, v{6+qt}\nv_fma_f32 v{t}, v{fx}, v{34+qt}, v{t}\nv_rcp_f32 v{t}, v{t}")
    for qt in range(2):
        fo, fx, t = 36+2*qt, 40+2*qt, 44+qt
        e(f"v_mul_f32 v{fo}, v{fo}, v{t}\nv_mul_f32 v{fx}, v{fx}, v{t}")
    for r in range(0, 64, 2):
        fo = 36 + 2*((r//4) % 2)
        e(f"v_pk_mul_f32 v[{vO+r}:{vO+r+1}], v[{vO+r}:{vO+r+1}], v[{fo}:{fo+1}] op_sel_hi:[1,0]")
    for dt in range(8):
        for qt in range(2):
            o = vO + 8*dt + 4*qt; p = vTmp + 4*dt + 2*qt; u = 48 + 4*((2*dt+qt) % 4); fx = 40+2*qt
            e(f"v_lshlrev_b32 v{u}, 16, v{p}\nv_and_b32 v{u+1}, 0xffff0000, v{p}\nv_lshlrev_b32 v{u+2}, 16, v{p+1}\nv_and_b32 v{u+3}, 0xffff0000, v{p+1}")
            e(f"v_pk_fma_f32 v[{o}:{o+1}], v[{u}:{u+1}], v[{fx}:{fx+1}], v[{o}:{o+1}] op_sel_hi:[1,0,1]")
            e(f"v_pk_fma_f32 v[{o+2}:{o+3}], v[{u+2}:{u+3}], v[{fx}:{fx+1}], v[{o+2}:{o+3}] op_sel_hi:[1,0,1]")
            e(f"v_cvt_pk_bf16_f32 v{o}, v{o}, v{o+1}\nv_cvt_pk_bf16_f32 v{o+1}, v{o+2}, v{o+3}")
            e(f"ds_write_b64 v{vEw}, v[{o}:{o+1}] offset:{4352*qt+32*dt}")
    fstamp(fin)
    korder = [0, 4, 1, 5, 2, 6, 3, 7]
    for n_, k in enumerate(korder): e(f"ds_read_b128 v[{192+4*n_}:{192+4*n_+3}], v{vEr} offset:{1088*k}")
    e(f"v_readfirstlane_b32 s3, v2\ns_cmp_eq_u32 s3, s{sT1}\ns_cbranch_scc1 L_tagok")
    e(f"buffer_wbl2 sc1\ns_waitcnt vmcnt(0)\ns_mov_b64 exec, 1\nbuffer_store_dword v2, v3, s[{sW}:{sW+3}], s{sPw} offen sc1\ns_mov_b64 exec, -1")
    e("L_tagok:")
    for k in range(8):
        e(f"buffer_store_dwordx4 v[{192+4*k}:{192+4*k+3}], v{vOg}, s[{sO}:{sO+3}], s{sX} offen offset:{512*(k%2)}{polO}")
        if k % 2 == 1 and k < 7: e(f"s_add_u32 s{sX}, s{sX}, 4096")
    fstamp(fin)
    endseg = Seg("end"); e = endseg.a
    if stamps:
        e("s_waitcnt vmcnt(0)")
        stamp(endseg)
        e(f"s_lshl_b32 s3, s2, 2\ns_add_u32 s3, s3, s{sWv}\ns_lshl_b32 s3, s3, 9\nv_lshlrev_b32 v{vSt}, 3, v0")
        e(f"buffer_store_dwordx2 v[10:11], v{vSt}, s[{sW}:{sW+3}], s3 offen")
    if padto:
        e(f"s_waitcnt vmcnt(0)\nL_pad:\ns_memrealtime s[98:99]\ns_waitcnt lgkmcnt(0)\ns_sub_u32 s3, s98, s96\ns_cmp_lt_u32 s3, {int(padto*100)}\ns_cbranch_scc1 L_pad")
    e("L_end:\ns_endpgm")
    rares = []
    for ret, i in ((0, 0), (1, 1), (2, NB-2), (3, NB-4), (4, NB-3)):
        r = Seg(f"rare{ret}"); e = r.a
        S = vS[(i+1)%2]; S2 = vS[i%2]
        e(f"L_rare{ret}:")
        rowmax(r, S, True)
        e("v_exp_f32 v6, -v1\nv_exp_f32 v7, -v4")
        for qt, d, al in ((0, 1, 6), (1, 4, 7)):
            for k in range(4): e(f"v_sub_f32 v{vCn+4*qt+k}, v{vCn+4*qt+k}, v{d}")
            for k in range(8): e(f"v_sub_f32 v{S+8*qt+k}, v{S+8*qt+k}, v{d}")
            if ret != 2:
                for k in range(8): e(f"v_sub_f32 v{S2+8*qt+k}, v{S2+8*qt+k}, v{d}")
            e(f"v_mul_f32 v{vL+qt}, v{al}, v{vL+qt}")
        for x in softmax_q(i+1, merge=False): r.add(x)
        for k in range(128): e(f"v_mul_f32 v{vO+k}, v{6+(k//4)%2}, v{vO+k}")
        e(f"s_nop 1\ns_branch L_back{ret}")
        rares.append(r)
    if exp:
        nb = []
        for x in body.ins:
            if "nolds" in exp and x.kind == "dsr": continue
            if "novalu" in exp and x.kind in ("valu","trans") and not x.text.startswith("v_add_u32") and not x.text.startswith("v_cmp") and not x.text.startswith("v_writelane"): continue
            if "nodma" in exp and x.kind == "dma": continue
            if "nomfma" in exp and x.kind == "mfma": continue
            if "nobar" in exp and (x.kind == "barrier" or (x.kind == "wait" and x.vm is not None)): continue
            if "nomax" in exp and x.text.startswith("v_max"): continue
            nb.append(x)
        body.ins = nb
    order = [pro, body, tail] + sends + [fin, endseg] + rares
    traces = [[pro, body, body, body, tail, s, fin, endseg] for s in sends]
    fix_waits(traces, verbose)
    for s in order: merge_waits(s)
    fix_waits(traces, verbose)
    def upto(seg, lab):
        s = Seg(seg.name+"_pre"); k = [i.text for i in seg.ins].index(lab); s.ins = seg.ins[:k]
        s2 = Seg(seg.name+"_post"); s2.ins = seg.ins[k:]; return s, s2
    for ret, seg, prev, nxt in ((0, body, [pro, body], [body]), (1, body, [pro, body], [body]), (1, body, [pro, body], [tail]), (2, tail, [pro, body], [sends[0]]), (3, tail, [pro, body], []), (4, tail, [pro, body], [])):
        p, q = upto(seg, f"L_back{ret}:")
        n0 = [len(x.ins) for x in [p, q] + nxt]
        fix_waits([prev + [p, rares[ret], q] + nxt], verbose)
        assert exp or [len(x.ins) for x in [p, q] + nxt] == n0, "rare path needs extra waits outside"
    lds = SPARE + KS
    txt = header + f"; @launch grid=(256,1,1) block=(256,1,1) lds={lds}\n"
    txt += f'.amdgcn_target "amdgcn-amd-amdhsa--gfx950"\n.text\n.globl {KN}\n.p2align 8\n.type {KN},@function\n{KN}:\n'
    txt += emit(order) + "\n"
    txt += f'''.section .rodata,"a"
.p2align 6
.amdhsa_kernel {KN}
  .amdhsa_next_free_vgpr 452
  .amdhsa_next_free_sgpr 102
  .amdhsa_accum_offset 256
  .amdhsa_group_segment_fixed_size 0
  .amdhsa_kernarg_size 48
  .amdhsa_user_sgpr_count 2
  .amdhsa_user_sgpr_kernarg_segment_ptr 1
  .amdhsa_system_sgpr_workgroup_id_x 1
.end_amdhsa_kernel
'''
    return txt
if __name__ == "__main__":
    kw = eval("dict(" + (sys.argv[1] if len(sys.argv) > 1 else "") + ")")
    print(gen(**kw))
```

```python
import sys, gen4 as gen_attn
hdr = open('header.txt').read()
out = sys.argv[1]
kw = eval("dict(" + (sys.argv[2] if len(sys.argv) > 2 else "") + ")")
open(out, "w").write(gen_attn.gen(header=hdr, **kw))
```

```python
import sys, math, struct
from asmlib import *
KN = "standalone__gqa_softmax__near_ridge_kernel"
def f2u(x): return struct.unpack("<I", struct.pack("<f", x))[0]
RS = 1056; KS = VS = 16*RS
KB = [i*KS for i in range(4)]
VB = [4*KS + i*VS for i in range(4)]
SPARE = 8*KS
C_SCALE = math.log2(math.e)/16.0
NB = 16
vOg, vEw, vEr, vSt = 12, 13, 14, 15
vKa, vVa, vDma, vDmaV, vMx = 16, 17, 18, 19, 20
vL = 22
vLb = 8
vPf = 80
vCn = 24
vP = [32, 40]; vS = [48, 64]; vTmp = 96; vO = 128
aQ, aKF, aVF = 0, 64, 128
sQ, sK, sV, sO, sW = 16, 20, 24, 28, 32
sWv, sOK, sOV, sMK, sMV, sCnt, sC, sDK, sDV, sXcc, sKh, sT0, sT1, sOo, sX = 40,41,42,43,44,45,46,47,48,49,50,51,52,53,54
sDK2, sDV2, sPw, sMb, sCh = 55, 56, 57, 58, 59
XBASE = 1 << 20

def gen(polK="", polV="", polQ="", polO="", stamps=False, T=8.0, verbose=False, header="", padto=0, exp=(),
        fast=True, pxor=16, bg=53, dmagaps=(57,1,9,17,25,33,41,49), npre=5, wgrp=2, smend=60, late=1.6, xld=' sc1', xpoll=' sc1', fine=False, xpad=None, xstag=0):
    nst = [0]
    def stamp(seg):
        if stamps:
            seg.a(f"s_waitcnt lgkmcnt(0)\ns_memtime s[60:61]\ns_memrealtime s[62:63]\ns_waitcnt lgkmcnt(0)\nv_writelane_b32 v10, s60, {nst[0]}\nv_writelane_b32 v11, s62, {nst[0]}"); nst[0] += 1
    nf = [32]
    def fstamp(seg, vm=None):
        if stamps and fine:
            if vm is not None: seg.a(f"s_waitcnt vmcnt({vm})")
            sv = nst[0]; nst[0] = nf[0]; stamp(seg); nf[0] += 1; nst[0] = sv
    pro = Seg("prologue"); a = pro.a
    a(f"s_cmp_ge_u32 s2, 256\ns_cbranch_scc1 L_end")
    a("s_load_dwordx8 s[4:11], s[0:1], 0\ns_load_dwordx2 s[14:15], s[0:1], 40")
    if padto: a("s_memrealtime s[96:97]")
    stamp(pro)
    if xstag:
        a(f"s_bitcmp1_b32 s2, 5\ns_cbranch_scc0 L_nostag\ns_sleep {xstag}\nL_nostag:")
    a("v_lshrrev_b32 v1, 6, v0\nv_and_b32 v0, 63, v0")
    a(f"v_readfirstlane_b32 s{sWv}, v1")
    a(f"v_lshlrev_b32 v{vDma}, 4, v0")
    if pxor == 16:
        a(f"s_mov_b32 s{sX}, s2")
    else:
        a(f"s_and_b32 s{sX}, s2, 0xee\ns_bfe_u32 s3, s2, 0x10004\ns_or_b32 s{sX}, s{sX}, s3\ns_and_b32 s3, s2, 1\ns_lshl_b32 s3, s3, 4\ns_or_b32 s{sX}, s{sX}, s3")
    a(f"s_and_b32 s{sT0}, s{sX}, 7\ns_lshr_b32 s{sT1}, s{sX}, 3\ns_lshl_b32 s{sT0}, s{sT0}, 3")
    a(f"s_lshr_b32 s3, s{sT1}, 2\ns_add_u32 s{sT0}, s{sT0}, s3")
    a(f"s_bfe_u32 s{sKh}, s{sT1}, 0x10001")
    a(f"s_and_b32 s{sT1}, s{sT1}, 1\ns_lshl_b32 s3, s{sT0}, 1\ns_add_u32 s{sT1}, s{sT1}, s3")
    a(f"s_lshl_b32 s{sT1}, s{sT1}, 16")
    a(f"s_lshl_b32 s{sT0}, s{sT0}, 19\ns_lshl_b32 s3, s{sKh}, 18\ns_add_u32 s{sT0}, s{sT0}, s3")
    a(f"s_mov_b32 s{sX}, {KB[3]}\ns_cmp_eq_u32 s{sWv}, 1\ns_cselect_b32 s{sX}, {VB[2]}, s{sX}")
    a(f"s_cmp_eq_u32 s{sWv}, 2\ns_cselect_b32 s{sX}, {VB[3]}, s{sX}\ns_cmp_eq_u32 s{sWv}, 3\ns_cselect_b32 s{sX}, {SPARE}, s{sX}")
    a(f"s_lshl_b32 s{sOo}, s{sWv}, 14")
    a(f"s_lshl_b32 s{sOK}, s{sWv}, 12\ns_mov_b32 s{sOV}, s{sOK}")
    a(f"s_mul_i32 s{sMK}, s{sWv}, {4*RS}\ns_add_u32 s{sMV}, s{sMK}, {VB[0]}")
    a(f"s_mov_b32 s{sQ+2}, 65536\ns_mov_b32 s{sQ+3}, 0x20000\ns_mov_b32 s3, s{sOo}\ns_mov_b32 m0, s{sX}")
    a(f"s_lshl_b32 s{sMb}, s2, 2\ns_add_u32 s{sMb}, s{sMb}, s{sWv}\ns_lshl_b32 s{sMb}, s{sMb}, 11\ns_add_u32 s{sMb}, s{sMb}, {XBASE}")
    a(f"s_mov_b32 s{sW+2}, {3*XBASE}\ns_mov_b32 s{sW+3}, 0x20000\nv_lshlrev_b32 v3, 7, v0")
    a("s_waitcnt lgkmcnt(0)")
    fstamp(pro)
    a(f"s_add_u32 s{sQ}, s4, s{sT1}\ns_addc_u32 s{sQ+1}, s5, 0")
    fill = [f"s_mov_b32 s{sW}, s14\ns_mov_b32 s{sW+1}, s15\ns_mov_b64 exec, 3\nbuffer_load_dword v8, v3, s[{sW}:{sW+3}], s{sMb} offen sc1\ns_mov_b64 exec, -1",
            f"s_add_u32 s{sK}, s6, s{sT0}\ns_addc_u32 s{sK+1}, s7, 0", f"s_mov_b32 s{sK+2}, {NB*16384}", f"s_mov_b32 s{sK+3}, 0x20000",
            f"s_add_u32 s{sV}, s8, s{sT0}\ns_addc_u32 s{sV+1}, s9, 0", f"s_mov_b32 s{sV+2}, {NB*16384}", f"s_mov_b32 s{sV+3}, 0x20000",
            f"s_add_u32 s{sO}, s10, s{sT1}\ns_addc_u32 s{sO+1}, s11, 0", f"s_mov_b32 s{sO+2}, 65536", f"s_mov_b32 s{sO+3}, 0x20000",
            f"s_mov_b32 s{sDK2}, {2*KS}", f"s_mov_b32 s{sDV2}, {2*VS}", f"s_mov_b32 s{sDK}, {2*KS}", f"s_mov_b32 s{sDV}, {2*VS}",
            f"s_xor_b32 s{sPw}, s{sMb}, {pxor*8192}"]
    for g in range(4):
        for j in range(4):
            if g or j:
                a(f"s_add_u32 m0, s{sX}, {4*RS*g+32*j}"); a(fill.pop(0))
            a(f"buffer_load_dwordx4 v{vDma}, s[{sQ}:{sQ+3}], s3 offen offset:{1024*j}{polQ} lds")
        a("s_add_u32 s3, s3, 4096")
    assert not fill
    def dmaK(n, j): return [parse(f"s_add_u32 m0, s{sMK}, {(n%2)*KS+32*j}"),
                            parse(f"buffer_load_dwordx4 v{vDma}, s[{sK}:{sK+3}], s{sOK} offen offset:{1024*j}{polK} lds")]
    def dmaV(n, j): return [parse(f"s_add_u32 m0, s{sMV}, {(n%2)*VS+32*j}"),
                            parse(f"buffer_load_dwordx4 v{vDmaV}, s[{sV}:{sV+3}], s{sOV} offen offset:{1024*j}{polV} lds")]
    def advK(n):
        L = [parse(f"s_add_u32 s{sOK}, s{sOK}, 16384")]
        if n % 2 == 1: L += [parse(f"s_add_u32 s{sMK}, s{sMK}, s{sDK2}"), parse(f"s_sub_u32 s{sDK2}, 0, s{sDK2}")]
        return L
    def advV(n):
        L = [parse(f"s_add_u32 s{sOV}, s{sOV}, 16384")]
        if n % 2 == 1: L += [parse(f"s_add_u32 s{sMV}, s{sMV}, s{sDV2}"), parse(f"s_sub_u32 s{sDV2}, 0, s{sDV2}")]
        return L
    def block(seg, f, adv, n):
        for j in range(4):
            x = f(n, j); seg.add(x[0]); seg.a("s_nop 0"); seg.add(x[1])
        for x in adv(n): seg.add(x)
    block(pro, dmaK, advK, 0)
    a(f"s_lshl_b32 s3, s{sKh}, 8\nv_xor_b32 v{vDmaV}, s3, v{vDma}")
    a(f"v_and_b32 v1, 15, v0\nv_lshrrev_b32 v4, 4, v0")
    a(f"v_mul_u32_u24 v2, {RS}, v1\nv_lshl_add_u32 v{vKa}, v4, 4, v2")
    a(f"v_add_u32 v5, s{sX}, v{vKa}")
    a(f"v_lshrrev_b32 v2, 2, v0\nv_mul_u32_u24 v2, {RS}, v2\nv_and_b32 v3, 3, v0\nv_lshl_add_u32 v2, v3, 3, v2\nv_add_u32 v{vVa}, {VB[0]}, v2")
    a(f"s_mul_i32 s3, s{sWv}, 8704")
    a(f"v_mul_u32_u24 v2, 272, v1\nv_lshlrev_b32 v3, 3, v4\nv_add3_u32 v{vEw}, v2, v3, s3")
    a(f"v_lshlrev_b32 v3, 4, v1\nv_mul_u32_u24 v6, 272, v4\nv_add3_u32 v{vEr}, v6, v3, s3")
    a(f"v_lshl_add_u32 v{vOg}, v4, 10, v3")
    a(f"s_mov_b32 s{sC}, {f2u(C_SCALE):#x}")
    a(f"s_getreg_b32 s{sXcc}, hwreg(HW_REG_XCC_ID)\ns_and_b32 s{sXcc}, s{sXcc}, 15")
    fstamp(pro)
    a(f"s_waitcnt vmcnt(19)")
    fstamp(pro)
    a(f"v_readlane_b32 s{sT0}, v8, 0\nv_readlane_b32 s{sT1}, v8, 1\nv_mov_b32 v3, 0")
    a(f"s_and_b32 s{sT1}, s{sT1}, 0xffffff00\ns_add_u32 s{sT1}, s{sT1}, 0x100\ns_or_b32 s{sT1}, s{sT1}, s{sXcc}")
    a(f"s_cmp_eq_u32 s{sT1}, s{sT0}\ns_cselect_b32 s3, 0x100, 0\ns_add_u32 s{sCh}, s{sT1}, s3\nv_mov_b32 v8, s{sCh}")
    a(f"s_mov_b64 exec, 1\nbuffer_store_dword v8, v3, s[{sW}:{sW+3}], s{sMb} offen offset:128 sc1\ns_mov_b64 exec, -1")
    block(pro, dmaK, advK, 1)
    for r in range(128): a(f"v_mov_b32 v{vO+r}, 0")
    a(f"v_mov_b32 v{vL}, 0\nv_mov_b32 v{vL+1}, 0\nv_mov_b32 v2, s{sC}")
    block(pro, dmaK, advK, 2)
    fstamp(pro)
    a(f"s_waitcnt vmcnt(13)")
    fstamp(pro)
    vQr = 64
    for f in range(16): a(f"ds_read_b128 v[{vQr+4*f}:{vQr+4*f+3}], v5 offset:{64*(f//2)+512*(f%2)}")
    def presc(r):
        x = 32 + 2*(r % 8)
        return [parse(t) for t in (f"v_lshlrev_b32 v{x}, 16, v{vQr+r}", f"v_and_b32 v{x+1}, 0xffff0000, v{vQr+r}",
                f"v_pk_mul_f32 v[{x}:{x+1}], v[{x}:{x+1}], v[2:3] op_sel_hi:[1,0]",
                f"v_cvt_pk_bf16_f32 v{x}, v{x}, v{x+1}", f"v_accvgpr_write_b32 a{aQ+r}, v{x}")]
    pq = [x for r in range(64) for x in presc(r)]
    per = npre*20//4
    for j in range(4):
        x = dmaV(0, j)
        pro.add(x[0])
        for _ in range(per): pro.add(pq.pop(0))
        pro.add(x[1])
    for x in advV(0): pro.add(x)
    fstamp(pro); fstamp(pro)
    a(f"s_waitcnt vmcnt(13) lgkmcnt(0)\ns_barrier")
    stamp(pro)
    def kread(n, j): return parse(f"ds_read_b128 a[{aKF+4*j}:{aKF+4*j+3}], v{vKa} offset:{(n%2)*KS+64*(j//2)+512*(j%2)}")
    def vread(n, dt, kt):
        r = aVF + 4*dt + 2*kt
        return parse(f"ds_read_b64_tr_b16 a[{r}:{r+1}], v{vVa} offset:{(n%2)*VS+512*kt+32*dt}")
    def qk(n, g, first0=False):
        j, qt = g//2, g % 2; t, kt = j//2, j % 2
        S = vS[n%2] + 8*qt + 4*kt; f = aKF+4*j; qf = aQ + 4*(2*t+qt)
        c = f"v[{S}:{S+3}]" if t else ("0" if first0 else f"v[{vCn+4*qt}:{vCn+4*qt+3}]")
        i = parse(f"v_mfma_f32_16x16x32_bf16 v[{S}:{S+3}], a[{f}:{f+3}], a[{qf}:{qf+3}], {c}")
        if g % (2*wgrp) == 0: i.extra = set(R("a", f, 4*wgrp))
        return i
    def pv(n, dt, qt, grp=None):
        f = aVF+4*dt; o = vO+8*dt+4*qt; p = vP[n%2]+4*qt
        i = parse(f"v_mfma_f32_16x16x32_bf16 v[{o}:{o+3}], a[{f}:{f+3}], v[{p}:{p+3}], v[{o}:{o+3}]")
        for d2 in (grp or ()): i.extra |= set(R("a", aVF+4*d2, 4))
        return i
    def pvlist(n, dts):
        L = []
        for k, dt in enumerate(dts):
            L.append(pv(n, dt, 0, dts[k:k+wgrp] if k % wgrp == 0 else None)); L.append(pv(n, dt, 1))
        return L
    def checkops():
        return [parse(f"v_max_f32 v{vMx}, v{vLb}, v{vLb+1}"), parse(f"v_cmp_lt_f32 vcc, {f2u(2.0**T):#x}, v{vMx}")]
    def mergeops(): return [parse(f"v_add_f32 v{vL+qt}, v{vL+qt}, v{vLb+qt}") for qt in range(2)]
    def softmax_q(n, merge=True):
        S = vS[n%2]; P = vP[n%2]
        E = lambda r: parse(f"v_exp_f32 v{vPf+r}, v{S+r}")
        def A(r):
            if r % 8 == 1: return parse(f"v_add_f32 v{vLb+r//8}, v{vPf+r-1}, v{vPf+r}")
            return parse(f"v_add_f32 v{vLb+r//8}, v{vLb+r//8}, v{vPf+r}")
        Cv = lambda p: parse(f"v_cvt_pk_bf16_f32 v{P+p}, v{vPf+2*p}, v{vPf+2*p+1}")
        q = []
        mg = mergeops() if merge else []
        for r in range(16):
            q.append(E(r))
            if r % 8 == 0:
                if mg: q.append(mg.pop(0))
            else: q.append(A(r))
            if r % 2 == 1: q.append(Cv(r//2))
        return q
    def spread(ops, g0, g1):
        tot = sum(x.cost for x in ops); c = 0; out = []
        for x in ops:
            out.append((x, g0 + (g1-g0)*c/max(tot-ops[-1].cost, 1), g0)); c += x.cost
        return out
    def post(x): x.tag = "post"; return x
    def schedule(seg, mf, streams, sca, label="", cap=2, lastempty=False):
        n = len(mf); streams = [list(s) for s in streams if s]
        nm = n
        if lastempty: n -= 1
        for g in range(nm):
            seg.add(mf[g])
            s_ = sca.get(g, [])
            pre = [x for x in s_ if x.tag != "post"]; pst = [x for x in s_ if x.tag == "post"]
            wsh = 1 if (g+1 < nm and mf[g+1].extra) else 0
            free = cap - max(0, len(pre)+wsh-1) - len([x for x in pst if x.kind != "label"])
            mem = []; val = []
            while True:
                cands = [s for s in streams if s and s[0][2] <= g]
                if val: cands = [s for s in cands if s[0][0].kind not in ("dsr","dsw","dma","vst","vld")] + [s for s in cands if s[0][0].kind in ("dsr","dsw","dma","vst","vld")]
                cands.sort(key=lambda s: s[0][1])
                pick = None
                for s in cands:
                    x, tg, _ = s[0]
                    if g < n-1 and tg > g + 1.0 and (mem or val): continue
                    if g < n-1 and tg > g + 2.0: continue
                    if val and val[-1].kind == "trans" and (x.rd & val[-1].wr) and g < n-1: continue
                    if x.cost <= free or tg <= g - late or g == n-1: pick = s; break
                if pick is None: break
                x = pick.pop(0)[0]; free -= x.cost
                (mem if x.kind in ("dsr","dsw","dma","vld") else val).append(x)
            row = pre + mem + val + pst
            for x in row: seg.add(x)
            if verbose: print(f"; {label} gap{g}: " + "".join({"dsr":"t","dma":"d","trans":"e","valu":"v","salu":"s","wait":"w","barrier":"B","vst":"S"}.get(x.kind, "?") for x in row))
        assert not any(streams)
    def addf(d, g, *xs): d.setdefault(g, []).extend(xs)
    if exp:
        for k in range(16): a(f"ds_read_b128 a[{aVF+4*k}:{aVF+4*k+3}], v{vKa} offset:{32*k}")
        for k in range(4): a(f"ds_read_b128 v[{vP[0]+4*k}:{vP[0]+4*k+3}], v{vKa} offset:{32*k+256}")
        a("s_waitcnt lgkmcnt(0)")
    for j in range(6): pro.add(kread(0, j))
    rd = [(kread(0, j), 2*(j-6), 0) for j in range(6, 16)]
    pl = []; sca = {}; dm = []
    for f in range(npre, 16):
        need = 4*(f//2) + (f % 2) - 2
        g0 = max(0, min(need, (f-npre)*28//(16-npre)))
        for x in pq[:20]: pl.append((x, g0 - 5, g0))
        pq = pq[20:]
    for k, g in enumerate((6, 13, 21, 29)):
        x = dmaK(3, k); addf(sca, g-1, x[0]); dm.append((x[1], g-3, g))
    addf(sca, 30, *advK(3))
    schedule(pro, [qk(0, g, True) for g in range(32)], [rd, pl, dm], sca, label="qk0")
    a(f"s_waitcnt vmcnt(12)\ns_barrier")
    stamp(pro)
    for j in range(6): pro.add(kread(1, j))
    a(f"s_mov_b32 s{sCnt}, {(NB-4)//2}")
    def rowmax(seg, S, zero):
        for qt, d, t in ((0, 1, 6), (1, 4, 7)):
            b = S + 8*qt
            seg.a(f"v_max3_f32 v{d}, v{b}, v{b+1}, v{b+2}\nv_max3_f32 v{d}, v{d}, v{b+3}, v{b+4}\nv_max3_f32 v{d}, v{d}, v{b+5}, v{b+6}")
            seg.a(f"v_max3_f32 v{d}, v{d}, v{b+7}, 0" if zero else f"v_max_f32 v{d}, v{d}, v{b+7}")
        seg.a("v_mov_b32 v6, v1\nv_mov_b32 v7, v4\nv_permlane16_swap_b32 v6, v1\nv_permlane16_swap_b32 v7, v4\nv_max_f32 v1, v1, v6\nv_max_f32 v4, v4, v7")
        seg.a("v_mov_b32 v6, v1\nv_mov_b32 v7, v4\nv_permlane32_swap_b32 v6, v1\nv_permlane32_swap_b32 v7, v4\nv_max_f32 v1, v1, v6\nv_max_f32 v4, v4, v7")
    rowmax(pro, vS[0], False)
    for qt, d in ((0, 1), (1, 4)):
        for r in range(4): a(f"v_sub_f32 v{vCn+4*qt+r}, 0, v{d}")
        for r in range(8): a(f"v_sub_f32 v{vS[0]+8*qt+r}, v{vS[0]+8*qt+r}, v{d}")
    NV0 = 3
    NK0 = 6
    def nosh(g):
        while g % (2*wgrp) == 2*wgrp-1: g += 1
        return g
    def iteration(seg, i, ret, do_pv=True, loopend=False, pref=False):
        sca = {}; dm = []
        mf = [qk(i+2, g) for g in range(32)]
        tK = [parse(f"v_add_u32 v{vKa}, s{sDK}, v{vKa}"), parse(f"s_sub_u32 s{sDK}, 0, s{sDK}")]
        tV = [parse(f"v_add_u32 v{vVa}, s{sDV}, v{vVa}"), parse(f"s_sub_u32 s{sDV}, 0, s{sDV}")]
        def place(g, xs):
            for x in xs:
                g = nosh(g)
                while g in sca: g = nosh(g+1)
                addf(sca, g, x); g += 1
            return g
        if do_pv:
            mf += pvlist(i, list(range(16)))
            mf[63].extra = set(R("a", aKF, 4*wgrp))
            mf[0].extra = set()
            dp = dmagaps
            addf(sca, bg, parse("s_waitcnt vmcnt(12)"), parse("s_barrier"))
            if loopend:
                addf(sca, 60, parse(f"s_sub_u32 s{sCnt}, s{sCnt}, 1")); addf(sca, 61, parse(f"s_cmp_lg_u32 s{sCnt}, 0"))
            last = i == NB-3
            for k in range(1, 8):
                if pref and k >= 4:
                    kk = 4*(i % 2) + k - 4
                    y = parse(f"buffer_load_dwordx4 a[192:195], v{vOg}, s[{sO}:{sO+3}], s{sT0} offen offset:{512*(kk%2)}"); y.wr = set()
                    dm.append((y, dp[k]-3, dp[k]))
                    if kk % 2 == 1: addf(sca, dp[k]+1, parse(f"s_add_u32 s{sT0}, s{sT0}, 4096"))
                    continue
                x = dmaV(i+2, k) if k < 4 else dmaK(i+5, k-4)
                addf(sca, dp[k]-1, x[0]); dm.append((x[1], dp[k]-3, dp[k]))
            if last:
                y = parse(f"buffer_load_dwordx4 a[192:195], v{vDma}, s[{sW}:{sW+3}], s{sMb} offen offset:256"); y.wr = set()
                dm.append((y, dp[0]-3, dp[0]))
            else:
                x = dmaV(i+3, 0); addf(sca, dp[0]-1, x[0]); dm.append((x[1], dp[0]-3, dp[0]))
            if not last: assert place(dp[3]+1, advV(i+2)) < dp[0]
            if not pref: assert place(dp[7]+1, advK(i+5)) <= 60
            r1 = [kread(i+2, j) for j in range(NK0, 16)] + [vread(i, dt, kt) for dt in range(16) for kt in range(2)]
            nxt = [vread(i+1, dt, kt) for dt in range(NV0) for kt in range(2)] if last else [kread(i+3, j) for j in range(NK0)]
            if last: mf[63].extra = set(R("a", aVF, 4*wgrp))
            rd = spread(r1, 0, bg-1) + [(y, t, bg+(2 if last else 1)) for (y, t, _) in spread(nxt, bg+1, 61)]
            tg = []
            if i % 2 == 1:
                tg = [(tK[0], 16, 16), (tV[0], bg-1, bg+1)]; place(21, [tK[1]]); assert place(bg+4, [tV[1]]) <= 60
            n0 = len(seg.ins)
            schedule(seg, mf, [dm, rd, tg, spread(softmax_q(i+1) + checkops(), 0, smend)], sca, label=f"it{i}", lastempty=True)
            tx = [x.text for x in seg.ins[n0:]]
            if i % 2 == 1:
                assert tx.index(kread(i+2, 15).text) < tx.index(tK[0].text) < tx.index(tK[1].text) < tx.index(nxt[0].text)
                assert tx.index(vread(i, 15, 1).text) < tx.index(tV[0].text) < tx.index(tV[1].text)
                if last: assert tx.index(tV[0].text) < tx.index(nxt[0].text)
            assert tx.index("s_barrier") < len(tx) - 1 - tx[::-1].index(nxt[0].text)
            seg.a(f"s_cbranch_vccnz L_rare{ret}\nL_back{ret}:")
        else:
            for k, g in enumerate((1, 5, 9, 13, 17, 21, 25, 29)):
                x = dmaV(i+2, k) if k < 4 else dmaK(i+5, k-4)
                addf(sca, g-1, x[0]); dm.append((x[1], g-3, g))
            place(14, advV(i+2)); place(30, advK(i+5))
            rd = spread([kread(i+2, j) for j in range(NK0, 16)], 0, 16)
            schedule(seg, mf, [dm, rd, spread(softmax_q(i+1, merge=False), 0, 31)], sca, label=f"it{i}")
            seg.add(tK[0]); seg.add(tK[1])
            seg.a("s_waitcnt vmcnt(12)\ns_barrier")
            for j in range(NK0): seg.add(kread(i+3, j))
            x = dmaV(i+3, 0); seg.add(x[0]); seg.a(f"buffer_load_dword v2, v3, s[{sW}:{sW+3}], s{sPw} offen offset:128 sc1"); seg.add(x[1])
            seg.a(f"s_waitcnt lgkmcnt({NK0-wgrp})")
    iteration(pro, -1, None, do_pv=False)
    stamp(pro)
    body = Seg("loop"); body.a("L_loop:")
    iteration(body, 0, 0); iteration(body, 1, 1, loopend=True)
    if stamps == 2:
        body.a(f"s_waitcnt lgkmcnt(0)\ns_memtime s[60:61]\ns_memrealtime s[62:63]\ns_sub_u32 m0, 21, s{sCnt}\ns_cmp_lg_u32 s{sCnt}, 0\ns_waitcnt lgkmcnt(0)\nv_writelane_b32 v10, s60, m0\nv_writelane_b32 v11, s62, m0")
    if xpad:
        k = [x.text for x in body.ins].index("L_back0:")
        ins = [parse(f"s_cmp_ge_u32 s{sCnt}, {xpad[0]}"), parse("s_cbranch_scc0 L_xp0")] + [parse("s_nop 15") for _ in range(xpad[1])] + [parse("L_xp0:")]
        body.ins[k+1:k+1] = ins
        body.a(f"s_cmp_ge_u32 s{sCnt}, {xpad[0]-1}\ns_cbranch_scc0 L_xp1");
        for _ in range(xpad[1]): body.a("s_nop 15")
        body.a(f"L_xp1:\ns_cmp_lg_u32 s{sCnt}, 0")
    body.a(f"s_cbranch_scc1 L_loop")
    tail = Seg("tail"); e = tail.a
    e(f"s_lshl_b32 s{sX}, s{sKh}, 8\ns_add_u32 s{sX}, s{sOo}, s{sX}\ns_xor_b32 s{sOo}, s{sX}, 256\ns_mov_b32 s{sT0}, s{sX}")
    iteration(tail, NB-4, 3, pref=True); iteration(tail, NB-3, 4, pref=True)
    stamp(tail)
    i = NB-2
    sq = softmax_q(i+1)
    o14 = list(range(16))
    o15 = [8,9,10,11,12,13,14,15,0,1,2,3,4,5,6,7]
    rd = spread([vread(i, dt, kt) for dt in range(NV0, 16) for kt in range(2)], 0, 21)
    bt = 25
    n15 = 3
    rd += [(vread(i+1, dt, kt), max(bt+1, 2*dt+2) , max(bt+1, 2*dt+2)) for dt in o15[:n15] for kt in range(2)]
    sca = {bt: [parse("s_waitcnt vmcnt(5)"), parse("s_barrier")]}
    schedule(tail, pvlist(i, o14), [rd, spread(sq + checkops(), 0, 29)], sca, label="it14", cap=3, lastempty=True)
    e("s_cbranch_vccnz L_rare2\nL_back2:")
    fstamp(tail)
    rem = [vread(i+1, dt, kt) for dt in o15[n15:] for kt in range(2)]
    for x in rem[:4]: tail.add(x)
    rem = rem[4:]
    for x in mergeops(): tail.add(x)
    e(f"v_mov_b32 v6, v{vL}\nv_mov_b32 v7, v{vL+1}\nv_readfirstlane_b32 s{sT1}, v2\nv_permlane16_swap_b32 v6, v{vL}\nv_permlane16_swap_b32 v7, v{vL+1}")
    e(f"v_add_f32 v{vL}, v6, v{vL}\nv_add_f32 v{vL+1}, v7, v{vL+1}\nv_mov_b32 v6, v{vL}\nv_mov_b32 v7, v{vL+1}\nv_mov_b32 v4, v{vCn}\nv_mov_b32 v5, v{vCn+4}")
    e(f"v_permlane32_swap_b32 v6, v{vL}\nv_permlane32_swap_b32 v7, v{vL+1}\nv_add_f32 v6, v6, v{vL}\nv_add_f32 v7, v7, v{vL+1}")
    e(f"s_and_b32 s3, s{sT1}, 0xff")
    sends = []
    if fast: e(f"s_cmp_eq_u32 s3, s{sXcc}\ns_cbranch_scc1 L_sendfast")
    for var in (("slow", " sc1"), ("fast", "")) if fast else (("slow", " sc1"),):
        sg = Seg("send_"+var[0]); sends.append(sg)
        if var[0] == "fast": sg.a("L_sendfast:")
        rd = spread([parse(x.text) for x in rem], 0, 16)
        q = [(parse(f"buffer_store_dwordx4 v[4:7], v{vDma}, s[{sW}:{sW+3}], s{sPw} offen offset:256{var[1]}"), 0, 0)]
        for k in range(8):
            o = vO + 8*(8+k); g0 = 2*k + 1 + 3
            for x in range(4): q.append((parse(f"v_cvt_pk_bf16_f32 v{vTmp+4*k+x}, v{o+2*x}, v{o+2*x+1}"), g0-2, g0))
            q.append((parse(f"buffer_store_dwordx4 v[{vTmp+4*k}:{vTmp+4*k+3}], v{vOg}, s[{sO}:{sO+3}], s{sOo} offen offset:{512*(k%2)}{var[1]}"), g0-2, g0))
            if k % 2 == 1 and k < 7: q.append((parse(f"s_add_u32 s{sOo}, s{sOo}, 4096"), g0-2, g0))
        schedule(sg, pvlist(i+1, o15), [rd, q], {}, label="it15", cap=3)
        if var[0] == "slow": nf0 = nf[0]
        nf[0] = nf0
        fstamp(sg)
        sg.a("s_waitcnt vmcnt(0)")
        if var[0] == "slow": st0 = nst[0]
        nst[0] = st0
        stamp(sg)
        sg.a(f"s_mov_b64 exec, 1\nbuffer_store_dword v2, v3, s[{sW}:{sW+3}], s{sPw} offen{var[1]}")
        if var[0] == "slow" and fast: sg.a("s_branch L_sent")
    fin = Seg("final"); e = fin.a
    e("L_sent:")
    e(f"s_mov_b32 s{sCnt}, 0x200000")
    e("L_poll:")
    e(f"s_sub_u32 s{sCnt}, s{sCnt}, 1\ns_cbranch_scc1 L_pollok")
    e(f"buffer_load_dword v8, v3, s[{sW}:{sW+3}], s{sMb} offen{xpoll}\ns_waitcnt vmcnt(0)\nv_readfirstlane_b32 s3, v8\ns_cmp_lg_u32 s3, s{sCh}\ns_cbranch_scc1 L_poll")
    e("L_pollok:")
    e("s_mov_b64 exec, -1")
    stamp(fin)
    e(f"s_mov_b32 s{sOo}, s{sX}")
    def xloads(pol):
        e(f"buffer_load_dwordx4 v[32:35], v{vDma}, s[{sW}:{sW+3}], s{sMb} offen offset:256{pol}")
        for k in range(8):
            e(f"buffer_load_dwordx4 v[{vTmp+4*k}:{vTmp+4*k+3}], v{vOg}, s[{sO}:{sO+3}], s{sOo} offen offset:{512*(k%2)}{pol}")
            if k % 2 == 1 and k < 7: e(f"s_add_u32 s{sOo}, s{sOo}, 4096")
    xloads(xld)
    e(f"buffer_load_dword v2, v3, s[{sW}:{sW+3}], s{sPw} offen offset:128 sc1")
    fstamp(fin, 9); fstamp(fin, 0)
    for qt in range(2):
        fo, fx, t = 36+2*qt, 40+2*qt, 44+qt
        e(f"v_min_f32 v{t}, v{4+qt}, v{32+qt}\nv_sub_f32 v{fo}, v{t}, v{4+qt}\nv_sub_f32 v{fx}, v{t}, v{32+qt}\nv_exp_f32 v{fo}, v{fo}\nv_exp_f32 v{fx}, v{fx}")
    for qt in range(2):
        fo, fx, t = 36+2*qt, 40+2*qt, 44+qt
        e(f"v_mul_f32 v{t}, v{fo}, v{6+qt}\nv_fma_f32 v{t}, v{fx}, v{34+qt}, v{t}\nv_rcp_f32 v{t}, v{t}")
    for qt in range(2):
        fo, fx, t = 36+2*qt, 40+2*qt, 44+qt
        e(f"v_mul_f32 v{fo}, v{fo}, v{t}\nv_mul_f32 v{fx}, v{fx}, v{t}")
    for r in range(0, 64, 2):
        fo = 36 + 2*((r//4) % 2)
        e(f"v_pk_mul_f32 v[{vO+r}:{vO+r+1}], v[{vO+r}:{vO+r+1}], v[{fo}:{fo+1}] op_sel_hi:[1,0]")
    for dt in range(8):
        for qt in range(2):
            o = vO + 8*dt + 4*qt; p = vTmp + 4*dt + 2*qt; u = 48 + 4*((2*dt+qt) % 4); fx = 40+2*qt
            e(f"v_lshlrev_b32 v{u}, 16, v{p}\nv_and_b32 v{u+1}, 0xffff0000, v{p}\nv_lshlrev_b32 v{u+2}, 16, v{p+1}\nv_and_b32 v{u+3}, 0xffff0000, v{p+1}")
            e(f"v_pk_fma_f32 v[{o}:{o+1}], v[{u}:{u+1}], v[{fx}:{fx+1}], v[{o}:{o+1}] op_sel_hi:[1,0,1]")
            e(f"v_pk_fma_f32 v[{o+2}:{o+3}], v[{u+2}:{u+3}], v[{fx}:{fx+1}], v[{o+2}:{o+3}] op_sel_hi:[1,0,1]")
            e(f"v_cvt_pk_bf16_f32 v{o}, v{o}, v{o+1}\nv_cvt_pk_bf16_f32 v{o+1}, v{o+2}, v{o+3}")
            e(f"ds_write_b64 v{vEw}, v[{o}:{o+1}] offset:{4352*qt+32*dt}")
    fstamp(fin)
    korder = [0, 4, 1, 5, 2, 6, 3, 7]
    for n_, k in enumerate(korder): e(f"ds_read_b128 v[{192+4*n_}:{192+4*n_+3}], v{vEr} offset:{1088*k}")
    e(f"v_readfirstlane_b32 s3, v2\ns_cmp_eq_u32 s3, s{sT1}\ns_cbranch_scc1 L_tagok")
    e(f"buffer_wbl2 sc1\ns_waitcnt vmcnt(0)\ns_mov_b64 exec, 1\nbuffer_store_dword v2, v3, s[{sW}:{sW+3}], s{sPw} offen sc1\ns_mov_b64 exec, -1")
    e("L_tagok:")
    for k in range(8):
        e(f"buffer_store_dwordx4 v[{192+4*k}:{192+4*k+3}], v{vOg}, s[{sO}:{sO+3}], s{sX} offen offset:{512*(k%2)}{polO}")
        if k % 2 == 1 and k < 7: e(f"s_add_u32 s{sX}, s{sX}, 4096")
    fstamp(fin)
    endseg = Seg("end"); e = endseg.a
    if stamps:
        e("s_waitcnt vmcnt(0)")
        stamp(endseg)
        e(f"s_lshl_b32 s3, s2, 2\ns_add_u32 s3, s3, s{sWv}\ns_lshl_b32 s3, s3, 9\nv_lshlrev_b32 v{vSt}, 3, v0")
        e(f"buffer_store_dwordx2 v[10:11], v{vSt}, s[{sW}:{sW+3}], s3 offen")
    if padto:
        e(f"s_waitcnt vmcnt(0)\nL_pad:\ns_memrealtime s[98:99]\ns_waitcnt lgkmcnt(0)\ns_sub_u32 s3, s98, s96\ns_cmp_lt_u32 s3, {int(padto*100)}\ns_cbranch_scc1 L_pad")
    e("L_end:\ns_endpgm")
    rares = []
    for ret, i in ((0, 0), (1, 1), (2, NB-2), (3, NB-4), (4, NB-3)):
        r = Seg(f"rare{ret}"); e = r.a
        S = vS[(i+1)%2]; S2 = vS[i%2]
        e(f"L_rare{ret}:")
        rowmax(r, S, True)
        e("v_exp_f32 v6, -v1\nv_exp_f32 v7, -v4")
        for qt, d, al in ((0, 1, 6), (1, 4, 7)):
            for k in range(4): e(f"v_sub_f32 v{vCn+4*qt+k}, v{vCn+4*qt+k}, v{d}")
            for k in range(8): e(f"v_sub_f32 v{S+8*qt+k}, v{S+8*qt+k}, v{d}")
            if ret != 2:
                for k in range(8): e(f"v_sub_f32 v{S2+8*qt+k}, v{S2+8*qt+k}, v{d}")
            e(f"v_mul_f32 v{vL+qt}, v{al}, v{vL+qt}")
        for x in softmax_q(i+1, merge=False): r.add(x)
        for k in range(128): e(f"v_mul_f32 v{vO+k}, v{6+(k//4)%2}, v{vO+k}")
        e(f"s_nop 1\ns_branch L_back{ret}")
        rares.append(r)
    if exp:
        nb = []
        for x in body.ins:
            if "nolds" in exp and x.kind == "dsr": continue
            if "novalu" in exp and x.kind in ("valu","trans") and not x.text.startswith("v_add_u32") and not x.text.startswith("v_cmp") and not x.text.startswith("v_writelane"): continue
            if "nodma" in exp and x.kind == "dma": continue
            if "nomfma" in exp and x.kind == "mfma": continue
            if "nobar" in exp and (x.kind == "barrier" or (x.kind == "wait" and x.vm is not None)): continue
            if "nomax" in exp and x.text.startswith("v_max"): continue
            nb.append(x)
        body.ins = nb
    order = [pro, body, tail] + sends + [fin, endseg] + rares
    traces = [[pro, body, body, body, tail, s, fin, endseg] for s in sends]
    fix_waits(traces, verbose)
    for s in order: merge_waits(s)
    fix_waits(traces, verbose)
    def upto(seg, lab):
        s = Seg(seg.name+"_pre"); k = [i.text for i in seg.ins].index(lab); s.ins = seg.ins[:k]
        s2 = Seg(seg.name+"_post"); s2.ins = seg.ins[k:]; return s, s2
    for ret, seg, prev, nxt in ((0, body, [pro, body], [body]), (1, body, [pro, body], [body]), (1, body, [pro, body], [tail]), (2, tail, [pro, body], [sends[0]]), (3, tail, [pro, body], []), (4, tail, [pro, body], [])):
        p, q = upto(seg, f"L_back{ret}:")
        n0 = [len(x.ins) for x in [p, q] + nxt]
        fix_waits([prev + [p, rares[ret], q] + nxt], verbose)
        assert exp or [len(x.ins) for x in [p, q] + nxt] == n0, "rare path needs extra waits outside"
    lds = SPARE + KS
    txt = header + f"; @launch grid=(256,1,1) block=(256,1,1) lds={lds}\n"
    txt += f'.amdgcn_target "amdgcn-amd-amdhsa--gfx950"\n.text\n.globl {KN}\n.p2align 8\n.type {KN},@function\n{KN}:\n'
    txt += emit(order) + "\n"
    txt += f'''.section .rodata,"a"
.p2align 6
.amdhsa_kernel {KN}
  .amdhsa_next_free_vgpr 452
  .amdhsa_next_free_sgpr 102
  .amdhsa_accum_offset 256
  .amdhsa_group_segment_fixed_size 0
  .amdhsa_kernarg_size 48
  .amdhsa_user_sgpr_count 2
  .amdhsa_user_sgpr_kernarg_segment_ptr 1
  .amdhsa_system_sgpr_workgroup_id_x 1
.end_amdhsa_kernel
'''
    return txt
if __name__ == "__main__":
    kw = eval("dict(" + (sys.argv[1] if len(sys.argv) > 1 else "") + ")")
    print(gen(**kw))
```

```python
import sys, math, struct
from asmlib import *
KN = "standalone__gqa_softmax__near_ridge_kernel"
def f2u(x): return struct.unpack("<I", struct.pack("<f", x))[0]
RS = 1056; KS = VS = 16*RS
KB = [i*KS for i in range(4)]
VB = [4*KS + i*VS for i in range(4)]
SPARE = 8*KS
C_SCALE = math.log2(math.e)/16.0
NB = 16
vOg, vEw, vEr, vSt = 12, 13, 14, 15
vKa, vVa, vDma, vDmaV, vMx = 16, 17, 18, 19, 20
vL = 22
vLb = 8
vPf = 80
vCn = 24
vP = [32, 40]; vS = [48, 64]; vTmp = 96; vO = 128
aQ, aKF, aVF = 0, 64, 128
sQ, sK, sV, sO, sW = 16, 20, 24, 28, 32
sWv, sOK, sOV, sMK, sMV, sCnt, sC, sDK, sDV, sXcc, sKh, sT0, sT1, sOo, sX = 40,41,42,43,44,45,46,47,48,49,50,51,52,53,54
sDK2, sDV2, sPw, sMb, sCh = 55, 56, 57, 58, 59
XBASE = 1 << 20

def gen(polK="", polV="", polQ="", polO="", stamps=False, T=8.0, verbose=False, header="", padto=0, exp=(),
        fast=True, pxor=16, bg=53, dmagaps=(57,1,9,17,25,33,41,49), npre=5, wgrp=2, smend=60, late=1.6, xld=' sc1', xpoll=' sc1', fine=False, xpad=None, xstag=0, probe=None):
    nst = [0]
    def stamp(seg):
        if probe is not None:
            if nst[0] == probe: seg.a("s_waitcnt lgkmcnt(0)\ns_memrealtime s[94:95]\ns_waitcnt lgkmcnt(0)")
            nst[0] += 1
        if stamps:
            seg.a(f"s_waitcnt lgkmcnt(0)\ns_memtime s[60:61]\ns_memrealtime s[62:63]\ns_waitcnt lgkmcnt(0)\nv_writelane_b32 v10, s60, {nst[0]}\nv_writelane_b32 v11, s62, {nst[0]}"); nst[0] += 1
    nf = [32]
    def fstamp(seg, vm=None):
        if stamps and fine:
            if vm is not None: seg.a(f"s_waitcnt vmcnt({vm})")
            sv = nst[0]; nst[0] = nf[0]; stamp(seg); nf[0] += 1; nst[0] = sv
    pro = Seg("prologue"); a = pro.a
    a(f"s_cmp_ge_u32 s2, 256\ns_cbranch_scc1 L_end")
    a("s_load_dwordx8 s[4:11], s[0:1], 0\ns_load_dwordx2 s[14:15], s[0:1], 40")
    if padto or probe is not None: a("s_memrealtime s[96:97]")
    stamp(pro)
    if xstag:
        a(f"s_bitcmp1_b32 s2, 5\ns_cbranch_scc0 L_nostag\ns_sleep {xstag}\nL_nostag:")
    a("v_lshrrev_b32 v1, 6, v0\nv_and_b32 v0, 63, v0")
    a(f"v_readfirstlane_b32 s{sWv}, v1")
    a(f"v_lshlrev_b32 v{vDma}, 4, v0")
    if pxor == 16:
        a(f"s_mov_b32 s{sX}, s2")
    else:
        a(f"s_and_b32 s{sX}, s2, 0xee\ns_bfe_u32 s3, s2, 0x10004\ns_or_b32 s{sX}, s{sX}, s3\ns_and_b32 s3, s2, 1\ns_lshl_b32 s3, s3, 4\ns_or_b32 s{sX}, s{sX}, s3")
    a(f"s_and_b32 s{sT0}, s{sX}, 7\ns_lshr_b32 s{sT1}, s{sX}, 3\ns_lshl_b32 s{sT0}, s{sT0}, 3")
    a(f"s_lshr_b32 s3, s{sT1}, 2\ns_add_u32 s{sT0}, s{sT0}, s3")
    a(f"s_bfe_u32 s{sKh}, s{sT1}, 0x10001")
    a(f"s_and_b32 s{sT1}, s{sT1}, 1\ns_lshl_b32 s3, s{sT0}, 1\ns_add_u32 s{sT1}, s{sT1}, s3")
    a(f"s_lshl_b32 s{sT1}, s{sT1}, 16")
    a(f"s_lshl_b32 s{sT0}, s{sT0}, 19\ns_lshl_b32 s3, s{sKh}, 18\ns_add_u32 s{sT0}, s{sT0}, s3")
    a(f"s_mov_b32 s{sX}, {KB[3]}\ns_cmp_eq_u32 s{sWv}, 1\ns_cselect_b32 s{sX}, {VB[2]}, s{sX}")
    a(f"s_cmp_eq_u32 s{sWv}, 2\ns_cselect_b32 s{sX}, {VB[3]}, s{sX}\ns_cmp_eq_u32 s{sWv}, 3\ns_cselect_b32 s{sX}, {SPARE}, s{sX}")
    a(f"s_lshl_b32 s{sOo}, s{sWv}, 14")
    a(f"s_lshl_b32 s{sOK}, s{sWv}, 12\ns_mov_b32 s{sOV}, s{sOK}")
    a(f"s_mul_i32 s{sMK}, s{sWv}, {4*RS}\ns_add_u32 s{sMV}, s{sMK}, {VB[0]}")
    a(f"s_mov_b32 s{sQ+2}, 65536\ns_mov_b32 s{sQ+3}, 0x20000\ns_mov_b32 s3, s{sOo}\ns_mov_b32 m0, s{sX}")
    a(f"s_lshl_b32 s{sMb}, s2, 2\ns_add_u32 s{sMb}, s{sMb}, s{sWv}\ns_lshl_b32 s{sMb}, s{sMb}, 11\ns_add_u32 s{sMb}, s{sMb}, {XBASE}")
    a(f"s_mov_b32 s{sW+2}, {3*XBASE}\ns_mov_b32 s{sW+3}, 0x20000\nv_lshlrev_b32 v3, 7, v0")
    a("s_waitcnt lgkmcnt(0)")
    fstamp(pro)
    a(f"s_add_u32 s{sQ}, s4, s{sT1}\ns_addc_u32 s{sQ+1}, s5, 0")
    fill = [f"s_mov_b32 s{sW}, s14\ns_mov_b32 s{sW+1}, s15\ns_mov_b64 exec, 3\nbuffer_load_dword v8, v3, s[{sW}:{sW+3}], s{sMb} offen sc1\ns_mov_b64 exec, -1",
            f"s_add_u32 s{sK}, s6, s{sT0}\ns_addc_u32 s{sK+1}, s7, 0", f"s_mov_b32 s{sK+2}, {NB*16384}", f"s_mov_b32 s{sK+3}, 0x20000",
            f"s_add_u32 s{sV}, s8, s{sT0}\ns_addc_u32 s{sV+1}, s9, 0", f"s_mov_b32 s{sV+2}, {NB*16384}", f"s_mov_b32 s{sV+3}, 0x20000",
            f"s_add_u32 s{sO}, s10, s{sT1}\ns_addc_u32 s{sO+1}, s11, 0", f"s_mov_b32 s{sO+2}, 65536", f"s_mov_b32 s{sO+3}, 0x20000",
            f"s_mov_b32 s{sDK2}, {2*KS}", f"s_mov_b32 s{sDV2}, {2*VS}", f"s_mov_b32 s{sDK}, {2*KS}", f"s_mov_b32 s{sDV}, {2*VS}",
            f"s_xor_b32 s{sPw}, s{sMb}, {pxor*8192}"]
    for g in range(4):
        for j in range(4):
            if g or j:
                a(f"s_add_u32 m0, s{sX}, {4*RS*g+32*j}"); a(fill.pop(0))
            a(f"buffer_load_dwordx4 v{vDma}, s[{sQ}:{sQ+3}], s3 offen offset:{1024*j}{polQ} lds")
        a("s_add_u32 s3, s3, 4096")
    assert not fill
    def dmaK(n, j): return [parse(f"s_add_u32 m0, s{sMK}, {(n%2)*KS+32*j}"),
                            parse(f"buffer_load_dwordx4 v{vDma}, s[{sK}:{sK+3}], s{sOK} offen offset:{1024*j}{polK} lds")]
    def dmaV(n, j): return [parse(f"s_add_u32 m0, s{sMV}, {(n%2)*VS+32*j}"),
                            parse(f"buffer_load_dwordx4 v{vDmaV}, s[{sV}:{sV+3}], s{sOV} offen offset:{1024*j}{polV} lds")]
    def advK(n):
        L = [parse(f"s_add_u32 s{sOK}, s{sOK}, 16384")]
        if n % 2 == 1: L += [parse(f"s_add_u32 s{sMK}, s{sMK}, s{sDK2}"), parse(f"s_sub_u32 s{sDK2}, 0, s{sDK2}")]
        return L
    def advV(n):
        L = [parse(f"s_add_u32 s{sOV}, s{sOV}, 16384")]
        if n % 2 == 1: L += [parse(f"s_add_u32 s{sMV}, s{sMV}, s{sDV2}"), parse(f"s_sub_u32 s{sDV2}, 0, s{sDV2}")]
        return L
    def block(seg, f, adv, n):
        for j in range(4):
            x = f(n, j); seg.add(x[0]); seg.a("s_nop 0"); seg.add(x[1])
        for x in adv(n): seg.add(x)
    block(pro, dmaK, advK, 0)
    a(f"s_lshl_b32 s3, s{sKh}, 8\nv_xor_b32 v{vDmaV}, s3, v{vDma}")
    a(f"v_and_b32 v1, 15, v0\nv_lshrrev_b32 v4, 4, v0")
    a(f"v_mul_u32_u24 v2, {RS}, v1\nv_lshl_add_u32 v{vKa}, v4, 4, v2")
    a(f"v_add_u32 v5, s{sX}, v{vKa}")
    a(f"v_lshrrev_b32 v2, 2, v0\nv_mul_u32_u24 v2, {RS}, v2\nv_and_b32 v3, 3, v0\nv_lshl_add_u32 v2, v3, 3, v2\nv_add_u32 v{vVa}, {VB[0]}, v2")
    a(f"s_mul_i32 s3, s{sWv}, 8704")
    a(f"v_mul_u32_u24 v2, 272, v1\nv_lshlrev_b32 v3, 3, v4\nv_add3_u32 v{vEw}, v2, v3, s3")
    a(f"v_lshlrev_b32 v3, 4, v1\nv_mul_u32_u24 v6, 272, v4\nv_add3_u32 v{vEr}, v6, v3, s3")
    a(f"v_lshl_add_u32 v{vOg}, v4, 10, v3")
    a(f"s_mov_b32 s{sC}, {f2u(C_SCALE):#x}")
    a(f"s_getreg_b32 s{sXcc}, hwreg(HW_REG_XCC_ID)\ns_and_b32 s{sXcc}, s{sXcc}, 15")
    fstamp(pro)
    a(f"s_waitcnt vmcnt(19)")
    fstamp(pro)
    a(f"v_readlane_b32 s{sT0}, v8, 0\nv_readlane_b32 s{sT1}, v8, 1\nv_mov_b32 v3, 0")
    a(f"s_and_b32 s{sT1}, s{sT1}, 0xffffff00\ns_add_u32 s{sT1}, s{sT1}, 0x100\ns_or_b32 s{sT1}, s{sT1}, s{sXcc}")
    a(f"s_cmp_eq_u32 s{sT1}, s{sT0}\ns_cselect_b32 s3, 0x100, 0\ns_add_u32 s{sCh}, s{sT1}, s3\nv_mov_b32 v8, s{sCh}")
    a(f"s_mov_b64 exec, 1\nbuffer_store_dword v8, v3, s[{sW}:{sW+3}], s{sMb} offen offset:128 sc1\ns_mov_b64 exec, -1")
    block(pro, dmaK, advK, 1)
    for r in range(128): a(f"v_mov_b32 v{vO+r}, 0")
    a(f"v_mov_b32 v{vL}, 0\nv_mov_b32 v{vL+1}, 0\nv_mov_b32 v2, s{sC}")
    block(pro, dmaK, advK, 2)
    fstamp(pro)
    a(f"s_waitcnt vmcnt(13)")
    fstamp(pro)
    vQr = 64
    for f in range(16): a(f"ds_read_b128 v[{vQr+4*f}:{vQr+4*f+3}], v5 offset:{64*(f//2)+512*(f%2)}")
    def presc(r):
        x = 32 + 2*(r % 8)
        return [parse(t) for t in (f"v_lshlrev_b32 v{x}, 16, v{vQr+r}", f"v_and_b32 v{x+1}, 0xffff0000, v{vQr+r}",
                f"v_pk_mul_f32 v[{x}:{x+1}], v[{x}:{x+1}], v[2:3] op_sel_hi:[1,0]",
                f"v_cvt_pk_bf16_f32 v{x}, v{x}, v{x+1}", f"v_accvgpr_write_b32 a{aQ+r}, v{x}")]
    pq = [x for r in range(64) for x in presc(r)]
    per = npre*20//4
    for j in range(4):
        x = dmaV(0, j)
        pro.add(x[0])
        for _ in range(per): pro.add(pq.pop(0))
        pro.add(x[1])
    for x in advV(0): pro.add(x)
    fstamp(pro); fstamp(pro)
    a(f"s_waitcnt vmcnt(13) lgkmcnt(0)\ns_barrier")
    stamp(pro)
    def kread(n, j): return parse(f"ds_read_b128 a[{aKF+4*j}:{aKF+4*j+3}], v{vKa} offset:{(n%2)*KS+64*(j//2)+512*(j%2)}")
    def vread(n, dt, kt):
        r = aVF + 4*dt + 2*kt
        return parse(f"ds_read_b64_tr_b16 a[{r}:{r+1}], v{vVa} offset:{(n%2)*VS+512*kt+32*dt}")
    def qk(n, g, first0=False):
        j, qt = g//2, g % 2; t, kt = j//2, j % 2
        S = vS[n%2] + 8*qt + 4*kt; f = aKF+4*j; qf = aQ + 4*(2*t+qt)
        c = f"v[{S}:{S+3}]" if t else ("0" if first0 else f"v[{vCn+4*qt}:{vCn+4*qt+3}]")
        i = parse(f"v_mfma_f32_16x16x32_bf16 v[{S}:{S+3}], a[{f}:{f+3}], a[{qf}:{qf+3}], {c}")
        if g % (2*wgrp) == 0: i.extra = set(R("a", f, 4*wgrp))
        return i
    def pv(n, dt, qt, grp=None):
        f = aVF+4*dt; o = vO+8*dt+4*qt; p = vP[n%2]+4*qt
        i = parse(f"v_mfma_f32_16x16x32_bf16 v[{o}:{o+3}], a[{f}:{f+3}], v[{p}:{p+3}], v[{o}:{o+3}]")
        for d2 in (grp or ()): i.extra |= set(R("a", aVF+4*d2, 4))
        return i
    def pvlist(n, dts):
        L = []
        for k, dt in enumerate(dts):
            L.append(pv(n, dt, 0, dts[k:k+wgrp] if k % wgrp == 0 else None)); L.append(pv(n, dt, 1))
        return L
    def checkops():
        return [parse(f"v_max_f32 v{vMx}, v{vLb}, v{vLb+1}"), parse(f"v_cmp_lt_f32 vcc, {f2u(2.0**T):#x}, v{vMx}")]
    def mergeops(): return [parse(f"v_add_f32 v{vL+qt}, v{vL+qt}, v{vLb+qt}") for qt in range(2)]
    def softmax_q(n, merge=True):
        S = vS[n%2]; P = vP[n%2]
        E = lambda r: parse(f"v_exp_f32 v{vPf+r}, v{S+r}")
        def A(r):
            if r % 8 == 1: return parse(f"v_add_f32 v{vLb+r//8}, v{vPf+r-1}, v{vPf+r}")
            return parse(f"v_add_f32 v{vLb+r//8}, v{vLb+r//8}, v{vPf+r}")
        Cv = lambda p: parse(f"v_cvt_pk_bf16_f32 v{P+p}, v{vPf+2*p}, v{vPf+2*p+1}")
        q = []
        mg = mergeops() if merge else []
        for r in range(16):
            q.append(E(r))
            if r % 8 == 0:
                if mg: q.append(mg.pop(0))
            else: q.append(A(r))
            if r % 2 == 1: q.append(Cv(r//2))
        return q
    def spread(ops, g0, g1):
        tot = sum(x.cost for x in ops); c = 0; out = []
        for x in ops:
            out.append((x, g0 + (g1-g0)*c/max(tot-ops[-1].cost, 1), g0)); c += x.cost
        return out
    def post(x): x.tag = "post"; return x
    def schedule(seg, mf, streams, sca, label="", cap=2, lastempty=False):
        n = len(mf); streams = [list(s) for s in streams if s]
        nm = n
        if lastempty: n -= 1
        for g in range(nm):
            seg.add(mf[g])
            s_ = sca.get(g, [])
            pre = [x for x in s_ if x.tag != "post"]; pst = [x for x in s_ if x.tag == "post"]
            wsh = 1 if (g+1 < nm and mf[g+1].extra) else 0
            free = cap - max(0, len(pre)+wsh-1) - len([x for x in pst if x.kind != "label"])
            mem = []; val = []
            while True:
                cands = [s for s in streams if s and s[0][2] <= g]
                if val: cands = [s for s in cands if s[0][0].kind not in ("dsr","dsw","dma","vst","vld")] + [s for s in cands if s[0][0].kind in ("dsr","dsw","dma","vst","vld")]
                cands.sort(key=lambda s: s[0][1])
                pick = None
                for s in cands:
                    x, tg, _ = s[0]
                    if g < n-1 and tg > g + 1.0 and (mem or val): continue
                    if g < n-1 and tg > g + 2.0: continue
                    if val and val[-1].kind == "trans" and (x.rd & val[-1].wr) and g < n-1: continue
                    if x.cost <= free or tg <= g - late or g == n-1: pick = s; break
                if pick is None: break
                x = pick.pop(0)[0]; free -= x.cost
                (mem if x.kind in ("dsr","dsw","dma","vld") else val).append(x)
            row = pre + mem + val + pst
            for x in row: seg.add(x)
            if verbose: print(f"; {label} gap{g}: " + "".join({"dsr":"t","dma":"d","trans":"e","valu":"v","salu":"s","wait":"w","barrier":"B","vst":"S"}.get(x.kind, "?") for x in row))
        assert not any(streams)
    def addf(d, g, *xs): d.setdefault(g, []).extend(xs)
    if exp:
        for k in range(16): a(f"ds_read_b128 a[{aVF+4*k}:{aVF+4*k+3}], v{vKa} offset:{32*k}")
        for k in range(4): a(f"ds_read_b128 v[{vP[0]+4*k}:{vP[0]+4*k+3}], v{vKa} offset:{32*k+256}")
        a("s_waitcnt lgkmcnt(0)")
    for j in range(6): pro.add(kread(0, j))
    rd = [(kread(0, j), 2*(j-6), 0) for j in range(6, 16)]
    pl = []; sca = {}; dm = []
    for f in range(npre, 16):
        need = 4*(f//2) + (f % 2) - 2
        g0 = max(0, min(need, (f-npre)*28//(16-npre)))
        for x in pq[:20]: pl.append((x, g0 - 5, g0))
        pq = pq[20:]
    for k, g in enumerate((6, 13, 21, 29)):
        x = dmaK(3, k); addf(sca, g-1, x[0]); dm.append((x[1], g-3, g))
    addf(sca, 30, *advK(3))
    schedule(pro, [qk(0, g, True) for g in range(32)], [rd, pl, dm], sca, label="qk0")
    a(f"s_waitcnt vmcnt(12)\ns_barrier")
    stamp(pro)
    for j in range(6): pro.add(kread(1, j))
    a(f"s_mov_b32 s{sCnt}, {(NB-4)//2}")
    def rowmax(seg, S, zero):
        for qt, d, t in ((0, 1, 6), (1, 4, 7)):
            b = S + 8*qt
            seg.a(f"v_max3_f32 v{d}, v{b}, v{b+1}, v{b+2}\nv_max3_f32 v{d}, v{d}, v{b+3}, v{b+4}\nv_max3_f32 v{d}, v{d}, v{b+5}, v{b+6}")
            seg.a(f"v_max3_f32 v{d}, v{d}, v{b+7}, 0" if zero else f"v_max_f32 v{d}, v{d}, v{b+7}")
        seg.a("v_mov_b32 v6, v1\nv_mov_b32 v7, v4\nv_permlane16_swap_b32 v6, v1\nv_permlane16_swap_b32 v7, v4\nv_max_f32 v1, v1, v6\nv_max_f32 v4, v4, v7")
        seg.a("v_mov_b32 v6, v1\nv_mov_b32 v7, v4\nv_permlane32_swap_b32 v6, v1\nv_permlane32_swap_b32 v7, v4\nv_max_f32 v1, v1, v6\nv_max_f32 v4, v4, v7")
    rowmax(pro, vS[0], False)
    for qt, d in ((0, 1), (1, 4)):
        for r in range(4): a(f"v_sub_f32 v{vCn+4*qt+r}, 0, v{d}")
        for r in range(8): a(f"v_sub_f32 v{vS[0]+8*qt+r}, v{vS[0]+8*qt+r}, v{d}")
    NV0 = 3
    NK0 = 6
    def nosh(g):
        while g % (2*wgrp) == 2*wgrp-1: g += 1
        return g
    def iteration(seg, i, ret, do_pv=True, loopend=False, pref=False):
        sca = {}; dm = []
        mf = [qk(i+2, g) for g in range(32)]
        tK = [parse(f"v_add_u32 v{vKa}, s{sDK}, v{vKa}"), parse(f"s_sub_u32 s{sDK}, 0, s{sDK}")]
        tV = [parse(f"v_add_u32 v{vVa}, s{sDV}, v{vVa}"), parse(f"s_sub_u32 s{sDV}, 0, s{sDV}")]
        def place(g, xs):
            for x in xs:
                g = nosh(g)
                while g in sca: g = nosh(g+1)
                addf(sca, g, x); g += 1
            return g
        if do_pv:
            mf += pvlist(i, list(range(16)))
            mf[63].extra = set(R("a", aKF, 4*wgrp))
            mf[0].extra = set()
            dp = dmagaps
            addf(sca, bg, parse("s_waitcnt vmcnt(12)"), parse("s_barrier"))
            if loopend:
                addf(sca, 60, parse(f"s_sub_u32 s{sCnt}, s{sCnt}, 1")); addf(sca, 61, parse(f"s_cmp_lg_u32 s{sCnt}, 0"))
            last = i == NB-3
            for k in range(1, 8):
                if pref and k >= 4:
                    kk = 4*(i % 2) + k - 4
                    y = parse(f"buffer_load_dwordx4 a[192:195], v{vOg}, s[{sO}:{sO+3}], s{sT0} offen offset:{512*(kk%2)}"); y.wr = set()
                    dm.append((y, dp[k]-3, dp[k]))
                    if kk % 2 == 1: addf(sca, dp[k]+1, parse(f"s_add_u32 s{sT0}, s{sT0}, 4096"))
                    continue
                x = dmaV(i+2, k) if k < 4 else dmaK(i+5, k-4)
                addf(sca, dp[k]-1, x[0]); dm.append((x[1], dp[k]-3, dp[k]))
            if last:
                y = parse(f"buffer_load_dwordx4 a[192:195], v{vDma}, s[{sW}:{sW+3}], s{sMb} offen offset:256"); y.wr = set()
                dm.append((y, dp[0]-3, dp[0]))
            else:
                x = dmaV(i+3, 0); addf(sca, dp[0]-1, x[0]); dm.append((x[1], dp[0]-3, dp[0]))
            if not last: assert place(dp[3]+1, advV(i+2)) < dp[0]
            if not pref: assert place(dp[7]+1, advK(i+5)) <= 60
            r1 = [kread(i+2, j) for j in range(NK0, 16)] + [vread(i, dt, kt) for dt in range(16) for kt in range(2)]
            nxt = [vread(i+1, dt, kt) for dt in range(NV0) for kt in range(2)] if last else [kread(i+3, j) for j in range(NK0)]
            if last: mf[63].extra = set(R("a", aVF, 4*wgrp))
            rd = spread(r1, 0, bg-1) + [(y, t, bg+(2 if last else 1)) for (y, t, _) in spread(nxt, bg+1, 61)]
            tg = []
            if i % 2 == 1:
                tg = [(tK[0], 16, 16), (tV[0], bg-1, bg+1)]; place(21, [tK[1]]); assert place(bg+4, [tV[1]]) <= 60
            n0 = len(seg.ins)
            schedule(seg, mf, [dm, rd, tg, spread(softmax_q(i+1) + checkops(), 0, smend)], sca, label=f"it{i}", lastempty=True)
            tx = [x.text for x in seg.ins[n0:]]
            if i % 2 == 1:
                assert tx.index(kread(i+2, 15).text) < tx.index(tK[0].text) < tx.index(tK[1].text) < tx.index(nxt[0].text)
                assert tx.index(vread(i, 15, 1).text) < tx.index(tV[0].text) < tx.index(tV[1].text)
                if last: assert tx.index(tV[0].text) < tx.index(nxt[0].text)
            assert tx.index("s_barrier") < len(tx) - 1 - tx[::-1].index(nxt[0].text)
            seg.a(f"s_cbranch_vccnz L_rare{ret}\nL_back{ret}:")
        else:
            for k, g in enumerate((1, 5, 9, 13, 17, 21, 25, 29)):
                x = dmaV(i+2, k) if k < 4 else dmaK(i+5, k-4)
                addf(sca, g-1, x[0]); dm.append((x[1], g-3, g))
            place(14, advV(i+2)); place(30, advK(i+5))
            rd = spread([kread(i+2, j) for j in range(NK0, 16)], 0, 16)
            schedule(seg, mf, [dm, rd, spread(softmax_q(i+1, merge=False), 0, 31)], sca, label=f"it{i}")
            seg.add(tK[0]); seg.add(tK[1])
            seg.a("s_waitcnt vmcnt(12)\ns_barrier")
            for j in range(NK0): seg.add(kread(i+3, j))
            x = dmaV(i+3, 0); seg.add(x[0]); seg.a(f"buffer_load_dword v2, v3, s[{sW}:{sW+3}], s{sPw} offen offset:128 sc1"); seg.add(x[1])
            seg.a(f"s_waitcnt lgkmcnt({NK0-wgrp})")
    iteration(pro, -1, None, do_pv=False)
    stamp(pro)
    body = Seg("loop"); body.a("L_loop:")
    iteration(body, 0, 0); iteration(body, 1, 1, loopend=True)
    if stamps == 2:
        body.a(f"s_waitcnt lgkmcnt(0)\ns_memtime s[60:61]\ns_memrealtime s[62:63]\ns_sub_u32 m0, 21, s{sCnt}\ns_cmp_lg_u32 s{sCnt}, 0\ns_waitcnt lgkmcnt(0)\nv_writelane_b32 v10, s60, m0\nv_writelane_b32 v11, s62, m0")
    if xpad:
        k = [x.text for x in body.ins].index("L_back0:")
        ins = [parse(f"s_cmp_ge_u32 s{sCnt}, {xpad[0]}"), parse("s_cbranch_scc0 L_xp0")] + [parse("s_nop 15") for _ in range(xpad[1])] + [parse("L_xp0:")]
        body.ins[k+1:k+1] = ins
        body.a(f"s_cmp_ge_u32 s{sCnt}, {xpad[0]-1}\ns_cbranch_scc0 L_xp1");
        for _ in range(xpad[1]): body.a("s_nop 15")
        body.a(f"L_xp1:\ns_cmp_lg_u32 s{sCnt}, 0")
    body.a(f"s_cbranch_scc1 L_loop")
    tail = Seg("tail"); e = tail.a
    e(f"s_lshl_b32 s{sX}, s{sKh}, 8\ns_add_u32 s{sX}, s{sOo}, s{sX}\ns_xor_b32 s{sOo}, s{sX}, 256\ns_mov_b32 s{sT0}, s{sX}")
    iteration(tail, NB-4, 3, pref=True); iteration(tail, NB-3, 4, pref=True)
    stamp(tail)
    i = NB-2
    sq = softmax_q(i+1)
    o14 = list(range(16))
    o15 = [8,9,10,11,12,13,14,15,0,1,2,3,4,5,6,7]
    rd = spread([vread(i, dt, kt) for dt in range(NV0, 16) for kt in range(2)], 0, 21)
    bt = 25
    n15 = 3
    rd += [(vread(i+1, dt, kt), max(bt+1, 2*dt+2) , max(bt+1, 2*dt+2)) for dt in o15[:n15] for kt in range(2)]
    sca = {bt: [parse("s_waitcnt vmcnt(5)"), parse("s_barrier")]}
    schedule(tail, pvlist(i, o14), [rd, spread(sq + checkops(), 0, 29)], sca, label="it14", cap=3, lastempty=True)
    e("s_cbranch_vccnz L_rare2\nL_back2:")
    fstamp(tail)
    rem = [vread(i+1, dt, kt) for dt in o15[n15:] for kt in range(2)]
    for x in rem[:4]: tail.add(x)
    rem = rem[4:]
    for x in mergeops(): tail.add(x)
    e(f"v_mov_b32 v6, v{vL}\nv_mov_b32 v7, v{vL+1}\nv_readfirstlane_b32 s{sT1}, v2\nv_permlane16_swap_b32 v6, v{vL}\nv_permlane16_swap_b32 v7, v{vL+1}")
    e(f"v_add_f32 v{vL}, v6, v{vL}\nv_add_f32 v{vL+1}, v7, v{vL+1}\nv_mov_b32 v6, v{vL}\nv_mov_b32 v7, v{vL+1}\nv_mov_b32 v4, v{vCn}\nv_mov_b32 v5, v{vCn+4}")
    e(f"v_permlane32_swap_b32 v6, v{vL}\nv_permlane32_swap_b32 v7, v{vL+1}\nv_add_f32 v6, v6, v{vL}\nv_add_f32 v7, v7, v{vL+1}")
    e(f"s_and_b32 s3, s{sT1}, 0xff")
    sends = []
    if fast: e(f"s_cmp_eq_u32 s3, s{sXcc}\ns_cbranch_scc1 L_sendfast")
    for var in (("slow", " sc1"), ("fast", "")) if fast else (("slow", " sc1"),):
        sg = Seg("send_"+var[0]); sends.append(sg)
        if var[0] == "fast": sg.a("L_sendfast:")
        rd = spread([parse(x.text) for x in rem], 0, 16)
        q = [(parse(f"buffer_store_dwordx4 v[4:7], v{vDma}, s[{sW}:{sW+3}], s{sPw} offen offset:256{var[1]}"), 0, 0)]
        for k in range(8):
            o = vO + 8*(8+k); g0 = 2*k + 1 + 3
            for x in range(4): q.append((parse(f"v_cvt_pk_bf16_f32 v{vTmp+4*k+x}, v{o+2*x}, v{o+2*x+1}"), g0-2, g0))
            q.append((parse(f"buffer_store_dwordx4 v[{vTmp+4*k}:{vTmp+4*k+3}], v{vOg}, s[{sO}:{sO+3}], s{sOo} offen offset:{512*(k%2)}{var[1]}"), g0-2, g0))
            if k % 2 == 1 and k < 7: q.append((parse(f"s_add_u32 s{sOo}, s{sOo}, 4096"), g0-2, g0))
        schedule(sg, pvlist(i+1, o15), [rd, q], {}, label="it15", cap=3)
        if var[0] == "slow": nf0 = nf[0]
        nf[0] = nf0
        fstamp(sg)
        sg.a("s_waitcnt vmcnt(0)")
        if var[0] == "slow": st0 = nst[0]
        nst[0] = st0
        stamp(sg)
        sg.a(f"s_mov_b64 exec, 1\nbuffer_store_dword v2, v3, s[{sW}:{sW+3}], s{sPw} offen{var[1]}")
        if var[0] == "slow" and fast: sg.a("s_branch L_sent")
    fin = Seg("final"); e = fin.a
    e("L_sent:")
    e(f"s_mov_b32 s{sCnt}, 0x200000")
    e("L_poll:")
    e(f"s_sub_u32 s{sCnt}, s{sCnt}, 1\ns_cbranch_scc1 L_pollok")
    e(f"buffer_load_dword v8, v3, s[{sW}:{sW+3}], s{sMb} offen{xpoll}\ns_waitcnt vmcnt(0)\nv_readfirstlane_b32 s3, v8\ns_cmp_lg_u32 s3, s{sCh}\ns_cbranch_scc1 L_poll")
    e("L_pollok:")
    e("s_mov_b64 exec, -1")
    stamp(fin)
    e(f"s_mov_b32 s{sOo}, s{sX}")
    def xloads(pol):
        e(f"buffer_load_dwordx4 v[32:35], v{vDma}, s[{sW}:{sW+3}], s{sMb} offen offset:256{pol}")
        for k in range(8):
            e(f"buffer_load_dwordx4 v[{vTmp+4*k}:{vTmp+4*k+3}], v{vOg}, s[{sO}:{sO+3}], s{sOo} offen offset:{512*(k%2)}{pol}")
            if k % 2 == 1 and k < 7: e(f"s_add_u32 s{sOo}, s{sOo}, 4096")
    xloads(xld)
    e(f"buffer_load_dword v2, v3, s[{sW}:{sW+3}], s{sPw} offen offset:128 sc1")
    fstamp(fin, 9); fstamp(fin, 0)
    for qt in range(2):
        fo, fx, t = 36+2*qt, 40+2*qt, 44+qt
        e(f"v_min_f32 v{t}, v{4+qt}, v{32+qt}\nv_sub_f32 v{fo}, v{t}, v{4+qt}\nv_sub_f32 v{fx}, v{t}, v{32+qt}\nv_exp_f32 v{fo}, v{fo}\nv_exp_f32 v{fx}, v{fx}")
    for qt in range(2):
        fo, fx, t = 36+2*qt, 40+2*qt, 44+qt
        e(f"v_mul_f32 v{t}, v{fo}, v{6+qt}\nv_fma_f32 v{t}, v{fx}, v{34+qt}, v{t}\nv_rcp_f32 v{t}, v{t}")
    for qt in range(2):
        fo, fx, t = 36+2*qt, 40+2*qt, 44+qt
        e(f"v_mul_f32 v{fo}, v{fo}, v{t}\nv_mul_f32 v{fx}, v{fx}, v{t}")
    for r in range(0, 64, 2):
        fo = 36 + 2*((r//4) % 2)
        e(f"v_pk_mul_f32 v[{vO+r}:{vO+r+1}], v[{vO+r}:{vO+r+1}], v[{fo}:{fo+1}] op_sel_hi:[1,0]")
    for dt in range(8):
        for qt in range(2):
            o = vO + 8*dt + 4*qt; p = vTmp + 4*dt + 2*qt; u = 48 + 4*((2*dt+qt) % 4); fx = 40+2*qt
            e(f"v_lshlrev_b32 v{u}, 16, v{p}\nv_and_b32 v{u+1}, 0xffff0000, v{p}\nv_lshlrev_b32 v{u+2}, 16, v{p+1}\nv_and_b32 v{u+3}, 0xffff0000, v{p+1}")
            e(f"v_pk_fma_f32 v[{o}:{o+1}], v[{u}:{u+1}], v[{fx}:{fx+1}], v[{o}:{o+1}] op_sel_hi:[1,0,1]")
            e(f"v_pk_fma_f32 v[{o+2}:{o+3}], v[{u+2}:{u+3}], v[{fx}:{fx+1}], v[{o+2}:{o+3}] op_sel_hi:[1,0,1]")
            e(f"v_cvt_pk_bf16_f32 v{o}, v{o}, v{o+1}\nv_cvt_pk_bf16_f32 v{o+1}, v{o+2}, v{o+3}")
            e(f"ds_write_b64 v{vEw}, v[{o}:{o+1}] offset:{4352*qt+32*dt}")
    fstamp(fin)
    korder = [0, 4, 1, 5, 2, 6, 3, 7]
    for n_, k in enumerate(korder): e(f"ds_read_b128 v[{192+4*n_}:{192+4*n_+3}], v{vEr} offset:{1088*k}")
    e(f"v_readfirstlane_b32 s3, v2\ns_cmp_eq_u32 s3, s{sT1}\ns_cbranch_scc1 L_tagok")
    e(f"buffer_wbl2 sc1\ns_waitcnt vmcnt(0)\ns_mov_b64 exec, 1\nbuffer_store_dword v2, v3, s[{sW}:{sW+3}], s{sPw} offen sc1\ns_mov_b64 exec, -1")
    e("L_tagok:")
    for k in range(8):
        e(f"buffer_store_dwordx4 v[{192+4*k}:{192+4*k+3}], v{vOg}, s[{sO}:{sO+3}], s{sX} offen offset:{512*(k%2)}{polO}")
        if k % 2 == 1 and k < 7: e(f"s_add_u32 s{sX}, s{sX}, 4096")
    fstamp(fin)
    endseg = Seg("end"); e = endseg.a
    if stamps:
        e("s_waitcnt vmcnt(0)")
        stamp(endseg)
        e(f"s_lshl_b32 s3, s2, 2\ns_add_u32 s3, s3, s{sWv}\ns_lshl_b32 s3, s3, 9\nv_lshlrev_b32 v{vSt}, 3, v0")
        e(f"buffer_store_dwordx2 v[10:11], v{vSt}, s[{sW}:{sW+3}], s3 offen")
    if probe is not None:
        e("s_waitcnt vmcnt(0)")
        stamp(endseg)
        e(f"s_sub_u32 s94, s94, s96\ns_add_u32 s94, s94, 2500\nL_pad:\ns_memrealtime s[98:99]\ns_waitcnt lgkmcnt(0)\ns_sub_u32 s3, s98, s96\ns_cmp_lt_u32 s3, s94\ns_cbranch_scc1 L_pad")
    if padto:
        e(f"s_waitcnt vmcnt(0)\nL_pad:\ns_memrealtime s[98:99]\ns_waitcnt lgkmcnt(0)\ns_sub_u32 s3, s98, s96\ns_cmp_lt_u32 s3, {int(padto*100)}\ns_cbranch_scc1 L_pad")
    e("L_end:\ns_endpgm")
    rares = []
    for ret, i in ((0, 0), (1, 1), (2, NB-2), (3, NB-4), (4, NB-3)):
        r = Seg(f"rare{ret}"); e = r.a
        S = vS[(i+1)%2]; S2 = vS[i%2]
        e(f"L_rare{ret}:")
        rowmax(r, S, True)
        e("v_exp_f32 v6, -v1\nv_exp_f32 v7, -v4")
        for qt, d, al in ((0, 1, 6), (1, 4, 7)):
            for k in range(4): e(f"v_sub_f32 v{vCn+4*qt+k}, v{vCn+4*qt+k}, v{d}")
            for k in range(8): e(f"v_sub_f32 v{S+8*qt+k}, v{S+8*qt+k}, v{d}")
            if ret != 2:
                for k in range(8): e(f"v_sub_f32 v{S2+8*qt+k}, v{S2+8*qt+k}, v{d}")
            e(f"v_mul_f32 v{vL+qt}, v{al}, v{vL+qt}")
        for x in softmax_q(i+1, merge=False): r.add(x)
        for k in range(128): e(f"v_mul_f32 v{vO+k}, v{6+(k//4)%2}, v{vO+k}")
        e(f"s_nop 1\ns_branch L_back{ret}")
        rares.append(r)
    if exp:
        nb = []
        for x in body.ins:
            if "nolds" in exp and x.kind == "dsr": continue
            if "novalu" in exp and x.kind in ("valu","trans") and not x.text.startswith("v_add_u32") and not x.text.startswith("v_cmp") and not x.text.startswith("v_writelane"): continue
            if "nodma" in exp and x.kind == "dma": continue
            if "nomfma" in exp and x.kind == "mfma": continue
            if "nobar" in exp and (x.kind == "barrier" or (x.kind == "wait" and x.vm is not None)): continue
            if "nomax" in exp and x.text.startswith("v_max"): continue
            nb.append(x)
        body.ins = nb
    order = [pro, body, tail] + sends + [fin, endseg] + rares
    traces = [[pro, body, body, body, tail, s, fin, endseg] for s in sends]
    fix_waits(traces, verbose)
    for s in order: merge_waits(s)
    fix_waits(traces, verbose)
    def upto(seg, lab):
        s = Seg(seg.name+"_pre"); k = [i.text for i in seg.ins].index(lab); s.ins = seg.ins[:k]
        s2 = Seg(seg.name+"_post"); s2.ins = seg.ins[k:]; return s, s2
    for ret, seg, prev, nxt in ((0, body, [pro, body], [body]), (1, body, [pro, body], [body]), (1, body, [pro, body], [tail]), (2, tail, [pro, body], [sends[0]]), (3, tail, [pro, body], []), (4, tail, [pro, body], [])):
        p, q = upto(seg, f"L_back{ret}:")
        n0 = [len(x.ins) for x in [p, q] + nxt]
        fix_waits([prev + [p, rares[ret], q] + nxt], verbose)
        assert exp or [len(x.ins) for x in [p, q] + nxt] == n0, "rare path needs extra waits outside"
    lds = SPARE + KS
    txt = header + f"; @launch grid=(256,1,1) block=(256,1,1) lds={lds}\n"
    txt += f'.amdgcn_target "amdgcn-amd-amdhsa--gfx950"\n.text\n.globl {KN}\n.p2align 8\n.type {KN},@function\n{KN}:\n'
    txt += emit(order) + "\n"
    txt += f'''.section .rodata,"a"
.p2align 6
.amdhsa_kernel {KN}
  .amdhsa_next_free_vgpr 452
  .amdhsa_next_free_sgpr 102
  .amdhsa_accum_offset 256
  .amdhsa_group_segment_fixed_size 0
  .amdhsa_kernarg_size 48
  .amdhsa_user_sgpr_count 2
  .amdhsa_user_sgpr_kernarg_segment_ptr 1
  .amdhsa_system_sgpr_workgroup_id_x 1
.end_amdhsa_kernel
'''
    return txt
if __name__ == "__main__":
    kw = eval("dict(" + (sys.argv[1] if len(sys.argv) > 1 else "") + ")")
    print(gen(**kw))
```

```python
import sys, math, struct
from asmlib import *
KN = "standalone__gqa_softmax__near_ridge_kernel"
def f2u(x): return struct.unpack("<I", struct.pack("<f", x))[0]
RS = 1056; KS = VS = 16*RS
KB = [i*KS for i in range(4)]
VB = [4*KS + i*VS for i in range(4)]
SPARE = 8*KS
C_SCALE = math.log2(math.e)/16.0
NB = 16
vOg, vEw, vEr, vSt = 12, 13, 14, 15
vKa, vVa, vDma, vDmaV, vMx = 16, 17, 18, 19, 20
vL = 22
vLb = 8
vPf = 80
vCn = 24
vP = [32, 40]; vS = [48, 64]; vTmp = 96; vO = 128
aQ, aKF, aVF = 0, 64, 128
sQ, sK, sV, sO, sW = 16, 20, 24, 28, 32
sWv, sOK, sOV, sMK, sMV, sCnt, sC, sDK, sDV, sXcc, sKh, sT0, sT1, sOo, sX = 40,41,42,43,44,45,46,47,48,49,50,51,52,53,54
sDK2, sDV2, sPw, sMb, sCh = 55, 56, 57, 58, 59
XBASE = 1 << 20

def gen(polK="", polV="", polQ="", polO="", stamps=False, T=8.0, verbose=False, header="", padto=0, exp=(),
        fast=True, pxor=16, bg=53, dmagaps=(57,1,9,17,25,33,41,49), npre=5, wgrp=2, smend=60, late=1.6, xld=' sc1', xpoll=' sc1', fine=False, xpad=None, xstag=0, probe=None, cpf=True, btx=7, tagg=36, nq0=11, zsplit=(128,128,128), zgap=14):
    nst = [0]
    def stamp(seg):
        if probe is not None:
            if nst[0] == probe: seg.a("s_waitcnt lgkmcnt(0)\ns_memrealtime s[94:95]\ns_waitcnt lgkmcnt(0)")
            nst[0] += 1
        if stamps:
            seg.a(f"s_waitcnt lgkmcnt(0)\ns_memtime s[60:61]\ns_memrealtime s[62:63]\ns_waitcnt lgkmcnt(0)\nv_writelane_b32 v10, s60, {nst[0]}\nv_writelane_b32 v11, s62, {nst[0]}"); nst[0] += 1
    nf = [32]
    def fstamp(seg, vm=None):
        if stamps and fine:
            if vm is not None: seg.a(f"s_waitcnt vmcnt({vm})")
            sv = nst[0]; nst[0] = nf[0]; stamp(seg); nf[0] += 1; nst[0] = sv
    pro = Seg("prologue"); a = pro.a
    a(f"s_cmp_ge_u32 s2, 256\ns_cbranch_scc1 L_end")
    a("s_load_dwordx8 s[4:11], s[0:1], 0\ns_load_dwordx2 s[14:15], s[0:1], 40")
    if padto or probe is not None: a("s_memrealtime s[96:97]")
    stamp(pro)
    if xstag:
        a(f"s_bitcmp1_b32 s2, 5\ns_cbranch_scc0 L_nostag\ns_sleep {xstag}\nL_nostag:")
    a("v_lshrrev_b32 v1, 6, v0\nv_and_b32 v0, 63, v0")
    a(f"v_readfirstlane_b32 s{sWv}, v1")
    if cpf:
        a(f"s_getpc_b64 s[36:37]\ns_lshr_b32 s3, s2, 3\ns_lshl_b32 s3, s3, 2\nv_add_u32 v4, s3, v1\nv_lshlrev_b32 v4, 1, v4\nv_add_u32 v4, v4, v0\nv_lshlrev_b32 v4, 7, v4")
        a(f"v_min_u32 v4, L_codeend-{KN}-256, v4\nv_mov_b32 v5, s37\nv_add_co_u32 v4, vcc, s36, v4\ns_nop 1\nv_addc_co_u32 v5, vcc, 0, v5, vcc")
        a("s_mov_b64 exec, 3")
        y = I("global_load_dword a192, v[4:5], off", "vld", rd=["v4", "v5"]); pro.add(y)
        a("s_mov_b64 exec, -1")
    a(f"v_lshlrev_b32 v{vDma}, 4, v0")
    if pxor == 16:
        a(f"s_mov_b32 s{sX}, s2")
    else:
        a(f"s_and_b32 s{sX}, s2, 0xee\ns_bfe_u32 s3, s2, 0x10004\ns_or_b32 s{sX}, s{sX}, s3\ns_and_b32 s3, s2, 1\ns_lshl_b32 s3, s3, 4\ns_or_b32 s{sX}, s{sX}, s3")
    a(f"s_and_b32 s{sT0}, s{sX}, 7\ns_lshr_b32 s{sT1}, s{sX}, 3\ns_lshl_b32 s{sT0}, s{sT0}, 3")
    a(f"s_lshr_b32 s3, s{sT1}, 2\ns_add_u32 s{sT0}, s{sT0}, s3")
    a(f"s_bfe_u32 s{sKh}, s{sT1}, 0x10001")
    a(f"s_and_b32 s{sT1}, s{sT1}, 1\ns_lshl_b32 s3, s{sT0}, 1\ns_add_u32 s{sT1}, s{sT1}, s3")
    a(f"s_lshl_b32 s{sT1}, s{sT1}, 16")
    a(f"s_lshl_b32 s{sT0}, s{sT0}, 19\ns_lshl_b32 s3, s{sKh}, 18\ns_add_u32 s{sT0}, s{sT0}, s3")
    a(f"s_mov_b32 s{sX}, {KB[3]}\ns_cmp_eq_u32 s{sWv}, 1\ns_cselect_b32 s{sX}, {VB[2]}, s{sX}")
    a(f"s_cmp_eq_u32 s{sWv}, 2\ns_cselect_b32 s{sX}, {VB[3]}, s{sX}\ns_cmp_eq_u32 s{sWv}, 3\ns_cselect_b32 s{sX}, {SPARE}, s{sX}")
    a(f"s_lshl_b32 s{sOo}, s{sWv}, 14")
    a(f"s_lshl_b32 s{sOK}, s{sWv}, 12\ns_mov_b32 s{sOV}, s{sOK}")
    a(f"s_mul_i32 s{sMK}, s{sWv}, {4*RS}\ns_add_u32 s{sMV}, s{sMK}, {VB[0]}")
    a(f"s_mov_b32 s{sQ+2}, 65536\ns_mov_b32 s{sQ+3}, 0x20000\ns_mov_b32 s3, s{sOo}\ns_mov_b32 m0, s{sX}")
    a(f"s_lshl_b32 s{sMb}, s2, 2\ns_add_u32 s{sMb}, s{sMb}, s{sWv}\ns_lshl_b32 s{sMb}, s{sMb}, 11\ns_add_u32 s{sMb}, s{sMb}, {XBASE}")
    a(f"s_mov_b32 s{sW+2}, {3*XBASE}\ns_mov_b32 s{sW+3}, 0x20000\nv_lshlrev_b32 v3, 7, v0")
    a("v_lshrrev_b32 v6, 3, v0\nv_and_b32 v7, 6, v6\nv_xor_b32 v7, v7, v0\nv_and_b32 v7, 7, v7\nv_lshlrev_b32 v7, 4, v7\nv_lshl_add_u32 v6, v6, 9, v7\nv_xor_b32 v7, 0x200, v6")
    a("s_waitcnt lgkmcnt(0)")
    fstamp(pro)
    a(f"s_add_u32 s{sQ}, s4, s{sT1}\ns_addc_u32 s{sQ+1}, s5, 0")
    fill = [f"s_mov_b32 s{sW}, s14\ns_mov_b32 s{sW+1}, s15\ns_mov_b64 exec, 3\nbuffer_load_dword v8, v3, s[{sW}:{sW+3}], s{sMb} offen sc1\ns_mov_b64 exec, -1",
            f"s_add_u32 s{sK}, s6, s{sT0}\ns_addc_u32 s{sK+1}, s7, 0", f"s_mov_b32 s{sK+2}, {NB*16384}", f"s_mov_b32 s{sK+3}, 0x20000",
            f"s_add_u32 s{sV}, s8, s{sT0}\ns_addc_u32 s{sV+1}, s9, 0", f"s_mov_b32 s{sV+2}, {NB*16384}", f"s_mov_b32 s{sV+3}, 0x20000",
            f"s_add_u32 s{sO}, s10, s{sT1}\ns_addc_u32 s{sO+1}, s11, 0", f"s_mov_b32 s{sO+2}, 65536", f"s_mov_b32 s{sO+3}, 0x20000",
            f"s_mov_b32 s{sDK2}, {2*KS}", f"s_mov_b32 s{sDV2}, {2*VS}", f"s_mov_b32 s{sDK}, {2*KS}", f"s_mov_b32 s{sDV}, {2*VS}",
            f"s_xor_b32 s{sPw}, s{sMb}, {pxor*8192}"]
    def setup():
        a(f"s_lshl_b32 s3, s{sKh}, 8\nv_xor_b32 v{vDmaV}, s3, v{vDma}")
        a(f"v_and_b32 v1, 15, v0\nv_lshrrev_b32 v4, 4, v0")
        a(f"v_mul_u32_u24 v2, {RS}, v1\nv_lshl_add_u32 v{vKa}, v4, 4, v2")
        a(f"v_lshrrev_b32 v2, 2, v0\nv_mul_u32_u24 v2, {RS}, v2\nv_and_b32 v3, 3, v0\nv_lshl_add_u32 v2, v3, 3, v2\nv_add_u32 v{vVa}, {VB[0]}, v2")
        a(f"v_lshlrev_b32 v3, 1, v3\nv_lshrrev_b32 v2, 2, v1\nv_and_b32 v5, 1, v2\nv_xor_b32 v5, v5, v3\nv_lshlrev_b32 v5, 7, v5\nv_lshl_add_u32 v5, v2, 10, v5")
        a(f"v_xor_b32 v3, v3, v4\nv_lshl_add_u32 v5, v3, 4, v5")
        a(f"v_add_u32 v28, s{sX}, v5\nv_xor_b32 v3, 128, v5\nv_add_u32 v29, s{sX}, v3\nv_xor_b32 v3, 64, v5\nv_add_u32 v30, s{sX}, v3\nv_xor_b32 v3, 0xc0, v5\nv_add_u32 v31, s{sX}, v3")
        a(f"s_mul_i32 s3, s{sWv}, 8704")
        a(f"v_mul_u32_u24 v2, 272, v1\nv_lshlrev_b32 v3, 3, v4\nv_add3_u32 v{vEw}, v2, v3, s3")
        a(f"v_lshlrev_b32 v3, 4, v1\nv_mul_u32_u24 v2, 272, v4\nv_add3_u32 v{vEr}, v2, v3, s3")
        a(f"v_lshl_add_u32 v{vOg}, v4, 10, v3")
        a(f"s_mov_b32 s{sC}, {f2u(C_SCALE):#x}")
        a(f"s_getreg_b32 s{sXcc}, hwreg(HW_REG_XCC_ID)\ns_and_b32 s{sXcc}, s{sXcc}, 15")
        a(f"v_mov_b32 v{vL}, 0\nv_mov_b32 v{vL+1}, 0\nv_mov_b32 v2, s{sC}")
        for r in range(zsplit[0]): a(f"v_mov_b32 v{vO+r}, 0")
    for c in range(4):
        for u in range(4):
            if 4*c+u == nq0: setup()
            if c or u:
                a(f"s_add_u32 m0, s{sX}, {1024*(4*c+u)}\ns_add_u32 s3, s{sOo}, {4096*u+128*c}"); a(fill.pop(0))
            a(f"buffer_load_dwordx4 v{6+u%2}, s[{sQ}:{sQ+3}], s3 offen{polQ} lds")
    assert not fill
    def dmaK(n, j): return [parse(f"s_add_u32 m0, s{sMK}, {(n%2)*KS+32*j}"),
                            parse(f"buffer_load_dwordx4 v{vDma}, s[{sK}:{sK+3}], s{sOK} offen offset:{1024*j}{polK} lds")]
    def dmaV(n, j): return [parse(f"s_add_u32 m0, s{sMV}, {(n%2)*VS+32*j}"),
                            parse(f"buffer_load_dwordx4 v{vDmaV}, s[{sV}:{sV+3}], s{sOV} offen offset:{1024*j}{polV} lds")]
    def advK(n):
        L = [parse(f"s_add_u32 s{sOK}, s{sOK}, 16384")]
        if n % 2 == 1: L += [parse(f"s_add_u32 s{sMK}, s{sMK}, s{sDK2}"), parse(f"s_sub_u32 s{sDK2}, 0, s{sDK2}")]
        return L
    def advV(n):
        L = [parse(f"s_add_u32 s{sOV}, s{sOV}, 16384")]
        if n % 2 == 1: L += [parse(f"s_add_u32 s{sMV}, s{sMV}, s{sDV2}"), parse(f"s_sub_u32 s{sDV2}, 0, s{sDV2}")]
        return L
    def block(seg, f, adv, n):
        for j in range(4):
            x = f(n, j); seg.add(x[0]); seg.a("s_nop 0"); seg.add(x[1])
        for x in adv(n): seg.add(x)
    vQr = 64
    def presc(r):
        x = 32 + 2*(r % 8)
        return [parse(t) for t in (f"v_lshlrev_b32 v{x}, 16, v{vQr+r}", f"v_and_b32 v{x+1}, 0xffff0000, v{vQr+r}",
                f"v_pk_mul_f32 v[{x}:{x+1}], v[{x}:{x+1}], v[2:3] op_sel_hi:[1,0]",
                f"v_cvt_pk_bf16_f32 v{x}, v{x}, v{x+1}", f"v_accvgpr_write_b32 a{aQ+r}, v{x}")]
    zq = [parse(f"v_mov_b32 v{vO+r}, 0") for r in range(128)]
    nxt_items = [(dmaK, advK, 0), (dmaK, advK, 1), (dmaK, advK, 2), (dmaV, advV, 0)]
    for c in range(4):
        a(f"s_waitcnt vmcnt({4*(3-c) + 4*c + (1 if c >= 1 else 0)})")
        if c == 0 or c == 3: fstamp(pro)
        for f in range(4*c, 4*c+4):
            tt, qt = (f//2) % 2, f % 2
            a(f"ds_read_b128 v[{vQr+4*f}:{vQr+4*f+3}], v{28+2*tt+qt} offset:{4096*c}")
        if c == 0:
            a(f"v_readlane_b32 s{sT0}, v8, 0\nv_readlane_b32 s{sT1}, v8, 1\nv_mov_b32 v3, 0")
            a(f"s_and_b32 s{sT1}, s{sT1}, 0xffffff00\ns_add_u32 s{sT1}, s{sT1}, 0x100\ns_or_b32 s{sT1}, s{sT1}, s{sXcc}")
            a(f"s_cmp_eq_u32 s{sT1}, s{sT0}\ns_cselect_b32 s3, 0x100, 0\ns_add_u32 s{sCh}, s{sT1}, s3\nv_mov_b32 v8, s{sCh}")
            a(f"buffer_store_dword v8, v3, s[{sW}:{sW+3}], s{sMb} offen offset:128 sc1")
        f_, adv, n = nxt_items[c]
        pq = [x for r in range(16*c, 16*c+16) for x in presc(r)]
        for j in range(4):
            x = f_(n, j); pro.add(x[0])
            for _ in range(20): pro.add(pq.pop(0))
            pro.add(x[1])
        for x in adv(n): pro.add(x)
        if c == 0 or c == 3: fstamp(pro)
    fstamp(pro); fstamp(pro)
    a(f"s_waitcnt vmcnt(12)\ns_barrier")
    stamp(pro)
    def kread(n, j): return parse(f"ds_read_b128 a[{aKF+4*j}:{aKF+4*j+3}], v{vKa} offset:{(n%2)*KS+64*(j//2)+512*(j%2)}")
    def vread(n, dt, kt, slot=None):
        r = aVF + 4*(dt if slot is None else slot) + 2*kt
        return parse(f"ds_read_b64_tr_b16 a[{r}:{r+1}], v{vVa} offset:{(n%2)*VS+512*kt+32*dt}")
    def qk(n, g, first0=False):
        j, qt = g//2, g % 2; t, kt = j//2, j % 2
        S = vS[n%2] + 8*qt + 4*kt; f = aKF+4*j; qf = aQ + 4*(2*t+qt)
        c = f"v[{S}:{S+3}]" if t else ("0" if first0 else f"v[{vCn+4*qt}:{vCn+4*qt+3}]")
        i = parse(f"v_mfma_f32_16x16x32_bf16 v[{S}:{S+3}], a[{f}:{f+3}], a[{qf}:{qf+3}], {c}")
        if g % (2*wgrp) == 0: i.extra = set(R("a", f, 4*wgrp))
        return i
    def pv(n, dt, qt, grp=None, slot=None):
        f = aVF+4*(dt if slot is None else slot); o = vO+8*dt+4*qt; p = vP[n%2]+4*qt
        i = parse(f"v_mfma_f32_16x16x32_bf16 v[{o}:{o+3}], a[{f}:{f+3}], v[{p}:{p+3}], v[{o}:{o+3}]")
        for d2 in (grp or ()): i.extra |= set(R("a", aVF+4*d2, 4))
        return i
    def pvlist(n, dts, slots=None):
        L = []; slots = slots or dts
        for k, dt in enumerate(dts):
            L.append(pv(n, dt, 0, slots[k:k+wgrp] if k % wgrp == 0 else None, slots[k])); L.append(pv(n, dt, 1, None, slots[k]))
        return L
    def checkops():
        return [parse(f"v_max_f32 v{vMx}, v{vLb}, v{vLb+1}"), parse(f"v_cmp_lt_f32 vcc, {f2u(2.0**T):#x}, v{vMx}")]
    def mergeops(): return [parse(f"v_add_f32 v{vL+qt}, v{vL+qt}, v{vLb+qt}") for qt in range(2)]
    def softmax_q(n, merge=True):
        S = vS[n%2]; P = vP[n%2]
        E = lambda r: parse(f"v_exp_f32 v{vPf+r}, v{S+r}")
        def A(r):
            if r % 8 == 1: return parse(f"v_add_f32 v{vLb+r//8}, v{vPf+r-1}, v{vPf+r}")
            return parse(f"v_add_f32 v{vLb+r//8}, v{vLb+r//8}, v{vPf+r}")
        Cv = lambda p: parse(f"v_cvt_pk_bf16_f32 v{P+p}, v{vPf+2*p}, v{vPf+2*p+1}")
        q = []
        mg = mergeops() if merge else []
        for r in range(16):
            q.append(E(r))
            if r % 8 == 0:
                if mg: q.append(mg.pop(0))
            else: q.append(A(r))
            if r % 2 == 1: q.append(Cv(r//2))
        return q
    def spread(ops, g0, g1):
        tot = sum(x.cost for x in ops); c = 0; out = []
        for x in ops:
            out.append((x, g0 + (g1-g0)*c/max(tot-ops[-1].cost, 1), g0)); c += x.cost
        return out
    def post(x): x.tag = "post"; return x
    def schedule(seg, mf, streams, sca, label="", cap=2, lastempty=False):
        n = len(mf); streams = [list(s) for s in streams if s]
        nm = n
        if lastempty: n -= 1
        for g in range(nm):
            seg.add(mf[g])
            s_ = sca.get(g, [])
            pre = [x for x in s_ if x.tag != "post"]; pst = [x for x in s_ if x.tag == "post"]
            wsh = 1 if (g+1 < nm and mf[g+1].extra) else 0
            free = cap - max(0, len(pre)+wsh-1) - len([x for x in pst if x.kind != "label"])
            mem = []; val = []
            while True:
                cands = [s for s in streams if s and s[0][2] <= g]
                if val: cands = [s for s in cands if s[0][0].kind not in ("dsr","dsw","dma","vst","vld")] + [s for s in cands if s[0][0].kind in ("dsr","dsw","dma","vst","vld")]
                cands.sort(key=lambda s: s[0][1])
                pick = None
                for s in cands:
                    x, tg, _ = s[0]
                    if g < n-1 and tg > g + 1.0 and (mem or val): continue
                    if g < n-1 and tg > g + 2.0: continue
                    if val and val[-1].kind == "trans" and (x.rd & val[-1].wr) and g < n-1: continue
                    if x.cost <= free or tg <= g - late or g == n-1: pick = s; break
                if pick is None: break
                x = pick.pop(0)[0]; free -= x.cost
                (mem if x.kind in ("dsr","dsw","dma","vld") else val).append(x)
            row = pre + mem + val + pst
            for x in row: seg.add(x)
            if verbose: print(f"; {label} gap{g}: " + "".join({"dsr":"t","dma":"d","trans":"e","valu":"v","salu":"s","wait":"w","barrier":"B","vst":"S"}.get(x.kind, "?") for x in row))
        assert not any(streams)
    def addf(d, g, *xs): d.setdefault(g, []).extend(xs)
    if exp:
        for k in range(16): a(f"ds_read_b128 a[{aVF+4*k}:{aVF+4*k+3}], v{vKa} offset:{32*k}")
        for k in range(4): a(f"ds_read_b128 v[{vP[0]+4*k}:{vP[0]+4*k+3}], v{vKa} offset:{32*k+256}")
        a("s_waitcnt lgkmcnt(0)")
    for j in range(6): pro.add(kread(0, j))
    rd = [(kread(0, j), 2*(j-6), 0) for j in range(6, 16)]
    pl = []; sca = {}; dm = []
    for k, g in enumerate((6, 13, 21, 29)):
        x = dmaK(3, k); addf(sca, g-1, x[0]); dm.append((x[1], g-3, g))
    addf(sca, 30, *advK(3))
    schedule(pro, [qk(0, g, True) for g in range(32)], [rd, pl, dm], sca, label="qk0")
    a(f"s_waitcnt vmcnt(12)\ns_barrier")
    stamp(pro)
    for j in range(6): pro.add(kread(1, j))
    a(f"s_mov_b32 s{sCnt}, {(NB-4)//2}")
    def rowmax(seg, S, zero):
        for qt, d, t in ((0, 1, 6), (1, 4, 7)):
            b = S + 8*qt
            seg.a(f"v_max3_f32 v{d}, v{b}, v{b+1}, v{b+2}\nv_max3_f32 v{d}, v{d}, v{b+3}, v{b+4}\nv_max3_f32 v{d}, v{d}, v{b+5}, v{b+6}")
            seg.a(f"v_max3_f32 v{d}, v{d}, v{b+7}, 0" if zero else f"v_max_f32 v{d}, v{d}, v{b+7}")
        seg.a("v_mov_b32 v6, v1\nv_mov_b32 v7, v4\nv_permlane16_swap_b32 v6, v1\nv_permlane16_swap_b32 v7, v4\nv_max_f32 v1, v1, v6\nv_max_f32 v4, v4, v7")
        seg.a("v_mov_b32 v6, v1\nv_mov_b32 v7, v4\nv_permlane32_swap_b32 v6, v1\nv_permlane32_swap_b32 v7, v4\nv_max_f32 v1, v1, v6\nv_max_f32 v4, v4, v7")
    for r in range(zsplit[0], zsplit[1]): a(f"v_mov_b32 v{vO+r}, 0")
    rowmax(pro, vS[0], False)
    for qt, d in ((0, 1), (1, 4)):
        for r in range(4): a(f"v_sub_f32 v{vCn+4*qt+r}, 0, v{d}")
        for r in range(8): a(f"v_sub_f32 v{vS[0]+8*qt+r}, v{vS[0]+8*qt+r}, v{d}")
    NV0 = 3
    NK0 = 6
    def nosh(g):
        while g % (2*wgrp) == 2*wgrp-1: g += 1
        return g
    def iteration(seg, i, ret, do_pv=True, loopend=False, pref=False):
        sca = {}; dm = []
        mf = [qk(i+2, g) for g in range(32)]
        tK = [parse(f"v_add_u32 v{vKa}, s{sDK}, v{vKa}"), parse(f"s_sub_u32 s{sDK}, 0, s{sDK}")]
        tV = [parse(f"v_add_u32 v{vVa}, s{sDV}, v{vVa}"), parse(f"s_sub_u32 s{sDV}, 0, s{sDV}")]
        def place(g, xs):
            for x in xs:
                g = nosh(g)
                while g in sca: g = nosh(g+1)
                addf(sca, g, x); g += 1
            return g
        if do_pv:
            mf += pvlist(i, list(range(16)))
            mf[63].extra = set(R("a", aKF, 4*wgrp))
            mf[0].extra = set()
            dp = dmagaps
            addf(sca, bg, parse("s_waitcnt vmcnt(12)"), parse("s_barrier"))
            if loopend:
                addf(sca, 60, parse(f"s_sub_u32 s{sCnt}, s{sCnt}, 1")); addf(sca, 61, parse(f"s_cmp_lg_u32 s{sCnt}, 0"))
            last = i == NB-3
            for k in range(1, 8):
                if pref and k >= 4:
                    kk = 4*(i % 2) + k - 4
                    y = parse(f"buffer_load_dwordx4 a[192:195], v{vOg}, s[{sO}:{sO+3}], s{sT0} offen offset:{512*(kk%2)}"); y.wr = set()
                    dm.append((y, dp[k]-3, dp[k]))
                    if kk % 2 == 1: addf(sca, dp[k]+1, parse(f"s_add_u32 s{sT0}, s{sT0}, 4096"))
                    continue
                x = dmaV(i+2, k) if k < 4 else dmaK(i+5, k-4)
                addf(sca, dp[k]-1, x[0]); dm.append((x[1], dp[k]-3, dp[k]))
            if last:
                y = parse(f"buffer_load_dwordx4 a[192:195], v{vDma}, s[{sW}:{sW+3}], s{sMb} offen offset:256"); y.wr = set()
                dm.append((y, dp[0]-3, dp[0]))
            else:
                x = dmaV(i+3, 0); addf(sca, dp[0]-1, x[0]); dm.append((x[1], dp[0]-3, dp[0]))
            if not last: assert place(dp[3]+1, advV(i+2)) < dp[0]
            if not pref: assert place(dp[7]+1, advK(i+5)) <= 60
            r1 = [kread(i+2, j) for j in range(NK0, 16)] + [vread(i, dt, kt) for dt in range(16) for kt in range(2)]
            nxt = [vread(i+1, dt, kt) for dt in range(8, 8+NV0) for kt in range(2)] if last else [kread(i+3, j) for j in range(NK0)]
            if last: mf[63].extra = set(R("a", aVF+32, 4*wgrp))
            rd = spread(r1, 0, bg-1) + [(y, t, bg+(2 if last else 1)) for (y, t, _) in spread(nxt, bg+1, 61)]
            tg = []
            if i % 2 == 1:
                tg = [(tK[0], 16, 16), (tV[0], bg-1, bg+1)]; place(21, [tK[1]]); assert place(bg+4, [tV[1]]) <= 60
            n0 = len(seg.ins)
            schedule(seg, mf, [dm, rd, tg, spread(softmax_q(i+1) + checkops(), 0, smend)], sca, label=f"it{i}", lastempty=True)
            tx = [x.text for x in seg.ins[n0:]]
            if i % 2 == 1:
                assert tx.index(kread(i+2, 15).text) < tx.index(tK[0].text) < tx.index(tK[1].text) < tx.index(nxt[0].text)
                assert tx.index(vread(i, 15, 1).text) < tx.index(tV[0].text) < tx.index(tV[1].text)
                if last: assert tx.index(tV[0].text) < tx.index(nxt[0].text)
            assert tx.index("s_barrier") < len(tx) - 1 - tx[::-1].index(nxt[0].text)
            seg.a(f"s_cbranch_vccnz L_rare{ret}\nL_back{ret}:")
        else:
            for k, g in enumerate((1, 5, 9, 13, 17, 21, 25, 29)):
                x = dmaV(i+2, k) if k < 4 else dmaK(i+5, k-4)
                addf(sca, g-1, x[0]); dm.append((x[1], g-3, g))
            place(14, advV(i+2)); place(30, advK(i+5))
            rd = spread([kread(i+2, j) for j in range(NK0, 16)], 0, 16)
            schedule(seg, mf, [dm, rd, spread(softmax_q(i+1, merge=False), 0, 31)], sca, label=f"it{i}")
            seg.add(tK[0]); seg.add(tK[1])
            seg.a("s_waitcnt vmcnt(12)\ns_barrier")
            for j in range(NK0): seg.add(kread(i+3, j))
            x = dmaV(i+3, 0); seg.add(x[0]); seg.a(f"buffer_load_dword v2, v3, s[{sW}:{sW+3}], s{sPw} offen offset:128 sc1"); seg.add(x[1])
            seg.a(f"s_waitcnt lgkmcnt({NK0-wgrp})")
    iteration(pro, -1, None, do_pv=False)
    for r in range(zsplit[1], zsplit[2]): a(f"v_mov_b32 v{vO+r}, 0")
    stamp(pro)
    body = Seg("loop"); body.a("L_loop:")
    iteration(body, 0, 0); iteration(body, 1, 1, loopend=True)
    if stamps == 2:
        body.a(f"s_waitcnt lgkmcnt(0)\ns_memtime s[60:61]\ns_memrealtime s[62:63]\ns_sub_u32 m0, 21, s{sCnt}\ns_cmp_lg_u32 s{sCnt}, 0\ns_waitcnt lgkmcnt(0)\nv_writelane_b32 v10, s60, m0\nv_writelane_b32 v11, s62, m0")
    zseg = Seg("zero")
    if zsplit[2] < 128:
        zgs = zgap if isinstance(zgap, tuple) else (zgap,)
        per = (128 - zsplit[2]) // len(zgs)
        for n_, zg in enumerate(zgs):
            r0 = zsplit[2] + n_*per
            assert zg < 32 + 2*(r0//8)
            mi = [k for k, x in enumerate(body.ins) if x.kind == "mfma"]
            k = mi[zg]
            body.ins[k+1:k+1] = [parse(f"s_cbranch_scc1 L_zero{n_}"), parse(f"L_zback{n_}:")]
            k = mi[zg-1]
            for y in body.ins[k+1:mi[zg]]: assert y.kind != "salu"
            body.ins[k+1:k+1] = [parse(f"s_cmp_eq_u32 s{sCnt}, {(NB-4)//2}")]
            zseg.a(f"L_zero{n_}:")
            for r in range(r0, r0+per): zseg.a(f"v_mov_b32 v{vO+r}, 0")
            zseg.a(f"s_nop 1\ns_branch L_zback{n_}")
    if xpad:
        nb = []; mcount = 0; lab = 0
        for x in body.ins:
            nb.append(x)
            if x.kind == "mfma":
                it = mcount // 64; g = mcount % 64; mcount += 1
                step = 64 // xpad[3]
                if g % step == step//2 - 2:
                    thr = xpad[it]
                    nb += [parse(f"s_cmp_ge_u32 s{sCnt}, {thr}"), parse(f"s_cbranch_scc0 L_xp{lab}")] + [parse("s_nop 15") for _ in range(xpad[2])] + [parse(f"L_xp{lab}:")]
                    lab += 1
        body.ins = nb
    body.a(f"s_cbranch_scc1 L_loop")
    tail = Seg("tail"); e = tail.a
    e(f"s_lshl_b32 s{sX}, s{sKh}, 8\ns_add_u32 s{sX}, s{sOo}, s{sX}\ns_xor_b32 s{sOo}, s{sX}, 256\ns_mov_b32 s{sT0}, s{sX}")
    iteration(tail, NB-4, 3, pref=True); iteration(tail, NB-3, 4, pref=True)
    stamp(tail)
    i = NB-2
    snd = list(range(8, 16)); own = list(range(8))
    rd = spread([vread(i, dt, kt) for dt in range(8+NV0, 16) for kt in range(2)], 0, 6)
    rd += [(y, t, btx+1) for (y, t, _) in spread([vread(i+1, dt, kt, dt-8) for dt in snd for kt in range(2)], btx+1, 15)]
    sca = {btx: [parse("s_waitcnt vmcnt(5)"), parse("s_barrier")]}
    mf = pvlist(i, snd); mf[0].extra = set()
    schedule(tail, mf, [rd, spread(softmax_q(i+1) + checkops(), 0, 15)], sca, label="X", cap=5)
    e(f"v_readfirstlane_b32 s{sT1}, v2\ns_cbranch_vccnz L_rare2\nL_back2:")
    fstamp(tail)
    e(f"s_and_b32 s3, s{sT1}, 0xff")
    sends = []
    if fast: e(f"s_cmp_eq_u32 s3, s{sXcc}\ns_cbranch_scc1 L_sendfast")
    for var in (("slow", " sc1"), ("fast", "")) if fast else (("slow", " sc1"),):
        sg = Seg("send_"+var[0]); sends.append(sg)
        if var[0] == "fast": sg.a("L_sendfast:")
        st = mergeops() + [parse(t) for t in (f"v_mov_b32 v6, v{vL}", f"v_mov_b32 v7, v{vL+1}", f"v_mov_b32 v4, v{vCn}", f"v_mov_b32 v5, v{vCn+4}",
              f"v_permlane16_swap_b32 v6, v{vL}", f"v_permlane16_swap_b32 v7, v{vL+1}", f"v_add_f32 v{vL}, v6, v{vL}", f"v_add_f32 v{vL+1}, v7, v{vL+1}",
              f"v_mov_b32 v6, v{vL}", f"v_mov_b32 v7, v{vL+1}", "s_nop 0", f"v_permlane32_swap_b32 v6, v{vL}", f"v_permlane32_swap_b32 v7, v{vL+1}",
              f"v_add_f32 v6, v6, v{vL}", f"v_add_f32 v7, v7, v{vL+1}",
              f"buffer_store_dwordx4 v[4:7], v{vDma}, s[{sW}:{sW+3}], s{sPw} offen offset:256{var[1]}")]
        q = []
        for k in range(8):
            o = vO + 8*(8+k); g0 = 2*k + 1 + 3
            for x in range(4): q.append((parse(f"v_cvt_pk_bf16_f32 v{vTmp+4*k+x}, v{o+2*x}, v{o+2*x+1}"), g0-2, g0))
            q.append((parse(f"buffer_store_dwordx4 v[{vTmp+4*k}:{vTmp+4*k+3}], v{vOg}, s[{sO}:{sO+3}], s{sOo} offen offset:{512*(k%2)}{var[1]}"), g0-2, g0))
            if k % 2 == 1 and k < 7: q.append((parse(f"s_add_u32 s{sOo}, s{sOo}, 4096"), g0-2, g0))
        rd = spread([vread(i, dt, kt, dt+8) for dt in own for kt in range(2)], 1, 20)
        rd += [(y, t, 17) for (y, t, _) in spread([vread(i+1, dt, kt) for dt in own for kt in range(2)], 21, 38)]
        mf = pvlist(i+1, snd, own) + pvlist(i, own, snd) + pvlist(i+1, own)
        if var[0] == "slow": nf0 = nf[0]; st0 = nst[0]
        nf[0] = nf0; nst[0] = st0
        tg = Seg("x"); tg.a("s_waitcnt vmcnt(0)"); stamp(tg)
        tg.a(f"buffer_store_dword v2, v3, s[{sW}:{sW+3}], s{sPw} offen{var[1]}")
        sca = {tagg: [post(x) for x in tg.ins]}
        schedule(sg, mf, [rd, q, spread(st, 0, 4)], sca, label="YZ", cap=3)
        fstamp(sg)
        if var[0] == "slow" and fast: sg.a("s_branch L_sent")
    fin = Seg("final"); e = fin.a
    e("L_sent:")
    e(f"s_mov_b32 s{sCnt}, 0x200000")
    e("L_poll:")
    e(f"s_sub_u32 s{sCnt}, s{sCnt}, 1\ns_cbranch_scc1 L_pollok")
    e(f"buffer_load_dword v8, v3, s[{sW}:{sW+3}], s{sMb} offen{xpoll}\ns_waitcnt vmcnt(0)\nv_readfirstlane_b32 s3, v8\ns_cmp_lg_u32 s3, s{sCh}\ns_cbranch_scc1 L_poll")
    e("L_pollok:")
    stamp(fin)
    e(f"s_mov_b32 s{sOo}, s{sX}")
    def xloads(pol):
        e(f"buffer_load_dwordx4 v[32:35], v{vDma}, s[{sW}:{sW+3}], s{sMb} offen offset:256{pol}")
        for k in range(8):
            e(f"buffer_load_dwordx4 v[{vTmp+4*k}:{vTmp+4*k+3}], v{vOg}, s[{sO}:{sO+3}], s{sOo} offen offset:{512*(k%2)}{pol}")
            if k % 2 == 1 and k < 7: e(f"s_add_u32 s{sOo}, s{sOo}, 4096")
    xloads(xld)
    e(f"buffer_load_dword v2, v3, s[{sW}:{sW+3}], s{sPw} offen offset:128 sc1")
    fstamp(fin, 9); fstamp(fin, 0)
    for qt in range(2):
        fo, fx, t = 36+2*qt, 40+2*qt, 44+qt
        e(f"v_min_f32 v{t}, v{4+qt}, v{32+qt}\nv_sub_f32 v{fo}, v{t}, v{4+qt}\nv_sub_f32 v{fx}, v{t}, v{32+qt}\nv_exp_f32 v{fo}, v{fo}\nv_exp_f32 v{fx}, v{fx}")
    for qt in range(2):
        fo, fx, t = 36+2*qt, 40+2*qt, 44+qt
        e(f"v_mul_f32 v{t}, v{fo}, v{6+qt}\nv_fma_f32 v{t}, v{fx}, v{34+qt}, v{t}\nv_rcp_f32 v{t}, v{t}")
    for qt in range(2):
        fo, fx, t = 36+2*qt, 40+2*qt, 44+qt
        e(f"v_mul_f32 v{fo}, v{fo}, v{t}\nv_mul_f32 v{fx}, v{fx}, v{t}")
    for r in range(0, 64, 2):
        fo = 36 + 2*((r//4) % 2)
        e(f"v_pk_mul_f32 v[{vO+r}:{vO+r+1}], v[{vO+r}:{vO+r+1}], v[{fo}:{fo+1}] op_sel_hi:[1,0]")
    for dt in range(8):
        for qt in range(2):
            o = vO + 8*dt + 4*qt; p = vTmp + 4*dt + 2*qt; u = 48 + 4*((2*dt+qt) % 4); fx = 40+2*qt
            e(f"v_lshlrev_b32 v{u}, 16, v{p}\nv_and_b32 v{u+1}, 0xffff0000, v{p}\nv_lshlrev_b32 v{u+2}, 16, v{p+1}\nv_and_b32 v{u+3}, 0xffff0000, v{p+1}")
            e(f"v_pk_fma_f32 v[{o}:{o+1}], v[{u}:{u+1}], v[{fx}:{fx+1}], v[{o}:{o+1}] op_sel_hi:[1,0,1]")
            e(f"v_pk_fma_f32 v[{o+2}:{o+3}], v[{u+2}:{u+3}], v[{fx}:{fx+1}], v[{o+2}:{o+3}] op_sel_hi:[1,0,1]")
            e(f"v_cvt_pk_bf16_f32 v{o}, v{o}, v{o+1}\nv_cvt_pk_bf16_f32 v{o+1}, v{o+2}, v{o+3}")
            e(f"ds_write_b64 v{vEw}, v[{o}:{o+1}] offset:{4352*qt+32*dt}")
    fstamp(fin)
    korder = [0, 4, 1, 5, 2, 6, 3, 7]
    for n_, k in enumerate(korder): e(f"ds_read_b128 v[{192+4*n_}:{192+4*n_+3}], v{vEr} offset:{1088*k}")
    e(f"v_readfirstlane_b32 s3, v2\ns_cmp_eq_u32 s3, s{sT1}\ns_cbranch_scc1 L_tagok")
    e(f"buffer_wbl2 sc1\ns_waitcnt vmcnt(0)\nbuffer_store_dword v2, v3, s[{sW}:{sW+3}], s{sPw} offen sc1")
    e("L_tagok:")
    for k in range(8):
        e(f"buffer_store_dwordx4 v[{192+4*k}:{192+4*k+3}], v{vOg}, s[{sO}:{sO+3}], s{sX} offen offset:{512*(k%2)}{polO}")
        if k % 2 == 1 and k < 7: e(f"s_add_u32 s{sX}, s{sX}, 4096")
    fstamp(fin)
    endseg = Seg("end"); e = endseg.a
    if stamps:
        e("s_waitcnt vmcnt(0)")
        stamp(endseg)
        e(f"s_lshl_b32 s3, s2, 2\ns_add_u32 s3, s3, s{sWv}\ns_lshl_b32 s3, s3, 9\nv_lshlrev_b32 v{vSt}, 3, v0")
        e(f"buffer_store_dwordx2 v[10:11], v{vSt}, s[{sW}:{sW+3}], s3 offen")
    if probe is not None:
        e("s_waitcnt vmcnt(0)")
        stamp(endseg)
        e(f"s_sub_u32 s94, s94, s96\ns_add_u32 s94, s94, 2500\nL_pad:\ns_memrealtime s[98:99]\ns_waitcnt lgkmcnt(0)\ns_sub_u32 s3, s98, s96\ns_cmp_lt_u32 s3, s94\ns_cbranch_scc1 L_pad")
    if padto:
        e(f"s_waitcnt vmcnt(0)\nL_pad:\ns_memrealtime s[98:99]\ns_waitcnt lgkmcnt(0)\ns_sub_u32 s3, s98, s96\ns_cmp_lt_u32 s3, {int(padto*100)}\ns_cbranch_scc1 L_pad")
    e("L_end:\ns_endpgm")
    rares = []
    for ret, i in ((0, 0), (1, 1), (2, NB-2), (3, NB-4), (4, NB-3)):
        r = Seg(f"rare{ret}"); e = r.a
        S = vS[(i+1)%2]; S2 = vS[i%2]
        e(f"L_rare{ret}:")
        rowmax(r, S, True)
        e("v_exp_f32 v6, -v1\nv_exp_f32 v7, -v4")
        for qt, d, al in ((0, 1, 6), (1, 4, 7)):
            for k in range(4): e(f"v_sub_f32 v{vCn+4*qt+k}, v{vCn+4*qt+k}, v{d}")
            for k in range(8): e(f"v_sub_f32 v{S+8*qt+k}, v{S+8*qt+k}, v{d}")
            if ret != 2:
                for k in range(8): e(f"v_sub_f32 v{S2+8*qt+k}, v{S2+8*qt+k}, v{d}")
            e(f"v_mul_f32 v{vL+qt}, v{al}, v{vL+qt}")
        if ret == 2:
            for k in range(8):
                p = vP[i%2] + k; al = 6 + k//4
                e(f"v_lshlrev_b32 v{vPf}, 16, v{p}\nv_and_b32 v{vPf+1}, 0xffff0000, v{p}\nv_mul_f32 v{vPf}, v{al}, v{vPf}\nv_mul_f32 v{vPf+1}, v{al}, v{vPf+1}\nv_cvt_pk_bf16_f32 v{p}, v{vPf}, v{vPf+1}")
        for x in softmax_q(i+1, merge=False): r.add(x)
        for k in range(128): e(f"v_mul_f32 v{vO+k}, v{6+(k//4)%2}, v{vO+k}")
        e(f"s_nop 1\ns_branch L_back{ret}")
        rares.append(r)
    if exp:
        nb = []
        for x in body.ins:
            if "nolds" in exp and x.kind == "dsr": continue
            if "novalu" in exp and x.kind in ("valu","trans") and not x.text.startswith("v_add_u32") and not x.text.startswith("v_cmp") and not x.text.startswith("v_writelane"): continue
            if "nodma" in exp and x.kind == "dma": continue
            if "nomfma" in exp and x.kind == "mfma": continue
            if "nobar" in exp and (x.kind == "barrier" or (x.kind == "wait" and x.vm is not None)): continue
            if "nomax" in exp and x.text.startswith("v_max"): continue
            nb.append(x)
        body.ins = nb
    order = [pro, body, tail] + sends + [fin, endseg, zseg] + rares
    traces = [[pro, body, body, body, tail, s, fin, endseg] for s in sends]
    fix_waits(traces, verbose)
    for s in order: merge_waits(s)
    fix_waits(traces, verbose)
    def upto(seg, lab):
        s = Seg(seg.name+"_pre"); k = [i.text for i in seg.ins].index(lab); s.ins = seg.ins[:k]
        s2 = Seg(seg.name+"_post"); s2.ins = seg.ins[k:]; return s, s2
    for ret, seg, prev, nxt in ((0, body, [pro, body], [body]), (1, body, [pro, body], [body]), (1, body, [pro, body], [tail]), (2, tail, [pro, body], [sends[0]]), (3, tail, [pro, body], []), (4, tail, [pro, body], [])):
        p, q = upto(seg, f"L_back{ret}:")
        n0 = [len(x.ins) for x in [p, q] + nxt]
        fix_waits([prev + [p, rares[ret], q] + nxt], verbose)
        assert exp or [len(x.ins) for x in [p, q] + nxt] == n0, "rare path needs extra waits outside"
    lds = SPARE + KS
    txt = header + f"; @launch grid=(256,1,1) block=(256,1,1) lds={lds}\n"
    txt += f'.amdgcn_target "amdgcn-amd-amdhsa--gfx950"\n.text\n.globl {KN}\n.p2align 8\n.type {KN},@function\n{KN}:\n'
    txt += emit(order) + "\nL_codeend:\n"
    txt += f'''.section .rodata,"a"
.p2align 6
.amdhsa_kernel {KN}
  .amdhsa_next_free_vgpr 452
  .amdhsa_next_free_sgpr 102
  .amdhsa_accum_offset 256
  .amdhsa_group_segment_fixed_size 0
  .amdhsa_kernarg_size 48
  .amdhsa_user_sgpr_count 2
  .amdhsa_user_sgpr_kernarg_segment_ptr 1
  .amdhsa_system_sgpr_workgroup_id_x 1
.end_amdhsa_kernel
'''
    return txt
if __name__ == "__main__":
    kw = eval("dict(" + (sys.argv[1] if len(sys.argv) > 1 else "") + ")")
    print(gen(**kw))
```

```python
import sys, math, struct
from asmlib import *
KN = "standalone__gqa_softmax__near_ridge_kernel"
def f2u(x): return struct.unpack("<I", struct.pack("<f", x))[0]
RS = 1056; KS = VS = 16*RS
KB = [i*KS for i in range(4)]
VB = [4*KS + i*VS for i in range(4)]
SPARE = 8*KS
C_SCALE = math.log2(math.e)/16.0
NB = 16
vOg, vEw, vEr, vSt = 12, 13, 14, 15
vKa, vVa, vDma, vDmaV, vMx = 16, 17, 18, 19, 20
vL = 22
vLb = 8
vPf = 80
vCn = 24
vP = [32, 40]; vS = [48, 64]; vTmp = 96; vO = 128
aQ, aKF, aVF = 0, 64, 128
sQ, sK, sV, sO, sW = 16, 20, 24, 28, 32
sWv, sOK, sOV, sMK, sMV, sCnt, sC, sDK, sDV, sXcc, sKh, sT0, sT1, sOo, sX = 40,41,42,43,44,45,46,47,48,49,50,51,52,53,54
sDK2, sDV2, sPw, sMb, sCh = 55, 56, 57, 58, 59
XBASE = 1 << 20

def gen(polK="", polV="", polQ="", polO="", stamps=False, T=8.0, verbose=False, header="", padto=0, exp=(),
        fast=True, pxor=16, bg=53, dmagaps=(57,1,9,17,25,33,41,49), npre=5, wgrp=2, smend=60, late=1.6, xld=' sc1', xpoll=' sc1', fine=False, xpad=None, xstag=0, probe=None, cpf=True, btx=7, tagg=36, nq0=11, zsplit=(128,128,128), zgap=14, otouch=False, peel=True, mergeb=False, prefmode=1, stag=None, st256=True, ptrips=(4,3,2), pcont=False, ppol=''):
    nst = [0]
    def stamp(seg):
        if probe is not None:
            if nst[0] == probe: seg.a("s_waitcnt lgkmcnt(0)\ns_memrealtime s[94:95]\ns_waitcnt lgkmcnt(0)")
            nst[0] += 1
        if stamps:
            seg.a(f"s_waitcnt lgkmcnt(0)\ns_memtime s[60:61]\ns_memrealtime s[62:63]\ns_waitcnt lgkmcnt(0)\nv_writelane_b32 v10, s60, {nst[0]}\nv_writelane_b32 v11, s62, {nst[0]}"); nst[0] += 1
    nf = [32]
    def fstamp(seg, vm=None):
        if stamps and fine:
            if vm is not None: seg.a(f"s_waitcnt vmcnt({vm})")
            sv = nst[0]; nst[0] = nf[0]; stamp(seg); nf[0] += 1; nst[0] = sv
    pro = Seg("prologue"); a = pro.a
    a(f"s_cmp_ge_u32 s2, 256\ns_cbranch_scc1 L_end")
    a("s_load_dwordx8 s[4:11], s[0:1], 0\ns_load_dwordx2 s[14:15], s[0:1], 40")
    if padto or probe is not None: a("s_memrealtime s[96:97]")
    stamp(pro)
    if xstag:
        a(f"s_bitcmp1_b32 s2, 5\ns_cbranch_scc0 L_nostag\ns_sleep {xstag}\nL_nostag:")
    a("v_lshrrev_b32 v1, 6, v0\nv_and_b32 v0, 63, v0")
    a(f"v_readfirstlane_b32 s{sWv}, v1")
    if cpf:
        a(f"s_getpc_b64 s[36:37]\ns_lshr_b32 s3, s2, 3\ns_lshl_b32 s3, s3, 2\nv_add_u32 v4, s3, v1\nv_lshlrev_b32 v4, 1, v4\nv_add_u32 v4, v4, v0\nv_lshlrev_b32 v4, 7, v4")
        a(f"v_min_u32 v4, L_codeend-{KN}-256, v4\nv_mov_b32 v5, s37\nv_add_co_u32 v4, vcc, s36, v4\ns_nop 1\nv_addc_co_u32 v5, vcc, 0, v5, vcc")
        a("s_mov_b64 exec, 3")
        y = I("global_load_dword a192, v[4:5], off", "vld", rd=["v4", "v5"]); pro.add(y)
        a("s_mov_b64 exec, -1")
    a(f"v_lshlrev_b32 v{vDma}, 4, v0")
    if pxor == 16:
        a(f"s_mov_b32 s{sX}, s2")
    else:
        a(f"s_and_b32 s{sX}, s2, 0xee\ns_bfe_u32 s3, s2, 0x10004\ns_or_b32 s{sX}, s{sX}, s3\ns_and_b32 s3, s2, 1\ns_lshl_b32 s3, s3, 4\ns_or_b32 s{sX}, s{sX}, s3")
    a(f"s_and_b32 s{sT0}, s{sX}, 7\ns_lshr_b32 s{sT1}, s{sX}, 3\ns_lshl_b32 s{sT0}, s{sT0}, 3")
    a(f"s_lshr_b32 s3, s{sT1}, 2\ns_add_u32 s{sT0}, s{sT0}, s3")
    a(f"s_bfe_u32 s{sKh}, s{sT1}, 0x10001")
    a(f"s_and_b32 s{sT1}, s{sT1}, 1\ns_lshl_b32 s3, s{sT0}, 1\ns_add_u32 s{sT1}, s{sT1}, s3")
    a(f"s_lshl_b32 s{sT1}, s{sT1}, 16")
    a(f"s_lshl_b32 s{sT0}, s{sT0}, 19\ns_lshl_b32 s3, s{sKh}, 18\ns_add_u32 s{sT0}, s{sT0}, s3")
    a(f"s_mov_b32 s{sX}, {KB[3]}\ns_cmp_eq_u32 s{sWv}, 1\ns_cselect_b32 s{sX}, {VB[2]}, s{sX}")
    a(f"s_cmp_eq_u32 s{sWv}, 2\ns_cselect_b32 s{sX}, {VB[3]}, s{sX}\ns_cmp_eq_u32 s{sWv}, 3\ns_cselect_b32 s{sX}, {SPARE}, s{sX}")
    a(f"s_lshl_b32 s{sOo}, s{sWv}, 14")
    a(f"s_lshl_b32 s{sOK}, s{sWv}, 12\ns_mov_b32 s{sOV}, s{sOK}")
    a(f"s_mul_i32 s{sMK}, s{sWv}, {4*RS}\ns_add_u32 s{sMV}, s{sMK}, {VB[0]}")
    a(f"s_mov_b32 s{sQ+2}, 65536\ns_mov_b32 s{sQ+3}, 0x20000\ns_mov_b32 s{sK+2}, {NB*16384}\ns_mov_b32 s{sK+3}, 0x20000\ns_mov_b32 m0, s{sMK}")
    a(f"s_mov_b32 s{sDK2}, {2*KS}\ns_mov_b32 s{sDV2}, {2*VS}\ns_mov_b32 s{sDK}, {2*KS}\ns_mov_b32 s{sDV}, {2*VS}")
    a(f"s_lshl_b32 s{sMb}, s2, 2\ns_add_u32 s{sMb}, s{sMb}, s{sWv}\ns_lshl_b32 s{sMb}, s{sMb}, 11\ns_add_u32 s{sMb}, s{sMb}, {XBASE}")
    a(f"s_mov_b32 s{sW+2}, {3*XBASE}\ns_mov_b32 s{sW+3}, 0x20000\nv_lshlrev_b32 v3, 7, v0")
    a(f"s_getreg_b32 s{sXcc}, hwreg(HW_REG_XCC_ID)\ns_and_b32 s{sXcc}, s{sXcc}, 15")
    a("v_lshrrev_b32 v6, 3, v0\nv_and_b32 v7, 6, v6\nv_xor_b32 v7, v7, v0\nv_and_b32 v7, 7, v7\nv_lshlrev_b32 v7, 4, v7\nv_lshl_add_u32 v6, v6, 9, v7\nv_xor_b32 v7, 0x200, v6")
    a("s_waitcnt lgkmcnt(0)")
    fstamp(pro)
    def setup():
        a(f"s_lshl_b32 s3, s{sKh}, 8\nv_xor_b32 v{vDmaV}, s3, v{vDma}")
        a(f"v_and_b32 v1, 15, v0\nv_lshrrev_b32 v4, 4, v0")
        a(f"v_mul_u32_u24 v2, {RS}, v1\nv_lshl_add_u32 v{vKa}, v4, 4, v2")
        a(f"v_lshrrev_b32 v2, 2, v0\nv_mul_u32_u24 v2, {RS}, v2\nv_and_b32 v3, 3, v0\nv_lshl_add_u32 v2, v3, 3, v2\nv_add_u32 v{vVa}, {VB[0]}, v2")
        a(f"v_lshlrev_b32 v3, 1, v3\nv_lshrrev_b32 v2, 2, v1\nv_and_b32 v5, 1, v2\nv_xor_b32 v5, v5, v3\nv_lshlrev_b32 v5, 7, v5\nv_lshl_add_u32 v5, v2, 10, v5")
        a(f"v_xor_b32 v3, v3, v4\nv_lshl_add_u32 v5, v3, 4, v5")
        a(f"v_add_u32 v28, s{sX}, v5\nv_xor_b32 v3, 128, v5\nv_add_u32 v29, s{sX}, v3\nv_xor_b32 v3, 64, v5\nv_add_u32 v30, s{sX}, v3\nv_xor_b32 v3, 0xc0, v5\nv_add_u32 v31, s{sX}, v3")
        a(f"s_mul_i32 s3, s{sWv}, 8704")
        a(f"v_mul_u32_u24 v2, 272, v1\nv_lshlrev_b32 v3, 3, v4\nv_add3_u32 v{vEw}, v2, v3, s3")
        a(f"v_lshlrev_b32 v3, 4, v1\nv_mul_u32_u24 v2, 272, v4\nv_add3_u32 v{vEr}, v2, v3, s3")
        a(f"v_lshl_add_u32 v{vOg}, v4, 10, v3\nv_mov_b32 v{vSt}, " + ("v3" if st256 else f"v{vDma}"))
        a(f"s_mov_b32 s{sC}, {f2u(C_SCALE):#x}")
        a(f"v_mov_b32 v{vL}, 0\nv_mov_b32 v{vL+1}, 0\nv_mov_b32 v2, s{sC}")
        for r in range(zsplit[0]): a(f"v_mov_b32 v{vO+r}, 0")
    def dmaK(n, j): return [parse(f"s_add_u32 m0, s{sMK}, {(n%2)*KS+32*j}"),
                            parse(f"buffer_load_dwordx4 v{vDma}, s[{sK}:{sK+3}], s{sOK} offen offset:{1024*j}{polK} lds")]
    def dmaV(n, j): return [parse(f"s_add_u32 m0, s{sMV}, {(n%2)*VS+32*j}"),
                            parse(f"buffer_load_dwordx4 v{vDmaV}, s[{sV}:{sV+3}], s{sOV} offen offset:{1024*j}{polV} lds")]
    def advK(n):
        L = [parse(f"s_add_u32 s{sOK}, s{sOK}, 16384")]
        if n % 2 == 1: L += [parse(f"s_add_u32 s{sMK}, s{sMK}, s{sDK2}"), parse(f"s_sub_u32 s{sDK2}, 0, s{sDK2}")]
        return L
    def advV(n):
        L = [parse(f"s_add_u32 s{sOV}, s{sOV}, 16384")]
        if n % 2 == 1: L += [parse(f"s_add_u32 s{sMV}, s{sMV}, s{sDV2}"), parse(f"s_sub_u32 s{sDV2}, 0, s{sDV2}")]
        return L
    def block(seg, f, adv, n):
        for j in range(4):
            x = f(n, j); seg.add(x[0]); seg.a("s_nop 0"); seg.add(x[1])
        for x in adv(n): seg.add(x)
    def kread(n, j): return parse(f"ds_read_b128 a[{aKF+4*j}:{aKF+4*j+3}], v{vKa} offset:{(n%2)*KS+64*(j//2)+512*(j%2)}")
    def vread(n, dt, kt, slot=None):
        r = aVF + 4*(dt if slot is None else slot) + 2*kt
        return parse(f"ds_read_b64_tr_b16 a[{r}:{r+1}], v{vVa} offset:{(n%2)*VS+512*kt+32*dt}")
    def qk(n, g, first0=False):
        j, qt = g//2, g % 2; t, kt = j//2, j % 2
        S = vS[n%2] + 8*qt + 4*kt; f = aKF+4*j; qf = aQ + 4*(2*t+qt)
        c = f"v[{S}:{S+3}]" if t else ("0" if first0 else f"v[{vCn+4*qt}:{vCn+4*qt+3}]")
        i = parse(f"v_mfma_f32_16x16x32_bf16 v[{S}:{S+3}], a[{f}:{f+3}], a[{qf}:{qf+3}], {c}")
        if g % (2*wgrp) == 0: i.extra = set(R("a", f, 4*wgrp))
        return i
    def pv(n, dt, qt, grp=None, slot=None):
        f = aVF+4*(dt if slot is None else slot); o = vO+8*dt+4*qt; p = vP[n%2]+4*qt
        i = parse(f"v_mfma_f32_16x16x32_bf16 v[{o}:{o+3}], a[{f}:{f+3}], v[{p}:{p+3}], v[{o}:{o+3}]")
        for d2 in (grp or ()): i.extra |= set(R("a", aVF+4*d2, 4))
        return i
    def pvlist(n, dts, slots=None):
        L = []; slots = slots or dts
        for k, dt in enumerate(dts):
            L.append(pv(n, dt, 0, slots[k:k+wgrp] if k % wgrp == 0 else None, slots[k])); L.append(pv(n, dt, 1, None, slots[k]))
        return L
    def checkops():
        return [parse(f"v_max_f32 v{vMx}, v{vLb}, v{vLb+1}"), parse(f"v_cmp_lt_f32 vcc, {f2u(2.0**T):#x}, v{vMx}")]
    def mergeops(): return [parse(f"v_add_f32 v{vL+qt}, v{vL+qt}, v{vLb+qt}") for qt in range(2)]
    def softmax_q(n, merge=True, pipe=False):
        S = vS[n%2]; P = vP[n%2]
        E = lambda r: parse(f"v_exp_f32 v{vPf+r}, v{S+r}")
        def A(r):
            if r % 8 == 1: return parse(f"v_add_f32 v{vLb+r//8}, v{vPf+r-1}, v{vPf+r}")
            return parse(f"v_add_f32 v{vLb+r//8}, v{vLb+r//8}, v{vPf+r}")
        Cv = lambda p: parse(f"v_cvt_pk_bf16_f32 v{P+p}, v{vPf+2*p}, v{vPf+2*p+1}")
        q = []
        if pipe:
            for r in range(17):
                if r < 16: q.append(E(r))
                if r >= 1 and (r-1) % 8: q.append(A(r-1))
                if r >= 2 and r % 2 == 0: q.append(Cv(r//2-1))
            return q
        mg = mergeops() if merge else []
        for r in range(16):
            q.append(E(r))
            if r % 8 == 0:
                if mg: q.append(mg.pop(0))
            else: q.append(A(r))
            if r % 2 == 1: q.append(Cv(r//2))
        return q
    def spread(ops, g0, g1):
        tot = sum(x.cost for x in ops); c = 0; out = []
        for x in ops:
            out.append((x, g0 + (g1-g0)*c/max(tot-ops[-1].cost, 1), g0)); c += x.cost
        return out
    def post(x): x.tag = "post"; return x
    def schedule(seg, mf, streams, sca, label="", cap=2, lastempty=False):
        n = len(mf); streams = [list(s) for s in streams if s]
        nm = n
        if lastempty: n -= 1
        for g in range(nm):
            seg.add(mf[g])
            s_ = sca.get(g, [])
            pre = [x for x in s_ if x.tag != "post"]; pst = [x for x in s_ if x.tag == "post"]
            wsh = 1 if (g+1 < nm and mf[g+1].extra) else 0
            free = cap - max(0, len(pre)+wsh-1) - len([x for x in pst if x.kind != "label"])
            mem = []; val = []
            while True:
                cands = [s for s in streams if s and s[0][2] <= g]
                if val: cands = [s for s in cands if s[0][0].kind not in ("dsr","dsw","dma","vst","vld")] + [s for s in cands if s[0][0].kind in ("dsr","dsw","dma","vst","vld")]
                cands.sort(key=lambda s: s[0][1])
                pick = None
                for s in cands:
                    x, tg, _ = s[0]
                    if g < n-1 and tg > g + 1.0 and (mem or val): continue
                    if g < n-1 and tg > g + 2.0: continue
                    if val and val[-1].kind == "trans" and (x.rd & val[-1].wr) and g < n-1: continue
                    if x.cost <= free or tg <= g - late or g == n-1: pick = s; break
                if pick is None: break
                x = pick.pop(0)[0]; free -= x.cost
                (mem if x.kind in ("dsr","dsw","dma","vld") else val).append(x)
            row = pre + mem + val + pst
            for x in row: seg.add(x)
            if verbose: print(f"; {label} gap{g}: " + "".join({"dsr":"t","dma":"d","trans":"e","valu":"v","salu":"s","wait":"w","barrier":"B","vst":"S"}.get(x.kind, "?") for x in row))
        assert not any(streams)
    def addf(d, g, *xs): d.setdefault(g, []).extend(xs)
    def rowmax(seg, S, zero):
        for qt, d, t in ((0, 1, 6), (1, 4, 7)):
            b = S + 8*qt
            seg.a(f"v_max3_f32 v{d}, v{b}, v{b+1}, v{b+2}\nv_max3_f32 v{d}, v{d}, v{b+3}, v{b+4}\nv_max3_f32 v{d}, v{d}, v{b+5}, v{b+6}")
            seg.a(f"v_max3_f32 v{d}, v{d}, v{b+7}, 0" if zero else f"v_max_f32 v{d}, v{d}, v{b+7}")
        seg.a("v_mov_b32 v6, v1\nv_mov_b32 v7, v4\nv_permlane16_swap_b32 v6, v1\nv_permlane16_swap_b32 v7, v4\nv_max_f32 v1, v1, v6\nv_max_f32 v4, v4, v7")
        seg.a("v_mov_b32 v6, v1\nv_mov_b32 v7, v4\nv_permlane32_swap_b32 v6, v1\nv_permlane32_swap_b32 v7, v4\nv_max_f32 v1, v1, v6\nv_max_f32 v4, v4, v7")
    NV0 = 3
    NK0 = 6
    def nosh(g):
        while g % (2*wgrp) == 2*wgrp-1: g += 1
        return g
    def iteration(seg, i, ret, do_pv=True, loopend=False, pref=False):
        sca = {}; dm = []
        mf = [qk(i+2, g) for g in range(32)]
        tK = [parse(f"v_add_u32 v{vKa}, s{sDK}, v{vKa}"), parse(f"s_sub_u32 s{sDK}, 0, s{sDK}")]
        tV = [parse(f"v_add_u32 v{vVa}, s{sDV}, v{vVa}"), parse(f"s_sub_u32 s{sDV}, 0, s{sDV}")]
        def place(g, xs):
            for x in xs:
                g = nosh(g)
                while g in sca: g = nosh(g+1)
                addf(sca, g, x); g += 1
            return g
        if do_pv:
            mf += pvlist(i, list(range(16)))
            mf[63].extra = set(R("a", aKF, 4*wgrp))
            mf[0].extra = set()
            dp = dmagaps
            addf(sca, bg, parse("s_waitcnt vmcnt(12)"), parse("s_barrier"))
            if loopend:
                addf(sca, 60, parse(f"s_sub_u32 s{sCnt}, s{sCnt}, 1")); addf(sca, 61, parse(f"s_cmp_lg_u32 s{sCnt}, 0"))
            last = i == NB-3
            for k in range(1, 8):
                if pref and k >= 4 and prefmode == 1:
                    kk = 4*(i % 2) + k - 4
                    if pcont:
                        y = parse(f"buffer_load_dwordx4 a[192:195], v{vDma}, s[{sO}:{sO+3}], s{sT0} offen offset:{1024*(kk%4)}{ppol}"); y.wr = set()
                        if kk % 4 == 3: addf(sca, dp[k]+1, parse(f"s_add_u32 s{sT0}, s{sT0}, 4096"))
                    else:
                        y = parse(f"buffer_load_dwordx4 a[192:195], v{vOg}, s[{sO}:{sO+3}], s{sT0} offen offset:{512*(kk%2)}{ppol}"); y.wr = set()
                        if kk % 2 == 1: addf(sca, dp[k]+1, parse(f"s_add_u32 s{sT0}, s{sT0}, 4096"))
                    dm.append((y, dp[k]-3, dp[k]))
                    continue
                x = dmaV(i+2, k) if k < 4 else dmaK(i+5, k-4)
                addf(sca, dp[k]-1, x[0]); dm.append((x[1], dp[k]-3, dp[k]))
            if last:
                y = parse(f"buffer_load_dwordx4 a[192:195], v{vSt}, s[{sW}:{sW+3}], s{sMb} offen offset:256"); y.wr = set()
                dm.append((y, dp[0]-3, dp[0]))
            else:
                x = dmaV(i+3, 0); addf(sca, dp[0]-1, x[0]); dm.append((x[1], dp[0]-3, dp[0]))
            if not last: assert place(dp[3]+1, advV(i+2)) < dp[0]
            if not (pref and prefmode == 1): assert place(dp[7]+1, advK(i+5)) <= 60
            r1 = [kread(i+2, j) for j in range(NK0, 16)] + [vread(i, dt, kt) for dt in range(16) for kt in range(2)]
            nxt = [vread(i+1, dt, kt) for dt in range(8, 8+NV0) for kt in range(2)] if last else [kread(i+3, j) for j in range(NK0)]
            if last: mf[63].extra = set(R("a", aVF+32, 4*wgrp))
            rd = spread(r1, 0, bg-1) + [(y, t, bg+(2 if last else 1)) for (y, t, _) in spread(nxt, bg+1, 61)]
            tg = []
            if i % 2 == 1:
                tg = [(tK[0], 16, 16), (tV[0], bg-1, bg+1)]; place(21, [tK[1]]); assert place(bg+4, [tV[1]]) <= 60
            n0 = len(seg.ins)
            schedule(seg, mf, [dm, rd, tg, spread(softmax_q(i+1) + checkops(), 0, smend)], sca, label=f"it{i}", lastempty=True)
            tx = [x.text for x in seg.ins[n0:]]
            if i % 2 == 1:
                assert tx.index(kread(i+2, 15).text) < tx.index(tK[0].text) < tx.index(tK[1].text) < tx.index(nxt[0].text)
                assert tx.index(vread(i, 15, 1).text) < tx.index(tV[0].text) < tx.index(tV[1].text)
                if last: assert tx.index(tV[0].text) < tx.index(nxt[0].text)
            assert tx.index("s_barrier") < len(tx) - 1 - tx[::-1].index(nxt[0].text)
            seg.a(f"s_cbranch_vccnz L_rare{ret}\nL_back{ret}:")
        else:
            for k, g in enumerate((1, 5, 9, 13, 17, 21, 25, 29)):
                x = dmaV(i+2, k) if k < 4 else dmaK(i+5, k-4)
                addf(sca, g-1, x[0]); dm.append((x[1], g-3, g))
            place(14, advV(i+2)); place(30, advK(i+5))
            rd = spread([kread(i+2, j) for j in range(NK0, 16)], 0, 16)
            schedule(seg, mf, [dm, rd, spread(softmax_q(i+1, merge=False), 0, 31)], sca, label=f"it{i}")
            seg.add(tK[0]); seg.add(tK[1])
            seg.a("s_waitcnt vmcnt(12)\ns_barrier")
            for j in range(NK0): seg.add(kread(i+3, j))
            x = dmaV(i+3, 0); seg.add(x[0]); seg.a(f"buffer_load_dword v2, v3, s[{sW}:{sW+3}], s{sPw} offen offset:128 sc1"); seg.add(x[1])
            if otouch:
                y = parse(f"buffer_load_dword a192, v3, s[{sO}:{sO+3}], s{sOo} offen"); y.wr = set(); seg.add(y)
            seg.a(f"s_waitcnt lgkmcnt({NK0-wgrp})")
    vm = []
    def vmwait(name, extra=""):
        k = max(j for j, x in enumerate(vm) if x == name)
        a(f"s_waitcnt vmcnt({len(vm)-1-k}){extra}")
    fill = [f"s_add_u32 s{sQ}, s4, s{sT1}\ns_addc_u32 s{sQ+1}, s5, 0", f"s_mov_b32 s{sW}, s14\ns_mov_b32 s{sW+1}, s15",
            f"s_add_u32 s{sV}, s8, s{sT0}\ns_addc_u32 s{sV+1}, s9, 0", f"s_mov_b32 s{sV+2}, {NB*16384}\ns_mov_b32 s{sV+3}, 0x20000",
            f"s_add_u32 s{sO}, s10, s{sT1}\ns_addc_u32 s{sO+1}, s11, 0", f"s_mov_b32 s{sO+2}, 65536\ns_mov_b32 s{sO+3}, 0x20000",
            f"s_xor_b32 s{sPw}, s{sMb}, {pxor*8192}"]
    a(f"s_add_u32 s{sK}, s6, s{sT0}\ns_addc_u32 s{sK+1}, s7, 0")
    def publish(t0, t1):
        a(f"v_readlane_b32 s{t0}, v8, 0\nv_readlane_b32 s{t1}, v8, 1\nv_mov_b32 v9, 0")
        a(f"s_and_b32 s{t1}, s{t1}, 0xffffff00\ns_add_u32 s{t1}, s{t1}, 0x100\ns_or_b32 s{t1}, s{t1}, s{sXcc}")
        a(f"s_cmp_eq_u32 s{t1}, s{t0}\ns_cselect_b32 s3, 0x100, 0\ns_add_u32 s{sCh}, s{t1}, s3\nv_mov_b32 v8, s{sCh}")
        a(f"buffer_store_dword v8, v9, s[{sW}:{sW+3}], s{sMb} offen offset:128 sc1")
    mbload = f"s_mov_b64 exec, 3\nbuffer_load_dword v8, v3, s[{sW}:{sW+3}], s{sMb} offen sc1\ns_mov_b64 exec, -1"
    if stag is not None:
        a(f"s_mov_b32 s{sW}, s14\ns_mov_b32 s{sW+1}, s15"); a(mbload); vm.append("mb")
        a(f"s_bitcmp1_b32 s2, {stag}\ns_cbranch_scc0 L_early\ns_waitcnt vmcnt(0)"); publish(36, 37); a("L_early:")
    def kvblock(f, adv, n, name, filler=None):
        for j in range(4):
            x = f(n, j)
            if not (name == "K0" and j == 0): pro.add(x[0]); (filler() if filler else a("s_nop 0"))
            pro.add(x[1]); vm.append(name)
        for x in adv(n): pro.add(x)
    def qdma(c, u):
        return [parse(f"s_add_u32 m0, s{sX}, {1024*(4*c+u)}"), parse(f"s_add_u32 s3, s{sOo}, {4096*u+128*c}"),
                parse(f"buffer_load_dwordx4 v{6+u%2}, s[{sQ}:{sQ+3}], s3 offen{polQ} lds")]
    def qblock(c):
        for u in range(4):
            for x in qdma(c, u): pro.add(x)
            vm.append(f"Q{c}")
    kvblock(dmaK, advK, 0, "K0", lambda: a(fill.pop(0)))
    kvblock(dmaK, advK, 1, "K1", lambda: a(fill.pop(0)))
    assert not fill
    if stag is None: a(mbload); vm.append("mb")
    qblock(0)
    setup()
    qblock(1)
    fstamp(pro)
    vmwait("mb" if stag is None else "K1"); a("s_barrier")
    stamp(pro)
    def k01read(n, j):
        r = (aKF if n == 0 else aVF) + 4*j
        return parse(f"ds_read_b128 a[{r}:{r+3}], v{vKa} offset:{n*KS+64*(j//2)+512*(j%2)}")
    def kgrp(c): return [k01read(n, j) for j in range(4*c, 4*c+4) for n in range(2)]
    def qraw(f): return 96 + 16*((f//4) % 2) + 4*(f % 4)
    def qgrp(c): return [parse(f"ds_read_b128 v[{qraw(f)}:{qraw(f)+3}], v{28+2*((f//2)%2)+f%2} offset:{4096*c}") for f in range(4*c, 4*c+4)]
    def presc(r):
        x = 32 + 2*(r % 8); q = qraw(r//4) + r % 4
        return [parse(t) for t in (f"v_lshlrev_b32 v{x}, 16, v{q}", f"v_and_b32 v{x+1}, 0xffff0000, v{q}",
                f"v_pk_mul_f32 v[{x}:{x+1}], v[{x}:{x+1}], v[2:3] op_sel_hi:[1,0]",
                f"v_cvt_pk_bf16_f32 v{x}, v{x}, v{x+1}", f"v_accvgpr_write_b32 a{aQ+r}, v{x}")]
    def mgrp(c):
        L = []
        for t in (2*c, 2*c+1):
            for kt in range(2):
                for n in range(2):
                    for qt in range(2):
                        S = vS[n] + 8*qt + 4*kt; f = (aKF if n == 0 else aVF) + 4*(2*t+kt); qf = aQ + 4*(2*t+qt)
                        L.append(parse(f"v_mfma_f32_16x16x32_bf16 v[{S}:{S+3}], a[{f}:{f+3}], a[{qf}:{qf+3}], " + (f"v[{S}:{S+3}]" if t else "0")))
        return L
    for x in kgrp(0): pro.add(x)
    qblock(2)
    if stag is None: publish(sT0, sT1); vm.append("pub")
    else:
        a(f"s_bitcmp1_b32 s2, {stag}\ns_cbranch_scc1 L_pubdone"); publish(sT0, sT1); a("L_pubdone:")
    a("v_mov_b32 v3, 0")
    items = [("Q3", lambda j: qdma(3, j), []), ("K2", lambda j: dmaK(2, j), advK(2)), ("V0", lambda j: dmaV(0, j), advV(0)),
             ("V1", lambda j: dmaV(1, j), advV(1)), (None, None, [])]
    zq = [parse(f"v_mov_b32 v{vO+r}, 0") for r in range(zsplit[0], zsplit[1])]
    for c in range(5):
        name, f_, adv = items[c]
        if c < 4:
            vmwait(f"Q{c}")
            if c in (0, 3): fstamp(pro)
            for x in qgrp(c): pro.add(x)
            pq = [x for r in range(16*c, 16*c+16) for x in presc(r)]
        else: pq = zq
        kr = kgrp(c+1) if c < 3 else []
        if c == 0:
            for j in range(4):
                x = f_(j)
                for y in x[:-1]: pro.add(y)
                for y in kr[2*j:2*j+2]: pro.add(y)
                for _ in range(20): pro.add(pq.pop(0))
                pro.add(x[-1]); vm.append(name)
        else:
            sca = {}; dm = []
            for j in range(4 if name else 0):
                x = f_(j); addf(sca, 4*j+1, *x[:-1]); dm.append((x[-1], 4*j-1, 4*j+2)); vm.append(name)
            schedule(pro, mgrp(c-1), [dm, spread(kr, 0, 12) if kr else [], spread(pq, 0, 15) if pq else []], sca, label=f"S{c}", cap=6)
        for x in adv: pro.add(x)
    fstamp(pro)
    NTRIP = (NB-4)//2 if peel else (NB-2)//2
    a(f"s_mov_b32 s{sCnt}, {NTRIP}")
    a(f"s_lshl_b32 s{sX}, s{sKh}, 8\ns_add_u32 s{sX}, s{sOo}, s{sX}\ns_xor_b32 s{sOo}, s{sX}, 256")
    if pcont: a(f"s_lshl_b32 s{sT0}, s{sKh}, 15\ns_lshl_b32 s3, s{sWv}, 13\ns_add_u32 s{sT0}, s{sT0}, s3")
    else: a(f"s_mov_b32 s{sT0}, s{sX}")
    a(f"v_add_u32 v{vKa}, s{sDK}, v{vKa}\ns_sub_u32 s{sDK}, 0, s{sDK}")
    post_ops = Seg("x")
    rowmax(post_ops, vS[0], False)
    for qt, d in ((0, 1), (1, 4)):
        for r in range(8): post_ops.a(f"v_sub_f32 v{vS[0]+8*qt+r}, v{vS[0]+8*qt+r}, v{d}")
    for x in softmax_q(0, merge=False, pipe=True): post_ops.add(x)
    for qt, d in ((0, 1), (1, 4)):
        for r in range(4): post_ops.a(f"v_sub_f32 v{vCn+4*qt+r}, 0, v{d}")
        for r in range(8): post_ops.a(f"v_sub_f32 v{vS[1]+8*qt+r}, v{vS[1]+8*qt+r}, v{d}")
    po = post_ops.ins
    if not mergeb:
        a("s_barrier")
        stamp(pro)
        def take(n):
            for _ in range(min(n, len(po))): pro.add(po.pop(0))
        kvblock(dmaK, advK, 3, "K3", lambda: take(12))
        kvblock(dmaK, advK, 4, "K4", lambda: take(12))
        take(1000)
        vmwait("V0"); a("s_barrier")
    else:
        stamp(pro)
        for x in po: pro.add(x)
        vmwait("V0"); a("s_barrier")
    for j in range(NK0): pro.add(kread(2, j))
    if mergeb:
        kvblock(dmaK, advK, 3, "K3"); kvblock(dmaK, advK, 4, "K4")
    if prefmode == 2:
        for kk in range(8):
            y = parse(f"buffer_load_dwordx4 a[192:195], v{vOg}, s[{sO}:{sO+3}], s{sT0} offen offset:{512*(kk%2)}{ppol}"); y.wr = set(); pro.add(y)
            if kk % 2: a(f"s_add_u32 s{sT0}, s{sT0}, 4096")
    x = dmaV(2, 0); pro.add(x[0]); a(f"buffer_load_dword v2, v3, s[{sW}:{sW+3}], s{sPw} offen offset:128 sc1"); pro.add(x[1])
    for r in range(zsplit[1], zsplit[2]): a(f"v_mov_b32 v{vO+r}, 0")
    a(f"s_waitcnt lgkmcnt({NK0-wgrp})")
    fstamp(pro)
    stamp(pro)
    body = Seg("loop"); body.a("L_loop:")
    iteration(body, 0, 0); iteration(body, 1, 1, loopend=True)
    if stamps == 2:
        body.a(f"s_waitcnt lgkmcnt(0)\ns_memtime s[60:61]\ns_memrealtime s[62:63]\ns_sub_u32 m0, {15+NTRIP}, s{sCnt}\ns_cmp_lg_u32 s{sCnt}, 0\ns_waitcnt lgkmcnt(0)\nv_writelane_b32 v10, s60, m0\nv_writelane_b32 v11, s62, m0")
    zseg = Seg("zero")
    if zsplit[2] < 128:
        zgs = zgap if isinstance(zgap, tuple) else (zgap,)
        per = (128 - zsplit[2]) // len(zgs)
        for n_, zg in enumerate(zgs):
            r0 = zsplit[2] + n_*per
            assert zg < 32 + 2*(r0//8)
            mi = [k for k, x in enumerate(body.ins) if x.kind == "mfma"]
            k = mi[zg]
            body.ins[k+1:k+1] = [parse(f"s_cbranch_scc1 L_zero{n_}"), parse(f"L_zback{n_}:")]
            k = mi[zg-1]
            for y in body.ins[k+1:mi[zg]]: assert y.kind != "salu"
            if n_ == 0 and not peel:
                mask = (1 << NTRIP) | sum(1 << t for t in ptrips)
                body.ins[k+1:k+1] = [parse(f"s_bitcmp1_b32 {mask}, s{sCnt}")]
                zseg.a(f"L_zero{n_}:\ns_cmp_eq_u32 s{sCnt}, {NTRIP}\ns_cbranch_scc1 L_zero{n_}b")
                for kk in range(3):
                    y = parse(f"buffer_load_dwordx4 a[192:195], v{vDma if pcont else vOg}, s[{sO}:{sO+3}], s{sT0} offen{ppol}"); y.wr = set(); zseg.add(y)
                    if pcont: zseg.a(f"s_add_u32 s{sT0}, s{sT0}, 1024")
                    else: zseg.a(f"s_xor_b32 s{sT0}, s{sT0}, 512\ns_bitcmp1_b32 s{sT0}, 9\ns_cselect_b32 s3, 0, 4096\ns_add_u32 s{sT0}, s{sT0}, s3")
                    if kk == 1:
                        zseg.a(f"s_cmp_lg_u32 s{sCnt}, {ptrips[-1]}\ns_cbranch_scc1 L_pf3")
                        y = parse(f"buffer_load_dwordx4 a[192:195], v{vSt}, s[{sW}:{sW+3}], s{sMb} offen offset:256"); y.wr = set(); zseg.add(y)
                        zseg.a(f"s_branch L_zback{n_}\nL_pf3:")
                zseg.a(f"s_branch L_zback{n_}\nL_zero{n_}b:")
            else:
                body.ins[k+1:k+1] = [parse(f"s_cmp_eq_u32 s{sCnt}, {NTRIP}")]
                zseg.a(f"L_zero{n_}:")
            for r in range(r0, r0+per): zseg.a(f"v_mov_b32 v{vO+r}, 0")
            zseg.a(f"s_nop 1\ns_branch L_zback{n_}")
    if xpad:
        nb = []; mcount = 0; lab = 0
        for x in body.ins:
            nb.append(x)
            if x.kind == "mfma":
                it = mcount // 64; g = mcount % 64; mcount += 1
                step = 64 // xpad[3]
                if g % step == step//2 - 2:
                    thr = xpad[it]
                    nb += [parse(f"s_cmp_ge_u32 s{sCnt}, {thr}"), parse(f"s_cbranch_scc0 L_xp{lab}")] + [parse("s_nop 15") for _ in range(xpad[2])] + [parse(f"L_xp{lab}:")]
                    lab += 1
        body.ins = nb
    body.a(f"s_cbranch_scc1 L_loop")
    tail = Seg("tail"); e = tail.a
    if peel: iteration(tail, NB-4, 3, pref=True); iteration(tail, NB-3, 4, pref=True)
    stamp(tail)
    i = NB-2
    snd = list(range(8, 16)); own = list(range(8))
    sq15 = softmax_q(i+1) + checkops()
    if not peel:
        for dt in range(8, 8+NV0):
            for kt in range(2): tail.add(vread(i, dt, kt))
        for x in (sq15[0], sq15[1], sq15[2], sq15[5], sq15[3], sq15[4]): tail.add(x)
        sq15 = sq15[6:]
    rd = spread([vread(i, dt, kt) for dt in range(8+NV0, 16) for kt in range(2)], 0, 6)
    rd += [(y, t, btx+1) for (y, t, _) in spread([vread(i+1, dt, kt, dt-8) for dt in snd for kt in range(2)], btx+1, 15)]
    sca = {btx: [parse("s_waitcnt vmcnt(5)" if peel else "s_waitcnt vmcnt(0)"), parse("s_barrier")]}
    if stamps and fine:
        t1 = Seg("x"); fstamp(t1); t2 = Seg("x"); fstamp(t2)
        sca[btx] = t1.ins + sca[btx] + t2.ins
    mf = pvlist(i, snd)
    if peel: mf[0].extra = set()
    schedule(tail, mf, [rd, spread(sq15, 0, 15)], sca, label="X", cap=5)
    e(f"v_readfirstlane_b32 s{sT1}, v2\ns_cbranch_vccnz L_rare2\nL_back2:")
    fstamp(tail)
    e(f"s_and_b32 s3, s{sT1}, 0xff")
    sends = []
    if fast: e(f"s_cmp_eq_u32 s3, s{sXcc}\ns_cbranch_scc1 L_sendfast")
    for var in (("slow", " sc1"), ("fast", "")) if fast else (("slow", " sc1"),):
        sg = Seg("send_"+var[0]); sends.append(sg)
        if var[0] == "fast": sg.a("L_sendfast:")
        st = mergeops() + [parse(t) for t in (f"v_mov_b32 v6, v{vL}", f"v_mov_b32 v7, v{vL+1}", f"v_mov_b32 v4, v{vCn}", f"v_mov_b32 v5, v{vCn+4}",
              f"v_permlane16_swap_b32 v6, v{vL}", f"v_permlane16_swap_b32 v7, v{vL+1}", f"v_add_f32 v{vL}, v6, v{vL}", f"v_add_f32 v{vL+1}, v7, v{vL+1}",
              f"v_mov_b32 v6, v{vL}", f"v_mov_b32 v7, v{vL+1}", "s_nop 0", f"v_permlane32_swap_b32 v6, v{vL}", f"v_permlane32_swap_b32 v7, v{vL+1}",
              f"v_add_f32 v6, v6, v{vL}", f"v_add_f32 v7, v7, v{vL+1}",
              f"buffer_store_dwordx4 v[4:7], v{vSt}, s[{sW}:{sW+3}], s{sPw} offen offset:256{var[1]}")]
        q = []
        for k in range(8):
            o = vO + 8*(8+k); g0 = 2*k + 1 + 3
            for x in range(4): q.append((parse(f"v_cvt_pk_bf16_f32 v{vTmp+4*k+x}, v{o+2*x}, v{o+2*x+1}"), g0-2, g0))
            q.append((parse(f"buffer_store_dwordx4 v[{vTmp+4*k}:{vTmp+4*k+3}], v{vOg}, s[{sO}:{sO+3}], s{sOo} offen offset:{512*(k%2)}{var[1]}"), g0-2, g0))
            if k % 2 == 1 and k < 7: q.append((parse(f"s_add_u32 s{sOo}, s{sOo}, 4096"), g0-2, g0))
        rd = spread([vread(i, dt, kt, dt+8) for dt in own for kt in range(2)], 1, 20)
        rd += [(y, t, 17) for (y, t, _) in spread([vread(i+1, dt, kt) for dt in own for kt in range(2)], 21, 38)]
        mf = pvlist(i+1, snd, own) + pvlist(i, own, snd) + pvlist(i+1, own)
        if var[0] == "slow": nf0 = nf[0]; st0 = nst[0]
        nf[0] = nf0; nst[0] = st0
        tg = Seg("x"); fstamp(tg); tg.a("s_waitcnt vmcnt(0)"); stamp(tg)
        tg.a(f"buffer_store_dword v2, v3, s[{sW}:{sW+3}], s{sPw} offen{var[1]}")
        sca = {tagg: [post(x) for x in tg.ins]}
        schedule(sg, mf, [rd, q, spread(st, 0, 4)], sca, label="YZ", cap=3)
        fstamp(sg)
        if var[0] == "slow" and fast: sg.a("s_branch L_sent")
    fin = Seg("final"); e = fin.a
    e("L_sent:")
    e(f"s_mov_b32 s{sCnt}, 0x200000")
    e("L_poll:")
    e(f"s_sub_u32 s{sCnt}, s{sCnt}, 1\ns_cbranch_scc1 L_pollok")
    e(f"buffer_load_dword v8, v3, s[{sW}:{sW+3}], s{sMb} offen{xpoll}\ns_waitcnt vmcnt(0)\nv_readfirstlane_b32 s3, v8\ns_cmp_lg_u32 s3, s{sCh}\ns_cbranch_scc1 L_poll")
    e("L_pollok:")
    stamp(fin)
    e(f"s_mov_b32 s{sOo}, s{sX}")
    def xloads(pol):
        e(f"buffer_load_dwordx4 v[32:35], v{vSt}, s[{sW}:{sW+3}], s{sMb} offen offset:256{pol}")
        for k in range(8):
            e(f"buffer_load_dwordx4 v[{vTmp+4*k}:{vTmp+4*k+3}], v{vOg}, s[{sO}:{sO+3}], s{sOo} offen offset:{512*(k%2)}{pol}")
            if k % 2 == 1 and k < 7: e(f"s_add_u32 s{sOo}, s{sOo}, 4096")
    xloads(xld)
    e(f"buffer_load_dword v2, v3, s[{sW}:{sW+3}], s{sPw} offen offset:128 sc1")
    fstamp(fin, 9); fstamp(fin, 0)
    for qt in range(2):
        fo, fx, t = 36+2*qt, 40+2*qt, 44+qt
        e(f"v_min_f32 v{t}, v{4+qt}, v{32+qt}\nv_sub_f32 v{fo}, v{t}, v{4+qt}\nv_sub_f32 v{fx}, v{t}, v{32+qt}\nv_exp_f32 v{fo}, v{fo}\nv_exp_f32 v{fx}, v{fx}")
    for qt in range(2):
        fo, fx, t = 36+2*qt, 40+2*qt, 44+qt
        e(f"v_mul_f32 v{t}, v{fo}, v{6+qt}\nv_fma_f32 v{t}, v{fx}, v{34+qt}, v{t}\nv_rcp_f32 v{t}, v{t}")
    for qt in range(2):
        fo, fx, t = 36+2*qt, 40+2*qt, 44+qt
        e(f"v_mul_f32 v{fo}, v{fo}, v{t}\nv_mul_f32 v{fx}, v{fx}, v{t}")
    for r in range(0, 64, 2):
        fo = 36 + 2*((r//4) % 2)
        e(f"v_pk_mul_f32 v[{vO+r}:{vO+r+1}], v[{vO+r}:{vO+r+1}], v[{fo}:{fo+1}] op_sel_hi:[1,0]")
    for dt in range(8):
        for qt in range(2):
            o = vO + 8*dt + 4*qt; p = vTmp + 4*dt + 2*qt; u = 48 + 4*((2*dt+qt) % 4); fx = 40+2*qt
            e(f"v_lshlrev_b32 v{u}, 16, v{p}\nv_and_b32 v{u+1}, 0xffff0000, v{p}\nv_lshlrev_b32 v{u+2}, 16, v{p+1}\nv_and_b32 v{u+3}, 0xffff0000, v{p+1}")
            e(f"v_pk_fma_f32 v[{o}:{o+1}], v[{u}:{u+1}], v[{fx}:{fx+1}], v[{o}:{o+1}] op_sel_hi:[1,0,1]")
            e(f"v_pk_fma_f32 v[{o+2}:{o+3}], v[{u+2}:{u+3}], v[{fx}:{fx+1}], v[{o+2}:{o+3}] op_sel_hi:[1,0,1]")
            e(f"v_cvt_pk_bf16_f32 v{o}, v{o}, v{o+1}\nv_cvt_pk_bf16_f32 v{o+1}, v{o+2}, v{o+3}")
            e(f"ds_write_b64 v{vEw}, v[{o}:{o+1}] offset:{4352*qt+32*dt}")
    fstamp(fin)
    korder = [0, 4, 1, 5, 2, 6, 3, 7]
    for n_, k in enumerate(korder): e(f"ds_read_b128 v[{192+4*n_}:{192+4*n_+3}], v{vEr} offset:{1088*k}")
    e(f"v_readfirstlane_b32 s3, v2\ns_cmp_eq_u32 s3, s{sT1}\ns_cbranch_scc1 L_tagok")
    e(f"buffer_wbl2 sc1\ns_waitcnt vmcnt(0)\nbuffer_store_dword v2, v3, s[{sW}:{sW+3}], s{sPw} offen sc1")
    e("L_tagok:")
    for k in range(8):
        e(f"buffer_store_dwordx4 v[{192+4*k}:{192+4*k+3}], v{vOg}, s[{sO}:{sO+3}], s{sX} offen offset:{512*(k%2)}{polO}")
        if k % 2 == 1 and k < 7: e(f"s_add_u32 s{sX}, s{sX}, 4096")
    fstamp(fin)
    endseg = Seg("end"); e = endseg.a
    if stamps:
        e("s_waitcnt vmcnt(0)")
        stamp(endseg)
        e(f"s_lshl_b32 s3, s2, 2\ns_add_u32 s3, s3, s{sWv}\ns_lshl_b32 s3, s3, 9\nv_lshlrev_b32 v{vSt}, 3, v0")
        e(f"buffer_store_dwordx2 v[10:11], v{vSt}, s[{sW}:{sW+3}], s3 offen")
    if probe is not None:
        e("s_waitcnt vmcnt(0)")
        stamp(endseg)
        e(f"s_sub_u32 s94, s94, s96\ns_add_u32 s94, s94, 2500\nL_pad:\ns_memrealtime s[98:99]\ns_waitcnt lgkmcnt(0)\ns_sub_u32 s3, s98, s96\ns_cmp_lt_u32 s3, s94\ns_cbranch_scc1 L_pad")
    if padto:
        e(f"s_waitcnt vmcnt(0)\nL_pad:\ns_memrealtime s[98:99]\ns_waitcnt lgkmcnt(0)\ns_sub_u32 s3, s98, s96\ns_cmp_lt_u32 s3, {int(padto*100)}\ns_cbranch_scc1 L_pad")
    e("L_end:\ns_endpgm")
    rares = []
    for ret, i in ((0, 0), (1, 1), (2, NB-2), (3, NB-4), (4, NB-3))[:5 if peel else 3]:
        r = Seg(f"rare{ret}"); e = r.a
        S = vS[(i+1)%2]; S2 = vS[i%2]
        e(f"L_rare{ret}:")
        rowmax(r, S, True)
        e("v_exp_f32 v6, -v1\nv_exp_f32 v7, -v4")
        for qt, d, al in ((0, 1, 6), (1, 4, 7)):
            for k in range(4): e(f"v_sub_f32 v{vCn+4*qt+k}, v{vCn+4*qt+k}, v{d}")
            for k in range(8): e(f"v_sub_f32 v{S+8*qt+k}, v{S+8*qt+k}, v{d}")
            if ret != 2:
                for k in range(8): e(f"v_sub_f32 v{S2+8*qt+k}, v{S2+8*qt+k}, v{d}")
            e(f"v_mul_f32 v{vL+qt}, v{al}, v{vL+qt}")
        if ret == 2:
            for k in range(8):
                p = vP[i%2] + k; al = 6 + k//4
                e(f"v_lshlrev_b32 v{vPf}, 16, v{p}\nv_and_b32 v{vPf+1}, 0xffff0000, v{p}\nv_mul_f32 v{vPf}, v{al}, v{vPf}\nv_mul_f32 v{vPf+1}, v{al}, v{vPf+1}\nv_cvt_pk_bf16_f32 v{p}, v{vPf}, v{vPf+1}")
        for x in softmax_q(i+1, merge=False, pipe=True): r.add(x)
        for k in range(128): e(f"v_mul_f32 v{vO+k}, v{6+(k//4)%2}, v{vO+k}")
        e(f"s_nop 1\ns_branch L_back{ret}")
        rares.append(r)
    if exp:
        nb = []
        for x in body.ins:
            if "nolds" in exp and x.kind == "dsr": continue
            if "novalu" in exp and x.kind in ("valu","trans") and not x.text.startswith("v_add_u32") and not x.text.startswith("v_cmp") and not x.text.startswith("v_writelane"): continue
            if "nodma" in exp and x.kind == "dma": continue
            if "nomfma" in exp and x.kind == "mfma": continue
            if "nobar" in exp and (x.kind == "barrier" or (x.kind == "wait" and x.vm is not None)): continue
            if "nomax" in exp and x.text.startswith("v_max"): continue
            nb.append(x)
        body.ins = nb
    order = [pro, body, tail] + sends + [fin, endseg, zseg] + rares
    traces = [[pro, body, body, body, tail, s, fin, endseg] for s in sends]
    fix_waits(traces, verbose)
    for s in order: merge_waits(s)
    fix_waits(traces, verbose)
    def upto(seg, lab):
        s = Seg(seg.name+"_pre"); k = [i.text for i in seg.ins].index(lab); s.ins = seg.ins[:k]
        s2 = Seg(seg.name+"_post"); s2.ins = seg.ins[k:]; return s, s2
    for ret, seg, prev, nxt in ((0, body, [pro, body], [body]), (1, body, [pro, body], [body]), (1, body, [pro, body], [tail]), (2, tail, [pro, body], [sends[0]]), (3, tail, [pro, body], []), (4, tail, [pro, body], []))[:6 if peel else 4]:
        p, q = upto(seg, f"L_back{ret}:")
        n0 = [len(x.ins) for x in [p, q] + nxt]
        fix_waits([prev + [p, rares[ret], q] + nxt], verbose)
        assert exp or [len(x.ins) for x in [p, q] + nxt] == n0, "rare path needs extra waits outside"
    lds = SPARE + KS
    txt = header + f"; @launch grid=(256,1,1) block=(256,1,1) lds={lds}\n"
    txt += f'.amdgcn_target "amdgcn-amd-amdhsa--gfx950"\n.text\n.globl {KN}\n.p2align 8\n.type {KN},@function\n{KN}:\n'
    txt += emit(order) + "\nL_codeend:\n"
    txt += f'''.section .rodata,"a"
.p2align 6
.amdhsa_kernel {KN}
  .amdhsa_next_free_vgpr 452
  .amdhsa_next_free_sgpr 102
  .amdhsa_accum_offset 256
  .amdhsa_group_segment_fixed_size 0
  .amdhsa_kernarg_size 48
  .amdhsa_user_sgpr_count 2
  .amdhsa_user_sgpr_kernarg_segment_ptr 1
  .amdhsa_system_sgpr_workgroup_id_x 1
.end_amdhsa_kernel
'''
    return txt
if __name__ == "__main__":
    kw = eval("dict(" + (sys.argv[1] if len(sys.argv) > 1 else "") + ")")
    print(gen(**kw))
```

```python
import sys, math, struct
from asmlib import *
KN = "standalone__gqa_softmax__near_ridge_kernel"
def f2u(x): return struct.unpack("<I", struct.pack("<f", x))[0]
RS = 1056; KS = VS = 16*RS
KB = [i*KS for i in range(4)]
VB = [4*KS + i*VS for i in range(4)]
SPARE = 8*KS
C_SCALE = math.log2(math.e)/16.0
NB = 16
vOg, vEw, vEr, vSt = 12, 13, 14, 15
vKa, vVa, vDma, vDmaV, vMx = 16, 17, 18, 19, 20
vL = 22
vLb = 8
vPf = 80
vCn = 24
vP = [32, 40]; vS = [48, 64]; vTmp = 96; vO = 128
aQ, aKF, aVF = 0, 64, 128
sQ, sK, sV, sO, sW = 16, 20, 24, 28, 32
sWv, sOK, sOV, sMK, sMV, sCnt, sC, sDK, sDV, sXcc, sKh, sT0, sT1, sOo, sX = 40,41,42,43,44,45,46,47,48,49,50,51,52,53,54
sDK2, sDV2, sPw, sMb, sCh = 55, 56, 57, 58, 59
XBASE = 1 << 20

def gen(polK=" nt", polV=" nt", polQ=" nt", polO="", stamps=False, T=8.0, verbose=False, header="", padto=0, exp=(),
        fast=True, pxor=16, bg=53, dmagaps=(57,1,9,17,25,33,41,49), npre=5, wgrp=2, smend=60, late=1.6, xld=' sc1', xpoll=' sc1', fine=False, xpad=None, xstag=0, probe=None, cpf=True, btx=7, tagg=36, nq0=11, zsplit=(0,0,0), zgap=(30,46), otouch=False, peel=True, mergeb=False, prefmode=1, stag=None, p2=True, nser=4, sergap=(60,)*8, cskip=('L_end','L_end'), ttouch=0, tpl=True, tE=(0,4,8,12,16,20,24,28,32,36,40,43,46,50,53,56), tD=(54,2,9,17,25,33,38,45), tbg=49, tdbl=(14,30), tzs=(30,42), align=None, pref13=True, q4=True, ilv=None, dsm0=False, lazy=0, pref12=False, xpad2=None, st256=True, ptrips=(4,3,2), pcont=False, ppol=''):
    nst = [0]
    def stamp(seg):
        if probe is not None:
            if nst[0] == probe: seg.a("s_waitcnt lgkmcnt(0)\ns_memrealtime s[94:95]\ns_waitcnt lgkmcnt(0)")
            nst[0] += 1
        if stamps:
            seg.a(f"s_waitcnt lgkmcnt(0)\ns_memtime s[64:65]\ns_memrealtime s[66:67]\ns_waitcnt lgkmcnt(0)\nv_writelane_b32 v10, s64, {nst[0]}\nv_writelane_b32 v11, s66, {nst[0]}"); nst[0] += 1
    nf = [32]
    def fstamp(seg, vm=None):
        if stamps and fine:
            if vm is not None: seg.a(f"s_waitcnt vmcnt({vm})")
            sv = nst[0]; nst[0] = nf[0]; stamp(seg); nf[0] += 1; nst[0] = sv
    pro = Seg("prologue"); a = pro.a
    a(f"s_cmp_ge_u32 s2, 256\ns_cbranch_scc1 L_end")
    a("s_load_dwordx8 s[4:11], s[0:1], 0\ns_load_dwordx2 s[14:15], s[0:1], 40")
    if padto or probe is not None: a("s_memrealtime s[96:97]")
    stamp(pro)
    if xstag:
        a(f"s_bitcmp1_b32 s2, 5\ns_cbranch_scc0 L_nostag\ns_sleep {xstag}\nL_nostag:")
    a("v_lshrrev_b32 v1, 6, v0\nv_and_b32 v0, 63, v0")
    a(f"v_readfirstlane_b32 s{sWv}, v1")
    if cpf:
        a(f"s_getpc_b64 s[36:37]\ns_lshr_b32 s3, s2, 3\ns_lshl_b32 s3, s3, 2\nv_add_u32 v4, s3, v1\nv_lshlrev_b32 v4, 1, v4\nv_add_u32 v4, v4, v0\nv_lshlrev_b32 v4, 7, v4")
        if cskip and cskip[0] != cskip[1]:
            a(f"v_mov_b32 v5, {cskip[1]}-{cskip[0]}\nv_cmp_le_u32 vcc, {cskip[0]}-{KN}, v4\nv_cndmask_b32 v5, 0, v5, vcc\nv_add_u32 v4, v4, v5")
        a(f"v_min_u32 v4, {'L_end' if cskip else 'L_codeend'}-{KN}-256, v4\nv_mov_b32 v5, s37\nv_add_co_u32 v4, vcc, s36, v4\ns_nop 1\nv_addc_co_u32 v5, vcc, 0, v5, vcc")
        a("s_mov_b64 exec, 3")
        y = I("global_load_dword a192, v[4:5], off", "vld", rd=["v4", "v5"]); pro.add(y)
        a("s_mov_b64 exec, -1")
    a(f"v_lshlrev_b32 v{vDma}, 4, v0")
    if pxor == 16:
        a(f"s_mov_b32 s{sX}, s2")
    else:
        a(f"s_and_b32 s{sX}, s2, 0xee\ns_bfe_u32 s3, s2, 0x10004\ns_or_b32 s{sX}, s{sX}, s3\ns_and_b32 s3, s2, 1\ns_lshl_b32 s3, s3, 4\ns_or_b32 s{sX}, s{sX}, s3")
    a(f"s_and_b32 s{sT0}, s{sX}, 7\ns_lshr_b32 s{sT1}, s{sX}, 3\ns_lshl_b32 s{sT0}, s{sT0}, 3")
    a(f"s_lshr_b32 s3, s{sT1}, 2\ns_add_u32 s{sT0}, s{sT0}, s3")
    a(f"s_bfe_u32 s{sKh}, s{sT1}, 0x10001")
    a(f"s_and_b32 s{sT1}, s{sT1}, 1\ns_lshl_b32 s3, s{sT0}, 1\ns_add_u32 s{sT1}, s{sT1}, s3")
    a(f"s_lshl_b32 s{sT1}, s{sT1}, 16")
    a(f"s_lshl_b32 s{sT0}, s{sT0}, 19\ns_lshl_b32 s3, s{sKh}, 18\ns_add_u32 s{sT0}, s{sT0}, s3")
    a(f"s_mov_b32 s{sX}, {KB[3]}\ns_cmp_eq_u32 s{sWv}, 1\ns_cselect_b32 s{sX}, {VB[2]}, s{sX}")
    a(f"s_cmp_eq_u32 s{sWv}, 2\ns_cselect_b32 s{sX}, {VB[3]}, s{sX}\ns_cmp_eq_u32 s{sWv}, 3\ns_cselect_b32 s{sX}, {SPARE}, s{sX}")
    a(f"s_lshl_b32 s{sOo}, s{sWv}, 14")
    a(f"s_lshl_b32 s{sOK}, s{sWv}, 12\ns_mov_b32 s{sOV}, s{sOK}")
    a(f"s_mul_i32 s{sMK}, s{sWv}, {4*RS}\ns_add_u32 s{sMV}, s{sMK}, {VB[0]}")
    a(f"s_mov_b32 s{sQ+2}, 65536\ns_mov_b32 s{sQ+3}, 0x20000\ns_mov_b32 s{sK+2}, {NB*16384}\ns_mov_b32 s{sK+3}, 0x20000\ns_mov_b32 m0, s{sMK}")
    a(f"s_mov_b32 s{sDK2}, {2*KS}\ns_mov_b32 s{sDV2}, {2*VS}\ns_mov_b32 s{sDK}, {2*KS}\ns_mov_b32 s{sDV}, {2*VS}")
    a(f"s_lshl_b32 s{sMb}, s2, 2\ns_add_u32 s{sMb}, s{sMb}, s{sWv}\ns_lshl_b32 s{sMb}, s{sMb}, 11\ns_add_u32 s{sMb}, s{sMb}, {XBASE}")
    a(f"s_mov_b32 s{sW+2}, {3*XBASE}\ns_mov_b32 s{sW+3}, 0x20000\nv_lshlrev_b32 v3, 7, v0")
    a(f"s_getreg_b32 s{sXcc}, hwreg(HW_REG_XCC_ID)\ns_and_b32 s{sXcc}, s{sXcc}, 15")
    a("v_lshrrev_b32 v6, 3, v0\nv_and_b32 v7, 6, v6\nv_xor_b32 v7, v7, v0\nv_and_b32 v7, 7, v7\nv_lshlrev_b32 v7, 4, v7\nv_lshl_add_u32 v6, v6, 9, v7\nv_xor_b32 v7, 0x200, v6")
    a("s_waitcnt lgkmcnt(0)")
    fstamp(pro)
    def epi_addr(a):
        a(f"v_and_b32 v1, 15, v0\nv_lshrrev_b32 v4, 4, v0\ns_mul_i32 s3, s{sWv}, 8704")
        a(f"v_mul_u32_u24 v5, 272, v1\nv_lshlrev_b32 v21, 3, v4\nv_add3_u32 v{vEw}, v5, v21, s3")
        a(f"v_lshlrev_b32 v21, 4, v1\nv_mul_u32_u24 v5, 272, v4\nv_add3_u32 v{vEr}, v5, v21, s3")
        a(f"v_lshl_add_u32 v{vOg}, v4, 10, v21\nv_mov_b32 v{vSt}, " + ("v21" if st256 else f"v{vDma}"))
        if q4:
            a(f"v_lshrrev_b32 v5, 3, v0\nv_and_b32 v21, 7, v0\nv_lshlrev_b32 v21, 4, v21\nv_mul_u32_u24 v{vEr}, 272, v5\nv_add3_u32 v{vEr}, v{vEr}, v21, s3\nv_lshl_add_u32 v21, v5, 10, v21")
    def setup():
        a(f"s_lshl_b32 s3, s{sKh}, 8\nv_xor_b32 v{vDmaV}, s3, v{vDma}")
        a(f"v_and_b32 v1, 15, v0\nv_lshrrev_b32 v4, 4, v0")
        a(f"v_mul_u32_u24 v2, {RS}, v1\nv_lshl_add_u32 v{vKa}, v4, 4, v2")
        a(f"v_lshrrev_b32 v2, 2, v0\nv_mul_u32_u24 v2, {RS}, v2\nv_and_b32 v3, 3, v0\nv_lshl_add_u32 v2, v3, 3, v2\nv_add_u32 v{vVa}, {VB[0]}, v2")
        a(f"v_lshlrev_b32 v3, 1, v3\nv_lshrrev_b32 v2, 2, v1\nv_and_b32 v5, 1, v2\nv_xor_b32 v5, v5, v3\nv_lshlrev_b32 v5, 7, v5\nv_lshl_add_u32 v5, v2, 10, v5")
        a(f"v_xor_b32 v3, v3, v4\nv_lshl_add_u32 v5, v3, 4, v5")
        a(f"v_add_u32 v28, s{sX}, v5\nv_xor_b32 v3, 128, v5\nv_add_u32 v29, s{sX}, v3\nv_xor_b32 v3, 64, v5\nv_add_u32 v30, s{sX}, v3\nv_xor_b32 v3, 0xc0, v5\nv_add_u32 v31, s{sX}, v3")
        epi_addr(a)
        a(f"s_mov_b32 s{sC}, {f2u(C_SCALE):#x}")
        a(f"v_mov_b32 v{vL}, 0\nv_mov_b32 v{vL+1}, 0\nv_mov_b32 v2, s{sC}")
        for r in range(zsplit[0]): a(f"v_mov_b32 v{vO+r}, 0")
    def dmaK(n, j): return [parse(f"s_add_u32 m0, s{sMK}, {(n%2)*KS+32*j}"),
                            parse(f"buffer_load_dwordx4 v{vDma}, s[{sK}:{sK+3}], s{sOK} offen offset:{1024*j}{polK} lds")]
    def dmaV(n, j): return [parse(f"s_add_u32 m0, s{sMV}, {(n%2)*VS+32*j}"),
                            parse(f"buffer_load_dwordx4 v{vDmaV}, s[{sV}:{sV+3}], s{sOV} offen offset:{1024*j}{polV} lds")]
    def advK(n):
        L = [parse(f"s_add_u32 s{sOK}, s{sOK}, 16384")]
        if n % 2 == 1: L += [parse(f"s_add_u32 s{sMK}, s{sMK}, s{sDK2}"), parse(f"s_sub_u32 s{sDK2}, 0, s{sDK2}")]
        return L
    def advV(n):
        L = [parse(f"s_add_u32 s{sOV}, s{sOV}, 16384")]
        if n % 2 == 1: L += [parse(f"s_add_u32 s{sMV}, s{sMV}, s{sDV2}"), parse(f"s_sub_u32 s{sDV2}, 0, s{sDV2}")]
        return L
    def block(seg, f, adv, n):
        for j in range(4):
            x = f(n, j); seg.add(x[0]); seg.a("s_nop 0"); seg.add(x[1])
        for x in adv(n): seg.add(x)
    def kread(n, j): return parse(f"ds_read_b128 a[{aKF+4*j}:{aKF+4*j+3}], v{vKa} offset:{(n%2)*KS+64*(j//2)+512*(j%2)}")
    def vread(n, dt, kt, slot=None):
        r = aVF + 4*(dt if slot is None else slot) + 2*kt
        return parse(f"ds_read_b64_tr_b16 a[{r}:{r+1}], v{vVa} offset:{(n%2)*VS+512*kt+32*dt}")
    def qk(n, g, first0=False):
        j, qt = g//2, g % 2; t, kt = j//2, j % 2
        S = vS[n%2] + 8*qt + 4*kt; f = aKF+4*j; qf = aQ + 4*(2*t+qt)
        c = f"v[{S}:{S+3}]" if t else ("0" if first0 else f"v[{vCn+4*qt}:{vCn+4*qt+3}]")
        i = parse(f"v_mfma_f32_16x16x32_bf16 v[{S}:{S+3}], a[{f}:{f+3}], a[{qf}:{qf+3}], {c}")
        if g % (2*wgrp) == 0: i.extra = set(R("a", f, 4*wgrp))
        return i
    def pv(n, dt, qt, grp=None, slot=None):
        f = aVF+4*(dt if slot is None else slot); o = vO+8*dt+4*qt; p = vP[n%2]+4*qt
        i = parse(f"v_mfma_f32_16x16x32_bf16 v[{o}:{o+3}], a[{f}:{f+3}], v[{p}:{p+3}], v[{o}:{o+3}]")
        for d2 in (grp or ()): i.extra |= set(R("a", aVF+4*d2, 4))
        return i
    def pvlist(n, dts, slots=None):
        L = []; slots = slots or dts
        for k, dt in enumerate(dts):
            L.append(pv(n, dt, 0, slots[k:k+wgrp] if k % wgrp == 0 else None, slots[k])); L.append(pv(n, dt, 1, None, slots[k]))
        return L
    def checkops():
        return [parse(f"v_max_f32 v{vMx}, v{vLb}, v{vLb+1}"), parse(f"v_cmp_lt_f32 vcc, {f2u(2.0**T):#x}, v{vMx}")]
    def mergeops(): return [parse(f"v_add_f32 v{vL+qt}, v{vL+qt}, v{vLb+qt}") for qt in range(2)]
    def softmax_q(n, merge=True, pipe=False):
        S = vS[n%2]; P = vP[n%2]
        E = lambda r: parse(f"v_exp_f32 v{vPf+r}, v{S+r}")
        def A(r):
            if r % 8 == 1: return parse(f"v_add_f32 v{vLb+r//8}, v{vPf+r-1}, v{vPf+r}")
            return parse(f"v_add_f32 v{vLb+r//8}, v{vLb+r//8}, v{vPf+r}")
        Cv = lambda p: parse(f"v_cvt_pk_bf16_f32 v{P+p}, v{vPf+2*p}, v{vPf+2*p+1}")
        q = []
        if pipe:
            for r in range(17):
                if r < 16: q.append(E(r))
                if r >= 1 and (r-1) % 8: q.append(A(r-1))
                if r >= 2 and r % 2 == 0: q.append(Cv(r//2-1))
            return q
        mg = mergeops() if merge else []
        for r in range(16):
            q.append(E(r))
            if r % 8 == 0:
                if mg: q.append(mg.pop(0))
            else: q.append(A(r))
            if r % 2 == 1: q.append(Cv(r//2))
        return q
    def spread(ops, g0, g1):
        tot = sum(x.cost for x in ops); c = 0; out = []
        for x in ops:
            out.append((x, g0 + (g1-g0)*c/max(tot-ops[-1].cost, 1), g0)); c += x.cost
        return out
    def post(x): x.tag = "post"; return x
    def schedule(seg, mf, streams, sca, label="", cap=2, lastempty=False):
        n = len(mf); streams = [list(s) for s in streams if s]
        nm = n
        if lastempty: n -= 1
        for g in range(nm):
            seg.add(mf[g])
            s_ = sca.get(g, [])
            pre = [x for x in s_ if x.tag != "post"]; pst = [x for x in s_ if x.tag == "post"]
            wsh = 1 if (g+1 < nm and mf[g+1].extra) else 0
            free = cap - max(0, len(pre)+wsh-1) - len([x for x in pst if x.kind != "label"])
            mem = []; val = []
            while True:
                cands = [s for s in streams if s and s[0][2] <= g]
                if val: cands = [s for s in cands if s[0][0].kind not in ("dsr","dsw","dma","vst","vld")] + [s for s in cands if s[0][0].kind in ("dsr","dsw","dma","vst","vld")]
                cands.sort(key=lambda s: s[0][1])
                pick = None
                for s in cands:
                    x, tg, _ = s[0]
                    if g < n-1 and tg > g + 1.0 and (mem or val): continue
                    if g < n-1 and tg > g + 2.0: continue
                    if val and val[-1].kind == "trans" and (x.rd & val[-1].wr) and g < n-1: continue
                    if x.cost <= free or tg <= g - late or g == n-1: pick = s; break
                if pick is None: break
                x = pick.pop(0)[0]; free -= x.cost
                (mem if x.kind in ("dsr","dsw","dma","vld") else val).append(x)
            row = pre + mem + val + pst
            for x in row: seg.add(x)
            if verbose: print(f"; {label} gap{g}: " + "".join({"dsr":"t","dma":"d","trans":"e","valu":"v","salu":"s","wait":"w","barrier":"B","vst":"S"}.get(x.kind, "?") for x in row))
        assert not any(streams)
    def addf(d, g, *xs): d.setdefault(g, []).extend(xs)
    def rowmax(seg, S, zero):
        for qt, d, t in ((0, 1, 6), (1, 4, 7)):
            b = S + 8*qt
            seg.a(f"v_max3_f32 v{d}, v{b}, v{b+1}, v{b+2}\nv_max3_f32 v{d}, v{d}, v{b+3}, v{b+4}\nv_max3_f32 v{d}, v{d}, v{b+5}, v{b+6}")
            seg.a(f"v_max3_f32 v{d}, v{d}, v{b+7}, 0" if zero else f"v_max_f32 v{d}, v{d}, v{b+7}")
        seg.a("v_mov_b32 v6, v1\nv_mov_b32 v7, v4\nv_permlane16_swap_b32 v6, v1\nv_permlane16_swap_b32 v7, v4\nv_max_f32 v1, v1, v6\nv_max_f32 v4, v4, v7")
        seg.a("v_mov_b32 v6, v1\nv_mov_b32 v7, v4\nv_permlane32_swap_b32 v6, v1\nv_permlane32_swap_b32 v7, v4\nv_max_f32 v1, v1, v6\nv_max_f32 v4, v4, v7")
    NV0 = 4 if tpl else 3
    NK0 = 8 if tpl else 5 if ilv else 6
    def nosh(g):
        while g % (2*wgrp) == 2*wgrp-1: g += 1
        return g
    def iteration(seg, i, ret, do_pv=True, loopend=False, pref=False):
        sca = {}; dm = []
        mf = [qk(i+2, g) for g in range(32)]
        tK = [parse(f"v_add_u32 v{vKa}, s{sDK}, v{vKa}"), parse(f"s_sub_u32 s{sDK}, 0, s{sDK}")]
        tV = [parse(f"v_add_u32 v{vVa}, s{sDV}, v{vVa}"), parse(f"s_sub_u32 s{sDV}, 0, s{sDV}")]
        def place(g, xs):
            for x in xs:
                g = nosh(g)
                while g in sca: g = nosh(g+1)
                addf(sca, g, x); g += 1
            return g
        if do_pv:
            mf += pvlist(i, list(range(16)))
            mf[63].extra = set(R("a", aKF, 4*wgrp))
            mf[0].extra = set()
            dp = dmagaps
            nvm = 12
            if pref and pref12 and prefmode == 1: nvm = 13 if i == NB-3 else 17
            if pref and pref13 and prefmode == 1: nvm = 12 if i == NB-3 else 8
            addf(sca, bg, parse(f"s_waitcnt vmcnt({nvm})"), parse("s_barrier"))
            if loopend:
                addf(sca, 60, parse(f"s_sub_u32 s{sCnt}, s{sCnt}, 1"))
                if ilv: addf(sca, 63, parse(f"s_cmp_lg_u32 s{sCnt}, 0"))
                else: addf(sca, 61, parse(f"s_cmp_lg_u32 s{sCnt}, 0"))
            last = i == NB-3
            for k in range(1, 8):
                if pref and k >= 4 and prefmode == 1:
                    if pref12 or pref13:
                        kks = [] if last != pref13 else [(2*(k-4), dp[k]-4), (2*(k-4)+1, dp[k])]
                    else: kks = [(4*(i % 2) + k - 4, dp[k])]
                    for kk, gg in kks:
                        y = parse(f"buffer_load_dwordx4 a[192:195], v{vOg}, s[{sO}:{sO+3}], s{sT0} offen offset:{512*(kk%2)}{ppol}"); y.wr = set()
                        if kk % 2 == 1: addf(sca, gg+1, parse(f"s_add_u32 s{sT0}, s{sT0}, 4096"))
                        dm.append((y, gg-3, gg))
                    if pref12 and not last and k == 7:
                        y = parse(f"buffer_load_dwordx4 a[192:195], v{vSt}, s[{sW}:{sW+3}], s{sMb} offen offset:256"); y.wr = set()
                        dm.append((y, dp[k]-1, dp[k]+2))
                    continue
                x = dmaV(i+2, k) if k < 4 else dmaK(i+5, k-4)
                addf(sca, dp[k]-1, x[0]); dm.append((x[1], dp[k]-3, dp[k]))
            if last:
                if not (pref12 and prefmode == 1):
                    y = parse(f"buffer_load_dwordx4 a[192:195], v{vSt}, s[{sW}:{sW+3}], s{sMb} offen offset:256"); y.wr = set()
                    dm.append((y, dp[0]-3, dp[0]))
            else:
                x = dmaV(i+3, 0); addf(sca, dp[0]-1, x[0]); dm.append((x[1], dp[0]-3, dp[0]))
            if not last: assert place(dp[3]+1, advV(i+2)) < dp[0]
            if not (pref and prefmode == 1): assert place(dp[7]+1, advK(i+5)) <= 60
            r1 = [kread(i+2, j) for j in range(NK0, 16)] + [vread(i, dt, kt) for dt in range(16) for kt in range(2)]
            nxt = [vread(i+1, dt, kt) for dt in range(8, 8+NV0) for kt in range(2)] if last else [kread(i+3, j) for j in range(NK0)]
            if last: mf[63].extra = set(R("a", aVF+32, 4*wgrp))
            rd = spread(r1, 0, bg-1) + [(y, t, bg+(2 if last else 1)) for (y, t, _) in spread(nxt, bg+1, 61)]
            rdv = []
            if ilv:
                lead = 64 - (bg+1)
                rd = [(kread(i+2, j), 2*j - lead, 0) for j in range(NK0, 16)]
                k_end = 30 - lead
                nslow = int(k_end * ilv[0])
                vr = [vread(i, dt, kt) for dt in range(16) for kt in range(2)]
                rdv = spread(vr[:nslow], 1, k_end) + [(y, t, 0) for (y, t, _) in spread(vr[nslow:], k_end+1, ilv[1])]
                if last: rdv += [(y, t, bg+2) for (y, t, _) in spread(nxt, ilv[1]+1.5, 62)]
                else: rd += [(y, bg+1+2*j, bg+1) for j, y in enumerate(nxt)]
            tg = []
            if i % 2 == 1:
                if ilv: tg = [(tK[0], 26, 26), (tV[0], ilv[1], ilv[1]+1)]; place(29, [tK[1]]); addf(sca, 62, post(tV[1]))
                else: tg = [(tK[0], 16, 16), (tV[0], bg-1, bg+1)]; place(21, [tK[1]]); assert place(bg+4, [tV[1]]) <= 60
            n0 = len(seg.ins)
            schedule(seg, mf, [dm, rd, rdv, tg, spread(softmax_q(i+1) + checkops(), 0, smend)], sca, label=f"it{i}", lastempty=True)
            tx = [x.text for x in seg.ins[n0:]]
            if i % 2 == 1:
                assert tx.index(kread(i+2, 15).text) < tx.index(tK[0].text) < tx.index(tK[1].text) < tx.index(nxt[0].text)
                assert tx.index(vread(i, 15, 1).text) < tx.index(tV[0].text) < tx.index(tV[1].text)
                if last: assert tx.index(tV[0].text) < tx.index(nxt[0].text)
            assert tx.index("s_barrier") < len(tx) - 1 - tx[::-1].index(nxt[0].text)
            seg.a(f"s_cbranch_vccnz L_rare{ret}\nL_back{ret}:")
        else:
            for k, g in enumerate((1, 5, 9, 13, 17, 21, 25, 29)):
                x = dmaV(i+2, k) if k < 4 else dmaK(i+5, k-4)
                addf(sca, g-1, x[0]); dm.append((x[1], g-3, g))
            place(14, advV(i+2)); place(30, advK(i+5))
            rd = spread([kread(i+2, j) for j in range(NK0, 16)], 0, 16)
            schedule(seg, mf, [dm, rd, spread(softmax_q(i+1, merge=False), 0, 31)], sca, label=f"it{i}")
            seg.add(tK[0]); seg.add(tK[1])
            seg.a("s_waitcnt vmcnt(12)\ns_barrier")
            for j in range(NK0): seg.add(kread(i+3, j))
            x = dmaV(i+3, 0); seg.add(x[0]); seg.a(f"buffer_load_dword v2, v3, s[{sW}:{sW+3}], s{sPw} offen offset:128 sc1"); seg.add(x[1])
            if otouch:
                y = parse(f"buffer_load_dword a192, v3, s[{sO}:{sO+3}], s{sOo} offen"); y.wr = set(); seg.add(y)
            seg.a(f"s_waitcnt lgkmcnt({NK0-wgrp})")
    sThr, sThr2 = 60, 61
    def iteration2(seg, i, ret, loopend=False, pref=False, zsites=False, serial=None, inl=None):
        last = i == NB-3; bg_ = tbg
        mf = [qk(i+2, g) for g in range(32)] + pvlist(i, list(range(16)))
        mf[63].extra = set(R("a", aVF+32 if last else aKF, 4*wgrp)); mf[0].extra = set()
        sh = {g: [] for g in range(64)}; mem = {g: [] for g in range(64)}; val = {g: [] for g in range(64)}
        resv = {g for g in range(63) if mf[g+1].extra}
        def place(g, xs):
            for x in xs:
                while g in resv or sh[g] or g == bg_: g += 1
                assert g < 63
                sh[g].append(x); g += 1
            return g
        nvm = 12
        if pref and prefmode == 1: nvm = 12 if last else 8
        assert bg_-1 not in resv or True
        sh[bg_ if (bg_-1) in resv else bg_-1].append(parse(f"s_waitcnt vmcnt({nvm})")); sh[bg_].append(parse("s_barrier"))
        if zsites:
            for n_, zg in enumerate(tzs):
                assert zg not in resv and zg-1 not in resv and zg not in tD and zg-1 not in tD
                sh[zg-1].append(parse(f"s_cmp_eq_u32 s{sCnt}, {NTRIP-1}")); sh[zg] += [parse(f"s_cbranch_scc1 L_zero{n_}"), parse(f"L_zback{n_}:")]
        nxt = [vread(i+1, dt, kt) for dt in range(8, 8+NV0) for kt in range(2)] if last else [kread(i+3, j) for j in range(NK0)]
        reads = [kread(i+2, j) for j in range(NK0, 16)] + [vread(i, dt, kt) for dt in range(16) for kt in range(2)] + nxt
        slots = []
        for g in range(63):
            if g not in tE and g != bg_: slots += [g, g] if g in tdbl else [g]
        assert len(slots) == len(reads), (len(slots), len(reads))
        for g, x in zip(slots, reads): mem[g].append(x)
        gpos = {x.text: g for g, x in zip(slots[:40], reads[:40])}
        assert slots[40] > bg_
        def putv(g, y): mem[g].append(y)
        for k in range(8):
            g = tD[k]; assert g not in resv and g not in tE and not sh[g]
            if k == 0:
                if last:
                    y = parse(f"buffer_load_dwordx4 a[192:195], v{vSt}, s[{sW}:{sW+3}], s{sMb} offen offset:256"); y.wr = set(); putv(g, y)
                else: x = dmaV(i+3, 0); sh[g].append(x[0]); putv(g, x[1])
            elif k >= 4 and pref and prefmode == 1:
                pass
            else:
                x = dmaV(i+2, k) if k < 4 else dmaK(i+5, k-4); sh[g].append(x[0]); putv(g, x[1])
        thr = f"s{sThr}"
        if loopend:
            g = 56
            while g in resv or sh[g] or g+1 in resv or sh[g+1]: g += 1
            sh[g].append(parse(f"s_sub_u32 s{sCnt}, s{sCnt}, 1")); sh[g+1].append(parse(f"s_cselect_b32 s{sThr2}, -1.0, s{sThr}")); thr = f"s{sThr2}"
        if not last: assert place(tD[3]+1, advV(i+2)) <= tD[0]
        if not (pref and prefmode == 1): assert place(tD[7]+1, advK(i+5)) <= 63
        q = softmax_q(i+1) + [parse(f"v_max_f32 v{vMx}, v{vLb}, v{vLb+1}"), parse(f"v_cmp_lt_f32 vcc, {thr}, v{vMx}")]
        blk = []
        if serial is not None:
            blk = mergeops() + softmax_q(i+1, merge=False, pipe=True) + q[-2:]; q = []
        ex = [x for x in q if x.kind == "trans"]; ot = []; ne = 0
        for x in q:
            if x.kind == "trans": ne += 1
            else: ot.append((x, tE[ne-1]+1))
        for g, x in zip(tE, ex): val[g].append(x)
        if i % 2 == 1:
            tK = [parse(f"v_add_u32 v{vKa}, s{sDK}, v{vKa}"), parse(f"s_sub_u32 s{sDK}, 0, s{sDK}")]
            tV = [parse(f"v_add_u32 v{vVa}, s{sDV}, v{vVa}"), parse(f"s_sub_u32 s{sDV}, 0, s{sDV}")]
            gk = gpos[kread(i+2, 15).text]; gv = slots[39]
            for t, g0 in ((tK, gk), (tV, gv)):
                g = g0
                while (g in tE or g == bg_ or len(mem[g]) + len(val[g]) >= 2) and not (t is tV and last): g += 1
                if t is tV and last: assert g < slots[40]
                val[g].append(t[0]); place(g+1, [t[1]])
        g = 0
        for x, e0 in ot:
            g = max(g, e0)
            while g in tE or g == bg_ or len(mem[g]) + len(val[g]) >= 2: g += 1
            assert g < 62, (i, x.text)
            val[g].append(x); g += 1
        if last and pref and prefmode == 1:
            cand = [g for g in range(tD[3]+1, bg_-1) if g not in tE and len(mem[g]) + len(val[g]) < 2]
            extra = [g for g in range(tD[3]+1, bg_-1) if g not in tE and g not in cand and g not in tdbl]
            while len(cand) < 8: cand.append(extra.pop(len(extra)//2))
            cand.sort(); cand = cand[:8]
            for kk, g in enumerate(cand):
                y = parse(f"buffer_load_dwordx4 a[192:195], v{vOg}, s[{sO}:{sO+3}], s{sT0} offen offset:{512*(kk%2)}{ppol}"); y.wr = set(); putv(g, y)
                if kk % 2 == 1 and kk < 7: val[g].append(parse(f"s_add_u32 s{sT0}, s{sT0}, 4096"))
        for g in range(64):
            seg.add(mf[g])
            row = sh[g] + [x for x in mem[g] if x.kind == "dsr"] + [x for x in mem[g] if x.kind != "dsr"] + val[g] + (blk if g == serial else []) + ((inl or {}).get(g) or [])
            for x in row: seg.add(x)
            if verbose: print(f"; it{i} gap{g}: " + ("w" if g in resv else "") + "".join({"dsr":"t","dma":"d","vld":"d","trans":"e","valu":"v","salu":"s","wait":"W","barrier":"B","branch":"x","label":""}.get(x.kind, "?") for x in row))
        if loopend:
            seg.a(f"s_cbranch_vccz L_loop\nv_cmp_lt_f32 vcc, s{sThr}, v{vMx}\ns_cmp_lt_i32 s{sCnt}, 0\ns_cbranch_vccnz L_rare{ret}\nL_back{ret}:\ns_cbranch_scc0 L_loop")
        else: seg.a(f"s_cbranch_vccnz L_rare{ret}\nL_back{ret}:")
    vm = []
    def vmwait(name, extra=""):
        k = max(j for j, x in enumerate(vm) if x == name)
        a(f"s_waitcnt vmcnt({len(vm)-1-k}){extra}")
    fill = [f"s_add_u32 s{sQ}, s4, s{sT1}\ns_addc_u32 s{sQ+1}, s5, 0", f"s_mov_b32 s{sW}, s14\ns_mov_b32 s{sW+1}, s15",
            f"s_add_u32 s{sV}, s8, s{sT0}\ns_addc_u32 s{sV+1}, s9, 0", f"s_mov_b32 s{sV+2}, {NB*16384}\ns_mov_b32 s{sV+3}, 0x20000",
            f"s_add_u32 s{sO}, s10, s{sT1}\ns_addc_u32 s{sO+1}, s11, 0", f"s_mov_b32 s{sO+2}, 65536\ns_mov_b32 s{sO+3}, 0x20000",
            f"s_xor_b32 s{sPw}, s{sMb}, {pxor*8192}"]
    a(f"s_add_u32 s{sK}, s6, s{sT0}\ns_addc_u32 s{sK+1}, s7, 0")
    def publish(t0, t1):
        a(f"v_readlane_b32 s{t0}, v8, 0\nv_readlane_b32 s{t1}, v8, 1\nv_mov_b32 v9, 0")
        a(f"s_and_b32 s{t1}, s{t1}, 0xffffff00\ns_add_u32 s{t1}, s{t1}, 0x100\ns_or_b32 s{t1}, s{t1}, s{sXcc}")
        a(f"s_cmp_eq_u32 s{t1}, s{t0}\ns_cselect_b32 s3, 0x100, 0\ns_add_u32 s{sCh}, s{t1}, s3\nv_mov_b32 v8, s{sCh}")
        a(f"buffer_store_dword v8, v9, s[{sW}:{sW+3}], s{sMb} offen offset:128 sc1")
    mbload = f"s_mov_b64 exec, 3\nbuffer_load_dword v8, v3, s[{sW}:{sW+3}], s{sMb} offen sc1\ns_mov_b64 exec, -1"
    if stag is not None:
        a(f"s_mov_b32 s{sW}, s14\ns_mov_b32 s{sW+1}, s15"); a(mbload); vm.append("mb")
        a(f"s_bitcmp1_b32 s2, {stag}\ns_cbranch_scc0 L_early\ns_waitcnt vmcnt(0)"); publish(36, 37); a("L_early:")
    def kvblock(f, adv, n, name, filler=None):
        for j in range(4):
            x = f(n, j)
            if not (name == "K0" and j == 0): pro.add(x[0]); (filler() if filler else a("s_nop 0"))
            pro.add(x[1]); vm.append(name)
        for x in adv(n): pro.add(x)
    def qdma(c, u):
        return [parse(f"s_add_u32 m0, s{sX}, {1024*(4*c+u)}"), parse(f"s_add_u32 s3, s{sOo}, {4096*u+128*c}"),
                parse(f"buffer_load_dwordx4 v{6+u%2}, s[{sQ}:{sQ+3}], s3 offen{polQ} lds")]
    def qblock(c):
        for u in range(4):
            for x in qdma(c, u): pro.add(x)
            vm.append(f"Q{c}")
    if ttouch:
        a("\n".join(fill)); fill = ["s_nop 0"]*7
        a("s_mov_b64 exec, 1")
        for srd, so in ((sK, sOK), (sQ, sOo), (sV, sOV), (sO, sOo))[:ttouch]:
            y = parse(f"buffer_load_dword a192, v{vDma}, s[{srd}:{srd+3}], s{so} offen{polK}"); y.wr = set(); pro.add(y); vm.append("tt")
        a("s_mov_b64 exec, -1")
    kvblock(dmaK, advK, 0, "K0", lambda: a(fill.pop(0)))
    kvblock(dmaK, advK, 1, "K1", lambda: a(fill.pop(0)))
    assert not fill
    if stag is None: a(mbload); vm.append("mb")
    qblock(0)
    setup()
    qblock(1)
    fstamp(pro)
    vmwait("mb" if stag is None else "K1"); a("s_barrier")
    stamp(pro)
    def k01read(n, j):
        r = (aKF if n == 0 else aVF) + 4*j
        return parse(f"ds_read_b128 a[{r}:{r+3}], v{vKa} offset:{n*KS+64*(j//2)+512*(j%2)}")
    def kgrp(c): return [k01read(n, j) for j in range(4*c, 4*c+4) for n in range(2)]
    def qraw(f): return 96 + 16*((f//4) % 2) + 4*(f % 4)
    def qgrp(c): return [parse(f"ds_read_b128 v[{qraw(f)}:{qraw(f)+3}], v{28+2*((f//2)%2)+f%2} offset:{4096*c}") for f in range(4*c, 4*c+4)]
    def presc(r):
        x = 32 + 2*(r % 8); q = qraw(r//4) + r % 4
        return [parse(t) for t in (f"v_lshlrev_b32 v{x}, 16, v{q}", f"v_and_b32 v{x+1}, 0xffff0000, v{q}",
                f"v_pk_mul_f32 v[{x}:{x+1}], v[{x}:{x+1}], v[2:3] op_sel_hi:[1,0]",
                f"v_cvt_pk_bf16_f32 v{x}, v{x}, v{x+1}", f"v_accvgpr_write_b32 a{aQ+r}, v{x}")]
    def mgrp(c, blocks=(0, 1)):
        L = []
        for t in (2*c, 2*c+1):
            for kt in range(2):
                for n in blocks:
                    for qt in range(2):
                        S = vS[n] + 8*qt + 4*kt; f = (aKF if n == 0 else aVF) + 4*(2*t+kt); qf = aQ + 4*(2*t+qt)
                        L.append(parse(f"v_mfma_f32_16x16x32_bf16 v[{S}:{S+3}], a[{f}:{f+3}], a[{qf}:{qf+3}], " + (f"v[{S}:{S+3}]" if t else "0")))
        return L
    for x in kgrp(0): pro.add(x)
    qblock(2)
    if stag is None: publish(sT0, sT1); vm.append("pub")
    else:
        a(f"s_bitcmp1_b32 s2, {stag}\ns_cbranch_scc1 L_pubdone"); publish(sT0, sT1); a("L_pubdone:")
    a("v_mov_b32 v3, 0")
    items = [("Q3", lambda j: qdma(3, j), []), ("K2", lambda j: dmaK(2, j), advK(2)), ("V0", lambda j: dmaV(0, j), advV(0)),
             ("V1", lambda j: dmaV(1, j), advV(1)) if lazy < 2 else (None, None, []), (None, None, [])]
    if lazy == 3: items[2] = (None, None, [])
    zq = [parse(f"v_mov_b32 v{vO+r}, 0") for r in range(zsplit[0], zsplit[1])]
    for c in range(4 if p2 else 5):
        name, f_, adv = items[c]
        if c < 4:
            vmwait(f"Q{c}")
            if c in (0, 3): fstamp(pro)
            for x in qgrp(c): pro.add(x)
            pq = [x for r in range(16*c, 16*c+16) for x in presc(r)]
        else: pq = zq
        kr = kgrp(c+1) if c < 3 else []
        if c == 0:
            for j in range(4):
                x = f_(j)
                for y in x[:-1]: pro.add(y)
                for y in kr[2*j:2*j+2]: pro.add(y)
                for _ in range(20): pro.add(pq.pop(0))
                pro.add(x[-1]); vm.append(name)
        else:
            sca = {}; dm = []; st = 2 if p2 else 4
            for j in range(4 if name else 0):
                x = f_(j); addf(sca, st*j, *x[:-1]); dm.append((x[-1], st*j-2, st*j+1)); vm.append(name)
            mf = mgrp(c-1, (0,)) if p2 else mgrp(c-1)
            schedule(pro, mf, [dm, spread(kr, 0, len(mf)-2) if kr else [], spread(pq, 0, len(mf)-1) if pq else []], sca, label=f"S{c}", cap=12 if p2 else 6)
        for x in adv: pro.add(x)
    fstamp(pro)
    NTRIP = ((NB-4)//2 if peel else (NB-2)//2) - (nser//2 if tpl else 0)
    scal = Seg("x")
    scal.a(f"s_mov_b32 s{sCnt}, {NTRIP-1 if tpl else NTRIP}")
    if tpl: a(f"s_mov_b32 s{sThr}, {f2u(2.0**T):#x}")
    scal.a(f"s_lshl_b32 s{sX}, s{sKh}, 8\ns_add_u32 s{sX}, s{sOo}, s{sX}\ns_xor_b32 s{sOo}, s{sX}, 256")
    if pcont: scal.a(f"s_lshl_b32 s{sT0}, s{sKh}, 15\ns_lshl_b32 s3, s{sWv}, 13\ns_add_u32 s{sT0}, s{sT0}, s3")
    else: scal.a(f"s_mov_b32 s{sT0}, s{sX}")
    post_ops = Seg("x"); post2 = Seg("x")
    rowmax(post_ops, vS[0], False)
    for qt, d in ((0, 1), (1, 4)):
        for r in range(8): post_ops.a(f"v_sub_f32 v{(vTmp if dsm0 else vS[0])+8*qt+r}, v{vS[0]+8*qt+r}, v{d}")
    if dsm0: post_ops.a(f"v_mov_b32 v{vLb}, 0\nv_mov_b32 v{vLb+1}, 0")
    else:
        for x in softmax_q(0, merge=False, pipe=True): post_ops.add(x)
    for qt, d in ((0, 1), (1, 4)):
        for r in range(4): post_ops.a(f"v_sub_f32 v{vCn+4*qt+r}, 0, v{d}")
        for r in range(8): post2.a(f"v_sub_f32 v{vS[1]+8*qt+r}, v{vS[1]+8*qt+r}, v{d}")
    tK = [parse(f"v_add_u32 v{vKa}, s{sDK}, v{vKa}"), parse(f"s_sub_u32 s{sDK}, 0, s{sDK}")]
    if p2:
        mf = mgrp(3, (0,)) + [x for c in range(4) for x in mgrp(c, (1,))]
        sca = {}; dm = []
        for k, x in enumerate(scal.ins): addf(sca, min(k, 3), x)
        if not lazy:
            addf(sca, 4, parse("s_waitcnt lgkmcnt(0)"), parse("s_barrier"))
            for k in range(8):
                x = dmaK(3 + k//4, k % 4); g = 6 + 4*k
                addf(sca, g-1, x[0]); dm.append((x[1], g-3, g)); vm.append("K3" if k < 4 else "K4")
            addf(sca, 19, *advK(3)); addf(sca, 36, *advK(4))
        if lazy == 3:
            for k in range(4):
                x = dmaV(0, k); g = 2 + 4*k
                addf(sca, g-1, x[0]); dm.append((x[1], g-3, g)); vm.append("V0")
            addf(sca, 16, *advV(0))
        schedule(pro, mf, [dm, [(x, 0, 0) for x in zq], spread(post_ops.ins, 10, 39)], sca, label="S4", cap=5)
        stamp(pro)
        for x in tK: pro.add(x)
        vmwait("V0"); a("s_barrier")
        po = post2.ins
    else:
        for x in scal.ins + tK: pro.add(x)
        po = post_ops.ins + post2.ins
        if not mergeb:
            a("s_barrier")
            stamp(pro)
            def take(n):
                for _ in range(min(n, len(po))): pro.add(po.pop(0))
            kvblock(dmaK, advK, 3, "K3", lambda: take(12))
            kvblock(dmaK, advK, 4, "K4", lambda: take(12))
            take(1000)
            vmwait("V0"); a("s_barrier")
        else:
            stamp(pro)
            for x in po: pro.add(x)
            po = []
            vmwait("V0"); a("s_barrier")
    for j in range(NK0): pro.add(kread(2, j))
    if lazy >= 2: kvblock(dmaV, advV, 1, "V1")
    if mergeb or lazy:
        kvblock(dmaK, advK, 3, "K3"); kvblock(dmaK, advK, 4, "K4")
    if prefmode == 2:
        for kk in range(8):
            y = parse(f"buffer_load_dwordx4 a[192:195], v{vOg}, s[{sO}:{sO+3}], s{sT0} offen offset:{512*(kk%2)}{ppol}"); y.wr = set(); pro.add(y)
            if kk % 2: a(f"s_add_u32 s{sT0}, s{sT0}, 4096")
    x = dmaV(2, 0); pro.add(x[0]); a(f"buffer_load_dword v2, v3, s[{sW}:{sW+3}], s{sPw} offen offset:128 sc1"); pro.add(x[1])
    for x in po: pro.add(x)
    for r in range(zsplit[1], zsplit[2]): a(f"v_mov_b32 v{vO+r}, 0")
    a(f"s_waitcnt lgkmcnt({NK0-wgrp})")
    fstamp(pro)
    stamp(pro)
    def sm0_block(zs):
        X, E_ = vTmp, vTmp+16
        for r in range(17):
            if r < 16: zs.a(f"v_exp_f32 v{E_+r}, v{X+r}")
            if r >= 1: zs.a(f"v_add_f32 v{vL+(r-1)//8}, v{vL+(r-1)//8}, v{E_+r-1}" if r < 16 else f"s_nop 0\nv_add_f32 v{vL+1}, v{vL+1}, v{E_+15}")
            if r >= 2 and r % 2 == 0: zs.a(f"v_cvt_pk_bf16_f32 v{vP[0]+r//2-1}, v{E_+r-2}, v{E_+r-1}")
    warm = Seg("warm")
    if tpl:
        inl0 = {}
        if nser and zsplit[2] < 128:
            per = (128 - zsplit[2]) // len(tzs)
            for n_, zg in enumerate(tzs):
                zs = Seg("x"); r0 = zsplit[2] + n_*per
                assert zg < 32 + 2*(r0//8)
                if n_ == 0 and dsm0: sm0_block(zs)
                for r in range(r0, r0+per): zs.a(f"v_mov_b32 v{vO+r}, 0")
                inl0[zg] = zs.ins
        for i in range(nser): iteration2(warm, i, 5+i, serial=sergap[i], inl=inl0 if i == 0 else None)
    body = Seg("loop"); body.a("L_loop:")
    if tpl: iteration2(body, 0, 0, zsites=zsplit[2] < 128 and not nser); iteration2(body, 1, 1, loopend=True)
    else: iteration(body, 0, 0); iteration(body, 1, 1, loopend=True)
    if stamps == 2:
        body.a(f"s_waitcnt lgkmcnt(0)\ns_memtime s[64:65]\ns_memrealtime s[66:67]\ns_sub_u32 m0, {15+NTRIP}, s{sCnt}\ns_cmp_lg_u32 s{sCnt}, 0\ns_waitcnt lgkmcnt(0)\nv_writelane_b32 v10, s64, m0\nv_writelane_b32 v11, s66, m0")
    zseg = Seg("zero")
    if zsplit[2] < 128 and not (tpl and nser):
        zgs = tzs if tpl else zgap if isinstance(zgap, tuple) else (zgap,)
        per = (128 - zsplit[2]) // len(zgs)
        for n_, zg in enumerate(zgs):
            r0 = zsplit[2] + n_*per
            assert zg < 32 + 2*(r0//8)
            if not tpl:
                mi = [k for k, x in enumerate(body.ins) if x.kind == "mfma"]
                k = mi[zg]
                body.ins[k+1:k+1] = [parse(f"s_cbranch_scc1 L_zero{n_}"), parse(f"L_zback{n_}:")]
                k = mi[zg-1]
                for y in body.ins[k+1:mi[zg]]: assert y.kind != "salu"
            if n_ == 0 and not peel:
                mask = (1 << NTRIP) | sum(1 << t for t in ptrips)
                body.ins[k+1:k+1] = [parse(f"s_bitcmp1_b32 {mask}, s{sCnt}")]
                zseg.a(f"L_zero{n_}:\ns_cmp_eq_u32 s{sCnt}, {NTRIP}\ns_cbranch_scc1 L_zero{n_}b")
                for kk in range(3):
                    y = parse(f"buffer_load_dwordx4 a[192:195], v{vDma if pcont else vOg}, s[{sO}:{sO+3}], s{sT0} offen{ppol}"); y.wr = set(); zseg.add(y)
                    if pcont: zseg.a(f"s_add_u32 s{sT0}, s{sT0}, 1024")
                    else: zseg.a(f"s_xor_b32 s{sT0}, s{sT0}, 512\ns_bitcmp1_b32 s{sT0}, 9\ns_cselect_b32 s3, 0, 4096\ns_add_u32 s{sT0}, s{sT0}, s3")
                    if kk == 1:
                        zseg.a(f"s_cmp_lg_u32 s{sCnt}, {ptrips[-1]}\ns_cbranch_scc1 L_pf3")
                        y = parse(f"buffer_load_dwordx4 a[192:195], v{vSt}, s[{sW}:{sW+3}], s{sMb} offen offset:256"); y.wr = set(); zseg.add(y)
                        zseg.a(f"s_branch L_zback{n_}\nL_pf3:")
                zseg.a(f"s_branch L_zback{n_}\nL_zero{n_}b:")
            else:
                if not tpl: body.ins[k+1:k+1] = [parse(f"s_cmp_eq_u32 s{sCnt}, {NTRIP}")]
                zseg.a(f"L_zero{n_}:")
            if n_ == 0 and dsm0: sm0_block(zseg)
            for r in range(r0, r0+per): zseg.a(f"v_mov_b32 v{vO+r}, 0")
            zseg.a(f"s_nop 1\ns_branch L_zback{n_}")
    if xpad2:
        for n_, (trip, gi, nn) in enumerate(xpad2):
            mi = [k for k, x in enumerate(body.ins) if x.kind == "mfma"]
            k = mi[gi]
            body.ins[k+1:k+1] = [parse(f"s_cmp_eq_u32 s{sCnt}, {NTRIP-trip-(1 if tpl else 0)}"), parse(f"s_cbranch_scc1 L_xq{n_}"), parse(f"L_xqb{n_}:")]
            zseg.a(f"L_xq{n_}:")
            for _ in range(nn): zseg.a("s_nop 15")
            zseg.a(f"s_branch L_xqb{n_}")
    if xpad:
        nb = []; mcount = 0; lab = 0
        for x in body.ins:
            nb.append(x)
            if x.kind == "mfma":
                it = mcount // 64; g = mcount % 64; mcount += 1
                step = 64 // xpad[3]
                if g % step == step//2 - 2:
                    thr = xpad[it]
                    nb += [parse(f"s_cmp_ge_u32 s{sCnt}, {thr}"), parse(f"s_cbranch_scc0 L_xp{lab}")] + [parse("s_nop 15") for _ in range(xpad[2])] + [parse(f"L_xp{lab}:")]
                    lab += 1
        body.ins = nb
    if not tpl: body.a(f"s_cbranch_scc1 L_loop")
    tail = Seg("tail"); e = tail.a
    e("L_tail:")
    if tpl: iteration2(tail, NB-4, 3, pref=True); iteration2(tail, NB-3, 4, pref=True)
    elif peel: iteration(tail, NB-4, 3, pref=True); iteration(tail, NB-3, 4, pref=True)
    stamp(tail)
    i = NB-2
    snd = list(range(8, 16)); own = list(range(8))
    sq15 = softmax_q(i+1) + checkops()
    if not peel:
        for dt in range(8, 8+NV0):
            for kt in range(2): tail.add(vread(i, dt, kt))
        for x in (sq15[0], sq15[1], sq15[2], sq15[5], sq15[3], sq15[4]): tail.add(x)
        sq15 = sq15[6:]
    rd = spread([vread(i, dt, kt) for dt in range(8+NV0, 16) for kt in range(2)], 0, 6)
    rd += [(y, t, btx+1) for (y, t, _) in spread([vread(i+1, dt, kt, dt-8) for dt in snd for kt in range(2)], btx+1, 15)]
    sca = {btx: [parse("s_waitcnt vmcnt(9)" if pref13 else "s_waitcnt vmcnt(5)" if peel and not (pref12 and prefmode == 1) else "s_waitcnt vmcnt(0)"), parse("s_barrier")]}
    if stamps and fine:
        t1 = Seg("x"); fstamp(t1); t2 = Seg("x"); fstamp(t2)
        sca[btx] = t1.ins + sca[btx] + t2.ins
    mf = pvlist(i, snd)
    if peel: mf[0].extra = set()
    schedule(tail, mf, [rd, spread(sq15, 0, 15)], sca, label="X", cap=5)
    e(f"v_readfirstlane_b32 s{sT1}, v2\ns_cbranch_vccnz L_rare2\nL_back2:")
    fstamp(tail)
    e(f"s_and_b32 s3, s{sT1}, 0xff")
    sends = []
    if fast: e(f"s_cmp_eq_u32 s3, s{sXcc}\ns_cbranch_scc1 L_sendfast")
    for var in (("slow", " sc1"), ("fast", "")) if fast else (("slow", " sc1"),):
        sg = Seg("send_"+var[0]); sends.append(sg)
        if var[0] == "fast": sg.a("L_sendfast:")
        st = mergeops() + [parse(t) for t in (f"v_mov_b32 v6, v{vL}", f"v_mov_b32 v7, v{vL+1}", f"v_mov_b32 v4, v{vCn}", f"v_mov_b32 v5, v{vCn+4}",
              f"v_permlane16_swap_b32 v6, v{vL}", f"v_permlane16_swap_b32 v7, v{vL+1}", f"v_add_f32 v{vL}, v6, v{vL}", f"v_add_f32 v{vL+1}, v7, v{vL+1}",
              f"v_mov_b32 v6, v{vL}", f"v_mov_b32 v7, v{vL+1}", "s_nop 0", f"v_permlane32_swap_b32 v6, v{vL}", f"v_permlane32_swap_b32 v7, v{vL+1}",
              f"v_add_f32 v6, v6, v{vL}", f"v_add_f32 v7, v7, v{vL+1}",
              f"buffer_store_dwordx4 v[4:7], v{vSt}, s[{sW}:{sW+3}], s{sPw} offen offset:256{var[1]}")]
        q = []
        for k in range(8):
            o = vO + 8*(8+k); g0 = 2*k + 1 + 3
            for x in range(4): q.append((parse(f"v_cvt_pk_bf16_f32 v{vTmp+4*k+x}, v{o+2*x}, v{o+2*x+1}"), g0-2, g0))
            q.append((parse(f"buffer_store_dwordx4 v[{vTmp+4*k}:{vTmp+4*k+3}], v{vOg}, s[{sO}:{sO+3}], s{sOo} offen offset:{512*(k%2)}{var[1]}"), g0-2, g0))
            if k % 2 == 1 and k < 7: q.append((parse(f"s_add_u32 s{sOo}, s{sOo}, 4096"), g0-2, g0))
        rd = spread([vread(i, dt, kt, dt+8) for dt in own for kt in range(2)], 1, 20)
        rd += [(y, t, 17) for (y, t, _) in spread([vread(i+1, dt, kt) for dt in own for kt in range(2)], 21, 38)]
        mf = pvlist(i+1, snd, own) + pvlist(i, own, snd) + pvlist(i+1, own)
        if var[0] == "slow": nf0 = nf[0]; st0 = nst[0]
        nf[0] = nf0; nst[0] = st0
        tg = Seg("x"); fstamp(tg); tg.a("s_waitcnt vmcnt(0)"); stamp(tg)
        tg.a(f"buffer_store_dword v2, v3, s[{sW}:{sW+3}], s{sPw} offen{var[1]}")
        sca = {tagg: [post(x) for x in tg.ins]}
        schedule(sg, mf, [rd, q, spread(st, 0, 4)], sca, label="YZ", cap=3)
        fstamp(sg)
        if var[0] == "slow" and fast: sg.a("s_branch L_sent")
    fin = Seg("final"); e = fin.a
    e("L_sent:")
    e(f"s_mov_b32 s{sCnt}, 0x200000")
    e("L_poll:")
    e(f"s_sub_u32 s{sCnt}, s{sCnt}, 1\ns_cbranch_scc1 L_pollok")
    e(f"buffer_load_dword v8, v3, s[{sW}:{sW+3}], s{sMb} offen{xpoll}\ns_waitcnt vmcnt(0)\nv_readfirstlane_b32 s3, v8\ns_cmp_lg_u32 s3, s{sCh}\ns_cbranch_scc1 L_poll")
    e("L_pollok:")
    stamp(fin)
    e(f"s_mov_b32 s{sOo}, s{sX}")
    def xloads(pol):
        e(f"buffer_load_dwordx4 v[32:35], v{vSt}, s[{sW}:{sW+3}], s{sMb} offen offset:256{pol}")
        for k in range(8):
            e(f"buffer_load_dwordx4 v[{vTmp+4*k}:{vTmp+4*k+3}], v{vOg}, s[{sO}:{sO+3}], s{sOo} offen offset:{512*(k%2)}{pol}")
            if k % 2 == 1 and k < 7: e(f"s_add_u32 s{sOo}, s{sOo}, 4096")
    xloads(xld)
    e(f"buffer_load_dword v2, v3, s[{sW}:{sW+3}], s{sPw} offen offset:128 sc1")
    fstamp(fin, 9); fstamp(fin, 0)
    for qt in range(2):
        fo, fx, t = 36+2*qt, 40+2*qt, 44+qt
        e(f"v_min_f32 v{t}, v{4+qt}, v{32+qt}\nv_sub_f32 v{fo}, v{t}, v{4+qt}\nv_sub_f32 v{fx}, v{t}, v{32+qt}\nv_exp_f32 v{fo}, v{fo}\nv_exp_f32 v{fx}, v{fx}")
    for qt in range(2):
        fo, fx, t = 36+2*qt, 40+2*qt, 44+qt
        e(f"v_mul_f32 v{t}, v{fo}, v{6+qt}\nv_fma_f32 v{t}, v{fx}, v{34+qt}, v{t}\nv_rcp_f32 v{t}, v{t}")
    for qt in range(2):
        fo, fx, t = 36+2*qt, 40+2*qt, 44+qt
        e(f"v_mul_f32 v{fo}, v{fo}, v{t}\nv_mul_f32 v{fx}, v{fx}, v{t}")
    for r in range(0, 64, 2):
        fo = 36 + 2*((r//4) % 2)
        e(f"v_pk_mul_f32 v[{vO+r}:{vO+r+1}], v[{vO+r}:{vO+r+1}], v[{fo}:{fo+1}] op_sel_hi:[1,0]")
    def comb(dt, qt):
        o = vO + 8*dt + 4*qt; p = vTmp + 4*dt + 2*qt; u = 48 + 4*((2*dt+qt) % 4); fx = 40+2*qt
        e(f"v_lshlrev_b32 v{u}, 16, v{p}\nv_and_b32 v{u+1}, 0xffff0000, v{p}\nv_lshlrev_b32 v{u+2}, 16, v{p+1}\nv_and_b32 v{u+3}, 0xffff0000, v{p+1}")
        e(f"v_pk_fma_f32 v[{o}:{o+1}], v[{u}:{u+1}], v[{fx}:{fx+1}], v[{o}:{o+1}] op_sel_hi:[1,0,1]")
        e(f"v_pk_fma_f32 v[{o+2}:{o+3}], v[{u+2}:{u+3}], v[{fx}:{fx+1}], v[{o+2}:{o+3}] op_sel_hi:[1,0,1]")
        e(f"v_cvt_pk_bf16_f32 v{o}, v{o}, v{o+1}\nv_cvt_pk_bf16_f32 v{o+1}, v{o+2}, v{o+3}")
    def dsw(dt, qt):
        o = vO + 8*dt + 4*qt
        e(f"ds_write_b64 v{vEw}, v[{o}:{o+1}] offset:{4352*qt+32*dt}")
    def retag():
        e(f"v_readfirstlane_b32 s3, v2\ns_cmp_eq_u32 s3, s{sT1}\ns_cbranch_scc1 L_tagok")
        e(f"buffer_wbl2 sc1\ns_waitcnt vmcnt(0)\nbuffer_store_dword v2, v3, s[{sW}:{sW+3}], s{sPw} offen sc1")
        e("L_tagok:")
    if q4:
        e(f"s_add_u32 s{sOo}, s{sX}, 8192")
        stq = []
        for n_, (h, qt) in enumerate(((0, 0), (0, 1), (1, 0), (1, 1))):
            for k, dt in enumerate(range(4*h, 4*h+4)):
                comb(dt, qt)
                if k in (1, 2) and stq: e(stq.pop(0))
            for dt in range(4*h, 4*h+4): dsw(dt, qt)
            for m in range(2):
                r = 192 + 8*n_ + 4*m
                e(f"ds_read_b128 v[{r}:{r+3}], v{vEr} offset:{272*(16*qt+8*m)+128*h}")
                stq.append(f"buffer_store_dwordx4 v[{r}:{r+3}], v21, s[{sO}:{sO+3}], s{sOo if m else sX} offen offset:{512*qt+128*h}{polO}")
            if n_ == 0: e("s_waitcnt vmcnt(1)")
        fstamp(fin)
        for x in stq: e(x)
        retag()
    else:
        for dt in range(8):
            for qt in range(2):
                comb(dt, qt)
                if qt == 1 and dt % 2 == 1:
                    for d2 in (dt-1, dt):
                        for q2 in range(2): dsw(d2, q2)
        fstamp(fin)
        korder = [0, 4, 1, 5, 2, 6, 3, 7]
        for n_, k in enumerate(korder): e(f"ds_read_b128 v[{192+4*n_}:{192+4*n_+3}], v{vEr} offset:{1088*k}")
        retag()
        for k in range(8):
            e(f"buffer_store_dwordx4 v[{192+4*k}:{192+4*k+3}], v{vOg}, s[{sO}:{sO+3}], s{sX} offen offset:{512*(k%2)}{polO}")
            if k % 2 == 1 and k < 7: e(f"s_add_u32 s{sX}, s{sX}, 4096")
    fstamp(fin)
    endseg = Seg("end"); e = endseg.a
    if stamps:
        e("s_waitcnt vmcnt(0)")
        stamp(endseg)
        e(f"s_lshl_b32 s3, s2, 2\ns_add_u32 s3, s3, s{sWv}\ns_lshl_b32 s3, s3, 9\nv_lshlrev_b32 v{vSt}, 3, v0")
        e(f"buffer_store_dwordx2 v[10:11], v{vSt}, s[{sW}:{sW+3}], s3 offen")
    if probe is not None:
        e("s_waitcnt vmcnt(0)")
        stamp(endseg)
        e(f"s_sub_u32 s94, s94, s96\ns_add_u32 s94, s94, 2500\nL_pad:\ns_memrealtime s[98:99]\ns_waitcnt lgkmcnt(0)\ns_sub_u32 s3, s98, s96\ns_cmp_lt_u32 s3, s94\ns_cbranch_scc1 L_pad")
    if padto:
        e(f"s_waitcnt vmcnt(0)\nL_pad:\ns_memrealtime s[98:99]\ns_waitcnt lgkmcnt(0)\ns_sub_u32 s3, s98, s96\ns_cmp_lt_u32 s3, {int(padto*100)}\ns_cbranch_scc1 L_pad")
    e("L_end:\ns_endpgm")
    rares = []
    for ret, i in ((0, 0), (1, 1), (2, NB-2), (3, NB-4), (4, NB-3))[:5 if peel else 3] + tuple((5+k, k) for k in range(nser if tpl else 0)):
        r = Seg(f"rare{ret}"); e = r.a
        S = vS[(i+1)%2]; S2 = vS[i%2]
        e(f"L_rare{ret}:")
        rowmax(r, S, True)
        e("v_exp_f32 v6, -v1\nv_exp_f32 v7, -v4")
        for qt, d, al in ((0, 1, 6), (1, 4, 7)):
            for k in range(4): e(f"v_sub_f32 v{vCn+4*qt+k}, v{vCn+4*qt+k}, v{d}")
            for k in range(8): e(f"v_sub_f32 v{S+8*qt+k}, v{S+8*qt+k}, v{d}")
            if ret != 2:
                for k in range(8): e(f"v_sub_f32 v{S2+8*qt+k}, v{S2+8*qt+k}, v{d}")
            e(f"v_mul_f32 v{vL+qt}, v{al}, v{vL+qt}")
        if ret == 2:
            for k in range(8):
                p = vP[i%2] + k; al = 6 + k//4
                e(f"v_lshlrev_b32 v{vPf}, 16, v{p}\nv_and_b32 v{vPf+1}, 0xffff0000, v{p}\nv_mul_f32 v{vPf}, v{al}, v{vPf}\nv_mul_f32 v{vPf+1}, v{al}, v{vPf+1}\nv_cvt_pk_bf16_f32 v{p}, v{vPf}, v{vPf+1}")
        for x in softmax_q(i+1, merge=False, pipe=True): r.add(x)
        for k in range(128): e(f"v_mul_f32 v{vO+k}, v{6+(k//4)%2}, v{vO+k}")
        e(f"s_nop 1\ns_branch L_back{ret}")
        rares.append(r)
    if "oob" in exp: pro.a(f"s_mov_b32 s{sK+2}, 0\ns_mov_b32 s{sV+2}, 0")
    if "l2hot" in exp:
        for x in body.ins:
            if x.text.startswith(f"s_add_u32 s{sOK}, s{sOK}, 16384") or x.text.startswith(f"s_add_u32 s{sOV}, s{sOV}, 16384"): x.text = "s_nop 0"
    if exp:
        nb = []
        for x in body.ins:
            if "nolds" in exp and x.kind == "dsr": continue
            if "novalu" in exp and x.kind in ("valu","trans") and not x.text.startswith("v_add_u32") and not x.text.startswith("v_cmp") and not x.text.startswith("v_writelane"): continue
            if "nodma" in exp and x.kind == "dma": continue
            if "nomfma" in exp and x.kind == "mfma": continue
            if "nobar" in exp and (x.kind == "barrier" or (x.kind == "wait" and x.vm is not None)): continue
            if "nomax" in exp and x.text.startswith("v_max"): continue
            nb.append(x)
        body.ins = nb
    order = [pro, warm, body, tail] + sends + [fin, endseg, zseg] + rares
    traces = [[pro, warm, body, body, body, tail, s, fin, endseg] for s in sends]
    fix_waits(traces, verbose)
    for s in order: merge_waits(s)
    fix_waits(traces, verbose)
    def upto(seg, lab):
        s = Seg(seg.name+"_pre"); k = [i.text for i in seg.ins].index(lab); s.ins = seg.ins[:k]
        s2 = Seg(seg.name+"_post"); s2.ins = seg.ins[k:]; return s, s2
    pw = [pro, warm]
    cases = [(0, body, pw+[body], [body]), (1, body, pw+[body], [body]), (1, body, pw+[body], [tail]), (2, tail, pw+[body], [sends[0]])]
    if peel: cases += [(3, tail, pw+[body], []), (4, tail, pw+[body], [])]
    cases += [(5+k, warm, [pro], [body]) for k in range(nser if tpl else 0)]
    for ret, seg, prev, nxt in cases:
        p, q = upto(seg, f"L_back{ret}:")
        n0 = [len(x.ins) for x in [p, q] + nxt]
        fix_waits([prev + [p, rares[ret], q] + nxt], verbose)
        assert exp or [len(x.ins) for x in [p, q] + nxt] == n0, "rare path needs extra waits outside"
    if zseg.ins and not xpad2:
        labs = [k for k, x in enumerate(zseg.ins) if x.kind == "label" and x.text.startswith("L_zero") and not x.text.endswith("b:")] + [len(zseg.ins)]
        parts = []
        for n_ in range(len(labs)-1):
            zp = Seg(f"zero{n_}"); zp.ins = zseg.ins[labs[n_]:labs[n_+1]]; parts.append(zp)
            p, q = upto(body, f"L_zback{n_}:")
            n0 = [len(p.ins), len(q.ins)]
            fix_waits([[pro, warm, p, zp, q]], verbose)
            assert exp or [len(p.ins), len(q.ins)] == n0, "zero block needs extra waits outside"
        zseg.ins = [x for zp in parts for x in zp.ins]
    lds = SPARE + KS
    txt = header + f"; @launch grid=(256,1,1) block=(256,1,1) lds={lds}\n"
    txt += f'.amdgcn_target "amdgcn-amd-amdhsa--gfx950"\n.text\n.globl {KN}\n.p2align 8\n.type {KN},@function\n{KN}:\n'
    body_txt = emit(order)
    if align is not None:
        body_txt = body_txt.replace("L_loop:\n", f".p2align {align[0]}\n" + "  s_nop 0\n"*align[1] + "L_loop:\n")
    txt += body_txt + "\nL_codeend:\n"
    txt += f'''.section .rodata,"a"
.p2align 6
.amdhsa_kernel {KN}
  .amdhsa_next_free_vgpr 452
  .amdhsa_next_free_sgpr 102
  .amdhsa_accum_offset 256
  .amdhsa_group_segment_fixed_size 0
  .amdhsa_kernarg_size 48
  .amdhsa_user_sgpr_count 2
  .amdhsa_user_sgpr_kernarg_segment_ptr 1
  .amdhsa_system_sgpr_workgroup_id_x 1
.end_amdhsa_kernel
'''
    return txt
if __name__ == "__main__":
    kw = eval("dict(" + (sys.argv[1] if len(sys.argv) > 1 else "") + ")")
    print(gen(**kw))
```

```python
import sys, math, struct
from asmlib import *
KN = "standalone__gqa_softmax__near_ridge_kernel"
def f2u(x): return struct.unpack("<I", struct.pack("<f", x))[0]
RS = 1056; KS = VS = 16*RS
KB = [i*KS for i in range(4)]
VB = [4*KS + i*VS for i in range(4)]
SPARE = 8*KS
C_SCALE = math.log2(math.e)/16.0
NB = 16
vOg, vEw, vEr, vSt = 12, 13, 14, 15
vKa, vVa, vDma, vDmaV, vMx = 16, 17, 18, 19, 20
vL = 22
vLb = 8
vPf = 80
vCn = 24
vP = [32, 40]; vS = [48, 64]; vTmp = 96; vO = 128
aQ, aKF, aVF = 0, 64, 128
sQ, sK, sV, sO, sW = 16, 20, 24, 28, 32
sWv, sOK, sOV, sMK, sMV, sCnt, sC, sDK, sDV, sXcc, sKh, sT0, sT1, sOo, sX = 40,41,42,43,44,45,46,47,48,49,50,51,52,53,54
sDK2, sDV2, sPw, sMb, sCh = 55, 56, 57, 58, 59
XBASE = 1 << 20

def gen(polK=" nt", polV=" nt", polQ=" nt", polO="", stamps=False, T=8.0, verbose=False, header="", padto=0, exp=(),
        fast=True, pxor=16, bg=53, dmagaps=(57,1,9,17,25,33,41,49), npre=5, wgrp=2, smend=60, late=1.6, xld=' sc1', xpoll=' sc1', fine=False, xpad=None, xstag=0, probe=None, cpf=True, btx=7, tagg=36, nq0=11, zsplit=(0,0,0), zgap=(30,46), otouch=False, peel=True, mergeb=False, prefmode=1, stag=None, p2=True, dfr=True, dpf=13, dbg_=33, dtag=52, xsw=False, prefw=None, h2=False, tga=21,  k1late=True, k4late=1, k1bar=2, y2=True, nser=4, sergap=(60,)*8, cskip=('L_end','L_end'), ttouch=0, tpl=True, tE=(0,4,8,12,16,20,24,28,32,36,40,43,46,50,53,56), tD=(54,2,9,17,25,33,38,45), tbg=49, tdbl=(14,30), tzs=(30,42), align=None, pref13=True, q4=True, ilv=None, dsm0=False, lazy=0, pref12=False, xpad2=None, st256=True, ptrips=(4,3,2), pcont=False, ppol=''):
    nst = [0]
    def stamp(seg):
        if probe is not None:
            if nst[0] == probe: seg.a("s_waitcnt lgkmcnt(0)\ns_memrealtime s[94:95]\ns_waitcnt lgkmcnt(0)")
            nst[0] += 1
        if stamps:
            seg.a(f"s_waitcnt lgkmcnt(0)\ns_memtime s[64:65]\ns_memrealtime s[66:67]\ns_waitcnt lgkmcnt(0)\nv_writelane_b32 v10, s64, {nst[0]}\nv_writelane_b32 v11, s66, {nst[0]}"); nst[0] += 1
    nf = [32]
    def fstamp(seg, vm=None):
        if stamps and fine:
            if vm is not None: seg.a(f"s_waitcnt vmcnt({vm})")
            sv = nst[0]; nst[0] = nf[0]; stamp(seg); nf[0] += 1; nst[0] = sv
    pro = Seg("prologue"); a = pro.a
    a(f"s_cmp_ge_u32 s2, 256\ns_cbranch_scc1 L_end")
    a("s_load_dwordx8 s[4:11], s[0:1], 0\ns_load_dwordx2 s[14:15], s[0:1], 40")
    if padto or probe is not None: a("s_memrealtime s[96:97]")
    stamp(pro)
    if xstag:
        a(f"s_bitcmp1_b32 s2, 5\ns_cbranch_scc0 L_nostag\ns_sleep {xstag}\nL_nostag:")
    a("v_lshrrev_b32 v1, 6, v0\nv_and_b32 v0, 63, v0")
    a(f"v_readfirstlane_b32 s{sWv}, v1")
    if cpf:
        a(f"s_getpc_b64 s[36:37]\ns_lshr_b32 s3, s2, 3\ns_lshl_b32 s3, s3, 2\nv_add_u32 v4, s3, v1\nv_lshlrev_b32 v4, 1, v4\nv_add_u32 v4, v4, v0\nv_lshlrev_b32 v4, 7, v4")
        if cskip and cskip[0] != cskip[1]:
            a(f"v_mov_b32 v5, {cskip[1]}-{cskip[0]}\nv_cmp_le_u32 vcc, {cskip[0]}-{KN}, v4\nv_cndmask_b32 v5, 0, v5, vcc\nv_add_u32 v4, v4, v5")
        a(f"v_min_u32 v4, {'L_end' if cskip else 'L_codeend'}-{KN}-256, v4\nv_mov_b32 v5, s37\nv_add_co_u32 v4, vcc, s36, v4\ns_nop 1\nv_addc_co_u32 v5, vcc, 0, v5, vcc")
        a("s_mov_b64 exec, 3")
        y = I("global_load_dword a192, v[4:5], off", "vld", rd=["v4", "v5"]); pro.add(y)
        a("s_mov_b64 exec, -1")
    a(f"v_lshlrev_b32 v{vDma}, 4, v0")
    if pxor == 16:
        a(f"s_mov_b32 s{sX}, s2")
    else:
        a(f"s_and_b32 s{sX}, s2, 0xee\ns_bfe_u32 s3, s2, 0x10004\ns_or_b32 s{sX}, s{sX}, s3\ns_and_b32 s3, s2, 1\ns_lshl_b32 s3, s3, 4\ns_or_b32 s{sX}, s{sX}, s3")
    a(f"s_and_b32 s{sT0}, s{sX}, 7\ns_lshr_b32 s{sT1}, s{sX}, 3\ns_lshl_b32 s{sT0}, s{sT0}, 3")
    a(f"s_lshr_b32 s3, s{sT1}, 2\ns_add_u32 s{sT0}, s{sT0}, s3")
    a(f"s_bfe_u32 s{sKh}, s{sT1}, 0x10001")
    a(f"s_and_b32 s{sT1}, s{sT1}, 1\ns_lshl_b32 s3, s{sT0}, 1\ns_add_u32 s{sT1}, s{sT1}, s3")
    a(f"s_lshl_b32 s{sT1}, s{sT1}, 16")
    a(f"s_lshl_b32 s{sT0}, s{sT0}, 19\ns_lshl_b32 s3, s{sKh}, 18\ns_add_u32 s{sT0}, s{sT0}, s3")
    a(f"s_mov_b32 s{sX}, {KB[3]}\ns_cmp_eq_u32 s{sWv}, 1\ns_cselect_b32 s{sX}, {VB[2]}, s{sX}")
    a(f"s_cmp_eq_u32 s{sWv}, 2\ns_cselect_b32 s{sX}, {VB[3]}, s{sX}\ns_cmp_eq_u32 s{sWv}, 3\ns_cselect_b32 s{sX}, {SPARE}, s{sX}")
    a(f"s_lshl_b32 s{sOo}, s{sWv}, 14")
    a(f"s_lshl_b32 s{sOK}, s{sWv}, 12\ns_mov_b32 s{sOV}, s{sOK}")
    a(f"s_mul_i32 s{sMK}, s{sWv}, {4*RS}\ns_add_u32 s{sMV}, s{sMK}, {VB[0]}")
    a(f"s_mov_b32 s{sQ+2}, 65536\ns_mov_b32 s{sQ+3}, 0x20000\ns_mov_b32 s{sK+2}, {NB*16384}\ns_mov_b32 s{sK+3}, 0x20000\ns_mov_b32 m0, s{sMK}")
    a(f"s_mov_b32 s{sDK2}, {2*KS}\ns_mov_b32 s{sDV2}, {2*VS}\ns_mov_b32 s{sDK}, {2*KS}\ns_mov_b32 s{sDV}, {2*VS}")
    a(f"s_lshl_b32 s{sMb}, s2, 2\ns_add_u32 s{sMb}, s{sMb}, s{sWv}\ns_lshl_b32 s{sMb}, s{sMb}, 11\ns_add_u32 s{sMb}, s{sMb}, {XBASE}")
    a(f"s_mov_b32 s{sW+2}, {3*XBASE}\ns_mov_b32 s{sW+3}, 0x20000\nv_lshlrev_b32 v3, 7, v0")
    a(f"s_getreg_b32 s{sXcc}, hwreg(HW_REG_XCC_ID)\ns_and_b32 s{sXcc}, s{sXcc}, 15")
    a("v_lshrrev_b32 v6, 3, v0\nv_and_b32 v7, 6, v6\nv_xor_b32 v7, v7, v0\nv_and_b32 v7, 7, v7\nv_lshlrev_b32 v7, 4, v7\nv_lshl_add_u32 v6, v6, 9, v7\nv_xor_b32 v7, 0x200, v6")
    a("s_waitcnt lgkmcnt(0)")
    fstamp(pro)
    def epi_addr(a):
        a(f"v_and_b32 v1, 15, v0\nv_lshrrev_b32 v4, 4, v0\ns_mul_i32 s3, s{sWv}, 8704")
        a(f"v_mul_u32_u24 v5, 272, v1\nv_lshlrev_b32 v21, 3, v4\nv_add3_u32 v{vEw}, v5, v21, s3")
        a(f"v_lshlrev_b32 v21, 4, v1\nv_mul_u32_u24 v5, 272, v4\nv_add3_u32 v{vEr}, v5, v21, s3")
        a(f"v_lshl_add_u32 v{vOg}, v4, 10, v21\nv_mov_b32 v{vSt}, " + ("v21" if st256 else f"v{vDma}"))
        if q4:
            a(f"v_lshrrev_b32 v5, 3, v0\nv_and_b32 v21, 7, v0\nv_lshlrev_b32 v21, 4, v21\nv_mul_u32_u24 v{vEr}, 272, v5\nv_add3_u32 v{vEr}, v{vEr}, v21, s3\nv_lshl_add_u32 v21, v5, 10, v21")
    def setup():
        a(f"s_lshl_b32 s3, s{sKh}, 8\nv_xor_b32 v{vDmaV}, s3, v{vDma}")
        a(f"v_and_b32 v1, 15, v0\nv_lshrrev_b32 v4, 4, v0")
        a(f"v_mul_u32_u24 v2, {RS}, v1\nv_lshl_add_u32 v{vKa}, v4, 4, v2")
        a(f"v_lshrrev_b32 v2, 2, v0\nv_mul_u32_u24 v2, {RS}, v2\nv_and_b32 v3, 3, v0\nv_lshl_add_u32 v2, v3, 3, v2\nv_add_u32 v{vVa}, {VB[0]}, v2")
        a(f"v_lshlrev_b32 v3, 1, v3\nv_lshrrev_b32 v2, 2, v1\nv_and_b32 v5, 1, v2\nv_xor_b32 v5, v5, v3\nv_lshlrev_b32 v5, 7, v5\nv_lshl_add_u32 v5, v2, 10, v5")
        a(f"v_xor_b32 v3, v3, v4\nv_lshl_add_u32 v5, v3, 4, v5")
        a(f"v_add_u32 v28, s{sX}, v5\nv_xor_b32 v3, 128, v5\nv_add_u32 v29, s{sX}, v3\nv_xor_b32 v3, 64, v5\nv_add_u32 v30, s{sX}, v3\nv_xor_b32 v3, 0xc0, v5\nv_add_u32 v31, s{sX}, v3")
        epi_addr(a)
        a(f"s_mov_b32 s{sC}, {f2u(C_SCALE):#x}")
        a(f"v_mov_b32 v{vL}, 0\nv_mov_b32 v{vL+1}, 0\nv_mov_b32 v2, s{sC}")
        for r in range(zsplit[0]): a(f"v_mov_b32 v{vO+r}, 0")
    def dmaK(n, j): return [parse(f"s_add_u32 m0, s{sMK}, {(n%2)*KS+32*j}"),
                            parse(f"buffer_load_dwordx4 v{vDma}, s[{sK}:{sK+3}], s{sOK} offen offset:{1024*j}{polK} lds")]
    def dmaV(n, j): return [parse(f"s_add_u32 m0, s{sMV}, {(2 if dfr and n == NB-1 else n%2)*VS+32*j}"),
                            parse(f"buffer_load_dwordx4 v{vDmaV}, s[{sV}:{sV+3}], s{sOV} offen offset:{1024*j}{polV} lds")]
    def advK(n):
        L = [parse(f"s_add_u32 s{sOK}, s{sOK}, 16384")]
        if n % 2 == 1: L += [parse(f"s_add_u32 s{sMK}, s{sMK}, s{sDK2}"), parse(f"s_sub_u32 s{sDK2}, 0, s{sDK2}")]
        return L
    def advV(n):
        L = [parse(f"s_add_u32 s{sOV}, s{sOV}, 16384")]
        if n % 2 == 1: L += [parse(f"s_add_u32 s{sMV}, s{sMV}, s{sDV2}"), parse(f"s_sub_u32 s{sDV2}, 0, s{sDV2}")]
        return L
    def block(seg, f, adv, n):
        for j in range(4):
            x = f(n, j); seg.add(x[0]); seg.a("s_nop 0"); seg.add(x[1])
        for x in adv(n): seg.add(x)
    def Pbuf(n): return (112, 120)[n-(NB-2)] if dfr and n >= NB-2 else vP[n%2]
    def kread(n, j): return parse(f"ds_read_b128 a[{aKF+4*j}:{aKF+4*j+3}], v{vKa} offset:{(n%2)*KS+64*(j//2)+512*(j%2)}")
    def vread(n, dt, kt, slot=None, va=vVa):
        r = aVF + 4*(dt if slot is None else slot) + 2*kt
        return parse(f"ds_read_b64_tr_b16 a[{r}:{r+1}], v{va} offset:{(2 if dfr and n == NB-1 else n%2)*VS+512*kt+32*dt}")
    def qk(n, g, first0=False):
        j, qt = g//2, g % 2; t, kt = j//2, j % 2
        S = vS[n%2] + 8*qt + 4*kt; f = aKF+4*j; qf = aQ + 4*(2*t+qt)
        c = f"v[{S}:{S+3}]" if t else ("0" if first0 else f"v[{vCn+4*qt}:{vCn+4*qt+3}]")
        i = parse(f"v_mfma_f32_16x16x32_bf16 v[{S}:{S+3}], a[{f}:{f+3}], a[{qf}:{qf+3}], {c}")
        if g % (2*wgrp) == 0: i.extra = set(R("a", f, 4*wgrp))
        return i
    def pv(n, dt, qt, grp=None, slot=None):
        f = aVF+4*(dt if slot is None else slot); o = vO+8*dt+4*qt; p = Pbuf(n)+4*qt
        i = parse(f"v_mfma_f32_16x16x32_bf16 v[{o}:{o+3}], a[{f}:{f+3}], v[{p}:{p+3}], v[{o}:{o+3}]")
        for d2 in (grp or ()): i.extra |= set(R("a", aVF+4*d2, 4))
        return i
    def pvlist(n, dts, slots=None):
        L = []; slots = slots or dts
        for k, dt in enumerate(dts):
            L.append(pv(n, dt, 0, slots[k:k+wgrp] if k % wgrp == 0 else None, slots[k])); L.append(pv(n, dt, 1, None, slots[k]))
        return L
    def checkops():
        return [parse(f"v_max_f32 v{vMx}, v{vLb}, v{vLb+1}"), parse(f"v_cmp_lt_f32 vcc, {f2u(2.0**T):#x}, v{vMx}")]
    def mergeops(): return [parse(f"v_add_f32 v{vL+qt}, v{vL+qt}, v{vLb+qt}") for qt in range(2)]
    def softmax_q(n, merge=True, pipe=False):
        S = vS[n%2]; P = Pbuf(n)
        E = lambda r: parse(f"v_exp_f32 v{vPf+r}, v{S+r}")
        def A(r):
            if r % 8 == 1: return parse(f"v_add_f32 v{vLb+r//8}, v{vPf+r-1}, v{vPf+r}")
            return parse(f"v_add_f32 v{vLb+r//8}, v{vLb+r//8}, v{vPf+r}")
        Cv = lambda p: parse(f"v_cvt_pk_bf16_f32 v{P+p}, v{vPf+2*p}, v{vPf+2*p+1}")
        q = []
        if pipe:
            for r in range(17):
                if r < 16: q.append(E(r))
                if r >= 1 and (r-1) % 8: q.append(A(r-1))
                if r >= 2 and r % 2 == 0: q.append(Cv(r//2-1))
            return q
        mg = mergeops() if merge else []
        for r in range(16):
            q.append(E(r))
            if r % 8 == 0:
                if mg: q.append(mg.pop(0))
            else: q.append(A(r))
            if r % 2 == 1: q.append(Cv(r//2))
        return q
    def spread(ops, g0, g1):
        tot = sum(x.cost for x in ops); c = 0; out = []
        for x in ops:
            out.append((x, g0 + (g1-g0)*c/max(tot-ops[-1].cost, 1), g0)); c += x.cost
        return out
    def post(x): x.tag = "post"; return x
    def schedule(seg, mf, streams, sca, label="", cap=2, lastempty=False):
        n = len(mf); streams = [list(s) for s in streams if s]
        nm = n
        if lastempty: n -= 1
        for g in range(nm):
            seg.add(mf[g])
            s_ = sca.get(g, [])
            pre = [x for x in s_ if x.tag != "post"]; pst = [x for x in s_ if x.tag == "post"]
            wsh = 1 if (g+1 < nm and mf[g+1].extra) else 0
            free = cap - max(0, len(pre)+wsh-1) - len([x for x in pst if x.kind != "label"])
            mem = []; val = []
            while True:
                cands = [s for s in streams if s and s[0][2] <= g]
                if val: cands = [s for s in cands if s[0][0].kind not in ("dsr","dsw","dma","vst","vld")] + [s for s in cands if s[0][0].kind in ("dsr","dsw","dma","vst","vld")]
                cands.sort(key=lambda s: s[0][1])
                pick = None
                for s in cands:
                    x, tg, _ = s[0]
                    if g < n-1 and tg > g + 1.0 and (mem or val): continue
                    if g < n-1 and tg > g + 2.0: continue
                    if val and val[-1].kind == "trans" and (x.rd & val[-1].wr) and g < n-1: continue
                    if x.cost <= free or tg <= g - late or g == n-1: pick = s; break
                if pick is None: break
                x = pick.pop(0)[0]; free -= x.cost
                (mem if x.kind in ("dsr","dsw","dma","vld") else val).append(x)
            row = pre + mem + val + pst
            for x in row: seg.add(x)
            if verbose: print(f"; {label} gap{g}: " + "".join({"dsr":"t","dma":"d","trans":"e","valu":"v","salu":"s","wait":"w","barrier":"B","vst":"S"}.get(x.kind, "?") for x in row))
        assert not any(streams)
    def addf(d, g, *xs): d.setdefault(g, []).extend(xs)
    def rowmax(seg, S, zero):
        for qt, d, t in ((0, 1, 6), (1, 4, 7)):
            b = S + 8*qt
            seg.a(f"v_max3_f32 v{d}, v{b}, v{b+1}, v{b+2}\nv_max3_f32 v{d}, v{d}, v{b+3}, v{b+4}\nv_max3_f32 v{d}, v{d}, v{b+5}, v{b+6}")
            seg.a(f"v_max3_f32 v{d}, v{d}, v{b+7}, 0" if zero else f"v_max_f32 v{d}, v{d}, v{b+7}")
        seg.a("v_mov_b32 v6, v1\nv_mov_b32 v7, v4\nv_permlane16_swap_b32 v6, v1\nv_permlane16_swap_b32 v7, v4\nv_max_f32 v1, v1, v6\nv_max_f32 v4, v4, v7")
        seg.a("v_mov_b32 v6, v1\nv_mov_b32 v7, v4\nv_permlane32_swap_b32 v6, v1\nv_permlane32_swap_b32 v7, v4\nv_max_f32 v1, v1, v6\nv_max_f32 v4, v4, v7")
    NV0 = 4 if tpl else 3
    NK0 = 8 if tpl else 5 if ilv else 6
    def nosh(g):
        while g % (2*wgrp) == 2*wgrp-1: g += 1
        return g
    def iteration(seg, i, ret, do_pv=True, loopend=False, pref=False):
        sca = {}; dm = []
        mf = [qk(i+2, g) for g in range(32)]
        tK = [parse(f"v_add_u32 v{vKa}, s{sDK}, v{vKa}"), parse(f"s_sub_u32 s{sDK}, 0, s{sDK}")]
        tV = [parse(f"v_add_u32 v{vVa}, s{sDV}, v{vVa}"), parse(f"s_sub_u32 s{sDV}, 0, s{sDV}")]
        def place(g, xs):
            for x in xs:
                g = nosh(g)
                while g in sca: g = nosh(g+1)
                addf(sca, g, x); g += 1
            return g
        if do_pv:
            mf += pvlist(i, list(range(16)))
            mf[63].extra = set(R("a", aKF, 4*wgrp))
            mf[0].extra = set()
            dp = dmagaps
            nvm = 12
            if pref and pref12 and prefmode == 1: nvm = 13 if i == NB-3 else 17
            if pref and pref13 and prefmode == 1: nvm = 12 if i == NB-3 else 8
            addf(sca, bg, parse(f"s_waitcnt vmcnt({nvm})"), parse("s_barrier"))
            if loopend:
                addf(sca, 60, parse(f"s_sub_u32 s{sCnt}, s{sCnt}, 1"))
                if ilv: addf(sca, 63, parse(f"s_cmp_lg_u32 s{sCnt}, 0"))
                else: addf(sca, 61, parse(f"s_cmp_lg_u32 s{sCnt}, 0"))
            last = i == NB-3
            for k in range(1, 8):
                if pref and k >= 4 and prefmode == 1:
                    if pref12 or pref13:
                        kks = [] if last != pref13 else [(2*(k-4), dp[k]-4), (2*(k-4)+1, dp[k])]
                    else: kks = [(4*(i % 2) + k - 4, dp[k])]
                    for kk, gg in kks:
                        y = parse(f"buffer_load_dwordx4 a[192:195], v{vOg}, s[{sO}:{sO+3}], s{sT0} offen offset:{512*(kk%2)}{ppol}"); y.wr = set()
                        if kk % 2 == 1: addf(sca, gg+1, parse(f"s_add_u32 s{sT0}, s{sT0}, 4096"))
                        dm.append((y, gg-3, gg))
                    if pref12 and not last and k == 7:
                        y = parse(f"buffer_load_dwordx4 a[192:195], v{vSt}, s[{sW}:{sW+3}], s{sMb} offen offset:256"); y.wr = set()
                        dm.append((y, dp[k]-1, dp[k]+2))
                    continue
                x = dmaV(i+2, k) if k < 4 else dmaK(i+5, k-4)
                addf(sca, dp[k]-1, x[0]); dm.append((x[1], dp[k]-3, dp[k]))
            if last:
                if not (pref12 and prefmode == 1):
                    y = parse(f"buffer_load_dwordx4 a[192:195], v{vSt}, s[{sW}:{sW+3}], s{sMb} offen offset:256"); y.wr = set()
                    dm.append((y, dp[0]-3, dp[0]))
            else:
                x = dmaV(i+3, 0); addf(sca, dp[0]-1, x[0]); dm.append((x[1], dp[0]-3, dp[0]))
            if not last: assert place(dp[3]+1, advV(i+2)) < dp[0]
            if not (pref and prefmode == 1): assert place(dp[7]+1, advK(i+5)) <= 60
            r1 = [kread(i+2, j) for j in range(NK0, 16)] + [vread(i, dt, kt) for dt in range(16) for kt in range(2)]
            nxt = [vread(i+1, dt, kt) for dt in range(8, 8+NV0) for kt in range(2)] if last else [kread(i+3, j) for j in range(NK0)]
            if last: mf[63].extra = set(R("a", aVF+32, 4*wgrp))
            rd = spread(r1, 0, bg-1) + [(y, t, bg+(2 if last else 1)) for (y, t, _) in spread(nxt, bg+1, 61)]
            rdv = []
            if ilv:
                lead = 64 - (bg+1)
                rd = [(kread(i+2, j), 2*j - lead, 0) for j in range(NK0, 16)]
                k_end = 30 - lead
                nslow = int(k_end * ilv[0])
                vr = [vread(i, dt, kt) for dt in range(16) for kt in range(2)]
                rdv = spread(vr[:nslow], 1, k_end) + [(y, t, 0) for (y, t, _) in spread(vr[nslow:], k_end+1, ilv[1])]
                if last: rdv += [(y, t, bg+2) for (y, t, _) in spread(nxt, ilv[1]+1.5, 62)]
                else: rd += [(y, bg+1+2*j, bg+1) for j, y in enumerate(nxt)]
            tg = []
            if i % 2 == 1:
                if ilv: tg = [(tK[0], 26, 26), (tV[0], ilv[1], ilv[1]+1)]; place(29, [tK[1]]); addf(sca, 62, post(tV[1]))
                else: tg = [(tK[0], 16, 16), (tV[0], bg-1, bg+1)]; place(21, [tK[1]]); assert place(bg+4, [tV[1]]) <= 60
            n0 = len(seg.ins)
            schedule(seg, mf, [dm, rd, rdv, tg, spread(softmax_q(i+1) + checkops(), 0, smend)], sca, label=f"it{i}", lastempty=True)
            tx = [x.text for x in seg.ins[n0:]]
            if i % 2 == 1:
                assert tx.index(kread(i+2, 15).text) < tx.index(tK[0].text) < tx.index(tK[1].text) < tx.index(nxt[0].text)
                assert tx.index(vread(i, 15, 1).text) < tx.index(tV[0].text) < tx.index(tV[1].text)
                if last: assert tx.index(tV[0].text) < tx.index(nxt[0].text)
            assert tx.index("s_barrier") < len(tx) - 1 - tx[::-1].index(nxt[0].text)
            seg.a(f"s_cbranch_vccnz L_rare{ret}\nL_back{ret}:")
        else:
            for k, g in enumerate((1, 5, 9, 13, 17, 21, 25, 29)):
                x = dmaV(i+2, k) if k < 4 else dmaK(i+5, k-4)
                addf(sca, g-1, x[0]); dm.append((x[1], g-3, g))
            place(14, advV(i+2)); place(30, advK(i+5))
            rd = spread([kread(i+2, j) for j in range(NK0, 16)], 0, 16)
            schedule(seg, mf, [dm, rd, spread(softmax_q(i+1, merge=False), 0, 31)], sca, label=f"it{i}")
            seg.add(tK[0]); seg.add(tK[1])
            seg.a("s_waitcnt vmcnt(12)\ns_barrier")
            for j in range(NK0): seg.add(kread(i+3, j))
            x = dmaV(i+3, 0); seg.add(x[0]); seg.a(f"buffer_load_dword v2, v3, s[{sW}:{sW+3}], s{sPw} offen offset:128 sc1"); seg.add(x[1])
            if otouch:
                y = parse(f"buffer_load_dword a192, v3, s[{sO}:{sO+3}], s{sOo} offen"); y.wr = set(); seg.add(y)
            seg.a(f"s_waitcnt lgkmcnt({NK0-wgrp})")
    sThr, sThr2 = 60, 61
    def iteration2(seg, i, ret, loopend=False, pref=False, zsites=False, serial=None, inl=None, xk=()):
        last = i == NB-3; bg_ = tbg
        mf = [qk(i+2, g) for g in range(32)] + pvlist(i, list(range(16)))
        mf[63].extra = set(R("a", aVF+32 if last else aKF, 4*wgrp)); mf[0].extra = set()
        sh = {g: [] for g in range(64)}; mem = {g: [] for g in range(64)}; val = {g: [] for g in range(64)}
        resv = {g for g in range(63) if mf[g+1].extra}
        def place(g, xs):
            for x in xs:
                while g in resv or sh[g] or g == bg_: g += 1
                assert g < 63
                sh[g].append(x); g += 1
            return g
        nvm = 12
        if pref and prefmode == 1: nvm = 12 if last else 8
        if pref and prefw is not None: nvm = 4 if last else 8
        if serial is not None and i == prefw: nvm = 21
        assert bg_-1 not in resv or True
        sh[bg_ if (bg_-1) in resv else bg_-1].append(parse(f"s_waitcnt vmcnt({nvm})")); sh[bg_].append(parse("s_barrier"))
        if zsites:
            for n_, zg in enumerate(tzs):
                assert zg not in resv and zg-1 not in resv and zg not in tD and zg-1 not in tD
                sh[zg-1].append(parse(f"s_cmp_eq_u32 s{sCnt}, {NTRIP-1}")); sh[zg] += [parse(f"s_cbranch_scc1 L_zero{n_}"), parse(f"L_zback{n_}:")]
        nxt = [vread(i+1, dt, kt) for dt in range(8, 8+NV0) for kt in range(2)] if last else [kread(i+3, j) for j in range(NK0)]
        reads = [kread(i+2, j) for j in range(NK0, 16)] + [vread(i, dt, kt) for dt in range(16) for kt in range(2)] + nxt
        slots = []
        for g in range(63):
            if g not in tE and g != bg_: slots += [g, g] if g in tdbl else [g]
        assert len(slots) == len(reads), (len(slots), len(reads))
        for g, x in zip(slots, reads): mem[g].append(x)
        gpos = {x.text: g for g, x in zip(slots[:40], reads[:40])}
        assert slots[40] > bg_
        def putv(g, y): mem[g].append(y)
        for k in range(8):
            g = tD[k]; assert g not in resv and g not in tE and not sh[g]
            if k == 0:
                if last and prefw is not None: pass
                elif last:
                    y = parse(f"buffer_load_dwordx4 a[192:195], v{vSt}, s[{sW}:{sW+3}], s{sMb} offen offset:256"); y.wr = set(); putv(g, y)
                else: x = dmaV(i+3, 0); sh[g].append(x[0]); putv(g, x[1])
            elif k >= 4 and pref and prefmode == 1:
                pass
            else:
                x = dmaV(i+2, k) if k < 4 else dmaK(i+5, k-4); sh[g].append(x[0]); putv(g, x[1])
        g = 1
        for n in xk:
            for j in range(4):
                while g in resv or sh[g] or g in tD or len(mem[g]) != 1: g += 1
                x = dmaK(n, j); sh[g].append(x[0]); putv(g, x[1]); g += 1
            g = place(g, advK(n))
        assert g <= tD[4]
        thr = f"s{sThr}"
        if loopend:
            g = 56
            while g in resv or sh[g] or g+1 in resv or sh[g+1]: g += 1
            sh[g].append(parse(f"s_sub_u32 s{sCnt}, s{sCnt}, 1")); sh[g+1].append(parse(f"s_cselect_b32 s{sThr2}, -1.0, s{sThr}")); thr = f"s{sThr2}"
        if not last: assert place(tD[3]+1, advV(i+2)) <= tD[0]
        if not (pref and prefmode == 1): assert place(tD[7]+1, advK(i+5)) <= 63
        q = softmax_q(i+1) + [parse(f"v_max_f32 v{vMx}, v{vLb}, v{vLb+1}"), parse(f"v_cmp_lt_f32 vcc, {thr}, v{vMx}")]
        blk = []
        if serial is not None:
            blk = mergeops() + softmax_q(i+1, merge=False, pipe=True) + q[-2:]; q = []
        ex = [x for x in q if x.kind == "trans"]; ot = []; ne = 0
        for x in q:
            if x.kind == "trans": ne += 1
            else: ot.append((x, tE[ne-1]+1))
        for g, x in zip(tE, ex): val[g].append(x)
        if i % 2 == 1:
            tK = [parse(f"v_add_u32 v{vKa}, s{sDK}, v{vKa}"), parse(f"s_sub_u32 s{sDK}, 0, s{sDK}")]
            tV = [parse(f"v_add_u32 v{vVa}, s{sDV}, v{vVa}"), parse(f"s_sub_u32 s{sDV}, 0, s{sDV}")]
            gk = gpos[kread(i+2, 15).text]; gv = slots[39]
            for t, g0 in ((tK, gk), (tV, gv)):
                g = g0
                while (g in tE or g == bg_ or len(mem[g]) + len(val[g]) >= 2) and not (t is tV and last): g += 1
                if t is tV and last: assert g < slots[40]
                val[g].append(t[0]); place(g+1, [t[1]])
        g = 0
        for x, e0 in ot:
            g = max(g, e0)
            while g in tE or g == bg_ or len(mem[g]) + len(val[g]) >= 2: g += 1
            assert g < 62, (i, x.text)
            val[g].append(x); g += 1
        if serial is not None and i == prefw:
            cand = [g for g in range(0, tD[3]) if len(mem[g]) + len(val[g]) < 2][:9]
            assert len(cand) == 9
            for kk, g in enumerate(cand):
                if kk < 8: y = parse(f"buffer_load_dwordx4 a[192:195], v{vOg}, s[{sO}:{sO+3}], s{sT0} offen offset:{512*(kk%2)}{ppol}")
                else: y = parse(f"buffer_load_dwordx4 a[192:195], v{vSt}, s[{sW}:{sW+3}], s{sMb} offen offset:256")
                y.wr = set(); putv(g, y)
                if kk % 2 == 1 and kk < 7: val[g].append(parse(f"s_add_u32 s{sT0}, s{sT0}, 4096"))
        if last and pref and prefmode == 1 and prefw is None:
            cand = [g for g in range(tD[3]+1, bg_-1) if g not in tE and len(mem[g]) + len(val[g]) < 2]
            extra = [g for g in range(tD[3]+1, bg_-1) if g not in tE and g not in cand and g not in tdbl]
            while len(cand) < 8: cand.append(extra.pop(len(extra)//2))
            cand.sort(); cand = cand[:8]
            for kk, g in enumerate(cand):
                y = parse(f"buffer_load_dwordx4 a[192:195], v{vOg}, s[{sO}:{sO+3}], s{sT0} offen offset:{512*(kk%2)}{ppol}"); y.wr = set(); putv(g, y)
                if kk % 2 == 1 and kk < 7: val[g].append(parse(f"s_add_u32 s{sT0}, s{sT0}, 4096"))
        for g in range(64):
            seg.add(mf[g])
            row = sh[g] + [x for x in mem[g] if x.kind == "dsr"] + [x for x in mem[g] if x.kind != "dsr"] + val[g] + (blk if g == serial else []) + ((inl or {}).get(g) or [])
            for x in row: seg.add(x)
            if verbose: print(f"; it{i} gap{g}: " + ("w" if g in resv else "") + "".join({"dsr":"t","dma":"d","vld":"d","trans":"e","valu":"v","salu":"s","wait":"W","barrier":"B","branch":"x","label":""}.get(x.kind, "?") for x in row))
        if loopend:
            seg.a(f"s_cbranch_vccz L_loop\nv_cmp_lt_f32 vcc, s{sThr}, v{vMx}\ns_cmp_lt_i32 s{sCnt}, 0\ns_cbranch_vccnz L_rare{ret}\nL_back{ret}:\ns_cbranch_scc0 L_loop")
        else: seg.a(f"s_cbranch_vccnz L_rare{ret}\nL_back{ret}:")
    def iteration3(seg, i, ret):
        last = i == NB-3; snd = list(range(8, 16)); bg_ = dbg_
        mf = [qk(i+2, g) for g in range(32)] + pvlist(i, snd)
        mf[47].extra = set(R("a", aVF+32 if last else aKF, 4*wgrp)); mf[0].extra = set()
        sca = {}; dm = []
        if not last:
            for k in range(1, 8):
                g = 2*k - 1 + (1 if k >= 4 else 0)
                x = dmaV(i+2 + k//4, k % 4); addf(sca, g-1, x[0]); dm.append((x[1], g-3, g))
            addf(sca, 6, *advV(i+2))
        if i == dpf:
            for kk in range(9):
                if kk < 8: y = parse(f"buffer_load_dwordx4 a[192:195], v{vOg}, s[{sO}:{sO+3}], s{sT0} offen offset:{512*(kk%2)}{ppol}")
                else: y = parse(f"buffer_load_dwordx4 a[192:195], v{vSt}, s[{sW}:{sW+3}], s{sMb} offen offset:256")
                g = (1 + 3*kk) if last else (16 + 2*kk); y.wr = set(); dm.append((y, g-3, g))
                if kk % 2 == 1 and kk < 7: addf(sca, g+1, parse(f"s_add_u32 s{sT0}, s{sT0}, 4096"))
        addf(sca, bg_, parse(f"s_waitcnt vmcnt({9 if last else 21 if i == dpf else 12})"), parse("s_barrier"))
        nxt = [vread(i+1, dt, kt) for dt in range(8, 8+NV0) for kt in range(2)] if last else [kread(i+3, j) for j in range(NK0)]
        rd = spread([kread(i+2, j) for j in range(NK0, 16)] + [vread(i, dt, kt) for dt in snd for kt in range(2)], 0, bg_-1)
        if last: rd += [(y, max(bg_+4, 34+2*(k//2)) + k*0.6, max(bg_+4, 34+2*(k//2))) for k, y in enumerate(nxt)]
        else: rd += [(y, t, bg_+1) for (y, t, _) in spread(nxt, bg_+1, 45)]
        tg = []
        if last:
            tV = [parse(f"v_add_u32 v{vVa}, s{sDV}, v{vVa}"), parse(f"s_sub_u32 s{sDV}, 0, s{sDV}")]
            tg = [(tV[0], bg_, bg_+2)]; addf(sca, bg_+5, tV[1])
        q = softmax_q(i+1) + [parse(f"v_max_f32 v{vMx}, v{vLb}, v{vLb+1}"), parse(f"v_cmp_lt_f32 vcc, s{sThr}, v{vMx}")]
        n0 = len(seg.ins)
        schedule(seg, mf, [dm, rd, tg, spread(q, 0, 44)], sca, label=f"it{i}", lastempty=True)
        tx = [x.text for x in seg.ins[n0:]]
        if last: assert tx.index(vread(i, 15, 1).text) < tx.index(tV[0].text) < tx.index(nxt[0].text) and tx.index(tV[0].text) < tx.index(tV[1].text)
        assert tx.index("s_barrier") < len(tx) - 1 - tx[::-1].index(nxt[0].text)
        assert all(seg.ins.index(y[0]) < n0 + tx.index("s_barrier") for y in dm)
        seg.a(f"s_cbranch_vccnz L_rare{ret}\nL_back{ret}:")
    vm = []
    def vmwait(name, extra=""):
        k = max(j for j, x in enumerate(vm) if x == name)
        a(f"s_waitcnt vmcnt({len(vm)-1-k}){extra}")
    fill = [f"s_add_u32 s{sQ}, s4, s{sT1}\ns_addc_u32 s{sQ+1}, s5, 0", f"s_mov_b32 s{sW}, s14\ns_mov_b32 s{sW+1}, s15",
            f"s_add_u32 s{sV}, s8, s{sT0}\ns_addc_u32 s{sV+1}, s9, 0", f"s_mov_b32 s{sV+2}, {NB*16384}\ns_mov_b32 s{sV+3}, 0x20000",
            f"s_add_u32 s{sO}, s10, s{sT1}\ns_addc_u32 s{sO+1}, s11, 0", f"s_mov_b32 s{sO+2}, 65536\ns_mov_b32 s{sO+3}, 0x20000",
            f"s_xor_b32 s{sPw}, s{sMb}, {pxor*8192}"]
    a(f"s_add_u32 s{sK}, s6, s{sT0}\ns_addc_u32 s{sK+1}, s7, 0")
    def publish(t0, t1):
        a(f"v_readlane_b32 s{t0}, v8, 0\nv_readlane_b32 s{t1}, v8, 1\nv_mov_b32 v9, 0")
        a(f"s_and_b32 s{t1}, s{t1}, 0xffffff00\ns_add_u32 s{t1}, s{t1}, 0x100\ns_or_b32 s{t1}, s{t1}, s{sXcc}")
        a(f"s_xor_b32 s3, s{t1}, s{t0}\ns_cmp_lt_u32 s3, 0x100\ns_cselect_b32 s3, 0x100, 0\ns_add_u32 s{sCh}, s{t1}, s3\nv_mov_b32 v8, s{sCh}")
        a(f"buffer_store_dword v8, v9, s[{sW}:{sW+3}], s{sMb} offen offset:128 sc1")
    mbload = f"s_mov_b64 exec, 3\nbuffer_load_dword v8, v3, s[{sW}:{sW+3}], s{sMb} offen sc1\ns_mov_b64 exec, -1"
    if stag is not None:
        a(f"s_mov_b32 s{sW}, s14\ns_mov_b32 s{sW+1}, s15"); a(mbload); vm.append("mb")
        a(f"s_bitcmp1_b32 s2, {stag}\ns_cbranch_scc0 L_early\ns_waitcnt vmcnt(0)"); publish(36, 37); a("L_early:")
    def kvblock(f, adv, n, name, filler=None):
        for j in range(4):
            x = f(n, j)
            if not (name == "K0" and j == 0): pro.add(x[0]); (filler() if filler else a("s_nop 0"))
            pro.add(x[1]); vm.append(name)
        for x in adv(n): pro.add(x)
    def qdma(c, u):
        return [parse(f"s_add_u32 m0, s{sX}, {1024*(4*c+u)}"), parse(f"s_add_u32 s3, s{sOo}, {4096*u+128*c}"),
                parse(f"buffer_load_dwordx4 v{6+u%2}, s[{sQ}:{sQ+3}], s3 offen{polQ} lds")]
    def qblock(c):
        for u in range(4):
            for x in qdma(c, u): pro.add(x)
            vm.append(f"Q{c}")
    if ttouch:
        a("\n".join(fill)); fill = ["s_nop 0"]*7
        a("s_mov_b64 exec, 1")
        for srd, so in ((sK, sOK), (sQ, sOo), (sV, sOV), (sO, sOo))[:ttouch]:
            y = parse(f"buffer_load_dword a192, v{vDma}, s[{srd}:{srd+3}], s{so} offen{polK}"); y.wr = set(); pro.add(y); vm.append("tt")
        a("s_mov_b64 exec, -1")
    kvblock(dmaK, advK, 0, "K0", lambda: a(fill.pop(0)))
    if k1late:
        a("\n".join(fill)); fill = []
    else: kvblock(dmaK, advK, 1, "K1", lambda: a(fill.pop(0)))
    assert not fill
    if stag is None: a(mbload); vm.append("mb")
    qblock(0)
    if k1late: qblock(1)
    setup()
    qblock(2 if k1late else 1)
    fstamp(pro)
    vmwait("mb" if stag is None else "K0" if k1late else "K1"); a("s_barrier")
    stamp(pro)
    def k01read(n, j):
        r = (aKF if n == 0 else aVF) + 4*j
        return parse(f"ds_read_b128 a[{r}:{r+3}], v{vKa} offset:{n*KS+64*(j//2)+512*(j%2)}")
    def kgrp(c): return [k01read(n, j) for j in range(4*c, 4*c+4) for n in range(1 if k1late else 2)]
    def qraw(f): return 96 + 16*((f//4) % 2) + 4*(f % 4)
    def qgrp(c): return [parse(f"ds_read_b128 v[{qraw(f)}:{qraw(f)+3}], v{28+2*((f//2)%2)+f%2} offset:{4096*c}") for f in range(4*c, 4*c+4)]
    def presc(r):
        x = 32 + 2*(r % 8); q = qraw(r//4) + r % 4
        return [parse(t) for t in (f"v_lshlrev_b32 v{x}, 16, v{q}", f"v_and_b32 v{x+1}, 0xffff0000, v{q}",
                f"v_pk_mul_f32 v[{x}:{x+1}], v[{x}:{x+1}], v[2:3] op_sel_hi:[1,0]",
                f"v_cvt_pk_bf16_f32 v{x}, v{x}, v{x+1}", f"v_accvgpr_write_b32 a{aQ+r}, v{x}")]
    def mgrp(c, blocks=(0, 1)):
        L = []
        for t in (2*c, 2*c+1):
            for kt in range(2):
                for n in blocks:
                    for qt in range(2):
                        S = vS[n] + 8*qt + 4*kt; f = (aKF if n == 0 else aVF) + 4*(2*t+kt); qf = aQ + 4*(2*t+qt)
                        L.append(parse(f"v_mfma_f32_16x16x32_bf16 v[{S}:{S+3}], a[{f}:{f+3}], a[{qf}:{qf+3}], " + (f"v[{S}:{S+3}]" if t else "0")))
        return L
    for x in kgrp(0): pro.add(x)
    if not k1late: qblock(2)
    if stag is None: publish(sT0, sT1); vm.append("pub")
    else:
        a(f"s_bitcmp1_b32 s2, {stag}\ns_cbranch_scc1 L_pubdone"); publish(sT0, sT1); a("L_pubdone:")
    a("v_mov_b32 v3, 0")
    items = [("Q3", lambda j: qdma(3, j), []), ("K2", lambda j: dmaK(2, j), advK(2)), ("V0", lambda j: dmaV(0, j), advV(0)),
             ("V1", lambda j: dmaV(1, j), advV(1)) if lazy < 2 else (None, None, []), (None, None, [])]
    if k1late: items = [items[0], ("K1", lambda j: dmaK(1, j), advK(1)), items[1], items[2]]
    zq = [parse(f"v_mov_b32 v{vO+r}, 0") for r in range(zsplit[0], zsplit[1])]
    for c in range(4 if p2 else 5):
        name, f_, adv = items[c]
        if c < 4:
            vmwait(f"Q{c}")
            if c in (0, 3): fstamp(pro)
            for x in qgrp(c): pro.add(x)
            pq = [x for r in range(16*c, 16*c+16) for x in presc(r)]
        else: pq = zq
        kr = kgrp(c+1) if c < 3 else []
        if c == 0:
            for j in range(4):
                x = f_(j)
                for y in x[:-1]: pro.add(y)
                for y in kr[len(kr)//4*j:len(kr)//4*(j+1)]: pro.add(y)
                for _ in range(20): pro.add(pq.pop(0))
                pro.add(x[-1]); vm.append(name)
        else:
            sca = {}; dm = []; st = 2 if p2 else 4
            for j in range(4 if name else 0):
                x = f_(j); addf(sca, st*j, *x[:-1]); dm.append((x[-1], st*j-2, st*j+1)); vm.append(name)
            mf = mgrp(c-1, (0,)) if p2 else mgrp(c-1)
            schedule(pro, mf, [dm, spread(kr, 0, len(mf)-2) if kr else [], spread(pq, 0, len(mf)-1) if pq else []], sca, label=f"S{c}", cap=12 if p2 else 6)
        for x in adv: pro.add(x)
    fstamp(pro)
    NTRIP = ((NB-4)//2 if peel else (NB-2)//2) - (nser//2 if tpl else 0)
    scal = Seg("x")
    scal.a(f"s_mov_b32 s{sCnt}, {NTRIP-1 if tpl else NTRIP}")
    if tpl: a(f"s_mov_b32 s{sThr}, {f2u(2.0**T):#x}")
    scal.a(f"s_lshl_b32 s{sX}, s{sKh}, 8\ns_add_u32 s{sX}, s{sOo}, s{sX}\ns_xor_b32 s{sOo}, s{sX}, 256")
    if pcont: scal.a(f"s_lshl_b32 s{sT0}, s{sKh}, 15\ns_lshl_b32 s3, s{sWv}, 13\ns_add_u32 s{sT0}, s{sT0}, s3")
    else: scal.a(f"s_mov_b32 s{sT0}, s{sX}")
    post_ops = Seg("x"); post2 = Seg("x")
    rowmax(post_ops, vS[0], False)
    for qt, d in ((0, 1), (1, 4)):
        for r in range(8): post_ops.a(f"v_sub_f32 v{(vTmp if dsm0 else vS[0])+8*qt+r}, v{vS[0]+8*qt+r}, v{d}")
    if dsm0: post_ops.a(f"v_mov_b32 v{vLb}, 0\nv_mov_b32 v{vLb+1}, 0")
    else:
        for x in softmax_q(0, merge=False, pipe=True): post_ops.add(x)
    for qt, d in ((0, 1), (1, 4)):
        for r in range(4): post_ops.a(f"v_sub_f32 v{vCn+4*qt+r}, 0, v{d}")
        for r in range(8): post2.a(f"v_sub_f32 v{vS[1]+8*qt+r}, v{vS[1]+8*qt+r}, v{d}")
    tK = [parse(f"v_add_u32 v{vKa}, s{sDK}, v{vKa}"), parse(f"s_sub_u32 s{sDK}, 0, s{sDK}")]
    if p2:
        mf = mgrp(3, (0,)) + [x for c in range(4) for x in mgrp(c, (1,))]
        sca = {}; dm = []
        for k, x in enumerate(scal.ins): addf(sca, min(k, k1bar-1 if k1late else 3), x)
        k1r = []
        if k1late:
            kk_ = max(j for j, x in enumerate(vm) if x == "K1")
            addf(sca, k1bar, parse(f"s_waitcnt vmcnt({len(vm)-1-kk_}) lgkmcnt(0)"), parse("s_barrier"))
            k1r = [(k01read(1, j), k1bar + 1 + (j if j < 4 else 2*j-4), k1bar+1) for j in range(16)]
            for g_ in range(8, 40, 4): mf[g_].extra = set(R("a", aVF + 4*((g_-8)//2), 8))
            nd = 12 - 4*k4late; stp = 3 if nd == 12 else 4 if nd == 8 else 8
            for k in range(nd):
                x = dmaV(1, k) if k < 4 else dmaK(3 + (k-4)//4, k % 4); g = k1bar + 3 + stp*k
                addf(sca, g-1, x[0]); dm.append((x[1], g-3, g)); vm.append("V1" if k < 4 else "K3" if k < 8 else "K4")
            addf(sca, k1bar+3+stp*3+1, *advV(1))
            if nd >= 8: addf(sca, k1bar+3+stp*7+1, *advK(3))
            if nd == 12: addf(sca, 39, *[post(y) for y in advK(4)])
        elif not lazy:
            addf(sca, 4, parse("s_waitcnt lgkmcnt(0)"), parse("s_barrier"))
            for k in range(8):
                x = dmaK(3 + k//4, k % 4); g = 6 + 4*k
                addf(sca, g-1, x[0]); dm.append((x[1], g-3, g)); vm.append("K3" if k < 4 else "K4")
            addf(sca, 19, *advK(3)); addf(sca, 36, *advK(4))
        schedule(pro, mf, [dm, k1r, [(x, 0, 0) for x in zq], spread(post_ops.ins, 10, 39)], sca, label="S4", cap=5)
        stamp(pro)
        for x in tK: pro.add(x)
        vmwait("V0"); a("s_barrier")
        po = post2.ins
    else:
        for x in scal.ins + tK: pro.add(x)
        po = post_ops.ins + post2.ins
        if not mergeb:
            a("s_barrier")
            stamp(pro)
            def take(n):
                for _ in range(min(n, len(po))): pro.add(po.pop(0))
            kvblock(dmaK, advK, 3, "K3", lambda: take(12))
            kvblock(dmaK, advK, 4, "K4", lambda: take(12))
            take(1000)
            vmwait("V0"); a("s_barrier")
        else:
            stamp(pro)
            for x in po: pro.add(x)
            po = []
            vmwait("V0"); a("s_barrier")
    for j in range(NK0): pro.add(kread(2, j))
    if lazy >= 2: kvblock(dmaV, advV, 1, "V1")
    if mergeb or lazy:
        kvblock(dmaK, advK, 3, "K3"); kvblock(dmaK, advK, 4, "K4")
    if prefmode == 2:
        for kk in range(8):
            y = parse(f"buffer_load_dwordx4 a[192:195], v{vOg}, s[{sO}:{sO+3}], s{sT0} offen offset:{512*(kk%2)}{ppol}"); y.wr = set(); pro.add(y)
            if kk % 2: a(f"s_add_u32 s{sT0}, s{sT0}, 4096")
    x = dmaV(2, 0); pro.add(x[0]); a(f"buffer_load_dword v2, v3, s[{sW}:{sW+3}], s{sPw} offen offset:128 sc1"); pro.add(x[1])
    for x in po: pro.add(x)
    for r in range(zsplit[1], zsplit[2]): a(f"v_mov_b32 v{vO+r}, 0")
    a(f"s_waitcnt lgkmcnt({NK0-wgrp})")
    fstamp(pro)
    stamp(pro)
    def sm0_block(zs):
        X, E_ = vTmp, vTmp+16
        for r in range(17):
            if r < 16: zs.a(f"v_exp_f32 v{E_+r}, v{X+r}")
            if r >= 1: zs.a(f"v_add_f32 v{vL+(r-1)//8}, v{vL+(r-1)//8}, v{E_+r-1}" if r < 16 else f"s_nop 0\nv_add_f32 v{vL+1}, v{vL+1}, v{E_+15}")
            if r >= 2 and r % 2 == 0: zs.a(f"v_cvt_pk_bf16_f32 v{vP[0]+r//2-1}, v{E_+r-2}, v{E_+r-1}")
    warm = Seg("warm")
    if tpl:
        inl0 = {}
        if nser and zsplit[2] < 128:
            per = (128 - zsplit[2]) // len(tzs)
            for n_, zg in enumerate(tzs):
                zs = Seg("x"); r0 = zsplit[2] + n_*per
                assert zg < 32 + 2*(r0//8)
                if n_ == 0 and dsm0: sm0_block(zs)
                for r in range(r0, r0+per): zs.a(f"v_mov_b32 v{vO+r}, 0")
                inl0[zg] = zs.ins
        for i in range(nser): iteration2(warm, i, 5+i, serial=sergap[i], inl=inl0 if i == 0 else None, xk=((4,), (3, 4))[k4late-1] if i == 0 and k1late and k4late else ())
    body = Seg("loop"); body.a("L_loop:")
    if tpl: iteration2(body, 0, 0, zsites=zsplit[2] < 128 and not nser); iteration2(body, 1, 1, loopend=True)
    else: iteration(body, 0, 0); iteration(body, 1, 1, loopend=True)
    if stamps == 2:
        body.a(f"s_waitcnt lgkmcnt(0)\ns_memtime s[64:65]\ns_memrealtime s[66:67]\ns_sub_u32 m0, {15+NTRIP}, s{sCnt}\ns_cmp_lg_u32 s{sCnt}, 0\ns_waitcnt lgkmcnt(0)\nv_writelane_b32 v10, s64, m0\nv_writelane_b32 v11, s66, m0")
    zseg = Seg("zero")
    if zsplit[2] < 128 and not (tpl and nser):
        zgs = tzs if tpl else zgap if isinstance(zgap, tuple) else (zgap,)
        per = (128 - zsplit[2]) // len(zgs)
        for n_, zg in enumerate(zgs):
            r0 = zsplit[2] + n_*per
            assert zg < 32 + 2*(r0//8)
            if not tpl:
                mi = [k for k, x in enumerate(body.ins) if x.kind == "mfma"]
                k = mi[zg]
                body.ins[k+1:k+1] = [parse(f"s_cbranch_scc1 L_zero{n_}"), parse(f"L_zback{n_}:")]
                k = mi[zg-1]
                for y in body.ins[k+1:mi[zg]]: assert y.kind != "salu"
            if n_ == 0 and not peel:
                mask = (1 << NTRIP) | sum(1 << t for t in ptrips)
                body.ins[k+1:k+1] = [parse(f"s_bitcmp1_b32 {mask}, s{sCnt}")]
                zseg.a(f"L_zero{n_}:\ns_cmp_eq_u32 s{sCnt}, {NTRIP}\ns_cbranch_scc1 L_zero{n_}b")
                for kk in range(3):
                    y = parse(f"buffer_load_dwordx4 a[192:195], v{vDma if pcont else vOg}, s[{sO}:{sO+3}], s{sT0} offen{ppol}"); y.wr = set(); zseg.add(y)
                    if pcont: zseg.a(f"s_add_u32 s{sT0}, s{sT0}, 1024")
                    else: zseg.a(f"s_xor_b32 s{sT0}, s{sT0}, 512\ns_bitcmp1_b32 s{sT0}, 9\ns_cselect_b32 s3, 0, 4096\ns_add_u32 s{sT0}, s{sT0}, s3")
                    if kk == 1:
                        zseg.a(f"s_cmp_lg_u32 s{sCnt}, {ptrips[-1]}\ns_cbranch_scc1 L_pf3")
                        y = parse(f"buffer_load_dwordx4 a[192:195], v{vSt}, s[{sW}:{sW+3}], s{sMb} offen offset:256"); y.wr = set(); zseg.add(y)
                        zseg.a(f"s_branch L_zback{n_}\nL_pf3:")
                zseg.a(f"s_branch L_zback{n_}\nL_zero{n_}b:")
            else:
                if not tpl: body.ins[k+1:k+1] = [parse(f"s_cmp_eq_u32 s{sCnt}, {NTRIP}")]
                zseg.a(f"L_zero{n_}:")
            if n_ == 0 and dsm0: sm0_block(zseg)
            for r in range(r0, r0+per): zseg.a(f"v_mov_b32 v{vO+r}, 0")
            zseg.a(f"s_nop 1\ns_branch L_zback{n_}")
    if xpad2:
        for n_, (trip, gi, nn) in enumerate(xpad2):
            mi = [k for k, x in enumerate(body.ins) if x.kind == "mfma"]
            k = mi[gi]
            body.ins[k+1:k+1] = [parse(f"s_cmp_eq_u32 s{sCnt}, {NTRIP-trip-(1 if tpl else 0)}"), parse(f"s_cbranch_scc1 L_xq{n_}"), parse(f"L_xqb{n_}:")]
            zseg.a(f"L_xq{n_}:")
            for _ in range(nn): zseg.a("s_nop 15")
            zseg.a(f"s_branch L_xqb{n_}")
    if xpad:
        nb = []; mcount = 0; lab = 0
        for x in body.ins:
            nb.append(x)
            if x.kind == "mfma":
                it = mcount // 64; g = mcount % 64; mcount += 1
                step = 64 // xpad[3]
                if g % step == step//2 - 2:
                    thr = xpad[it]
                    nb += [parse(f"s_cmp_ge_u32 s{sCnt}, {thr}"), parse(f"s_cbranch_scc0 L_xp{lab}")] + [parse("s_nop 15") for _ in range(xpad[2])] + [parse(f"L_xp{lab}:")]
                    lab += 1
        body.ins = nb
    if not tpl: body.a(f"s_cbranch_scc1 L_loop")
    tail = Seg("tail"); e = tail.a
    e("L_tail:")
    if dfr: iteration3(tail, NB-4, 3); iteration3(tail, NB-3, 4)
    elif tpl: iteration2(tail, NB-4, 3, pref=True); iteration2(tail, NB-3, 4, pref=True)
    elif peel: iteration(tail, NB-4, 3, pref=True); iteration(tail, NB-3, 4, pref=True)
    stamp(tail)
    i = NB-2
    snd = list(range(8, 16)); own = list(range(8))
    sq15 = softmax_q(i+1) + checkops()
    if not peel:
        for dt in range(8, 8+NV0):
            for kt in range(2): tail.add(vread(i, dt, kt))
        for x in (sq15[0], sq15[1], sq15[2], sq15[5], sq15[3], sq15[4]): tail.add(x)
        sq15 = sq15[6:]
    rd = spread([vread(i, dt, kt) for dt in range(8+NV0, 16) for kt in range(2)], 0, 6)
    rd += [(y, t, btx+1) for (y, t, _) in spread([vread(i+1, dt, kt, dt-8) for dt in snd for kt in range(2)], btx+1, 15)]
    sca = {btx: [parse("s_waitcnt vmcnt(0)" if prefw is not None else "s_waitcnt vmcnt(9)" if pref13 else "s_waitcnt vmcnt(5)" if peel and not (pref12 and prefmode == 1) else "s_waitcnt vmcnt(0)"), parse("s_barrier")]}
    if dfr:
        sca = {btx: []}
        rd = spread([vread(i, dt, kt) for dt in range(8+NV0, 16) for kt in range(2)] + [vread(i+1, dt, kt, dt-8) for dt in snd for kt in range(2)], 0, 14)
    if stamps and fine:
        t1 = Seg("x"); fstamp(t1); t2 = Seg("x"); fstamp(t2)
        sca[btx] = t1.ins + sca[btx] + t2.ins
    mf = pvlist(i, snd)
    if peel: mf[0].extra = set()
    schedule(tail, mf, [rd, spread(sq15, 0, 15)], sca, label="X", cap=5)
    e(f"v_readfirstlane_b32 s{sT1}, v2\ns_cbranch_vccnz L_rare2\nL_back2:")
    fstamp(tail)
    e(f"s_and_b32 s3, s{sT1}, 0xff")
    def rcv(k): return vTmp + 4*k
    def xa(k):
        if xsw: return f"v{(vOg, 1)[k % 2]}, s[{sO}:{sO+3}], s{sOo} offen"
        return f"v{vOg}, s[{sO}:{sO+3}], s{sOo} offen offset:{512*(k%2)}"
    if xsw: e(f"s_and_b32 s36, s{sWv}, 1\ns_lshl_b32 s36, s36, 9\nv_add_u32 v{vOg}, s36, v{vOg}\nv_xor_b32 v1, 0x200, v{vOg}")
    pollb = Seg("pollb")
    if h2:
        sOo2, sX2, sChB = 62, 63, 38
        vG = 64
        def xaddr(k, b0, b1): return f"v21, s[{sO}:{sO+3}], s{b1 if (k % 4) >> 1 else b0} offen offset:{512*(k & 1) + 128*(k//4)}"
        e(f"s_add_u32 s{sOo2}, s{sOo}, 8192\ns_add_u32 s{sX2}, s{sX}, 8192\ns_xor_b32 s{sChB}, s{sCh}, 0x80\nv_xor_b32 v1, 0x80, v2")
        sends = []
        if fast: e(f"s_cmp_eq_u32 s3, s{sXcc}\ns_cbranch_scc1 L_sendfast")
        lo, hi = [0, 1, 2, 3], [4, 5, 6, 7]
        for var in (("slow", " sc1"), ("fast", "")) if fast else (("slow", " sc1"),):
            sg = Seg("send_"+var[0]); sends.append(sg)
            if var[0] == "fast": sg.a("L_sendfast:")
            st = mergeops() + [parse(t) for t in (f"v_mov_b32 v6, v{vL}", f"v_mov_b32 v7, v{vL+1}", f"v_mov_b32 v4, v{vCn}", f"v_mov_b32 v5, v{vCn+4}",
                  f"v_permlane16_swap_b32 v6, v{vL}", f"v_permlane16_swap_b32 v7, v{vL+1}", f"v_add_f32 v{vL}, v6, v{vL}", f"v_add_f32 v{vL+1}, v7, v{vL+1}",
                  f"v_mov_b32 v6, v{vL}", f"v_mov_b32 v7, v{vL+1}", "s_nop 0", f"v_permlane32_swap_b32 v6, v{vL}", f"v_permlane32_swap_b32 v7, v{vL+1}",
                  f"v_add_f32 v6, v6, v{vL}", f"v_add_f32 v7, v7, v{vL+1}")]
            mf = pvlist(i+1, snd, own) + pvlist(i, lo, [d+8 for d in lo]) + pvlist(i+1, lo)
            rows = {g: [] for g in range(32)}
            for k, x in enumerate(st): rows[min(3, k*4//len(st))].append(x)
            rows[4].append(parse(f"buffer_store_dwordx4 v[4:7], v{vSt}, s[{sW}:{sW+3}], s{sPw} offen offset:256{var[1]}"))
            rr = [vread(i, dt, kt, dt+8) for dt in lo for kt in range(2)] + [vread(i+1, dt, kt) for dt in lo for kt in range(2)]
            r2 = [vread(i, dt, kt, dt+8) for dt in hi for kt in range(2)] + [vread(i+1, dt, kt) for dt in hi for kt in range(2)]
            for k in range(8):
                o = vO + 8*(8+k)
                rows[2*k+4] += [parse(f"v_cvt_pk_bf16_f32 v{vTmp+4*k+x}, v{o+2*x}, v{o+2*x+1}") for x in range(4)]
                rows[2*k+5] += [parse(f"buffer_store_dwordx4 v[{vTmp+4*k}:{vTmp+4*k+3}], {xaddr(k, sOo, sOo2)}{var[1]}")] + rr[2*k:2*k+2]
            for k, x in enumerate(r2): rows[20 + k*12//16].append(x)
            if var[0] == "slow": nf0 = nf[0]; st0 = nst[0]
            nf[0] = nf0; nst[0] = st0
            tg = Seg("x"); tg.a(f"s_waitcnt vmcnt(4)\nbuffer_store_dword v2, v3, s[{sW}:{sW+3}], s{sPw} offen{var[1]}")
            rows[tga] = tg.ins + rows[tga]
            for g in range(32):
                sg.add(mf[g])
                for x in rows[g]: sg.add(x)
            fstamp(sg); sg.a("s_waitcnt vmcnt(0)"); stamp(sg)
            sg.a(f"buffer_store_dword v1, v3, s[{sW}:{sW+3}], s{sPw} offen{var[1]}")
            fstamp(sg)
            if var[0] == "slow" and fast: sg.a("s_branch L_sent")
        fin = Seg("final"); e = fin.a
        e("L_sent:")
        e(f"s_mov_b32 s{sCnt}, 0x200000")
        e("L_poll:")
        e(f"s_sub_u32 s{sCnt}, s{sCnt}, 1\ns_cbranch_scc1 L_pollok")
        e(f"buffer_load_dword v8, v3, s[{sW}:{sW+3}], s{sMb} offen{xpoll}\ns_waitcnt vmcnt(0)\nv_readfirstlane_b32 s36, v8\ns_xor_b32 s3, s36, s{sCh}\ns_andn2_b32 s3, s3, 0x80\ns_cbranch_scc1 L_poll")
        e("L_pollok:")
        stamp(fin)
        e(f"buffer_load_dwordx4 v[{vG}:{vG+3}], v{vSt}, s[{sW}:{sW+3}], s{sMb} offen offset:256{xld}")
        for k in lo: e(f"buffer_load_dwordx4 v[{vTmp+4*k}:{vTmp+4*k+3}], {xaddr(k, sX, sX2)}{xld}")
        for x in pvlist(i, hi, [d+8 for d in hi]): fin.add(x)
        e(f"s_cmp_eq_u32 s36, s{sChB}\ns_cbranch_scc0 L_pollb\nL_pollbok:")
        pollb.a(f"L_pollb:\ns_sub_u32 s{sCnt}, s{sCnt}, 1\ns_cbranch_scc1 L_pollbok")
        pollb.a(f"buffer_load_dword v8, v3, s[{sW}:{sW+3}], s{sMb} offen{xpoll}\ns_waitcnt vmcnt(0)\nv_readfirstlane_b32 s36, v8\ns_nop 1\ns_cmp_eq_u32 s36, s{sChB}\ns_cbranch_scc0 L_pollb\ns_branch L_pollbok")
        for k in hi: e(f"buffer_load_dwordx4 v[{vTmp+4*k}:{vTmp+4*k+3}], {xaddr(k, sX, sX2)}{xld}")
        e(f"buffer_load_dword v2, v3, s[{sW}:{sW+3}], s{sPw} offen offset:128 sc1")
        for x in pvlist(i+1, hi): fin.add(x)
        fstamp(fin); fstamp(fin)
        for qt in range(2):
            fo, fx, t = vG+4+2*qt, vG+8+2*qt, vG+12+qt
            e(f"v_min_f32 v{t}, v{4+qt}, v{vG+qt}\nv_sub_f32 v{fo}, v{t}, v{4+qt}\nv_sub_f32 v{fx}, v{t}, v{vG+qt}\nv_exp_f32 v{fo}, v{fo}\nv_exp_f32 v{fx}, v{fx}")
        for qt in range(2):
            fo, fx, t = vG+4+2*qt, vG+8+2*qt, vG+12+qt
            e(f"v_mul_f32 v{t}, v{fo}, v{6+qt}\nv_fma_f32 v{t}, v{fx}, v{vG+2+qt}, v{t}\nv_rcp_f32 v{t}, v{t}")
        for qt in range(2):
            fo, fx, t = vG+4+2*qt, vG+8+2*qt, vG+12+qt
            e(f"v_mul_f32 v{fo}, v{fo}, v{t}\nv_mul_f32 v{fx}, v{fx}, v{t}")
        stq = []
        for n_, (h, qt) in enumerate(((0, 0), (0, 1), (1, 0), (1, 1))):
            fo, fx = vG+4+2*qt, vG+8+2*qt
            for k, dt in enumerate(range(4*h, 4*h+4)):
                o = vO + 8*dt + 4*qt; p = vTmp + 4*dt + 2*qt; u = 48 + 4*((2*dt+qt) % 4)
                e(f"v_lshlrev_b32 v{u}, 16, v{p}\nv_and_b32 v{u+1}, 0xffff0000, v{p}\nv_lshlrev_b32 v{u+2}, 16, v{p+1}\nv_and_b32 v{u+3}, 0xffff0000, v{p+1}")
                for x in range(4): e(f"v_mul_f32 v{o+x}, v{fo}, v{o+x}")
                for x in range(4): e(f"v_fmac_f32 v{o+x}, v{fx}, v{u+x}")
                e(f"v_cvt_pk_bf16_f32 v{o}, v{o}, v{o+1}\nv_cvt_pk_bf16_f32 v{o+1}, v{o+2}, v{o+3}")
                if k in (1, 2) and stq: e(stq.pop(0))
            for dt in range(4*h, 4*h+4):
                o = vO + 8*dt + 4*qt
                e(f"ds_write_b64 v{vEw}, v[{o}:{o+1}] offset:{4352*qt+32*dt}")
            for m in range(2):
                r = 192 + 8*n_ + 4*m
                e(f"ds_read_b128 v[{r}:{r+3}], v{vEr} offset:{272*(16*qt+8*m)+128*h}")
                stq.append(f"buffer_store_dwordx4 v[{r}:{r+3}], v21, s[{sO}:{sO+3}], s{sX2 if m else sX} offen offset:{512*qt+128*h}{polO}")
        fstamp(fin)
        for x in stq: e(x)
        e(f"v_readfirstlane_b32 s3, v2\ns_cmp_eq_u32 s3, s{sT1}\ns_cbranch_scc1 L_tagok")
        e(f"v_xor_b32 v2, 0x80, v2\nbuffer_wbl2 sc1\ns_waitcnt vmcnt(0)\nbuffer_store_dword v2, v3, s[{sW}:{sW+3}], s{sPw} offen sc1")
        e("L_tagok:")
        fstamp(fin)
    else:
        sends = []
        if fast: e(f"s_cmp_eq_u32 s3, s{sXcc}\ns_cbranch_scc1 L_sendfast")
        for var in (("slow", " sc1"), ("fast", "")) if fast else (("slow", " sc1"),):
            sg = Seg("send_"+var[0]); sends.append(sg)
            if var[0] == "fast": sg.a("L_sendfast:")
            st = mergeops() + [parse(t) for t in (f"v_mov_b32 v6, v{vL}", f"v_mov_b32 v7, v{vL+1}", f"v_mov_b32 v4, v{vCn}", f"v_mov_b32 v5, v{vCn+4}",
                  f"v_permlane16_swap_b32 v6, v{vL}", f"v_permlane16_swap_b32 v7, v{vL+1}", f"v_add_f32 v{vL}, v6, v{vL}", f"v_add_f32 v{vL+1}, v7, v{vL+1}",
                  f"v_mov_b32 v6, v{vL}", f"v_mov_b32 v7, v{vL+1}", "s_nop 0", f"v_permlane32_swap_b32 v6, v{vL}", f"v_permlane32_swap_b32 v7, v{vL+1}",
                  f"v_add_f32 v6, v6, v{vL}", f"v_add_f32 v7, v7, v{vL+1}",
                  f"buffer_store_dwordx4 v[4:7], v{vSt}, s[{sW}:{sW+3}], s{sPw} offen offset:256{var[1]}")]
            q = []
            for k in range(8):
                o = vO + 8*(8+k); g0 = 2*k + 1 + 3
                for x in range(4): q.append((parse(f"v_cvt_pk_bf16_f32 v{vTmp+4*k+x}, v{o+2*x}, v{o+2*x+1}"), g0-2, g0))
                q.append((parse(f"buffer_store_dwordx4 v[{vTmp+4*k}:{vTmp+4*k+3}], {xa(k)}{var[1]}"), g0-2, g0))
                if k % 2 == 1 and k < 7: q.append((parse(f"s_add_u32 s{sOo}, s{sOo}, 4096"), g0-2, g0))
            rd = spread([vread(i, dt, kt, dt+8) for dt in own for kt in range(2)], 1, 20)
            rd += [(y, t, 17) for (y, t, _) in spread([vread(i+1, dt, kt) for dt in own for kt in range(2)], 21, 38)]
            mf = pvlist(i+1, snd, own) + pvlist(i, own, snd) + pvlist(i+1, own)
            if var[0] == "slow": nf0 = nf[0]; st0 = nst[0]
            nf[0] = nf0; nst[0] = st0
            tg = Seg("x"); fstamp(tg); tg.a("s_waitcnt vmcnt(0)"); stamp(tg)
            tg.a(f"buffer_store_dword v2, v3, s[{sW}:{sW+3}], s{sPw} offen{var[1]}")
            if dfr:
                mf = pvlist(i+1, snd, own) + pvlist(i-2, own, snd) + pvlist(i-1, own) + pvlist(i, own, snd) + pvlist(i+1, own)
                rows = {g: [] for g in range(80)}
                nst_ = len(st) - 1
                for k, x in enumerate(st[:-1]): rows[min(3, k*4//nst_)].append(x)
                rows[0].insert(0, parse(f"v_add_u32 v1, s{sDV}, v{vVa}"))
                rows[4].append(st[-1])
                rb = [[vread(i-2+n_, dt, kt, dt + (8 if n_ % 2 == 0 else 0), 1 if n_ < 2 else vVa) for dt in own for kt in range(2)] for n_ in range(4)]
                for k in range(8):
                    o = vO + 8*(8+k)
                    rows[2*k+4] += [parse(f"v_cvt_pk_bf16_f32 v{o+x}, v{o+2*x}, v{o+2*x+1}") for x in range(4)]
                    rows[2*k+5] += [parse(f"buffer_store_dwordx4 v[{o}:{o+3}], {xa(k)}{var[1]}")] + rb[0][2*k:2*k+2]
                    if k % 2 == 1 and k < 7: rows[2*k+5].append(parse(f"s_add_u32 s{sOo}, s{sOo}, 4096"))
                for k, x in enumerate(rb[1]): rows[20 + k*10//16].append(x)
                for k, x in enumerate(rb[2]): rows[34 + k*13//16].append(x)
                for k, x in enumerate(rb[3]): rows[50 + k*13//16].append(x)
                rows[dtag] += tg.ins
                for g in range(80):
                    sg.add(mf[g])
                    for x in rows[g]: sg.add(x)
            elif y2:
                rows = {g: [] for g in range(48)}
                r14 = [vread(i, dt, kt, dt+8) for dt in own for kt in range(2)]; r15 = [vread(i+1, dt, kt) for dt in own for kt in range(2)]
                nst_ = len(st) - 1
                for k, x in enumerate(st[:-1]): rows[min(3, k*4//nst_)].append(x)
                tiles = [[y[0] for y in q[a_:b_]] for a_, b_ in zip([0,5,11,16,22,27,33,38], [5,11,16,22,27,33,38,43])]
                for k in range(8):
                    rows[2*k+4] += tiles[k][:4]
                    rows[2*k+5] += tiles[k][4:5] + r14[2*k:2*k+2] + tiles[k][5:]
                rows[1] = r14[:0] + rows[1]
                rows[4] = [st[-1]] + rows[4]
                for k, x in enumerate(r15): rows[20 + k].append(x)
                rows[tagg] += tg.ins
                for g in range(48):
                    sg.add(mf[g])
                    for x in rows[g]: sg.add(x)
            else:
                sca = {tagg: [post(x) for x in tg.ins]}
                schedule(sg, mf, [rd, q, spread(st, 0, 4)], sca, label="YZ", cap=3)
            fstamp(sg)
            if var[0] == "slow" and fast: sg.a("s_branch L_sent")
        fin = Seg("final"); e = fin.a
        e("L_sent:")
        e(f"s_mov_b32 s{sCnt}, 0x200000")
        e("L_poll:")
        e(f"s_sub_u32 s{sCnt}, s{sCnt}, 1\ns_cbranch_scc1 L_pollok")
        e(f"buffer_load_dword v8, v3, s[{sW}:{sW+3}], s{sMb} offen{xpoll}\ns_waitcnt vmcnt(0)\nv_readfirstlane_b32 s3, v8\ns_cmp_lg_u32 s3, s{sCh}\ns_cbranch_scc1 L_poll")
        e("L_pollok:")
        stamp(fin)
        e(f"s_mov_b32 s{sOo}, s{sX}")
        def xloads(pol):
            e(f"buffer_load_dwordx4 v[32:35], v{vSt}, s[{sW}:{sW+3}], s{sMb} offen offset:256{pol}")
            for k in range(8):
                e(f"buffer_load_dwordx4 v[{rcv(k)}:{rcv(k)+3}], {xa(k)}{pol}")
                if k % 2 == 1 and k < 7: e(f"s_add_u32 s{sOo}, s{sOo}, 4096")
        xloads(xld)
        e(f"buffer_load_dword v2, v3, s[{sW}:{sW+3}], s{sPw} offen offset:128 sc1")
        fstamp(fin, 9); fstamp(fin, 0)
        for qt in range(2):
            fo, fx, t = 36+2*qt, 40+2*qt, 44+qt
            e(f"v_min_f32 v{t}, v{4+qt}, v{32+qt}\nv_sub_f32 v{fo}, v{t}, v{4+qt}\nv_sub_f32 v{fx}, v{t}, v{32+qt}\nv_exp_f32 v{fo}, v{fo}\nv_exp_f32 v{fx}, v{fx}")
        for qt in range(2):
            fo, fx, t = 36+2*qt, 40+2*qt, 44+qt
            e(f"v_mul_f32 v{t}, v{fo}, v{6+qt}\nv_fma_f32 v{t}, v{fx}, v{34+qt}, v{t}\nv_rcp_f32 v{t}, v{t}")
        for qt in range(2):
            fo, fx, t = 36+2*qt, 40+2*qt, 44+qt
            e(f"v_mul_f32 v{fo}, v{fo}, v{t}\nv_mul_f32 v{fx}, v{fx}, v{t}")
        for r in range(0, 64, 2):
            fo = 36 + 2*((r//4) % 2)
            e(f"v_pk_mul_f32 v[{vO+r}:{vO+r+1}], v[{vO+r}:{vO+r+1}], v[{fo}:{fo+1}] op_sel_hi:[1,0]")
        def comb(dt, qt):
            o = vO + 8*dt + 4*qt; p = rcv(dt) + 2*qt; u = 48 + 4*((2*dt+qt) % 4); fx = 40+2*qt
            e(f"v_lshlrev_b32 v{u}, 16, v{p}\nv_and_b32 v{u+1}, 0xffff0000, v{p}\nv_lshlrev_b32 v{u+2}, 16, v{p+1}\nv_and_b32 v{u+3}, 0xffff0000, v{p+1}")
            e(f"v_pk_fma_f32 v[{o}:{o+1}], v[{u}:{u+1}], v[{fx}:{fx+1}], v[{o}:{o+1}] op_sel_hi:[1,0,1]")
            e(f"v_pk_fma_f32 v[{o+2}:{o+3}], v[{u+2}:{u+3}], v[{fx}:{fx+1}], v[{o+2}:{o+3}] op_sel_hi:[1,0,1]")
            e(f"v_cvt_pk_bf16_f32 v{o}, v{o}, v{o+1}\nv_cvt_pk_bf16_f32 v{o+1}, v{o+2}, v{o+3}")
        def dsw(dt, qt):
            o = vO + 8*dt + 4*qt
            e(f"ds_write_b64 v{vEw}, v[{o}:{o+1}] offset:{4352*qt+32*dt}")
        def retag():
            e(f"v_readfirstlane_b32 s3, v2\ns_cmp_eq_u32 s3, s{sT1}\ns_cbranch_scc1 L_tagok")
            e(f"buffer_wbl2 sc1\ns_waitcnt vmcnt(0)\nbuffer_store_dword v2, v3, s[{sW}:{sW+3}], s{sPw} offen sc1")
            e("L_tagok:")
        if q4:
            e(f"s_add_u32 s{sOo}, s{sX}, 8192")
            stq = []
            for n_, (h, qt) in enumerate(((0, 0), (0, 1), (1, 0), (1, 1))):
                for k, dt in enumerate(range(4*h, 4*h+4)):
                    comb(dt, qt)
                    if k in (1, 2) and stq: e(stq.pop(0))
                for dt in range(4*h, 4*h+4): dsw(dt, qt)
                for m in range(2):
                    r = 192 + 8*n_ + 4*m
                    e(f"ds_read_b128 v[{r}:{r+3}], v{vEr} offset:{272*(16*qt+8*m)+128*h}")
                    stq.append(f"buffer_store_dwordx4 v[{r}:{r+3}], v21, s[{sO}:{sO+3}], s{sOo if m else sX} offen offset:{512*qt+128*h}{polO}")
                if n_ == 0: e("s_waitcnt vmcnt(1)")
            fstamp(fin)
            for x in stq: e(x)
            retag()
        else:
            for dt in range(8):
                for qt in range(2):
                    comb(dt, qt)
                    if qt == 1 and dt % 2 == 1:
                        for d2 in (dt-1, dt):
                            for q2 in range(2): dsw(d2, q2)
            fstamp(fin)
            korder = [0, 4, 1, 5, 2, 6, 3, 7]
            for n_, k in enumerate(korder): e(f"ds_read_b128 v[{192+4*n_}:{192+4*n_+3}], v{vEr} offset:{1088*k}")
            retag()
            for k in range(8):
                e(f"buffer_store_dwordx4 v[{192+4*k}:{192+4*k+3}], v{vOg}, s[{sO}:{sO+3}], s{sX} offen offset:{512*(k%2)}{polO}")
                if k % 2 == 1 and k < 7: e(f"s_add_u32 s{sX}, s{sX}, 4096")
        fstamp(fin)
    endseg = Seg("end"); e = endseg.a
    if stamps:
        e("s_waitcnt vmcnt(0)")
        stamp(endseg)
        e(f"s_lshl_b32 s3, s2, 2\ns_add_u32 s3, s3, s{sWv}\ns_lshl_b32 s3, s3, 9\nv_lshlrev_b32 v{vSt}, 3, v0")
        e(f"buffer_store_dwordx2 v[10:11], v{vSt}, s[{sW}:{sW+3}], s3 offen")
    if probe is not None:
        e("s_waitcnt vmcnt(0)")
        stamp(endseg)
        e(f"s_sub_u32 s94, s94, s96\ns_add_u32 s94, s94, 2500\nL_pad:\ns_memrealtime s[98:99]\ns_waitcnt lgkmcnt(0)\ns_sub_u32 s3, s98, s96\ns_cmp_lt_u32 s3, s94\ns_cbranch_scc1 L_pad")
    if padto:
        e(f"s_waitcnt vmcnt(0)\nL_pad:\ns_memrealtime s[98:99]\ns_waitcnt lgkmcnt(0)\ns_sub_u32 s3, s98, s96\ns_cmp_lt_u32 s3, {int(padto*100)}\ns_cbranch_scc1 L_pad")
    e("L_end:\ns_endpgm")
    rares = []
    for ret, i in ((0, 0), (1, 1), (2, NB-2), (3, NB-4), (4, NB-3))[:5 if peel else 3] + tuple((5+k, k) for k in range(nser if tpl else 0)):
        r = Seg(f"rare{ret}"); e = r.a
        S = vS[(i+1)%2]; S2 = vS[i%2]
        e(f"L_rare{ret}:")
        rowmax(r, S, True)
        e("v_exp_f32 v6, -v1\nv_exp_f32 v7, -v4")
        for qt, d, al in ((0, 1, 6), (1, 4, 7)):
            for k in range(4): e(f"v_sub_f32 v{vCn+4*qt+k}, v{vCn+4*qt+k}, v{d}")
            for k in range(8): e(f"v_sub_f32 v{S+8*qt+k}, v{S+8*qt+k}, v{d}")
            if ret != 2:
                for k in range(8): e(f"v_sub_f32 v{S2+8*qt+k}, v{S2+8*qt+k}, v{d}")
            e(f"v_mul_f32 v{vL+qt}, v{al}, v{vL+qt}")
        pend = [NB-2] if ret == 2 else []
        if dfr and ret in (2, 3, 4): pend = list(range(NB-4, i+1))
        for n in pend:
            for k in range(8):
                p = Pbuf(n) + k; al = 6 + k//4
                e(f"v_lshlrev_b32 v{vPf}, 16, v{p}\nv_and_b32 v{vPf+1}, 0xffff0000, v{p}\nv_mul_f32 v{vPf}, v{al}, v{vPf}\nv_mul_f32 v{vPf+1}, v{al}, v{vPf+1}\nv_cvt_pk_bf16_f32 v{p}, v{vPf}, v{vPf+1}")
        for x in softmax_q(i+1, merge=False, pipe=True): r.add(x)
        for k in range(128): e(f"v_mul_f32 v{vO+k}, v{6+(k//4)%2}, v{vO+k}")
        e(f"s_nop 1\ns_branch L_back{ret}")
        rares.append(r)
    if "oob" in exp: pro.a(f"s_mov_b32 s{sK+2}, 0\ns_mov_b32 s{sV+2}, 0")
    if "l2hot" in exp:
        for x in body.ins:
            if x.text.startswith(f"s_add_u32 s{sOK}, s{sOK}, 16384") or x.text.startswith(f"s_add_u32 s{sOV}, s{sOV}, 16384"): x.text = "s_nop 0"
    if exp:
        nb = []
        for x in body.ins:
            if "nolds" in exp and x.kind == "dsr": continue
            if "novalu" in exp and x.kind in ("valu","trans") and not x.text.startswith("v_add_u32") and not x.text.startswith("v_cmp") and not x.text.startswith("v_writelane"): continue
            if "nodma" in exp and x.kind == "dma": continue
            if "nomfma" in exp and x.kind == "mfma": continue
            if "nobar" in exp and (x.kind == "barrier" or (x.kind == "wait" and x.vm is not None)): continue
            if "nomax" in exp and x.text.startswith("v_max"): continue
            nb.append(x)
        body.ins = nb
    order = [pro, warm, body, tail] + sends + [fin, endseg, pollb, zseg] + rares
    traces = [[pro, warm, body, body, body, tail, s, fin, endseg] for s in sends]
    fix_waits(traces, verbose)
    for s in order: merge_waits(s)
    fix_waits(traces, verbose)
    def upto(seg, lab):
        s = Seg(seg.name+"_pre"); k = [i.text for i in seg.ins].index(lab); s.ins = seg.ins[:k]
        s2 = Seg(seg.name+"_post"); s2.ins = seg.ins[k:]; return s, s2
    pw = [pro, warm]
    cases = [(0, body, pw+[body], [body]), (1, body, pw+[body], [body]), (1, body, pw+[body], [tail]), (2, tail, pw+[body], [sends[0]])]
    if peel: cases += [(3, tail, pw+[body], []), (4, tail, pw+[body], [])]
    cases += [(5+k, warm, [pro], [body]) for k in range(nser if tpl else 0)]
    for ret, seg, prev, nxt in cases:
        p, q = upto(seg, f"L_back{ret}:")
        n0 = [len(x.ins) for x in [p, q] + nxt]
        fix_waits([prev + [p, rares[ret], q] + nxt], verbose)
        assert exp or [len(x.ins) for x in [p, q] + nxt] == n0, "rare path needs extra waits outside"
    if zseg.ins and not xpad2:
        labs = [k for k, x in enumerate(zseg.ins) if x.kind == "label" and x.text.startswith("L_zero") and not x.text.endswith("b:")] + [len(zseg.ins)]
        parts = []
        for n_ in range(len(labs)-1):
            zp = Seg(f"zero{n_}"); zp.ins = zseg.ins[labs[n_]:labs[n_+1]]; parts.append(zp)
            p, q = upto(body, f"L_zback{n_}:")
            n0 = [len(p.ins), len(q.ins)]
            fix_waits([[pro, warm, p, zp, q]], verbose)
            assert exp or [len(p.ins), len(q.ins)] == n0, "zero block needs extra waits outside"
        zseg.ins = [x for zp in parts for x in zp.ins]
    lds = SPARE + KS
    txt = header + f"; @launch grid=(256,1,1) block=(256,1,1) lds={lds}\n"
    txt += f'.amdgcn_target "amdgcn-amd-amdhsa--gfx950"\n.text\n.globl {KN}\n.p2align 8\n.type {KN},@function\n{KN}:\n'
    body_txt = emit(order)
    if align is not None:
        body_txt = body_txt.replace("L_loop:\n", f".p2align {align[0]}\n" + "  s_nop 0\n"*align[1] + "L_loop:\n")
    txt += body_txt + "\nL_codeend:\n"
    txt += f'''.section .rodata,"a"
.p2align 6
.amdhsa_kernel {KN}
  .amdhsa_next_free_vgpr 452
  .amdhsa_next_free_sgpr 102
  .amdhsa_accum_offset 256
  .amdhsa_group_segment_fixed_size 0
  .amdhsa_kernarg_size 48
  .amdhsa_user_sgpr_count 2
  .amdhsa_user_sgpr_kernarg_segment_ptr 1
  .amdhsa_system_sgpr_workgroup_id_x 1
.end_amdhsa_kernel
'''
    return txt
if __name__ == "__main__":
    kw = eval("dict(" + (sys.argv[1] if len(sys.argv) > 1 else "") + ")")
    print(gen(**kw))
```

```python
import sys, math, struct
from asmlib import *
KN = "standalone__gqa_softmax__near_ridge_kernel"
def f2u(x): return struct.unpack("<I", struct.pack("<f", x))[0]
RS = 1056; KS = VS = 16*RS
KB = [i*KS for i in range(4)]
VB = [4*KS + i*VS for i in range(4)]
SPARE = 8*KS
C_SCALE = math.log2(math.e)/16.0
NB = 16
vOg, vEw, vEr, vSt = 12, 13, 14, 15
vKa, vVa, vDma, vDmaV, vMx = 16, 17, 18, 19, 20
vL = 22
vLb = 8
vPf = 80
vCn = 24
vP = [32, 40]; vS = [48, 64]; vTmp = 96; vO = 128
aQ, aKF, aVF = 0, 64, 128
sQ, sK, sV, sO, sW = 16, 20, 24, 28, 32
sWv, sOK, sOV, sMK, sMV, sCnt, sC, sDK, sDV, sXcc, sKh, sT0, sT1, sOo, sX = 40,41,42,43,44,45,46,47,48,49,50,51,52,53,54
sDK2, sDV2, sPw, sMb, sCh = 55, 56, 57, 58, 59
XBASE = 1 << 20

def gen(polK=" nt", polV=" nt", polQ=" nt", polO="", stamps=False, T=8.0, verbose=False, header="", padto=0, exp=(),
        fast=True, pxor=16, bg=53, dmagaps=(57,1,9,17,25,33,41,49), npre=5, wgrp=2, smend=60, late=1.6, xld=' sc1', xpoll=' sc1', fine=False, xpad=None, xstag=0, probe=None, cpf=True, btx=7, tagg=36, nq0=11, zsplit=(0,0,0), zgap=(30,46), otouch=False, peel=True, mergeb=False, prefmode=1, stag=None, p2=True, dfr=True, dpf=13, dbg_=33, dtag=52, xsw=False, prefw=None, h2=False, tga=21,  k1late=True, k4late=1, kcatch=0, k1bar=2, y2=True, nser=4, sergap=(60,)*8, cskip=('L_end','L_end'), ttouch=0, tpl=True, tE=(0,4,8,12,16,20,24,28,32,36,40,43,46,50,53,56), tD=(54,2,9,17,25,33,38,45), tbg=49, tdbl=(14,30), tzs=(30,42), align=None, pref13=True, q4=True, ilv=None, dsm0=True, lazy=0, pref12=False, xpad2=None, st256=True, ptrips=(4,3,2), pcont=False, ppol=''):
    nst = [0]
    def stamp(seg):
        if probe is not None:
            if nst[0] == probe: seg.a("s_waitcnt lgkmcnt(0)\ns_memrealtime s[94:95]\ns_waitcnt lgkmcnt(0)")
            nst[0] += 1
        if stamps:
            seg.a(f"s_waitcnt lgkmcnt(0)\ns_memtime s[64:65]\ns_memrealtime s[66:67]\ns_waitcnt lgkmcnt(0)\nv_writelane_b32 v10, s64, {nst[0]}\nv_writelane_b32 v11, s66, {nst[0]}"); nst[0] += 1
    nf = [32]
    def fstamp(seg, vm=None):
        if stamps and fine:
            if vm is not None: seg.a(f"s_waitcnt vmcnt({vm})")
            sv = nst[0]; nst[0] = nf[0]; stamp(seg); nf[0] += 1; nst[0] = sv
    pro = Seg("prologue"); a = pro.a
    a(f"s_cmp_ge_u32 s2, 256\ns_cbranch_scc1 L_end")
    a("s_load_dwordx8 s[4:11], s[0:1], 0\ns_load_dwordx2 s[14:15], s[0:1], 40")
    if padto or probe is not None: a("s_memrealtime s[96:97]")
    stamp(pro)
    if xstag:
        a(f"s_bitcmp1_b32 s2, 5\ns_cbranch_scc0 L_nostag\ns_sleep {xstag}\nL_nostag:")
    a("v_lshrrev_b32 v1, 6, v0\nv_and_b32 v0, 63, v0")
    a(f"v_readfirstlane_b32 s{sWv}, v1")
    if cpf:
        a(f"s_getpc_b64 s[36:37]\ns_lshr_b32 s3, s2, 3\ns_lshl_b32 s3, s3, 2\nv_add_u32 v4, s3, v1\nv_lshlrev_b32 v4, 1, v4\nv_add_u32 v4, v4, v0\nv_lshlrev_b32 v4, 7, v4")
        if cskip and cskip[0] != cskip[1]:
            a(f"v_mov_b32 v5, {cskip[1]}-{cskip[0]}\nv_cmp_le_u32 vcc, {cskip[0]}-{KN}, v4\nv_cndmask_b32 v5, 0, v5, vcc\nv_add_u32 v4, v4, v5")
        a(f"v_min_u32 v4, {'L_end' if cskip else 'L_codeend'}-{KN}-256, v4\nv_mov_b32 v5, s37\nv_add_co_u32 v4, vcc, s36, v4\ns_nop 1\nv_addc_co_u32 v5, vcc, 0, v5, vcc")
        a("s_mov_b64 exec, 3")
        y = I("global_load_dword a192, v[4:5], off", "vld", rd=["v4", "v5"]); pro.add(y)
        a("s_mov_b64 exec, -1")
    a(f"v_lshlrev_b32 v{vDma}, 4, v0")
    if pxor == 16:
        a(f"s_mov_b32 s{sX}, s2")
    else:
        a(f"s_and_b32 s{sX}, s2, 0xee\ns_bfe_u32 s3, s2, 0x10004\ns_or_b32 s{sX}, s{sX}, s3\ns_and_b32 s3, s2, 1\ns_lshl_b32 s3, s3, 4\ns_or_b32 s{sX}, s{sX}, s3")
    a(f"s_and_b32 s{sT0}, s{sX}, 7\ns_lshr_b32 s{sT1}, s{sX}, 3\ns_lshl_b32 s{sT0}, s{sT0}, 3")
    a(f"s_lshr_b32 s3, s{sT1}, 2\ns_add_u32 s{sT0}, s{sT0}, s3")
    a(f"s_bfe_u32 s{sKh}, s{sT1}, 0x10001")
    a(f"s_and_b32 s{sT1}, s{sT1}, 1\ns_lshl_b32 s3, s{sT0}, 1\ns_add_u32 s{sT1}, s{sT1}, s3")
    a(f"s_lshl_b32 s{sT1}, s{sT1}, 16")
    a(f"s_lshl_b32 s{sT0}, s{sT0}, 19\ns_lshl_b32 s3, s{sKh}, 18\ns_add_u32 s{sT0}, s{sT0}, s3")
    a(f"s_mov_b32 s{sX}, {KB[3]}\ns_cmp_eq_u32 s{sWv}, 1\ns_cselect_b32 s{sX}, {VB[2]}, s{sX}")
    a(f"s_cmp_eq_u32 s{sWv}, 2\ns_cselect_b32 s{sX}, {VB[3]}, s{sX}\ns_cmp_eq_u32 s{sWv}, 3\ns_cselect_b32 s{sX}, {SPARE}, s{sX}")
    a(f"s_lshl_b32 s{sOo}, s{sWv}, 14")
    a(f"s_lshl_b32 s{sOK}, s{sWv}, 12\ns_mov_b32 s{sOV}, s{sOK}")
    a(f"s_mul_i32 s{sMK}, s{sWv}, {4*RS}\ns_add_u32 s{sMV}, s{sMK}, {VB[0]}")
    a(f"s_mov_b32 s{sQ+2}, 65536\ns_mov_b32 s{sQ+3}, 0x20000\ns_mov_b32 s{sK+2}, {NB*16384}\ns_mov_b32 s{sK+3}, 0x20000\ns_mov_b32 m0, s{sMK}")
    a(f"s_mov_b32 s{sDK2}, {2*KS}\ns_mov_b32 s{sDV2}, {2*VS}\ns_mov_b32 s{sDK}, {2*KS}\ns_mov_b32 s{sDV}, {2*VS}")
    a(f"s_lshl_b32 s{sMb}, s2, 2\ns_add_u32 s{sMb}, s{sMb}, s{sWv}\ns_lshl_b32 s{sMb}, s{sMb}, 11\ns_add_u32 s{sMb}, s{sMb}, {XBASE}")
    a(f"s_mov_b32 s{sW+2}, {3*XBASE}\ns_mov_b32 s{sW+3}, 0x20000\nv_lshlrev_b32 v3, 7, v0")
    a(f"s_getreg_b32 s{sXcc}, hwreg(HW_REG_XCC_ID)\ns_and_b32 s{sXcc}, s{sXcc}, 15")
    a("v_lshrrev_b32 v6, 3, v0\nv_and_b32 v7, 6, v6\nv_xor_b32 v7, v7, v0\nv_and_b32 v7, 7, v7\nv_lshlrev_b32 v7, 4, v7\nv_lshl_add_u32 v6, v6, 9, v7\nv_xor_b32 v7, 0x200, v6")
    a("s_waitcnt lgkmcnt(0)")
    fstamp(pro)
    def epi_addr(a):
        a(f"v_and_b32 v1, 15, v0\nv_lshrrev_b32 v4, 4, v0\ns_mul_i32 s3, s{sWv}, 8704")
        a(f"v_mul_u32_u24 v5, 272, v1\nv_lshlrev_b32 v21, 3, v4\nv_add3_u32 v{vEw}, v5, v21, s3")
        a(f"v_lshlrev_b32 v21, 4, v1\nv_mul_u32_u24 v5, 272, v4\nv_add3_u32 v{vEr}, v5, v21, s3")
        a(f"v_lshl_add_u32 v{vOg}, v4, 10, v21\nv_mov_b32 v{vSt}, " + ("v21" if st256 else f"v{vDma}"))
        if q4:
            a(f"v_lshrrev_b32 v5, 3, v0\nv_and_b32 v21, 7, v0\nv_lshlrev_b32 v21, 4, v21\nv_mul_u32_u24 v{vEr}, 272, v5\nv_add3_u32 v{vEr}, v{vEr}, v21, s3\nv_lshl_add_u32 v21, v5, 10, v21")
    def setup():
        a(f"s_lshl_b32 s3, s{sKh}, 8\nv_xor_b32 v{vDmaV}, s3, v{vDma}")
        a(f"v_and_b32 v1, 15, v0\nv_lshrrev_b32 v4, 4, v0")
        a(f"v_mul_u32_u24 v2, {RS}, v1\nv_lshl_add_u32 v{vKa}, v4, 4, v2")
        a(f"v_lshrrev_b32 v2, 2, v0\nv_mul_u32_u24 v2, {RS}, v2\nv_and_b32 v3, 3, v0\nv_lshl_add_u32 v2, v3, 3, v2\nv_add_u32 v{vVa}, {VB[0]}, v2")
        a(f"v_lshlrev_b32 v3, 1, v3\nv_lshrrev_b32 v2, 2, v1\nv_and_b32 v5, 1, v2\nv_xor_b32 v5, v5, v3\nv_lshlrev_b32 v5, 7, v5\nv_lshl_add_u32 v5, v2, 10, v5")
        a(f"v_xor_b32 v3, v3, v4\nv_lshl_add_u32 v5, v3, 4, v5")
        a(f"v_add_u32 v28, s{sX}, v5\nv_xor_b32 v3, 128, v5\nv_add_u32 v29, s{sX}, v3\nv_xor_b32 v3, 64, v5\nv_add_u32 v30, s{sX}, v3\nv_xor_b32 v3, 0xc0, v5\nv_add_u32 v31, s{sX}, v3")
        epi_addr(a)
        a(f"s_mov_b32 s{sC}, {f2u(C_SCALE):#x}")
        a(f"v_mov_b32 v{vL}, 0\nv_mov_b32 v{vL+1}, 0\nv_mov_b32 v2, s{sC}")
        for r in range(zsplit[0]): a(f"v_mov_b32 v{vO+r}, 0")
    def dmaK(n, j): return [parse(f"s_add_u32 m0, s{sMK}, {(n%2)*KS+32*j}"),
                            parse(f"buffer_load_dwordx4 v{vDma}, s[{sK}:{sK+3}], s{sOK} offen offset:{1024*j}{polK} lds")]
    def dmaV(n, j): return [parse(f"s_add_u32 m0, s{sMV}, {(2 if dfr and n == NB-1 else n%2)*VS+32*j}"),
                            parse(f"buffer_load_dwordx4 v{vDmaV}, s[{sV}:{sV+3}], s{sOV} offen offset:{1024*j}{polV} lds")]
    def advK(n):
        L = [parse(f"s_add_u32 s{sOK}, s{sOK}, 16384")]
        if n % 2 == 1: L += [parse(f"s_add_u32 s{sMK}, s{sMK}, s{sDK2}"), parse(f"s_sub_u32 s{sDK2}, 0, s{sDK2}")]
        return L
    def advV(n):
        L = [parse(f"s_add_u32 s{sOV}, s{sOV}, 16384")]
        if n % 2 == 1: L += [parse(f"s_add_u32 s{sMV}, s{sMV}, s{sDV2}"), parse(f"s_sub_u32 s{sDV2}, 0, s{sDV2}")]
        return L
    def block(seg, f, adv, n):
        for j in range(4):
            x = f(n, j); seg.add(x[0]); seg.a("s_nop 0"); seg.add(x[1])
        for x in adv(n): seg.add(x)
    def Pbuf(n): return (112, 120)[n-(NB-2)] if dfr and n >= NB-2 else vP[n%2]
    def kread(n, j): return parse(f"ds_read_b128 a[{aKF+4*j}:{aKF+4*j+3}], v{vKa} offset:{(n%2)*KS+64*(j//2)+512*(j%2)}")
    def vread(n, dt, kt, slot=None, va=vVa):
        r = aVF + 4*(dt if slot is None else slot) + 2*kt
        return parse(f"ds_read_b64_tr_b16 a[{r}:{r+1}], v{va} offset:{(2 if dfr and n == NB-1 else n%2)*VS+512*kt+32*dt}")
    def qk(n, g, first0=False):
        j, qt = g//2, g % 2; t, kt = j//2, j % 2
        S = vS[n%2] + 8*qt + 4*kt; f = aKF+4*j; qf = aQ + 4*(2*t+qt)
        c = f"v[{S}:{S+3}]" if t else ("0" if first0 else f"v[{vCn+4*qt}:{vCn+4*qt+3}]")
        i = parse(f"v_mfma_f32_16x16x32_bf16 v[{S}:{S+3}], a[{f}:{f+3}], a[{qf}:{qf+3}], {c}")
        if g % (2*wgrp) == 0: i.extra = set(R("a", f, 4*wgrp))
        return i
    def pv(n, dt, qt, grp=None, slot=None):
        f = aVF+4*(dt if slot is None else slot); o = vO+8*dt+4*qt; p = Pbuf(n)+4*qt
        i = parse(f"v_mfma_f32_16x16x32_bf16 v[{o}:{o+3}], a[{f}:{f+3}], v[{p}:{p+3}], v[{o}:{o+3}]")
        for d2 in (grp or ()): i.extra |= set(R("a", aVF+4*d2, 4))
        return i
    def pvlist(n, dts, slots=None):
        L = []; slots = slots or dts
        for k, dt in enumerate(dts):
            L.append(pv(n, dt, 0, slots[k:k+wgrp] if k % wgrp == 0 else None, slots[k])); L.append(pv(n, dt, 1, None, slots[k]))
        return L
    def checkops():
        return [parse(f"v_max_f32 v{vMx}, v{vLb}, v{vLb+1}"), parse(f"v_cmp_lt_f32 vcc, {f2u(2.0**T):#x}, v{vMx}")]
    def mergeops(): return [parse(f"v_add_f32 v{vL+qt}, v{vL+qt}, v{vLb+qt}") for qt in range(2)]
    def softmax_q(n, merge=True, pipe=False):
        S = vS[n%2]; P = Pbuf(n)
        E = lambda r: parse(f"v_exp_f32 v{vPf+r}, v{S+r}")
        def A(r):
            if r % 8 == 1: return parse(f"v_add_f32 v{vLb+r//8}, v{vPf+r-1}, v{vPf+r}")
            return parse(f"v_add_f32 v{vLb+r//8}, v{vLb+r//8}, v{vPf+r}")
        Cv = lambda p: parse(f"v_cvt_pk_bf16_f32 v{P+p}, v{vPf+2*p}, v{vPf+2*p+1}")
        q = []
        if pipe:
            for r in range(17):
                if r < 16: q.append(E(r))
                if r >= 1 and (r-1) % 8: q.append(A(r-1))
                if r >= 2 and r % 2 == 0: q.append(Cv(r//2-1))
            return q
        mg = mergeops() if merge else []
        for r in range(16):
            q.append(E(r))
            if r % 8 == 0:
                if mg: q.append(mg.pop(0))
            else: q.append(A(r))
            if r % 2 == 1: q.append(Cv(r//2))
        return q
    def spread(ops, g0, g1):
        tot = sum(x.cost for x in ops); c = 0; out = []
        for x in ops:
            out.append((x, g0 + (g1-g0)*c/max(tot-ops[-1].cost, 1), g0)); c += x.cost
        return out
    def post(x): x.tag = "post"; return x
    def schedule(seg, mf, streams, sca, label="", cap=2, lastempty=False):
        n = len(mf); streams = [list(s) for s in streams if s]
        nm = n
        if lastempty: n -= 1
        for g in range(nm):
            seg.add(mf[g])
            s_ = sca.get(g, [])
            pre = [x for x in s_ if x.tag != "post"]; pst = [x for x in s_ if x.tag == "post"]
            wsh = 1 if (g+1 < nm and mf[g+1].extra) else 0
            free = cap - max(0, len(pre)+wsh-1) - len([x for x in pst if x.kind != "label"])
            mem = []; val = []
            while True:
                cands = [s for s in streams if s and s[0][2] <= g]
                if val: cands = [s for s in cands if s[0][0].kind not in ("dsr","dsw","dma","vst","vld")] + [s for s in cands if s[0][0].kind in ("dsr","dsw","dma","vst","vld")]
                cands.sort(key=lambda s: s[0][1])
                pick = None
                for s in cands:
                    x, tg, _ = s[0]
                    if g < n-1 and tg > g + 1.0 and (mem or val): continue
                    if g < n-1 and tg > g + 2.0: continue
                    if val and val[-1].kind == "trans" and (x.rd & val[-1].wr) and g < n-1: continue
                    if x.cost <= free or tg <= g - late or g == n-1: pick = s; break
                if pick is None: break
                x = pick.pop(0)[0]; free -= x.cost
                (mem if x.kind in ("dsr","dsw","dma","vld") else val).append(x)
            row = pre + mem + val + pst
            for x in row: seg.add(x)
            if verbose: print(f"; {label} gap{g}: " + "".join({"dsr":"t","dma":"d","trans":"e","valu":"v","salu":"s","wait":"w","barrier":"B","vst":"S"}.get(x.kind, "?") for x in row))
        assert not any(streams)
    def addf(d, g, *xs): d.setdefault(g, []).extend(xs)
    def rowmax(seg, S, zero):
        for qt, d, t in ((0, 1, 6), (1, 4, 7)):
            b = S + 8*qt
            seg.a(f"v_max3_f32 v{d}, v{b}, v{b+1}, v{b+2}\nv_max3_f32 v{d}, v{d}, v{b+3}, v{b+4}\nv_max3_f32 v{d}, v{d}, v{b+5}, v{b+6}")
            seg.a(f"v_max3_f32 v{d}, v{d}, v{b+7}, 0" if zero else f"v_max_f32 v{d}, v{d}, v{b+7}")
        seg.a("v_mov_b32 v6, v1\nv_mov_b32 v7, v4\nv_permlane16_swap_b32 v6, v1\nv_permlane16_swap_b32 v7, v4\nv_max_f32 v1, v1, v6\nv_max_f32 v4, v4, v7")
        seg.a("v_mov_b32 v6, v1\nv_mov_b32 v7, v4\nv_permlane32_swap_b32 v6, v1\nv_permlane32_swap_b32 v7, v4\nv_max_f32 v1, v1, v6\nv_max_f32 v4, v4, v7")
    NV0 = 4 if tpl else 3
    NK0 = 8 if tpl else 5 if ilv else 6
    def nosh(g):
        while g % (2*wgrp) == 2*wgrp-1: g += 1
        return g
    def iteration(seg, i, ret, do_pv=True, loopend=False, pref=False):
        sca = {}; dm = []
        mf = [qk(i+2, g) for g in range(32)]
        tK = [parse(f"v_add_u32 v{vKa}, s{sDK}, v{vKa}"), parse(f"s_sub_u32 s{sDK}, 0, s{sDK}")]
        tV = [parse(f"v_add_u32 v{vVa}, s{sDV}, v{vVa}"), parse(f"s_sub_u32 s{sDV}, 0, s{sDV}")]
        def place(g, xs):
            for x in xs:
                g = nosh(g)
                while g in sca: g = nosh(g+1)
                addf(sca, g, x); g += 1
            return g
        if do_pv:
            mf += pvlist(i, list(range(16)))
            mf[63].extra = set(R("a", aKF, 4*wgrp))
            mf[0].extra = set()
            dp = dmagaps
            nvm = 12
            if pref and pref12 and prefmode == 1: nvm = 13 if i == NB-3 else 17
            if pref and pref13 and prefmode == 1: nvm = 12 if i == NB-3 else 8
            addf(sca, bg, parse(f"s_waitcnt vmcnt({nvm})"), parse("s_barrier"))
            if loopend:
                addf(sca, 60, parse(f"s_sub_u32 s{sCnt}, s{sCnt}, 1"))
                if ilv: addf(sca, 63, parse(f"s_cmp_lg_u32 s{sCnt}, 0"))
                else: addf(sca, 61, parse(f"s_cmp_lg_u32 s{sCnt}, 0"))
            last = i == NB-3
            for k in range(1, 8):
                if pref and k >= 4 and prefmode == 1:
                    if pref12 or pref13:
                        kks = [] if last != pref13 else [(2*(k-4), dp[k]-4), (2*(k-4)+1, dp[k])]
                    else: kks = [(4*(i % 2) + k - 4, dp[k])]
                    for kk, gg in kks:
                        y = parse(f"buffer_load_dwordx4 a[192:195], v{vOg}, s[{sO}:{sO+3}], s{sT0} offen offset:{512*(kk%2)}{ppol}"); y.wr = set()
                        if kk % 2 == 1: addf(sca, gg+1, parse(f"s_add_u32 s{sT0}, s{sT0}, 4096"))
                        dm.append((y, gg-3, gg))
                    if pref12 and not last and k == 7:
                        y = parse(f"buffer_load_dwordx4 a[192:195], v{vSt}, s[{sW}:{sW+3}], s{sMb} offen offset:256"); y.wr = set()
                        dm.append((y, dp[k]-1, dp[k]+2))
                    continue
                x = dmaV(i+2, k) if k < 4 else dmaK(i+5, k-4)
                addf(sca, dp[k]-1, x[0]); dm.append((x[1], dp[k]-3, dp[k]))
            if last:
                if not (pref12 and prefmode == 1):
                    y = parse(f"buffer_load_dwordx4 a[192:195], v{vSt}, s[{sW}:{sW+3}], s{sMb} offen offset:256"); y.wr = set()
                    dm.append((y, dp[0]-3, dp[0]))
            else:
                x = dmaV(i+3, 0); addf(sca, dp[0]-1, x[0]); dm.append((x[1], dp[0]-3, dp[0]))
            if not last: assert place(dp[3]+1, advV(i+2)) < dp[0]
            if not (pref and prefmode == 1): assert place(dp[7]+1, advK(i+5)) <= 60
            r1 = [kread(i+2, j) for j in range(NK0, 16)] + [vread(i, dt, kt) for dt in range(16) for kt in range(2)]
            nxt = [vread(i+1, dt, kt) for dt in range(8, 8+NV0) for kt in range(2)] if last else [kread(i+3, j) for j in range(NK0)]
            if last: mf[63].extra = set(R("a", aVF+32, 4*wgrp))
            rd = spread(r1, 0, bg-1) + [(y, t, bg+(2 if last else 1)) for (y, t, _) in spread(nxt, bg+1, 61)]
            rdv = []
            if ilv:
                lead = 64 - (bg+1)
                rd = [(kread(i+2, j), 2*j - lead, 0) for j in range(NK0, 16)]
                k_end = 30 - lead
                nslow = int(k_end * ilv[0])
                vr = [vread(i, dt, kt) for dt in range(16) for kt in range(2)]
                rdv = spread(vr[:nslow], 1, k_end) + [(y, t, 0) for (y, t, _) in spread(vr[nslow:], k_end+1, ilv[1])]
                if last: rdv += [(y, t, bg+2) for (y, t, _) in spread(nxt, ilv[1]+1.5, 62)]
                else: rd += [(y, bg+1+2*j, bg+1) for j, y in enumerate(nxt)]
            tg = []
            if i % 2 == 1:
                if ilv: tg = [(tK[0], 26, 26), (tV[0], ilv[1], ilv[1]+1)]; place(29, [tK[1]]); addf(sca, 62, post(tV[1]))
                else: tg = [(tK[0], 16, 16), (tV[0], bg-1, bg+1)]; place(21, [tK[1]]); assert place(bg+4, [tV[1]]) <= 60
            n0 = len(seg.ins)
            schedule(seg, mf, [dm, rd, rdv, tg, spread(softmax_q(i+1) + checkops(), 0, smend)], sca, label=f"it{i}", lastempty=True)
            tx = [x.text for x in seg.ins[n0:]]
            if i % 2 == 1:
                assert tx.index(kread(i+2, 15).text) < tx.index(tK[0].text) < tx.index(tK[1].text) < tx.index(nxt[0].text)
                assert tx.index(vread(i, 15, 1).text) < tx.index(tV[0].text) < tx.index(tV[1].text)
                if last: assert tx.index(tV[0].text) < tx.index(nxt[0].text)
            assert tx.index("s_barrier") < len(tx) - 1 - tx[::-1].index(nxt[0].text)
            seg.a(f"s_cbranch_vccnz L_rare{ret}\nL_back{ret}:")
        else:
            for k, g in enumerate((1, 5, 9, 13, 17, 21, 25, 29)):
                x = dmaV(i+2, k) if k < 4 else dmaK(i+5, k-4)
                addf(sca, g-1, x[0]); dm.append((x[1], g-3, g))
            place(14, advV(i+2)); place(30, advK(i+5))
            rd = spread([kread(i+2, j) for j in range(NK0, 16)], 0, 16)
            schedule(seg, mf, [dm, rd, spread(softmax_q(i+1, merge=False), 0, 31)], sca, label=f"it{i}")
            seg.add(tK[0]); seg.add(tK[1])
            seg.a("s_waitcnt vmcnt(12)\ns_barrier")
            for j in range(NK0): seg.add(kread(i+3, j))
            x = dmaV(i+3, 0); seg.add(x[0]); seg.a(f"buffer_load_dword v2, v3, s[{sW}:{sW+3}], s{sPw} offen offset:128 sc1"); seg.add(x[1])
            if otouch:
                y = parse(f"buffer_load_dword a192, v3, s[{sO}:{sO+3}], s{sOo} offen"); y.wr = set(); seg.add(y)
            seg.a(f"s_waitcnt lgkmcnt({NK0-wgrp})")
    sThr, sThr2 = 60, 61
    def iteration2(seg, i, ret, loopend=False, pref=False, zsites=False, serial=None, inl=None, xk=(), kl=5):
        last = i == NB-3; bg_ = tbg
        mf = [qk(i+2, g) for g in range(32)] + pvlist(i, list(range(16)))
        mf[63].extra = set(R("a", aVF+32 if last else aKF, 4*wgrp)); mf[0].extra = set()
        sh = {g: [] for g in range(64)}; mem = {g: [] for g in range(64)}; val = {g: [] for g in range(64)}
        resv = {g for g in range(63) if mf[g+1].extra}
        def place(g, xs):
            for x in xs:
                while g in resv or sh[g] or g == bg_: g += 1
                assert g < 63
                sh[g].append(x); g += 1
            return g
        nvm = 12
        if pref and prefmode == 1: nvm = 12 if last else 8
        if pref and prefw is not None: nvm = 4 if last else 8
        if serial is not None and i == prefw: nvm = 21
        if kl == 4: nvm = 8
        assert bg_-1 not in resv or True
        sh[bg_ if (bg_-1) in resv else bg_-1].append(parse(f"s_waitcnt vmcnt({nvm})")); sh[bg_].append(parse("s_barrier"))
        if zsites:
            for n_, zg in enumerate(tzs):
                assert zg not in resv and zg-1 not in resv and zg not in tD and zg-1 not in tD
                sh[zg-1].append(parse(f"s_cmp_eq_u32 s{sCnt}, {NTRIP-1}")); sh[zg] += [parse(f"s_cbranch_scc1 L_zero{n_}"), parse(f"L_zback{n_}:")]
        nxt = [vread(i+1, dt, kt) for dt in range(8, 8+NV0) for kt in range(2)] if last else [kread(i+3, j) for j in range(NK0)]
        reads = [kread(i+2, j) for j in range(NK0, 16)] + [vread(i, dt, kt) for dt in range(16) for kt in range(2)] + nxt
        slots = []
        for g in range(63):
            if g not in tE and g != bg_: slots += [g, g] if g in tdbl else [g]
        assert len(slots) == len(reads), (len(slots), len(reads))
        for g, x in zip(slots, reads): mem[g].append(x)
        gpos = {x.text: g for g, x in zip(slots[:40], reads[:40])}
        assert slots[40] > bg_
        def putv(g, y): mem[g].append(y)
        for k in range(8):
            g = tD[k]; assert g not in resv and g not in tE and not sh[g]
            if k == 0:
                if last and prefw is not None: pass
                elif last:
                    y = parse(f"buffer_load_dwordx4 a[192:195], v{vSt}, s[{sW}:{sW+3}], s{sMb} offen offset:256"); y.wr = set(); putv(g, y)
                else: x = dmaV(i+3, 0); sh[g].append(x[0]); putv(g, x[1])
            elif k >= 4 and pref and prefmode == 1:
                pass
            else:
                x = dmaV(i+2, k) if k < 4 else dmaK(i+kl, k-4); sh[g].append(x[0]); putv(g, x[1])
        g = 1
        for n in xk:
            for j in range(4):
                while g in resv or sh[g] or g in tD or len(mem[g]) != 1: g += 1
                x = dmaK(n, j); sh[g].append(x[0]); putv(g, x[1]); g += 1
            g = place(g, advK(n))
        assert g <= tD[4]
        thr = f"s{sThr}"
        if loopend:
            g = 56
            while g in resv or sh[g] or g+1 in resv or sh[g+1]: g += 1
            sh[g].append(parse(f"s_sub_u32 s{sCnt}, s{sCnt}, 1")); sh[g+1].append(parse(f"s_cselect_b32 s{sThr2}, -1.0, s{sThr}")); thr = f"s{sThr2}"
        if not last: assert place(tD[3]+1, advV(i+2)) <= tD[0]
        if not (pref and prefmode == 1): assert place(tD[7]+1, advK(i+kl)) <= 63
        q = softmax_q(i+1) + [parse(f"v_max_f32 v{vMx}, v{vLb}, v{vLb+1}"), parse(f"v_cmp_lt_f32 vcc, {thr}, v{vMx}")]
        blk = []
        if serial is not None:
            blk = mergeops() + softmax_q(i+1, merge=False, pipe=True) + q[-2:]; q = []
        ex = [x for x in q if x.kind == "trans"]; ot = []; ne = 0
        for x in q:
            if x.kind == "trans": ne += 1
            else: ot.append((x, tE[ne-1]+1))
        for g, x in zip(tE, ex): val[g].append(x)
        if i % 2 == 1:
            tK = [parse(f"v_add_u32 v{vKa}, s{sDK}, v{vKa}"), parse(f"s_sub_u32 s{sDK}, 0, s{sDK}")]
            tV = [parse(f"v_add_u32 v{vVa}, s{sDV}, v{vVa}"), parse(f"s_sub_u32 s{sDV}, 0, s{sDV}")]
            gk = gpos[kread(i+2, 15).text]; gv = slots[39]
            for t, g0 in ((tK, gk), (tV, gv)):
                g = g0
                while (g in tE or g == bg_ or len(mem[g]) + len(val[g]) >= 2) and not (t is tV and last): g += 1
                if t is tV and last: assert g < slots[40]
                val[g].append(t[0]); place(g+1, [t[1]])
        g = 0
        for x, e0 in ot:
            g = max(g, e0)
            while g in tE or g == bg_ or len(mem[g]) + len(val[g]) >= 2: g += 1
            assert g < 62, (i, x.text)
            val[g].append(x); g += 1
        if serial is not None and i == prefw:
            cand = [g for g in range(0, tD[3]) if len(mem[g]) + len(val[g]) < 2][:9]
            assert len(cand) == 9
            for kk, g in enumerate(cand):
                if kk < 8: y = parse(f"buffer_load_dwordx4 a[192:195], v{vOg}, s[{sO}:{sO+3}], s{sT0} offen offset:{512*(kk%2)}{ppol}")
                else: y = parse(f"buffer_load_dwordx4 a[192:195], v{vSt}, s[{sW}:{sW+3}], s{sMb} offen offset:256")
                y.wr = set(); putv(g, y)
                if kk % 2 == 1 and kk < 7: val[g].append(parse(f"s_add_u32 s{sT0}, s{sT0}, 4096"))
        if last and pref and prefmode == 1 and prefw is None:
            cand = [g for g in range(tD[3]+1, bg_-1) if g not in tE and len(mem[g]) + len(val[g]) < 2]
            extra = [g for g in range(tD[3]+1, bg_-1) if g not in tE and g not in cand and g not in tdbl]
            while len(cand) < 8: cand.append(extra.pop(len(extra)//2))
            cand.sort(); cand = cand[:8]
            for kk, g in enumerate(cand):
                y = parse(f"buffer_load_dwordx4 a[192:195], v{vOg}, s[{sO}:{sO+3}], s{sT0} offen offset:{512*(kk%2)}{ppol}"); y.wr = set(); putv(g, y)
                if kk % 2 == 1 and kk < 7: val[g].append(parse(f"s_add_u32 s{sT0}, s{sT0}, 4096"))
        for g in range(64):
            seg.add(mf[g])
            row = sh[g] + [x for x in mem[g] if x.kind == "dsr"] + [x for x in mem[g] if x.kind != "dsr"] + val[g] + (blk if g == serial else []) + ((inl or {}).get(g) or [])
            for x in row: seg.add(x)
            if verbose: print(f"; it{i} gap{g}: " + ("w" if g in resv else "") + "".join({"dsr":"t","dma":"d","vld":"d","trans":"e","valu":"v","salu":"s","wait":"W","barrier":"B","branch":"x","label":""}.get(x.kind, "?") for x in row))
        if loopend:
            seg.a(f"s_cbranch_vccz L_loop\nv_cmp_lt_f32 vcc, s{sThr}, v{vMx}\ns_cmp_lt_i32 s{sCnt}, 0\ns_cbranch_vccnz L_rare{ret}\nL_back{ret}:\ns_cbranch_scc0 L_loop")
        else: seg.a(f"s_cbranch_vccnz L_rare{ret}\nL_back{ret}:")
    def iteration3(seg, i, ret):
        last = i == NB-3; snd = list(range(8, 16)); bg_ = dbg_
        mf = [qk(i+2, g) for g in range(32)] + pvlist(i, snd)
        mf[47].extra = set(R("a", aVF+32 if last else aKF, 4*wgrp)); mf[0].extra = set()
        sca = {}; dm = []
        if not last:
            for k in range(1, 8):
                g = 2*k - 1 + (1 if k >= 4 else 0)
                x = dmaV(i+2 + k//4, k % 4); addf(sca, g-1, x[0]); dm.append((x[1], g-3, g))
            addf(sca, 6, *advV(i+2))
        if i == dpf:
            for kk in range(9):
                if kk < 8: y = parse(f"buffer_load_dwordx4 a[192:195], v{vOg}, s[{sO}:{sO+3}], s{sT0} offen offset:{512*(kk%2)}{ppol}")
                else: y = parse(f"buffer_load_dwordx4 a[192:195], v{vSt}, s[{sW}:{sW+3}], s{sMb} offen offset:256")
                g = (1 + 3*kk) if last else (16 + 2*kk); y.wr = set(); dm.append((y, g-3, g))
                if kk % 2 == 1 and kk < 7: addf(sca, g+1, parse(f"s_add_u32 s{sT0}, s{sT0}, 4096"))
        addf(sca, bg_, parse(f"s_waitcnt vmcnt({9 if last else 21 if i == dpf else 12})"), parse("s_barrier"))
        nxt = [vread(i+1, dt, kt) for dt in range(8, 8+NV0) for kt in range(2)] if last else [kread(i+3, j) for j in range(NK0)]
        rd = spread([kread(i+2, j) for j in range(NK0, 16)] + [vread(i, dt, kt) for dt in snd for kt in range(2)], 0, bg_-1)
        if last: rd += [(y, max(bg_+4, 34+2*(k//2)) + k*0.6, max(bg_+4, 34+2*(k//2))) for k, y in enumerate(nxt)]
        else: rd += [(y, t, bg_+1) for (y, t, _) in spread(nxt, bg_+1, 45)]
        tg = []
        if last:
            tV = [parse(f"v_add_u32 v{vVa}, s{sDV}, v{vVa}"), parse(f"s_sub_u32 s{sDV}, 0, s{sDV}")]
            tg = [(tV[0], bg_, bg_+2)]; addf(sca, bg_+5, tV[1])
        q = softmax_q(i+1) + [parse(f"v_max_f32 v{vMx}, v{vLb}, v{vLb+1}"), parse(f"v_cmp_lt_f32 vcc, s{sThr}, v{vMx}")]
        n0 = len(seg.ins)
        schedule(seg, mf, [dm, rd, tg, spread(q, 0, 44)], sca, label=f"it{i}", lastempty=True)
        tx = [x.text for x in seg.ins[n0:]]
        if last: assert tx.index(vread(i, 15, 1).text) < tx.index(tV[0].text) < tx.index(nxt[0].text) and tx.index(tV[0].text) < tx.index(tV[1].text)
        assert tx.index("s_barrier") < len(tx) - 1 - tx[::-1].index(nxt[0].text)
        assert all(seg.ins.index(y[0]) < n0 + tx.index("s_barrier") for y in dm)
        seg.a(f"s_cbranch_vccnz L_rare{ret}\nL_back{ret}:")
    vm = []
    def vmwait(name, extra=""):
        k = max(j for j, x in enumerate(vm) if x == name)
        a(f"s_waitcnt vmcnt({len(vm)-1-k}){extra}")
    fill = [f"s_add_u32 s{sQ}, s4, s{sT1}\ns_addc_u32 s{sQ+1}, s5, 0", f"s_mov_b32 s{sW}, s14\ns_mov_b32 s{sW+1}, s15",
            f"s_add_u32 s{sV}, s8, s{sT0}\ns_addc_u32 s{sV+1}, s9, 0", f"s_mov_b32 s{sV+2}, {NB*16384}\ns_mov_b32 s{sV+3}, 0x20000",
            f"s_add_u32 s{sO}, s10, s{sT1}\ns_addc_u32 s{sO+1}, s11, 0", f"s_mov_b32 s{sO+2}, 65536\ns_mov_b32 s{sO+3}, 0x20000",
            f"s_xor_b32 s{sPw}, s{sMb}, {pxor*8192}"]
    a(f"s_add_u32 s{sK}, s6, s{sT0}\ns_addc_u32 s{sK+1}, s7, 0")
    def publish(t0, t1):
        a(f"v_readlane_b32 s{t0}, v8, 0\nv_readlane_b32 s{t1}, v8, 1\nv_mov_b32 v9, 0")
        a(f"s_and_b32 s{t1}, s{t1}, 0xffffff00\ns_add_u32 s{t1}, s{t1}, 0x100\ns_or_b32 s{t1}, s{t1}, s{sXcc}")
        a(f"s_xor_b32 s3, s{t1}, s{t0}\ns_cmp_lt_u32 s3, 0x100\ns_cselect_b32 s3, 0x100, 0\ns_add_u32 s{sCh}, s{t1}, s3\nv_mov_b32 v8, s{sCh}")
        a(f"buffer_store_dword v8, v9, s[{sW}:{sW+3}], s{sMb} offen offset:128 sc1")
    mbload = f"s_mov_b64 exec, 3\nbuffer_load_dword v8, v3, s[{sW}:{sW+3}], s{sMb} offen sc1\ns_mov_b64 exec, -1"
    if stag is not None:
        a(f"s_mov_b32 s{sW}, s14\ns_mov_b32 s{sW+1}, s15"); a(mbload); vm.append("mb")
        a(f"s_bitcmp1_b32 s2, {stag}\ns_cbranch_scc0 L_early\ns_waitcnt vmcnt(0)"); publish(36, 37); a("L_early:")
    def kvblock(f, adv, n, name, filler=None):
        for j in range(4):
            x = f(n, j)
            if not (name == "K0" and j == 0): pro.add(x[0]); (filler() if filler else a("s_nop 0"))
            pro.add(x[1]); vm.append(name)
        for x in adv(n): pro.add(x)
    def qdma(c, u):
        return [parse(f"s_add_u32 m0, s{sX}, {1024*(4*c+u)}"), parse(f"s_add_u32 s3, s{sOo}, {4096*u+128*c}"),
                parse(f"buffer_load_dwordx4 v{6+u%2}, s[{sQ}:{sQ+3}], s3 offen{polQ} lds")]
    def qblock(c):
        for u in range(4):
            for x in qdma(c, u): pro.add(x)
            vm.append(f"Q{c}")
    if ttouch:
        a("\n".join(fill)); fill = ["s_nop 0"]*7
        a("s_mov_b64 exec, 1")
        for srd, so in ((sK, sOK), (sQ, sOo), (sV, sOV), (sO, sOo))[:ttouch]:
            y = parse(f"buffer_load_dword a192, v{vDma}, s[{srd}:{srd+3}], s{so} offen{polK}"); y.wr = set(); pro.add(y); vm.append("tt")
        a("s_mov_b64 exec, -1")
    kvblock(dmaK, advK, 0, "K0", lambda: a(fill.pop(0)))
    if k1late:
        a("\n".join(fill)); fill = []
    else: kvblock(dmaK, advK, 1, "K1", lambda: a(fill.pop(0)))
    assert not fill
    if stag is None: a(mbload); vm.append("mb")
    qblock(0)
    if k1late: qblock(1)
    setup()
    qblock(2 if k1late else 1)
    fstamp(pro)
    vmwait("mb" if stag is None else "K0" if k1late else "K1"); a("s_barrier")
    stamp(pro)
    def k01read(n, j):
        r = (aKF if n == 0 else aVF) + 4*j
        return parse(f"ds_read_b128 a[{r}:{r+3}], v{vKa} offset:{n*KS+64*(j//2)+512*(j%2)}")
    def kgrp(c): return [k01read(n, j) for j in range(4*c, 4*c+4) for n in range(1 if k1late else 2)]
    def qraw(f): return 96 + 16*((f//4) % 2) + 4*(f % 4)
    def qgrp(c): return [parse(f"ds_read_b128 v[{qraw(f)}:{qraw(f)+3}], v{28+2*((f//2)%2)+f%2} offset:{4096*c}") for f in range(4*c, 4*c+4)]
    def presc(r):
        x = 32 + 2*(r % 8); q = qraw(r//4) + r % 4
        return [parse(t) for t in (f"v_lshlrev_b32 v{x}, 16, v{q}", f"v_and_b32 v{x+1}, 0xffff0000, v{q}",
                f"v_pk_mul_f32 v[{x}:{x+1}], v[{x}:{x+1}], v[2:3] op_sel_hi:[1,0]",
                f"v_cvt_pk_bf16_f32 v{x}, v{x}, v{x+1}", f"v_accvgpr_write_b32 a{aQ+r}, v{x}")]
    def mgrp(c, blocks=(0, 1)):
        L = []
        for t in (2*c, 2*c+1):
            for kt in range(2):
                for n in blocks:
                    for qt in range(2):
                        S = vS[n] + 8*qt + 4*kt; f = (aKF if n == 0 else aVF) + 4*(2*t+kt); qf = aQ + 4*(2*t+qt)
                        L.append(parse(f"v_mfma_f32_16x16x32_bf16 v[{S}:{S+3}], a[{f}:{f+3}], a[{qf}:{qf+3}], " + (f"v[{S}:{S+3}]" if t else "0")))
        return L
    for x in kgrp(0): pro.add(x)
    if not k1late: qblock(2)
    if stag is None: publish(sT0, sT1); vm.append("pub")
    else:
        a(f"s_bitcmp1_b32 s2, {stag}\ns_cbranch_scc1 L_pubdone"); publish(sT0, sT1); a("L_pubdone:")
    a("v_mov_b32 v3, 0")
    items = [("Q3", lambda j: qdma(3, j), []), ("K2", lambda j: dmaK(2, j), advK(2)), ("V0", lambda j: dmaV(0, j), advV(0)),
             ("V1", lambda j: dmaV(1, j), advV(1)) if lazy < 2 else (None, None, []), (None, None, [])]
    if k1late: items = [items[0], ("K1", lambda j: dmaK(1, j), advK(1)), items[1], items[2]]
    zq = [parse(f"v_mov_b32 v{vO+r}, 0") for r in range(zsplit[0], zsplit[1])]
    for c in range(4 if p2 else 5):
        name, f_, adv = items[c]
        if c < 4:
            vmwait(f"Q{c}")
            if c in (0, 3): fstamp(pro)
            for x in qgrp(c): pro.add(x)
            pq = [x for r in range(16*c, 16*c+16) for x in presc(r)]
        else: pq = zq
        kr = kgrp(c+1) if c < 3 else []
        if c == 0:
            for j in range(4):
                x = f_(j)
                for y in x[:-1]: pro.add(y)
                for y in kr[len(kr)//4*j:len(kr)//4*(j+1)]: pro.add(y)
                for _ in range(20): pro.add(pq.pop(0))
                pro.add(x[-1]); vm.append(name)
        else:
            sca = {}; dm = []; st = 2 if p2 else 4
            for j in range(4 if name else 0):
                x = f_(j); addf(sca, st*j, *x[:-1]); dm.append((x[-1], st*j-2, st*j+1)); vm.append(name)
            mf = mgrp(c-1, (0,)) if p2 else mgrp(c-1)
            schedule(pro, mf, [dm, spread(kr, 0, len(mf)-2) if kr else [], spread(pq, 0, len(mf)-1) if pq else []], sca, label=f"S{c}", cap=12 if p2 else 6)
        for x in adv: pro.add(x)
    fstamp(pro)
    NTRIP = ((NB-4)//2 if peel else (NB-2)//2) - (nser//2 if tpl else 0)
    scal = Seg("x")
    scal.a(f"s_mov_b32 s{sCnt}, {NTRIP-1 if tpl else NTRIP}")
    if tpl: a(f"s_mov_b32 s{sThr}, {f2u(2.0**T):#x}")
    scal.a(f"s_lshl_b32 s{sX}, s{sKh}, 8\ns_add_u32 s{sX}, s{sOo}, s{sX}\ns_xor_b32 s{sOo}, s{sX}, 256")
    if pcont: scal.a(f"s_lshl_b32 s{sT0}, s{sKh}, 15\ns_lshl_b32 s3, s{sWv}, 13\ns_add_u32 s{sT0}, s{sT0}, s3")
    else: scal.a(f"s_mov_b32 s{sT0}, s{sX}")
    post_ops = Seg("x"); post2 = Seg("x")
    rowmax(post_ops, vS[0], False)
    for qt, d in ((0, 1), (1, 4)):
        for r in range(8): post_ops.a(f"v_sub_f32 v{(vTmp if dsm0 else vS[0])+8*qt+r}, v{vS[0]+8*qt+r}, v{d}")
    if dsm0: post_ops.a(f"v_mov_b32 v{vLb}, 0\nv_mov_b32 v{vLb+1}, 0")
    else:
        for x in softmax_q(0, merge=False, pipe=True): post_ops.add(x)
    for qt, d in ((0, 1), (1, 4)):
        for r in range(4): post_ops.a(f"v_sub_f32 v{vCn+4*qt+r}, 0, v{d}")
        for r in range(8): post2.a(f"v_sub_f32 v{vS[1]+8*qt+r}, v{vS[1]+8*qt+r}, v{d}")
    tK = [parse(f"v_add_u32 v{vKa}, s{sDK}, v{vKa}"), parse(f"s_sub_u32 s{sDK}, 0, s{sDK}")]
    if p2:
        mf = mgrp(3, (0,)) + [x for c in range(4) for x in mgrp(c, (1,))]
        sca = {}; dm = []
        for k, x in enumerate(scal.ins): addf(sca, min(k, k1bar-1 if k1late else 3), x)
        k1r = []
        if k1late:
            kk_ = max(j for j, x in enumerate(vm) if x == "K1")
            addf(sca, k1bar, parse(f"s_waitcnt vmcnt({len(vm)-1-kk_}) lgkmcnt(0)"), parse("s_barrier"))
            k1r = [(k01read(1, j), k1bar + 1 + (j if j < 4 else 2*j-4), k1bar+1) for j in range(16)]
            for g_ in range(8, 40, 4): mf[g_].extra = set(R("a", aVF + 4*((g_-8)//2), 8))
            nd = 12 - 4*k4late; stp = 3 if nd == 12 else 4 if nd == 8 else 8
            for k in range(nd):
                x = dmaV(1, k) if k < 4 else dmaK(3 + (k-4)//4, k % 4); g = k1bar + 3 + stp*k
                addf(sca, g-1, x[0]); dm.append((x[1], g-3, g)); vm.append("V1" if k < 4 else "K3" if k < 8 else "K4")
            addf(sca, k1bar+3+stp*3+1, *advV(1))
            if nd >= 8: addf(sca, k1bar+3+stp*7+1, *advK(3))
            if nd == 12: addf(sca, 39, *[post(y) for y in advK(4)])
        elif not lazy:
            addf(sca, 4, parse("s_waitcnt lgkmcnt(0)"), parse("s_barrier"))
            for k in range(8):
                x = dmaK(3 + k//4, k % 4); g = 6 + 4*k
                addf(sca, g-1, x[0]); dm.append((x[1], g-3, g)); vm.append("K3" if k < 4 else "K4")
            addf(sca, 19, *advK(3)); addf(sca, 36, *advK(4))
        schedule(pro, mf, [dm, k1r, [(x, 0, 0) for x in zq], spread(post_ops.ins, 10, 39)], sca, label="S4", cap=5)
        stamp(pro)
        for x in tK: pro.add(x)
        vmwait("V0"); a("s_barrier")
        po = post2.ins
    else:
        for x in scal.ins + tK: pro.add(x)
        po = post_ops.ins + post2.ins
        if not mergeb:
            a("s_barrier")
            stamp(pro)
            def take(n):
                for _ in range(min(n, len(po))): pro.add(po.pop(0))
            kvblock(dmaK, advK, 3, "K3", lambda: take(12))
            kvblock(dmaK, advK, 4, "K4", lambda: take(12))
            take(1000)
            vmwait("V0"); a("s_barrier")
        else:
            stamp(pro)
            for x in po: pro.add(x)
            po = []
            vmwait("V0"); a("s_barrier")
    for j in range(NK0): pro.add(kread(2, j))
    if lazy >= 2: kvblock(dmaV, advV, 1, "V1")
    if mergeb or lazy:
        kvblock(dmaK, advK, 3, "K3"); kvblock(dmaK, advK, 4, "K4")
    if prefmode == 2:
        for kk in range(8):
            y = parse(f"buffer_load_dwordx4 a[192:195], v{vOg}, s[{sO}:{sO+3}], s{sT0} offen offset:{512*(kk%2)}{ppol}"); y.wr = set(); pro.add(y)
            if kk % 2: a(f"s_add_u32 s{sT0}, s{sT0}, 4096")
    x = dmaV(2, 0); pro.add(x[0]); a(f"buffer_load_dword v2, v3, s[{sW}:{sW+3}], s{sPw} offen offset:128 sc1"); pro.add(x[1])
    for x in po: pro.add(x)
    for r in range(zsplit[1], zsplit[2]): a(f"v_mov_b32 v{vO+r}, 0")
    a(f"s_waitcnt lgkmcnt({NK0-wgrp})")
    fstamp(pro)
    stamp(pro)
    def sm0_block(zs):
        X, E_ = vTmp, vTmp+16
        for r in range(17):
            if r < 16: zs.a(f"v_exp_f32 v{E_+r}, v{X+r}")
            if r >= 1: zs.a(f"v_add_f32 v{vL+(r-1)//8}, v{vL+(r-1)//8}, v{E_+r-1}" if r < 16 else f"s_nop 0\nv_add_f32 v{vL+1}, v{vL+1}, v{E_+15}")
            if r >= 2 and r % 2 == 0: zs.a(f"v_cvt_pk_bf16_f32 v{vP[0]+r//2-1}, v{E_+r-2}, v{E_+r-1}")
    warm = Seg("warm")
    if tpl:
        inl0 = {}
        if nser and zsplit[2] < 128:
            per = (128 - zsplit[2]) // len(tzs)
            for n_, zg in enumerate(tzs):
                zs = Seg("x"); r0 = zsplit[2] + n_*per
                assert zg < 32 + 2*(r0//8)
                if n_ == 0 and dsm0: sm0_block(zs)
                for r in range(r0, r0+per): zs.a(f"v_mov_b32 v{vO+r}, 0")
                inl0[zg] = zs.ins
        for i in range(nser): iteration2(warm, i, 5+i, serial=sergap[i], inl=inl0 if i == 0 else None, xk=(i+4,) if i == kcatch and k1late and k4late else (), kl=4 if i < kcatch and k1late and k4late else 5)
    body = Seg("loop"); body.a("L_loop:")
    if tpl: iteration2(body, 0, 0, zsites=zsplit[2] < 128 and not nser); iteration2(body, 1, 1, loopend=True)
    else: iteration(body, 0, 0); iteration(body, 1, 1, loopend=True)
    if stamps == 2:
        body.a(f"s_waitcnt lgkmcnt(0)\ns_memtime s[64:65]\ns_memrealtime s[66:67]\ns_sub_u32 m0, {15+NTRIP}, s{sCnt}\ns_cmp_lg_u32 s{sCnt}, 0\ns_waitcnt lgkmcnt(0)\nv_writelane_b32 v10, s64, m0\nv_writelane_b32 v11, s66, m0")
    zseg = Seg("zero")
    if zsplit[2] < 128 and not (tpl and nser):
        zgs = tzs if tpl else zgap if isinstance(zgap, tuple) else (zgap,)
        per = (128 - zsplit[2]) // len(zgs)
        for n_, zg in enumerate(zgs):
            r0 = zsplit[2] + n_*per
            assert zg < 32 + 2*(r0//8)
            if not tpl:
                mi = [k for k, x in enumerate(body.ins) if x.kind == "mfma"]
                k = mi[zg]
                body.ins[k+1:k+1] = [parse(f"s_cbranch_scc1 L_zero{n_}"), parse(f"L_zback{n_}:")]
                k = mi[zg-1]
                for y in body.ins[k+1:mi[zg]]: assert y.kind != "salu"
            if n_ == 0 and not peel:
                mask = (1 << NTRIP) | sum(1 << t for t in ptrips)
                body.ins[k+1:k+1] = [parse(f"s_bitcmp1_b32 {mask}, s{sCnt}")]
                zseg.a(f"L_zero{n_}:\ns_cmp_eq_u32 s{sCnt}, {NTRIP}\ns_cbranch_scc1 L_zero{n_}b")
                for kk in range(3):
                    y = parse(f"buffer_load_dwordx4 a[192:195], v{vDma if pcont else vOg}, s[{sO}:{sO+3}], s{sT0} offen{ppol}"); y.wr = set(); zseg.add(y)
                    if pcont: zseg.a(f"s_add_u32 s{sT0}, s{sT0}, 1024")
                    else: zseg.a(f"s_xor_b32 s{sT0}, s{sT0}, 512\ns_bitcmp1_b32 s{sT0}, 9\ns_cselect_b32 s3, 0, 4096\ns_add_u32 s{sT0}, s{sT0}, s3")
                    if kk == 1:
                        zseg.a(f"s_cmp_lg_u32 s{sCnt}, {ptrips[-1]}\ns_cbranch_scc1 L_pf3")
                        y = parse(f"buffer_load_dwordx4 a[192:195], v{vSt}, s[{sW}:{sW+3}], s{sMb} offen offset:256"); y.wr = set(); zseg.add(y)
                        zseg.a(f"s_branch L_zback{n_}\nL_pf3:")
                zseg.a(f"s_branch L_zback{n_}\nL_zero{n_}b:")
            else:
                if not tpl: body.ins[k+1:k+1] = [parse(f"s_cmp_eq_u32 s{sCnt}, {NTRIP}")]
                zseg.a(f"L_zero{n_}:")
            if n_ == 0 and dsm0: sm0_block(zseg)
            for r in range(r0, r0+per): zseg.a(f"v_mov_b32 v{vO+r}, 0")
            zseg.a(f"s_nop 1\ns_branch L_zback{n_}")
    if xpad2:
        for n_, (trip, gi, nn) in enumerate(xpad2):
            mi = [k for k, x in enumerate(body.ins) if x.kind == "mfma"]
            k = mi[gi]
            body.ins[k+1:k+1] = [parse(f"s_cmp_eq_u32 s{sCnt}, {NTRIP-trip-(1 if tpl else 0)}"), parse(f"s_cbranch_scc1 L_xq{n_}"), parse(f"L_xqb{n_}:")]
            zseg.a(f"L_xq{n_}:")
            for _ in range(nn): zseg.a("s_nop 15")
            zseg.a(f"s_branch L_xqb{n_}")
    if xpad:
        nb = []; mcount = 0; lab = 0
        for x in body.ins:
            nb.append(x)
            if x.kind == "mfma":
                it = mcount // 64; g = mcount % 64; mcount += 1
                step = 64 // xpad[3]
                if g % step == step//2 - 2:
                    thr = xpad[it]
                    nb += [parse(f"s_cmp_ge_u32 s{sCnt}, {thr}"), parse(f"s_cbranch_scc0 L_xp{lab}")] + [parse("s_nop 15") for _ in range(xpad[2])] + [parse(f"L_xp{lab}:")]
                    lab += 1
        body.ins = nb
    if not tpl: body.a(f"s_cbranch_scc1 L_loop")
    tail = Seg("tail"); e = tail.a
    e("L_tail:")
    if dfr: iteration3(tail, NB-4, 3); iteration3(tail, NB-3, 4)
    elif tpl: iteration2(tail, NB-4, 3, pref=True); iteration2(tail, NB-3, 4, pref=True)
    elif peel: iteration(tail, NB-4, 3, pref=True); iteration(tail, NB-3, 4, pref=True)
    stamp(tail)
    i = NB-2
    snd = list(range(8, 16)); own = list(range(8))
    sq15 = softmax_q(i+1) + checkops()
    if not peel:
        for dt in range(8, 8+NV0):
            for kt in range(2): tail.add(vread(i, dt, kt))
        for x in (sq15[0], sq15[1], sq15[2], sq15[5], sq15[3], sq15[4]): tail.add(x)
        sq15 = sq15[6:]
    rd = spread([vread(i, dt, kt) for dt in range(8+NV0, 16) for kt in range(2)], 0, 6)
    rd += [(y, t, btx+1) for (y, t, _) in spread([vread(i+1, dt, kt, dt-8) for dt in snd for kt in range(2)], btx+1, 15)]
    sca = {btx: [parse("s_waitcnt vmcnt(0)" if prefw is not None else "s_waitcnt vmcnt(9)" if pref13 else "s_waitcnt vmcnt(5)" if peel and not (pref12 and prefmode == 1) else "s_waitcnt vmcnt(0)"), parse("s_barrier")]}
    if dfr:
        sca = {btx: []}
        rd = spread([vread(i, dt, kt) for dt in range(8+NV0, 16) for kt in range(2)] + [vread(i+1, dt, kt, dt-8) for dt in snd for kt in range(2)], 0, 14)
    if stamps and fine:
        t1 = Seg("x"); fstamp(t1); t2 = Seg("x"); fstamp(t2)
        sca[btx] = t1.ins + sca[btx] + t2.ins
    mf = pvlist(i, snd)
    if peel: mf[0].extra = set()
    schedule(tail, mf, [rd, spread(sq15, 0, 15)], sca, label="X", cap=5)
    e(f"v_readfirstlane_b32 s{sT1}, v2\ns_cbranch_vccnz L_rare2\nL_back2:")
    fstamp(tail)
    e(f"s_and_b32 s3, s{sT1}, 0xff")
    def rcv(k): return vTmp + 4*k
    def xa(k):
        if xsw: return f"v{(vOg, 1)[k % 2]}, s[{sO}:{sO+3}], s{sOo} offen"
        return f"v{vOg}, s[{sO}:{sO+3}], s{sOo} offen offset:{512*(k%2)}"
    if xsw: e(f"s_and_b32 s36, s{sWv}, 1\ns_lshl_b32 s36, s36, 9\nv_add_u32 v{vOg}, s36, v{vOg}\nv_xor_b32 v1, 0x200, v{vOg}")
    pollb = Seg("pollb")
    if h2:
        sOo2, sX2, sChB = 62, 63, 38
        vG = 64
        def xaddr(k, b0, b1): return f"v21, s[{sO}:{sO+3}], s{b1 if (k % 4) >> 1 else b0} offen offset:{512*(k & 1) + 128*(k//4)}"
        e(f"s_add_u32 s{sOo2}, s{sOo}, 8192\ns_add_u32 s{sX2}, s{sX}, 8192\ns_xor_b32 s{sChB}, s{sCh}, 0x80\nv_xor_b32 v1, 0x80, v2")
        sends = []
        if fast: e(f"s_cmp_eq_u32 s3, s{sXcc}\ns_cbranch_scc1 L_sendfast")
        lo, hi = [0, 1, 2, 3], [4, 5, 6, 7]
        for var in (("slow", " sc1"), ("fast", "")) if fast else (("slow", " sc1"),):
            sg = Seg("send_"+var[0]); sends.append(sg)
            if var[0] == "fast": sg.a("L_sendfast:")
            st = mergeops() + [parse(t) for t in (f"v_mov_b32 v6, v{vL}", f"v_mov_b32 v7, v{vL+1}", f"v_mov_b32 v4, v{vCn}", f"v_mov_b32 v5, v{vCn+4}",
                  f"v_permlane16_swap_b32 v6, v{vL}", f"v_permlane16_swap_b32 v7, v{vL+1}", f"v_add_f32 v{vL}, v6, v{vL}", f"v_add_f32 v{vL+1}, v7, v{vL+1}",
                  f"v_mov_b32 v6, v{vL}", f"v_mov_b32 v7, v{vL+1}", "s_nop 0", f"v_permlane32_swap_b32 v6, v{vL}", f"v_permlane32_swap_b32 v7, v{vL+1}",
                  f"v_add_f32 v6, v6, v{vL}", f"v_add_f32 v7, v7, v{vL+1}")]
            mf = pvlist(i+1, snd, own) + pvlist(i, lo, [d+8 for d in lo]) + pvlist(i+1, lo)
            rows = {g: [] for g in range(32)}
            for k, x in enumerate(st): rows[min(3, k*4//len(st))].append(x)
            rows[4].append(parse(f"buffer_store_dwordx4 v[4:7], v{vSt}, s[{sW}:{sW+3}], s{sPw} offen offset:256{var[1]}"))
            rr = [vread(i, dt, kt, dt+8) for dt in lo for kt in range(2)] + [vread(i+1, dt, kt) for dt in lo for kt in range(2)]
            r2 = [vread(i, dt, kt, dt+8) for dt in hi for kt in range(2)] + [vread(i+1, dt, kt) for dt in hi for kt in range(2)]
            for k in range(8):
                o = vO + 8*(8+k)
                rows[2*k+4] += [parse(f"v_cvt_pk_bf16_f32 v{vTmp+4*k+x}, v{o+2*x}, v{o+2*x+1}") for x in range(4)]
                rows[2*k+5] += [parse(f"buffer_store_dwordx4 v[{vTmp+4*k}:{vTmp+4*k+3}], {xaddr(k, sOo, sOo2)}{var[1]}")] + rr[2*k:2*k+2]
            for k, x in enumerate(r2): rows[20 + k*12//16].append(x)
            if var[0] == "slow": nf0 = nf[0]; st0 = nst[0]
            nf[0] = nf0; nst[0] = st0
            tg = Seg("x"); tg.a(f"s_waitcnt vmcnt(4)\nbuffer_store_dword v2, v3, s[{sW}:{sW+3}], s{sPw} offen{var[1]}")
            rows[tga] = tg.ins + rows[tga]
            for g in range(32):
                sg.add(mf[g])
                for x in rows[g]: sg.add(x)
            fstamp(sg); sg.a("s_waitcnt vmcnt(0)"); stamp(sg)
            sg.a(f"buffer_store_dword v1, v3, s[{sW}:{sW+3}], s{sPw} offen{var[1]}")
            fstamp(sg)
            if var[0] == "slow" and fast: sg.a("s_branch L_sent")
        fin = Seg("final"); e = fin.a
        e("L_sent:")
        e(f"s_mov_b32 s{sCnt}, 0x200000")
        e("L_poll:")
        e(f"s_sub_u32 s{sCnt}, s{sCnt}, 1\ns_cbranch_scc1 L_pollok")
        e(f"buffer_load_dword v8, v3, s[{sW}:{sW+3}], s{sMb} offen{xpoll}\ns_waitcnt vmcnt(0)\nv_readfirstlane_b32 s36, v8\ns_xor_b32 s3, s36, s{sCh}\ns_andn2_b32 s3, s3, 0x80\ns_cbranch_scc1 L_poll")
        e("L_pollok:")
        stamp(fin)
        e(f"buffer_load_dwordx4 v[{vG}:{vG+3}], v{vSt}, s[{sW}:{sW+3}], s{sMb} offen offset:256{xld}")
        for k in lo: e(f"buffer_load_dwordx4 v[{vTmp+4*k}:{vTmp+4*k+3}], {xaddr(k, sX, sX2)}{xld}")
        for x in pvlist(i, hi, [d+8 for d in hi]): fin.add(x)
        e(f"s_cmp_eq_u32 s36, s{sChB}\ns_cbranch_scc0 L_pollb\nL_pollbok:")
        pollb.a(f"L_pollb:\ns_sub_u32 s{sCnt}, s{sCnt}, 1\ns_cbranch_scc1 L_pollbok")
        pollb.a(f"buffer_load_dword v8, v3, s[{sW}:{sW+3}], s{sMb} offen{xpoll}\ns_waitcnt vmcnt(0)\nv_readfirstlane_b32 s36, v8\ns_nop 1\ns_cmp_eq_u32 s36, s{sChB}\ns_cbranch_scc0 L_pollb\ns_branch L_pollbok")
        for k in hi: e(f"buffer_load_dwordx4 v[{vTmp+4*k}:{vTmp+4*k+3}], {xaddr(k, sX, sX2)}{xld}")
        e(f"buffer_load_dword v2, v3, s[{sW}:{sW+3}], s{sPw} offen offset:128 sc1")
        for x in pvlist(i+1, hi): fin.add(x)
        fstamp(fin); fstamp(fin)
        for qt in range(2):
            fo, fx, t = vG+4+2*qt, vG+8+2*qt, vG+12+qt
            e(f"v_min_f32 v{t}, v{4+qt}, v{vG+qt}\nv_sub_f32 v{fo}, v{t}, v{4+qt}\nv_sub_f32 v{fx}, v{t}, v{vG+qt}\nv_exp_f32 v{fo}, v{fo}\nv_exp_f32 v{fx}, v{fx}")
        for qt in range(2):
            fo, fx, t = vG+4+2*qt, vG+8+2*qt, vG+12+qt
            e(f"v_mul_f32 v{t}, v{fo}, v{6+qt}\nv_fma_f32 v{t}, v{fx}, v{vG+2+qt}, v{t}\nv_rcp_f32 v{t}, v{t}")
        for qt in range(2):
            fo, fx, t = vG+4+2*qt, vG+8+2*qt, vG+12+qt
            e(f"v_mul_f32 v{fo}, v{fo}, v{t}\nv_mul_f32 v{fx}, v{fx}, v{t}")
        stq = []
        for n_, (h, qt) in enumerate(((0, 0), (0, 1), (1, 0), (1, 1))):
            fo, fx = vG+4+2*qt, vG+8+2*qt
            for k, dt in enumerate(range(4*h, 4*h+4)):
                o = vO + 8*dt + 4*qt; p = vTmp + 4*dt + 2*qt; u = 48 + 4*((2*dt+qt) % 4)
                e(f"v_lshlrev_b32 v{u}, 16, v{p}\nv_and_b32 v{u+1}, 0xffff0000, v{p}\nv_lshlrev_b32 v{u+2}, 16, v{p+1}\nv_and_b32 v{u+3}, 0xffff0000, v{p+1}")
                for x in range(4): e(f"v_mul_f32 v{o+x}, v{fo}, v{o+x}")
                for x in range(4): e(f"v_fmac_f32 v{o+x}, v{fx}, v{u+x}")
                e(f"v_cvt_pk_bf16_f32 v{o}, v{o}, v{o+1}\nv_cvt_pk_bf16_f32 v{o+1}, v{o+2}, v{o+3}")
                if k in (1, 2) and stq: e(stq.pop(0))
            for dt in range(4*h, 4*h+4):
                o = vO + 8*dt + 4*qt
                e(f"ds_write_b64 v{vEw}, v[{o}:{o+1}] offset:{4352*qt+32*dt}")
            for m in range(2):
                r = 192 + 8*n_ + 4*m
                e(f"ds_read_b128 v[{r}:{r+3}], v{vEr} offset:{272*(16*qt+8*m)+128*h}")
                stq.append(f"buffer_store_dwordx4 v[{r}:{r+3}], v21, s[{sO}:{sO+3}], s{sX2 if m else sX} offen offset:{512*qt+128*h}{polO}")
        fstamp(fin)
        for x in stq: e(x)
        e(f"v_readfirstlane_b32 s3, v2\ns_cmp_eq_u32 s3, s{sT1}\ns_cbranch_scc1 L_tagok")
        e(f"v_xor_b32 v2, 0x80, v2\nbuffer_wbl2 sc1\ns_waitcnt vmcnt(0)\nbuffer_store_dword v2, v3, s[{sW}:{sW+3}], s{sPw} offen sc1")
        e("L_tagok:")
        fstamp(fin)
    else:
        sends = []
        if fast: e(f"s_cmp_eq_u32 s3, s{sXcc}\ns_cbranch_scc1 L_sendfast")
        for var in (("slow", " sc1"), ("fast", "")) if fast else (("slow", " sc1"),):
            sg = Seg("send_"+var[0]); sends.append(sg)
            if var[0] == "fast": sg.a("L_sendfast:")
            st = mergeops() + [parse(t) for t in (f"v_mov_b32 v6, v{vL}", f"v_mov_b32 v7, v{vL+1}", f"v_mov_b32 v4, v{vCn}", f"v_mov_b32 v5, v{vCn+4}",
                  f"v_permlane16_swap_b32 v6, v{vL}", f"v_permlane16_swap_b32 v7, v{vL+1}", f"v_add_f32 v{vL}, v6, v{vL}", f"v_add_f32 v{vL+1}, v7, v{vL+1}",
                  f"v_mov_b32 v6, v{vL}", f"v_mov_b32 v7, v{vL+1}", "s_nop 0", f"v_permlane32_swap_b32 v6, v{vL}", f"v_permlane32_swap_b32 v7, v{vL+1}",
                  f"v_add_f32 v6, v6, v{vL}", f"v_add_f32 v7, v7, v{vL+1}",
                  f"buffer_store_dwordx4 v[4:7], v{vSt}, s[{sW}:{sW+3}], s{sPw} offen offset:256{var[1]}")]
            q = []
            for k in range(8):
                o = vO + 8*(8+k); g0 = 2*k + 1 + 3
                for x in range(4): q.append((parse(f"v_cvt_pk_bf16_f32 v{vTmp+4*k+x}, v{o+2*x}, v{o+2*x+1}"), g0-2, g0))
                q.append((parse(f"buffer_store_dwordx4 v[{vTmp+4*k}:{vTmp+4*k+3}], {xa(k)}{var[1]}"), g0-2, g0))
                if k % 2 == 1 and k < 7: q.append((parse(f"s_add_u32 s{sOo}, s{sOo}, 4096"), g0-2, g0))
            rd = spread([vread(i, dt, kt, dt+8) for dt in own for kt in range(2)], 1, 20)
            rd += [(y, t, 17) for (y, t, _) in spread([vread(i+1, dt, kt) for dt in own for kt in range(2)], 21, 38)]
            mf = pvlist(i+1, snd, own) + pvlist(i, own, snd) + pvlist(i+1, own)
            if var[0] == "slow": nf0 = nf[0]; st0 = nst[0]
            nf[0] = nf0; nst[0] = st0
            tg = Seg("x"); fstamp(tg); tg.a("s_waitcnt vmcnt(0)"); stamp(tg)
            tg.a(f"buffer_store_dword v2, v3, s[{sW}:{sW+3}], s{sPw} offen{var[1]}")
            if dfr:
                mf = pvlist(i+1, snd, own) + pvlist(i-2, own, snd) + pvlist(i-1, own) + pvlist(i, own, snd) + pvlist(i+1, own)
                rows = {g: [] for g in range(80)}
                nst_ = len(st) - 1
                for k, x in enumerate(st[:-1]): rows[min(3, k*4//nst_)].append(x)
                rows[0].insert(0, parse(f"v_add_u32 v1, s{sDV}, v{vVa}"))
                rows[4].append(st[-1])
                rb = [[vread(i-2+n_, dt, kt, dt + (8 if n_ % 2 == 0 else 0), 1 if n_ < 2 else vVa) for dt in own for kt in range(2)] for n_ in range(4)]
                for k in range(8):
                    o = vO + 8*(8+k)
                    rows[2*k+4] += [parse(f"v_cvt_pk_bf16_f32 v{o+x}, v{o+2*x}, v{o+2*x+1}") for x in range(4)]
                    rows[2*k+5] += [parse(f"buffer_store_dwordx4 v[{o}:{o+3}], {xa(k)}{var[1]}")] + rb[0][2*k:2*k+2]
                    if k % 2 == 1 and k < 7: rows[2*k+5].append(parse(f"s_add_u32 s{sOo}, s{sOo}, 4096"))
                for k, x in enumerate(rb[1]): rows[20 + k*10//16].append(x)
                for k, x in enumerate(rb[2]): rows[34 + k*13//16].append(x)
                for k, x in enumerate(rb[3]): rows[50 + k*13//16].append(x)
                rows[dtag] += tg.ins
                for g in range(80):
                    sg.add(mf[g])
                    for x in rows[g]: sg.add(x)
            elif y2:
                rows = {g: [] for g in range(48)}
                r14 = [vread(i, dt, kt, dt+8) for dt in own for kt in range(2)]; r15 = [vread(i+1, dt, kt) for dt in own for kt in range(2)]
                nst_ = len(st) - 1
                for k, x in enumerate(st[:-1]): rows[min(3, k*4//nst_)].append(x)
                tiles = [[y[0] for y in q[a_:b_]] for a_, b_ in zip([0,5,11,16,22,27,33,38], [5,11,16,22,27,33,38,43])]
                for k in range(8):
                    rows[2*k+4] += tiles[k][:4]
                    rows[2*k+5] += tiles[k][4:5] + r14[2*k:2*k+2] + tiles[k][5:]
                rows[1] = r14[:0] + rows[1]
                rows[4] = [st[-1]] + rows[4]
                for k, x in enumerate(r15): rows[20 + k].append(x)
                rows[tagg] += tg.ins
                for g in range(48):
                    sg.add(mf[g])
                    for x in rows[g]: sg.add(x)
            else:
                sca = {tagg: [post(x) for x in tg.ins]}
                schedule(sg, mf, [rd, q, spread(st, 0, 4)], sca, label="YZ", cap=3)
            fstamp(sg)
            if var[0] == "slow" and fast: sg.a("s_branch L_sent")
        fin = Seg("final"); e = fin.a
        e("L_sent:")
        e(f"s_mov_b32 s{sCnt}, 0x200000")
        e("L_poll:")
        e(f"s_sub_u32 s{sCnt}, s{sCnt}, 1\ns_cbranch_scc1 L_pollok")
        e(f"buffer_load_dword v8, v3, s[{sW}:{sW+3}], s{sMb} offen{xpoll}\ns_waitcnt vmcnt(0)\nv_readfirstlane_b32 s3, v8\ns_cmp_lg_u32 s3, s{sCh}\ns_cbranch_scc1 L_poll")
        e("L_pollok:")
        stamp(fin)
        e(f"s_mov_b32 s{sOo}, s{sX}")
        def xloads(pol):
            e(f"buffer_load_dwordx4 v[32:35], v{vSt}, s[{sW}:{sW+3}], s{sMb} offen offset:256{pol}")
            for k in range(8):
                e(f"buffer_load_dwordx4 v[{rcv(k)}:{rcv(k)+3}], {xa(k)}{pol}")
                if k % 2 == 1 and k < 7: e(f"s_add_u32 s{sOo}, s{sOo}, 4096")
        xloads(xld)
        e(f"buffer_load_dword v2, v3, s[{sW}:{sW+3}], s{sPw} offen offset:128 sc1")
        fstamp(fin, 9); fstamp(fin, 0)
        for qt in range(2):
            fo, fx, t = 36+2*qt, 40+2*qt, 44+qt
            e(f"v_min_f32 v{t}, v{4+qt}, v{32+qt}\nv_sub_f32 v{fo}, v{t}, v{4+qt}\nv_sub_f32 v{fx}, v{t}, v{32+qt}\nv_exp_f32 v{fo}, v{fo}\nv_exp_f32 v{fx}, v{fx}")
        for qt in range(2):
            fo, fx, t = 36+2*qt, 40+2*qt, 44+qt
            e(f"v_mul_f32 v{t}, v{fo}, v{6+qt}\nv_fma_f32 v{t}, v{fx}, v{34+qt}, v{t}\nv_rcp_f32 v{t}, v{t}")
        for qt in range(2):
            fo, fx, t = 36+2*qt, 40+2*qt, 44+qt
            e(f"v_mul_f32 v{fo}, v{fo}, v{t}\nv_mul_f32 v{fx}, v{fx}, v{t}")
        for r in range(0, 64, 2):
            fo = 36 + 2*((r//4) % 2)
            e(f"v_pk_mul_f32 v[{vO+r}:{vO+r+1}], v[{vO+r}:{vO+r+1}], v[{fo}:{fo+1}] op_sel_hi:[1,0]")
        def comb(dt, qt):
            o = vO + 8*dt + 4*qt; p = rcv(dt) + 2*qt; u = 48 + 4*((2*dt+qt) % 4); fx = 40+2*qt
            e(f"v_lshlrev_b32 v{u}, 16, v{p}\nv_and_b32 v{u+1}, 0xffff0000, v{p}\nv_lshlrev_b32 v{u+2}, 16, v{p+1}\nv_and_b32 v{u+3}, 0xffff0000, v{p+1}")
            e(f"v_pk_fma_f32 v[{o}:{o+1}], v[{u}:{u+1}], v[{fx}:{fx+1}], v[{o}:{o+1}] op_sel_hi:[1,0,1]")
            e(f"v_pk_fma_f32 v[{o+2}:{o+3}], v[{u+2}:{u+3}], v[{fx}:{fx+1}], v[{o+2}:{o+3}] op_sel_hi:[1,0,1]")
            e(f"v_cvt_pk_bf16_f32 v{o}, v{o}, v{o+1}\nv_cvt_pk_bf16_f32 v{o+1}, v{o+2}, v{o+3}")
        def dsw(dt, qt):
            o = vO + 8*dt + 4*qt
            e(f"ds_write_b64 v{vEw}, v[{o}:{o+1}] offset:{4352*qt+32*dt}")
        def retag():
            e(f"v_readfirstlane_b32 s3, v2\ns_cmp_eq_u32 s3, s{sT1}\ns_cbranch_scc1 L_tagok")
            e(f"buffer_wbl2 sc1\ns_waitcnt vmcnt(0)\nbuffer_store_dword v2, v3, s[{sW}:{sW+3}], s{sPw} offen sc1")
            e("L_tagok:")
        if q4:
            e(f"s_add_u32 s{sOo}, s{sX}, 8192")
            stq = []
            for n_, (h, qt) in enumerate(((0, 0), (0, 1), (1, 0), (1, 1))):
                for k, dt in enumerate(range(4*h, 4*h+4)):
                    comb(dt, qt)
                    if k in (1, 2) and stq: e(stq.pop(0))
                for dt in range(4*h, 4*h+4): dsw(dt, qt)
                for m in range(2):
                    r = 192 + 8*n_ + 4*m
                    e(f"ds_read_b128 v[{r}:{r+3}], v{vEr} offset:{272*(16*qt+8*m)+128*h}")
                    stq.append(f"buffer_store_dwordx4 v[{r}:{r+3}], v21, s[{sO}:{sO+3}], s{sOo if m else sX} offen offset:{512*qt+128*h}{polO}")
                if n_ == 0: e("s_waitcnt vmcnt(1)")
            fstamp(fin)
            for x in stq: e(x)
            retag()
        else:
            for dt in range(8):
                for qt in range(2):
                    comb(dt, qt)
                    if qt == 1 and dt % 2 == 1:
                        for d2 in (dt-1, dt):
                            for q2 in range(2): dsw(d2, q2)
            fstamp(fin)
            korder = [0, 4, 1, 5, 2, 6, 3, 7]
            for n_, k in enumerate(korder): e(f"ds_read_b128 v[{192+4*n_}:{192+4*n_+3}], v{vEr} offset:{1088*k}")
            retag()
            for k in range(8):
                e(f"buffer_store_dwordx4 v[{192+4*k}:{192+4*k+3}], v{vOg}, s[{sO}:{sO+3}], s{sX} offen offset:{512*(k%2)}{polO}")
                if k % 2 == 1 and k < 7: e(f"s_add_u32 s{sX}, s{sX}, 4096")
        fstamp(fin)
    endseg = Seg("end"); e = endseg.a
    if stamps:
        e("s_waitcnt vmcnt(0)")
        stamp(endseg)
        e(f"s_lshl_b32 s3, s2, 2\ns_add_u32 s3, s3, s{sWv}\ns_lshl_b32 s3, s3, 9\nv_lshlrev_b32 v{vSt}, 3, v0")
        e(f"buffer_store_dwordx2 v[10:11], v{vSt}, s[{sW}:{sW+3}], s3 offen")
    if probe is not None:
        e("s_waitcnt vmcnt(0)")
        stamp(endseg)
        e(f"s_sub_u32 s94, s94, s96\ns_add_u32 s94, s94, 2500\nL_pad:\ns_memrealtime s[98:99]\ns_waitcnt lgkmcnt(0)\ns_sub_u32 s3, s98, s96\ns_cmp_lt_u32 s3, s94\ns_cbranch_scc1 L_pad")
    if padto:
        e(f"s_waitcnt vmcnt(0)\nL_pad:\ns_memrealtime s[98:99]\ns_waitcnt lgkmcnt(0)\ns_sub_u32 s3, s98, s96\ns_cmp_lt_u32 s3, {int(padto*100)}\ns_cbranch_scc1 L_pad")
    e("L_end:\ns_endpgm")
    rares = []
    for ret, i in ((0, 0), (1, 1), (2, NB-2), (3, NB-4), (4, NB-3))[:5 if peel else 3] + tuple((5+k, k) for k in range(nser if tpl else 0)):
        r = Seg(f"rare{ret}"); e = r.a
        S = vS[(i+1)%2]; S2 = vS[i%2]
        e(f"L_rare{ret}:")
        rowmax(r, S, True)
        e("v_exp_f32 v6, -v1\nv_exp_f32 v7, -v4")
        for qt, d, al in ((0, 1, 6), (1, 4, 7)):
            for k in range(4): e(f"v_sub_f32 v{vCn+4*qt+k}, v{vCn+4*qt+k}, v{d}")
            for k in range(8): e(f"v_sub_f32 v{S+8*qt+k}, v{S+8*qt+k}, v{d}")
            if ret != 2:
                for k in range(8): e(f"v_sub_f32 v{S2+8*qt+k}, v{S2+8*qt+k}, v{d}")
            e(f"v_mul_f32 v{vL+qt}, v{al}, v{vL+qt}")
        pend = [NB-2] if ret == 2 else []
        if dfr and ret in (2, 3, 4): pend = list(range(NB-4, i+1))
        for n in pend:
            for k in range(8):
                p = Pbuf(n) + k; al = 6 + k//4
                e(f"v_lshlrev_b32 v{vPf}, 16, v{p}\nv_and_b32 v{vPf+1}, 0xffff0000, v{p}\nv_mul_f32 v{vPf}, v{al}, v{vPf}\nv_mul_f32 v{vPf+1}, v{al}, v{vPf+1}\nv_cvt_pk_bf16_f32 v{p}, v{vPf}, v{vPf+1}")
        for x in softmax_q(i+1, merge=False, pipe=True): r.add(x)
        for k in range(128): e(f"v_mul_f32 v{vO+k}, v{6+(k//4)%2}, v{vO+k}")
        e(f"s_nop 1\ns_branch L_back{ret}")
        rares.append(r)
    if "oob" in exp: pro.a(f"s_mov_b32 s{sK+2}, 0\ns_mov_b32 s{sV+2}, 0")
    if "l2hot" in exp:
        for x in body.ins:
            if x.text.startswith(f"s_add_u32 s{sOK}, s{sOK}, 16384") or x.text.startswith(f"s_add_u32 s{sOV}, s{sOV}, 16384"): x.text = "s_nop 0"
    if exp:
        nb = []
        for x in body.ins:
            if "nolds" in exp and x.kind == "dsr": continue
            if "novalu" in exp and x.kind in ("valu","trans") and not x.text.startswith("v_add_u32") and not x.text.startswith("v_cmp") and not x.text.startswith("v_writelane"): continue
            if "nodma" in exp and x.kind == "dma": continue
            if "nomfma" in exp and x.kind == "mfma": continue
            if "nobar" in exp and (x.kind == "barrier" or (x.kind == "wait" and x.vm is not None)): continue
            if "nomax" in exp and x.text.startswith("v_max"): continue
            nb.append(x)
        body.ins = nb
    order = [pro, warm, body, tail] + sends + [fin, endseg, pollb, zseg] + rares
    traces = [[pro, warm, body, body, body, tail, s, fin, endseg] for s in sends]
    fix_waits(traces, verbose)
    for s in order: merge_waits(s)
    fix_waits(traces, verbose)
    def upto(seg, lab):
        s = Seg(seg.name+"_pre"); k = [i.text for i in seg.ins].index(lab); s.ins = seg.ins[:k]
        s2 = Seg(seg.name+"_post"); s2.ins = seg.ins[k:]; return s, s2
    pw = [pro, warm]
    cases = [(0, body, pw+[body], [body]), (1, body, pw+[body], [body]), (1, body, pw+[body], [tail]), (2, tail, pw+[body], [sends[0]])]
    if peel: cases += [(3, tail, pw+[body], []), (4, tail, pw+[body], [])]
    cases += [(5+k, warm, [pro], [body]) for k in range(nser if tpl else 0)]
    for ret, seg, prev, nxt in cases:
        p, q = upto(seg, f"L_back{ret}:")
        n0 = [len(x.ins) for x in [p, q] + nxt]
        fix_waits([prev + [p, rares[ret], q] + nxt], verbose)
        assert exp or [len(x.ins) for x in [p, q] + nxt] == n0, "rare path needs extra waits outside"
    if zseg.ins and not xpad2:
        labs = [k for k, x in enumerate(zseg.ins) if x.kind == "label" and x.text.startswith("L_zero") and not x.text.endswith("b:")] + [len(zseg.ins)]
        parts = []
        for n_ in range(len(labs)-1):
            zp = Seg(f"zero{n_}"); zp.ins = zseg.ins[labs[n_]:labs[n_+1]]; parts.append(zp)
            p, q = upto(body, f"L_zback{n_}:")
            n0 = [len(p.ins), len(q.ins)]
            fix_waits([[pro, warm, p, zp, q]], verbose)
            assert exp or [len(p.ins), len(q.ins)] == n0, "zero block needs extra waits outside"
        zseg.ins = [x for zp in parts for x in zp.ins]
    lds = SPARE + KS
    txt = header + f"; @launch grid=(256,1,1) block=(256,1,1) lds={lds}\n"
    txt += f'.amdgcn_target "amdgcn-amd-amdhsa--gfx950"\n.text\n.globl {KN}\n.p2align 8\n.type {KN},@function\n{KN}:\n'
    body_txt = emit(order)
    if align is not None:
        body_txt = body_txt.replace("L_loop:\n", f".p2align {align[0]}\n" + "  s_nop 0\n"*align[1] + "L_loop:\n")
    txt += body_txt + "\nL_codeend:\n"
    txt += f'''.section .rodata,"a"
.p2align 6
.amdhsa_kernel {KN}
  .amdhsa_next_free_vgpr 452
  .amdhsa_next_free_sgpr 102
  .amdhsa_accum_offset 256
  .amdhsa_group_segment_fixed_size 0
  .amdhsa_kernarg_size 48
  .amdhsa_user_sgpr_count 2
  .amdhsa_user_sgpr_kernarg_segment_ptr 1
  .amdhsa_system_sgpr_workgroup_id_x 1
.end_amdhsa_kernel
'''
    return txt
if __name__ == "__main__":
    kw = eval("dict(" + (sys.argv[1] if len(sys.argv) > 1 else "") + ")")
    print(gen(**kw))
```

```python
import sys, math, struct
from asmlib import *
KN = "standalone__gqa_softmax__near_ridge_kernel"
def f2u(x): return struct.unpack("<I", struct.pack("<f", x))[0]
RS = 1056; KS = VS = 16*RS
KB = [i*KS for i in range(4)]
VB = [4*KS + i*VS for i in range(4)]
SPARE = 8*KS
C_SCALE = math.log2(math.e)/16.0
NB = 16
vOg, vEw, vEr, vSt = 12, 13, 14, 15
vKa, vVa, vDma, vDmaV, vMx = 16, 17, 18, 19, 20
vL = 22
vLb = 8
vPf = 80
vCn = 24
vP = [32, 40]; vS = [48, 64]; vTmp = 96; vO = 128
aQ, aKF, aVF = 0, 64, 128
sQ, sK, sV, sO, sW = 16, 20, 24, 28, 32
sWv, sOK, sOV, sMK, sMV, sCnt, sC, sDK, sDV, sXcc, sKh, sT0, sT1, sOo, sX = 40,41,42,43,44,45,46,47,48,49,50,51,52,53,54
sDK2, sDV2, sPw, sMb, sCh = 55, 56, 57, 58, 59
XBASE = 1 << 20

def gen(polK=" nt", polV=" nt", polQ=" nt", polO="", stamps=False, T=8.0, verbose=False, header="", padto=0, exp=(),
        fast=True, pxor=16, bg=53, dmagaps=(57,1,9,17,25,33,41,49), npre=5, wgrp=2, smend=60, late=1.6, xld=' sc1', xpoll=' sc1', fine=False, xpad=None, xstag=0, probe=None, cpf=True, btx=7, tagg=36, nq0=11, zsplit=(0,0,0), zgap=(30,46), otouch=False, peel=True, mergeb=False, prefmode=1, stag=None, p2=True, xdelay=None, dfr=True, dpf=13, n12=0, dbg_=33, dtag=68, xsw=False, prefw=None, h2=False, tga=21,  k1late=False, k4late=0, kcatch=0, k1bar=2, y2=True, nser=4, sergap=(60,)*8, cskip=('L_end','L_end'), ttouch=0, tpl=True, tE=(0,4,8,12,16,20,24,28,32,36,40,43,46,50,53,56), tD=(54,2,9,17,25,33,38,45), tbg=49, tdbl=(14,30), tzs=(30,42), align=None, pref13=True, q4=True, ilv=None, dsm0=True, lazy=0, pref12=False, xpad2=None, st256=True, ptrips=(4,3,2), pcont=False, ppol=''):
    nst = [0]
    def stamp(seg):
        if probe is not None:
            if nst[0] == probe: seg.a("s_waitcnt lgkmcnt(0)\ns_memrealtime s[94:95]\ns_waitcnt lgkmcnt(0)")
            nst[0] += 1
        if stamps:
            seg.a(f"s_waitcnt lgkmcnt(0)\ns_memtime s[64:65]\ns_memrealtime s[66:67]\ns_waitcnt lgkmcnt(0)\nv_writelane_b32 v10, s64, {nst[0]}\nv_writelane_b32 v11, s66, {nst[0]}"); nst[0] += 1
    nf = [32]
    def fstamp(seg, vm=None):
        if stamps and fine:
            if vm is not None: seg.a(f"s_waitcnt vmcnt({vm})")
            sv = nst[0]; nst[0] = nf[0]; stamp(seg); nf[0] += 1; nst[0] = sv
    pro = Seg("prologue"); a = pro.a
    a(f"s_cmp_ge_u32 s2, 256\ns_cbranch_scc1 L_end")
    a("s_load_dwordx8 s[4:11], s[0:1], 0\ns_load_dwordx2 s[14:15], s[0:1], 40")
    if padto or probe is not None: a("s_memrealtime s[96:97]")
    stamp(pro)
    if xdelay is not None:
        a(f"s_bitcmp1_b32 s2, {xdelay}\ns_cbranch_scc0 L_nodly\ns_mov_b32 s3, 12\nL_dly:\ns_sleep 127\ns_sub_u32 s3, s3, 1\ns_cbranch_scc0 L_dly\nL_nodly:")
    if xstag:
        a(f"s_bitcmp1_b32 s2, 5\ns_cbranch_scc0 L_nostag\ns_sleep {xstag}\nL_nostag:")
    a("v_lshrrev_b32 v1, 6, v0\nv_and_b32 v0, 63, v0")
    a(f"v_readfirstlane_b32 s{sWv}, v1")
    if cpf:
        a(f"s_getpc_b64 s[36:37]\ns_lshr_b32 s3, s2, 3\ns_lshl_b32 s3, s3, 2\nv_add_u32 v4, s3, v1\nv_lshlrev_b32 v4, 1, v4\nv_add_u32 v4, v4, v0\nv_lshlrev_b32 v4, 7, v4")
        if cskip and cskip[0] != cskip[1]:
            a(f"v_mov_b32 v5, {cskip[1]}-{cskip[0]}\nv_cmp_le_u32 vcc, {cskip[0]}-{KN}, v4\nv_cndmask_b32 v5, 0, v5, vcc\nv_add_u32 v4, v4, v5")
        a(f"v_min_u32 v4, {'L_end' if cskip else 'L_codeend'}-{KN}-256, v4\nv_mov_b32 v5, s37\nv_add_co_u32 v4, vcc, s36, v4\ns_nop 1\nv_addc_co_u32 v5, vcc, 0, v5, vcc")
        a("s_mov_b64 exec, 3")
        y = I("global_load_dword a192, v[4:5], off", "vld", rd=["v4", "v5"]); pro.add(y)
        a("s_mov_b64 exec, -1")
    a(f"v_lshlrev_b32 v{vDma}, 4, v0")
    if pxor == 16:
        a(f"s_mov_b32 s{sX}, s2")
    else:
        a(f"s_and_b32 s{sX}, s2, 0xee\ns_bfe_u32 s3, s2, 0x10004\ns_or_b32 s{sX}, s{sX}, s3\ns_and_b32 s3, s2, 1\ns_lshl_b32 s3, s3, 4\ns_or_b32 s{sX}, s{sX}, s3")
    a(f"s_and_b32 s{sT0}, s{sX}, 7\ns_lshr_b32 s{sT1}, s{sX}, 3\ns_lshl_b32 s{sT0}, s{sT0}, 3")
    a(f"s_lshr_b32 s3, s{sT1}, 2\ns_add_u32 s{sT0}, s{sT0}, s3")
    a(f"s_bfe_u32 s{sKh}, s{sT1}, 0x10001")
    a(f"s_and_b32 s{sT1}, s{sT1}, 1\ns_lshl_b32 s3, s{sT0}, 1\ns_add_u32 s{sT1}, s{sT1}, s3")
    a(f"s_lshl_b32 s{sT1}, s{sT1}, 16")
    a(f"s_lshl_b32 s{sT0}, s{sT0}, 19\ns_lshl_b32 s3, s{sKh}, 18\ns_add_u32 s{sT0}, s{sT0}, s3")
    a(f"s_mov_b32 s{sX}, {KB[3]}\ns_cmp_eq_u32 s{sWv}, 1\ns_cselect_b32 s{sX}, {VB[2]}, s{sX}")
    a(f"s_cmp_eq_u32 s{sWv}, 2\ns_cselect_b32 s{sX}, {VB[3]}, s{sX}\ns_cmp_eq_u32 s{sWv}, 3\ns_cselect_b32 s{sX}, {SPARE}, s{sX}")
    a(f"s_lshl_b32 s{sOo}, s{sWv}, 14")
    a(f"s_lshl_b32 s{sOK}, s{sWv}, 12\ns_mov_b32 s{sOV}, s{sOK}")
    a(f"s_mul_i32 s{sMK}, s{sWv}, {4*RS}\ns_add_u32 s{sMV}, s{sMK}, {VB[0]}")
    a(f"s_mov_b32 s{sQ+2}, 65536\ns_mov_b32 s{sQ+3}, 0x20000\ns_mov_b32 s{sK+2}, {NB*16384}\ns_mov_b32 s{sK+3}, 0x20000\ns_mov_b32 m0, s{sMK}")
    a(f"s_mov_b32 s{sDK2}, {2*KS}\ns_mov_b32 s{sDV2}, {2*VS}\ns_mov_b32 s{sDK}, {2*KS}\ns_mov_b32 s{sDV}, {2*VS}")
    a(f"s_lshl_b32 s{sMb}, s2, 2\ns_add_u32 s{sMb}, s{sMb}, s{sWv}\ns_lshl_b32 s{sMb}, s{sMb}, 11\ns_add_u32 s{sMb}, s{sMb}, {XBASE}")
    a(f"s_mov_b32 s{sW+2}, {3*XBASE}\ns_mov_b32 s{sW+3}, 0x20000\nv_lshlrev_b32 v3, 7, v0")
    a(f"s_getreg_b32 s{sXcc}, hwreg(HW_REG_XCC_ID)\ns_and_b32 s{sXcc}, s{sXcc}, 15")
    a("v_lshrrev_b32 v6, 3, v0\nv_and_b32 v7, 6, v6\nv_xor_b32 v7, v7, v0\nv_and_b32 v7, 7, v7\nv_lshlrev_b32 v7, 4, v7\nv_lshl_add_u32 v6, v6, 9, v7\nv_xor_b32 v7, 0x200, v6")
    a("s_waitcnt lgkmcnt(0)")
    fstamp(pro)
    def epi_addr(a):
        a(f"v_and_b32 v1, 15, v0\nv_lshrrev_b32 v4, 4, v0\ns_mul_i32 s3, s{sWv}, 8704")
        a(f"v_mul_u32_u24 v5, 272, v1\nv_lshlrev_b32 v21, 3, v4\nv_add3_u32 v{vEw}, v5, v21, s3")
        a(f"v_lshlrev_b32 v21, 4, v1\nv_mul_u32_u24 v5, 272, v4\nv_add3_u32 v{vEr}, v5, v21, s3")
        a(f"v_lshl_add_u32 v{vOg}, v4, 10, v21\nv_mov_b32 v{vSt}, " + ("v21" if st256 else f"v{vDma}"))
        if q4:
            a(f"v_lshrrev_b32 v5, 3, v0\nv_and_b32 v21, 7, v0\nv_lshlrev_b32 v21, 4, v21\nv_mul_u32_u24 v{vEr}, 272, v5\nv_add3_u32 v{vEr}, v{vEr}, v21, s3\nv_lshl_add_u32 v21, v5, 10, v21")
    def setup():
        a(f"s_lshl_b32 s3, s{sKh}, 8\nv_xor_b32 v{vDmaV}, s3, v{vDma}")
        a(f"v_and_b32 v1, 15, v0\nv_lshrrev_b32 v4, 4, v0")
        a(f"v_mul_u32_u24 v2, {RS}, v1\nv_lshl_add_u32 v{vKa}, v4, 4, v2")
        a(f"v_lshrrev_b32 v2, 2, v0\nv_mul_u32_u24 v2, {RS}, v2\nv_and_b32 v3, 3, v0\nv_lshl_add_u32 v2, v3, 3, v2\nv_add_u32 v{vVa}, {VB[0]}, v2")
        a(f"v_lshlrev_b32 v3, 1, v3\nv_lshrrev_b32 v2, 2, v1\nv_and_b32 v5, 1, v2\nv_xor_b32 v5, v5, v3\nv_lshlrev_b32 v5, 7, v5\nv_lshl_add_u32 v5, v2, 10, v5")
        a(f"v_xor_b32 v3, v3, v4\nv_lshl_add_u32 v5, v3, 4, v5")
        a(f"v_add_u32 v28, s{sX}, v5\nv_xor_b32 v3, 128, v5\nv_add_u32 v29, s{sX}, v3\nv_xor_b32 v3, 64, v5\nv_add_u32 v30, s{sX}, v3\nv_xor_b32 v3, 0xc0, v5\nv_add_u32 v31, s{sX}, v3")
        epi_addr(a)
        a(f"s_mov_b32 s{sC}, {f2u(C_SCALE):#x}")
        a(f"v_mov_b32 v{vL}, 0\nv_mov_b32 v{vL+1}, 0\nv_mov_b32 v2, s{sC}")
        for r in range(zsplit[0]): a(f"v_mov_b32 v{vO+r}, 0")
    def dmaK(n, j): return [parse(f"s_add_u32 m0, s{sMK}, {(n%2)*KS+32*j}"),
                            parse(f"buffer_load_dwordx4 v{vDma}, s[{sK}:{sK+3}], s{sOK} offen offset:{1024*j}{polK} lds")]
    def dmaV(n, j): return [parse(f"s_add_u32 m0, s{sMV}, {(2 if dfr and n == NB-1 else n%2)*VS+32*j}"),
                            parse(f"buffer_load_dwordx4 v{vDmaV}, s[{sV}:{sV+3}], s{sOV} offen offset:{1024*j}{polV} lds")]
    def advK(n):
        L = [parse(f"s_add_u32 s{sOK}, s{sOK}, 16384")]
        if n % 2 == 1: L += [parse(f"s_add_u32 s{sMK}, s{sMK}, s{sDK2}"), parse(f"s_sub_u32 s{sDK2}, 0, s{sDK2}")]
        return L
    def advV(n):
        L = [parse(f"s_add_u32 s{sOV}, s{sOV}, 16384")]
        if n % 2 == 1: L += [parse(f"s_add_u32 s{sMV}, s{sMV}, s{sDV2}"), parse(f"s_sub_u32 s{sDV2}, 0, s{sDV2}")]
        return L
    def block(seg, f, adv, n):
        for j in range(4):
            x = f(n, j); seg.add(x[0]); seg.a("s_nop 0"); seg.add(x[1])
        for x in adv(n): seg.add(x)
    def Pbuf(n): return (112, 120)[n-(NB-2)] if dfr and n >= NB-2 else vP[n%2]
    def kread(n, j): return parse(f"ds_read_b128 a[{aKF+4*j}:{aKF+4*j+3}], v{vKa} offset:{(n%2)*KS+64*(j//2)+512*(j%2)}")
    def vread(n, dt, kt, slot=None, va=vVa):
        r = aVF + 4*(dt if slot is None else slot) + 2*kt
        return parse(f"ds_read_b64_tr_b16 a[{r}:{r+1}], v{va} offset:{(2 if dfr and n == NB-1 else n%2)*VS+512*kt+32*dt}")
    def qk(n, g, first0=False):
        j, qt = g//2, g % 2; t, kt = j//2, j % 2
        S = vS[n%2] + 8*qt + 4*kt; f = aKF+4*j; qf = aQ + 4*(2*t+qt)
        c = f"v[{S}:{S+3}]" if t else ("0" if first0 else f"v[{vCn+4*qt}:{vCn+4*qt+3}]")
        i = parse(f"v_mfma_f32_16x16x32_bf16 v[{S}:{S+3}], a[{f}:{f+3}], a[{qf}:{qf+3}], {c}")
        if g % (2*wgrp) == 0: i.extra = set(R("a", f, 4*wgrp))
        return i
    def pv(n, dt, qt, grp=None, slot=None):
        f = aVF+4*(dt if slot is None else slot); o = vO+8*dt+4*qt; p = Pbuf(n)+4*qt
        i = parse(f"v_mfma_f32_16x16x32_bf16 v[{o}:{o+3}], a[{f}:{f+3}], v[{p}:{p+3}], v[{o}:{o+3}]")
        for d2 in (grp or ()): i.extra |= set(R("a", aVF+4*d2, 4))
        return i
    def pvlist(n, dts, slots=None):
        L = []; slots = slots or dts
        for k, dt in enumerate(dts):
            L.append(pv(n, dt, 0, slots[k:k+wgrp] if k % wgrp == 0 else None, slots[k])); L.append(pv(n, dt, 1, None, slots[k]))
        return L
    def checkops():
        return [parse(f"v_max_f32 v{vMx}, v{vLb}, v{vLb+1}"), parse(f"v_cmp_lt_f32 vcc, {f2u(2.0**T):#x}, v{vMx}")]
    def mergeops(): return [parse(f"v_add_f32 v{vL+qt}, v{vL+qt}, v{vLb+qt}") for qt in range(2)]
    def softmax_q(n, merge=True, pipe=False):
        S = vS[n%2]; P = Pbuf(n)
        E = lambda r: parse(f"v_exp_f32 v{vPf+r}, v{S+r}")
        def A(r):
            if r % 8 == 1: return parse(f"v_add_f32 v{vLb+r//8}, v{vPf+r-1}, v{vPf+r}")
            return parse(f"v_add_f32 v{vLb+r//8}, v{vLb+r//8}, v{vPf+r}")
        Cv = lambda p: parse(f"v_cvt_pk_bf16_f32 v{P+p}, v{vPf+2*p}, v{vPf+2*p+1}")
        q = []
        if pipe:
            for r in range(17):
                if r < 16: q.append(E(r))
                if r >= 1 and (r-1) % 8: q.append(A(r-1))
                if r >= 2 and r % 2 == 0: q.append(Cv(r//2-1))
            return q
        mg = mergeops() if merge else []
        for r in range(16):
            q.append(E(r))
            if r % 8 == 0:
                if mg: q.append(mg.pop(0))
            else: q.append(A(r))
            if r % 2 == 1: q.append(Cv(r//2))
        return q
    def spread(ops, g0, g1):
        tot = sum(x.cost for x in ops); c = 0; out = []
        for x in ops:
            out.append((x, g0 + (g1-g0)*c/max(tot-ops[-1].cost, 1), g0)); c += x.cost
        return out
    def post(x): x.tag = "post"; return x
    def schedule(seg, mf, streams, sca, label="", cap=2, lastempty=False):
        n = len(mf); streams = [list(s) for s in streams if s]
        nm = n
        if lastempty: n -= 1
        for g in range(nm):
            seg.add(mf[g])
            s_ = sca.get(g, [])
            pre = [x for x in s_ if x.tag != "post"]; pst = [x for x in s_ if x.tag == "post"]
            wsh = 1 if (g+1 < nm and mf[g+1].extra) else 0
            free = cap - max(0, len(pre)+wsh-1) - len([x for x in pst if x.kind != "label"])
            mem = []; val = []
            while True:
                cands = [s for s in streams if s and s[0][2] <= g]
                if val: cands = [s for s in cands if s[0][0].kind not in ("dsr","dsw","dma","vst","vld")] + [s for s in cands if s[0][0].kind in ("dsr","dsw","dma","vst","vld")]
                cands.sort(key=lambda s: s[0][1])
                pick = None
                for s in cands:
                    x, tg, _ = s[0]
                    if g < n-1 and tg > g + 1.0 and (mem or val): continue
                    if g < n-1 and tg > g + 2.0: continue
                    if val and val[-1].kind == "trans" and (x.rd & val[-1].wr) and g < n-1: continue
                    if x.cost <= free or tg <= g - late or g == n-1: pick = s; break
                if pick is None: break
                x = pick.pop(0)[0]; free -= x.cost
                (mem if x.kind in ("dsr","dsw","dma","vld") else val).append(x)
            row = pre + mem + val + pst
            for x in row: seg.add(x)
            if verbose: print(f"; {label} gap{g}: " + "".join({"dsr":"t","dma":"d","trans":"e","valu":"v","salu":"s","wait":"w","barrier":"B","vst":"S"}.get(x.kind, "?") for x in row))
        assert not any(streams)
    def addf(d, g, *xs): d.setdefault(g, []).extend(xs)
    def rowmax(seg, S, zero):
        for qt, d, t in ((0, 1, 6), (1, 4, 7)):
            b = S + 8*qt
            seg.a(f"v_max3_f32 v{d}, v{b}, v{b+1}, v{b+2}\nv_max3_f32 v{d}, v{d}, v{b+3}, v{b+4}\nv_max3_f32 v{d}, v{d}, v{b+5}, v{b+6}")
            seg.a(f"v_max3_f32 v{d}, v{d}, v{b+7}, 0" if zero else f"v_max_f32 v{d}, v{d}, v{b+7}")
        seg.a("v_mov_b32 v6, v1\nv_mov_b32 v7, v4\nv_permlane16_swap_b32 v6, v1\nv_permlane16_swap_b32 v7, v4\nv_max_f32 v1, v1, v6\nv_max_f32 v4, v4, v7")
        seg.a("v_mov_b32 v6, v1\nv_mov_b32 v7, v4\nv_permlane32_swap_b32 v6, v1\nv_permlane32_swap_b32 v7, v4\nv_max_f32 v1, v1, v6\nv_max_f32 v4, v4, v7")
    NV0 = 4 if tpl else 3
    NK0 = 8 if tpl else 5 if ilv else 6
    def nosh(g):
        while g % (2*wgrp) == 2*wgrp-1: g += 1
        return g
    def iteration(seg, i, ret, do_pv=True, loopend=False, pref=False):
        sca = {}; dm = []
        mf = [qk(i+2, g) for g in range(32)]
        tK = [parse(f"v_add_u32 v{vKa}, s{sDK}, v{vKa}"), parse(f"s_sub_u32 s{sDK}, 0, s{sDK}")]
        tV = [parse(f"v_add_u32 v{vVa}, s{sDV}, v{vVa}"), parse(f"s_sub_u32 s{sDV}, 0, s{sDV}")]
        def place(g, xs):
            for x in xs:
                g = nosh(g)
                while g in sca: g = nosh(g+1)
                addf(sca, g, x); g += 1
            return g
        if do_pv:
            mf += pvlist(i, list(range(16)))
            mf[63].extra = set(R("a", aKF, 4*wgrp))
            mf[0].extra = set()
            dp = dmagaps
            nvm = 12
            if pref and pref12 and prefmode == 1: nvm = 13 if i == NB-3 else 17
            if pref and pref13 and prefmode == 1: nvm = 12 if i == NB-3 else 8
            addf(sca, bg, parse(f"s_waitcnt vmcnt({nvm})"), parse("s_barrier"))
            if loopend:
                addf(sca, 60, parse(f"s_sub_u32 s{sCnt}, s{sCnt}, 1"))
                if ilv: addf(sca, 63, parse(f"s_cmp_lg_u32 s{sCnt}, 0"))
                else: addf(sca, 61, parse(f"s_cmp_lg_u32 s{sCnt}, 0"))
            last = i == NB-3
            for k in range(1, 8):
                if pref and k >= 4 and prefmode == 1:
                    if pref12 or pref13:
                        kks = [] if last != pref13 else [(2*(k-4), dp[k]-4), (2*(k-4)+1, dp[k])]
                    else: kks = [(4*(i % 2) + k - 4, dp[k])]
                    for kk, gg in kks:
                        y = parse(f"buffer_load_dwordx4 a[192:195], v{vOg}, s[{sO}:{sO+3}], s{sT0} offen offset:{512*(kk%2)}{ppol}"); y.wr = set()
                        if kk % 2 == 1: addf(sca, gg+1, parse(f"s_add_u32 s{sT0}, s{sT0}, 4096"))
                        dm.append((y, gg-3, gg))
                    if pref12 and not last and k == 7:
                        y = parse(f"buffer_load_dwordx4 a[192:195], v{vSt}, s[{sW}:{sW+3}], s{sMb} offen offset:256"); y.wr = set()
                        dm.append((y, dp[k]-1, dp[k]+2))
                    continue
                x = dmaV(i+2, k) if k < 4 else dmaK(i+5, k-4)
                addf(sca, dp[k]-1, x[0]); dm.append((x[1], dp[k]-3, dp[k]))
            if last:
                if not (pref12 and prefmode == 1):
                    y = parse(f"buffer_load_dwordx4 a[192:195], v{vSt}, s[{sW}:{sW+3}], s{sMb} offen offset:256"); y.wr = set()
                    dm.append((y, dp[0]-3, dp[0]))
            else:
                x = dmaV(i+3, 0); addf(sca, dp[0]-1, x[0]); dm.append((x[1], dp[0]-3, dp[0]))
            if not last: assert place(dp[3]+1, advV(i+2)) < dp[0]
            if not (pref and prefmode == 1): assert place(dp[7]+1, advK(i+5)) <= 60
            r1 = [kread(i+2, j) for j in range(NK0, 16)] + [vread(i, dt, kt) for dt in range(16) for kt in range(2)]
            nxt = [vread(i+1, dt, kt) for dt in range(8, 8+NV0) for kt in range(2)] if last else [kread(i+3, j) for j in range(NK0)]
            if last: mf[63].extra = set(R("a", aVF+32, 4*wgrp))
            rd = spread(r1, 0, bg-1) + [(y, t, bg+(2 if last else 1)) for (y, t, _) in spread(nxt, bg+1, 61)]
            rdv = []
            if ilv:
                lead = 64 - (bg+1)
                rd = [(kread(i+2, j), 2*j - lead, 0) for j in range(NK0, 16)]
                k_end = 30 - lead
                nslow = int(k_end * ilv[0])
                vr = [vread(i, dt, kt) for dt in range(16) for kt in range(2)]
                rdv = spread(vr[:nslow], 1, k_end) + [(y, t, 0) for (y, t, _) in spread(vr[nslow:], k_end+1, ilv[1])]
                if last: rdv += [(y, t, bg+2) for (y, t, _) in spread(nxt, ilv[1]+1.5, 62)]
                else: rd += [(y, bg+1+2*j, bg+1) for j, y in enumerate(nxt)]
            tg = []
            if i % 2 == 1:
                if ilv: tg = [(tK[0], 26, 26), (tV[0], ilv[1], ilv[1]+1)]; place(29, [tK[1]]); addf(sca, 62, post(tV[1]))
                else: tg = [(tK[0], 16, 16), (tV[0], bg-1, bg+1)]; place(21, [tK[1]]); assert place(bg+4, [tV[1]]) <= 60
            n0 = len(seg.ins)
            schedule(seg, mf, [dm, rd, rdv, tg, spread(softmax_q(i+1) + checkops(), 0, smend)], sca, label=f"it{i}", lastempty=True)
            tx = [x.text for x in seg.ins[n0:]]
            if i % 2 == 1:
                assert tx.index(kread(i+2, 15).text) < tx.index(tK[0].text) < tx.index(tK[1].text) < tx.index(nxt[0].text)
                assert tx.index(vread(i, 15, 1).text) < tx.index(tV[0].text) < tx.index(tV[1].text)
                if last: assert tx.index(tV[0].text) < tx.index(nxt[0].text)
            assert tx.index("s_barrier") < len(tx) - 1 - tx[::-1].index(nxt[0].text)
            seg.a(f"s_cbranch_vccnz L_rare{ret}\nL_back{ret}:")
        else:
            for k, g in enumerate((1, 5, 9, 13, 17, 21, 25, 29)):
                x = dmaV(i+2, k) if k < 4 else dmaK(i+5, k-4)
                addf(sca, g-1, x[0]); dm.append((x[1], g-3, g))
            place(14, advV(i+2)); place(30, advK(i+5))
            rd = spread([kread(i+2, j) for j in range(NK0, 16)], 0, 16)
            schedule(seg, mf, [dm, rd, spread(softmax_q(i+1, merge=False), 0, 31)], sca, label=f"it{i}")
            seg.add(tK[0]); seg.add(tK[1])
            seg.a("s_waitcnt vmcnt(12)\ns_barrier")
            for j in range(NK0): seg.add(kread(i+3, j))
            x = dmaV(i+3, 0); seg.add(x[0]); seg.a(f"buffer_load_dword v2, v3, s[{sW}:{sW+3}], s{sPw} offen offset:128 sc1"); seg.add(x[1])
            if otouch:
                y = parse(f"buffer_load_dword a192, v3, s[{sO}:{sO+3}], s{sOo} offen"); y.wr = set(); seg.add(y)
            seg.a(f"s_waitcnt lgkmcnt({NK0-wgrp})")
    sThr, sThr2 = 60, 61
    def iteration2(seg, i, ret, loopend=False, pref=False, zsites=False, serial=None, inl=None, xk=(), kl=5):
        last = i == NB-3; bg_ = tbg
        mf = [qk(i+2, g) for g in range(32)] + pvlist(i, list(range(16)))
        mf[63].extra = set(R("a", aVF+32 if last else aKF, 4*wgrp)); mf[0].extra = set()
        sh = {g: [] for g in range(64)}; mem = {g: [] for g in range(64)}; val = {g: [] for g in range(64)}
        resv = {g for g in range(63) if mf[g+1].extra}
        def place(g, xs):
            for x in xs:
                while g in resv or sh[g] or g == bg_: g += 1
                assert g < 63
                sh[g].append(x); g += 1
            return g
        nvm = 12
        if pref and prefmode == 1: nvm = 12 if last else 8
        if pref and prefw is not None: nvm = 4 if last else 8
        if serial is not None and i == prefw: nvm = 21
        if kl == 4: nvm = 8
        assert bg_-1 not in resv or True
        sh[bg_ if (bg_-1) in resv else bg_-1].append(parse(f"s_waitcnt vmcnt({nvm})")); sh[bg_].append(parse("s_barrier"))
        if zsites:
            for n_, zg in enumerate(tzs):
                assert zg not in resv and zg-1 not in resv and zg not in tD and zg-1 not in tD
                sh[zg-1].append(parse(f"s_cmp_eq_u32 s{sCnt}, {NTRIP-1}")); sh[zg] += [parse(f"s_cbranch_scc1 L_zero{n_}"), parse(f"L_zback{n_}:")]
        nxt = [vread(i+1, dt, kt) for dt in range(8, 8+NV0) for kt in range(2)] if last else [kread(i+3, j) for j in range(NK0)]
        reads = [kread(i+2, j) for j in range(NK0, 16)] + [vread(i, dt, kt) for dt in range(16) for kt in range(2)] + nxt
        slots = []
        for g in range(63):
            if g not in tE and g != bg_: slots += [g, g] if g in tdbl else [g]
        assert len(slots) == len(reads), (len(slots), len(reads))
        for g, x in zip(slots, reads): mem[g].append(x)
        gpos = {x.text: g for g, x in zip(slots[:40], reads[:40])}
        assert slots[40] > bg_
        def putv(g, y): mem[g].append(y)
        for k in range(8):
            g = tD[k]; assert g not in resv and g not in tE and not sh[g]
            if k == 0:
                if last and prefw is not None: pass
                elif last:
                    y = parse(f"buffer_load_dwordx4 a[192:195], v{vSt}, s[{sW}:{sW+3}], s{sMb} offen offset:256"); y.wr = set(); putv(g, y)
                else: x = dmaV(i+3, 0); sh[g].append(x[0]); putv(g, x[1])
            elif k >= 4 and pref and prefmode == 1:
                pass
            else:
                x = dmaV(i+2, k) if k < 4 else dmaK(i+kl, k-4); sh[g].append(x[0]); putv(g, x[1])
        g = 1
        for n in xk:
            for j in range(4):
                while g in resv or sh[g] or g in tD or len(mem[g]) != 1: g += 1
                x = dmaK(n, j); sh[g].append(x[0]); putv(g, x[1]); g += 1
            g = place(g, advK(n))
        assert g <= tD[4]
        thr = f"s{sThr}"
        if loopend:
            g = 56
            while g in resv or sh[g] or g+1 in resv or sh[g+1]: g += 1
            sh[g].append(parse(f"s_sub_u32 s{sCnt}, s{sCnt}, 1")); sh[g+1].append(parse(f"s_cselect_b32 s{sThr2}, -1.0, s{sThr}")); thr = f"s{sThr2}"
        if not last: assert place(tD[3]+1, advV(i+2)) <= tD[0]
        if not (pref and prefmode == 1): assert place(tD[7]+1, advK(i+kl)) <= 63
        q = softmax_q(i+1) + [parse(f"v_max_f32 v{vMx}, v{vLb}, v{vLb+1}"), parse(f"v_cmp_lt_f32 vcc, {thr}, v{vMx}")]
        blk = []
        if serial is not None:
            blk = mergeops() + softmax_q(i+1, merge=False, pipe=True) + q[-2:]; q = []
        ex = [x for x in q if x.kind == "trans"]; ot = []; ne = 0
        for x in q:
            if x.kind == "trans": ne += 1
            else: ot.append((x, tE[ne-1]+1))
        for g, x in zip(tE, ex): val[g].append(x)
        if i % 2 == 1:
            tK = [parse(f"v_add_u32 v{vKa}, s{sDK}, v{vKa}"), parse(f"s_sub_u32 s{sDK}, 0, s{sDK}")]
            tV = [parse(f"v_add_u32 v{vVa}, s{sDV}, v{vVa}"), parse(f"s_sub_u32 s{sDV}, 0, s{sDV}")]
            gk = gpos[kread(i+2, 15).text]; gv = slots[39]
            for t, g0 in ((tK, gk), (tV, gv)):
                g = g0
                while (g in tE or g == bg_ or len(mem[g]) + len(val[g]) >= 2) and not (t is tV and last): g += 1
                if t is tV and last: assert g < slots[40]
                val[g].append(t[0]); place(g+1, [t[1]])
        g = 0
        for x, e0 in ot:
            g = max(g, e0)
            while g in tE or g == bg_ or len(mem[g]) + len(val[g]) >= 2: g += 1
            assert g < 62, (i, x.text)
            val[g].append(x); g += 1
        if serial is not None and i == prefw:
            cand = [g for g in range(0, tD[3]) if len(mem[g]) + len(val[g]) < 2][:9]
            assert len(cand) == 9
            for kk, g in enumerate(cand):
                if kk < 8: y = parse(f"buffer_load_dwordx4 a[192:195], v{vOg}, s[{sO}:{sO+3}], s{sT0} offen offset:{512*(kk%2)}{ppol}")
                else: y = parse(f"buffer_load_dwordx4 a[192:195], v{vSt}, s[{sW}:{sW+3}], s{sMb} offen offset:256")
                y.wr = set(); putv(g, y)
                if kk % 2 == 1 and kk < 7: val[g].append(parse(f"s_add_u32 s{sT0}, s{sT0}, 4096"))
        if last and pref and prefmode == 1 and prefw is None:
            cand = [g for g in range(tD[3]+1, bg_-1) if g not in tE and len(mem[g]) + len(val[g]) < 2]
            extra = [g for g in range(tD[3]+1, bg_-1) if g not in tE and g not in cand and g not in tdbl]
            while len(cand) < 8: cand.append(extra.pop(len(extra)//2))
            cand.sort(); cand = cand[:8]
            for kk, g in enumerate(cand):
                y = parse(f"buffer_load_dwordx4 a[192:195], v{vOg}, s[{sO}:{sO+3}], s{sT0} offen offset:{512*(kk%2)}{ppol}"); y.wr = set(); putv(g, y)
                if kk % 2 == 1 and kk < 7: val[g].append(parse(f"s_add_u32 s{sT0}, s{sT0}, 4096"))
        for g in range(64):
            seg.add(mf[g])
            row = sh[g] + [x for x in mem[g] if x.kind == "dsr"] + [x for x in mem[g] if x.kind != "dsr"] + val[g] + (blk if g == serial else []) + ((inl or {}).get(g) or [])
            for x in row: seg.add(x)
            if verbose: print(f"; it{i} gap{g}: " + ("w" if g in resv else "") + "".join({"dsr":"t","dma":"d","vld":"d","trans":"e","valu":"v","salu":"s","wait":"W","barrier":"B","branch":"x","label":""}.get(x.kind, "?") for x in row))
        if loopend:
            seg.a(f"s_cbranch_vccz L_loop\nv_cmp_lt_f32 vcc, s{sThr}, v{vMx}\ns_cmp_lt_i32 s{sCnt}, 0\ns_cbranch_vccnz L_rare{ret}\nL_back{ret}:\ns_cbranch_scc0 L_loop")
        else: seg.a(f"s_cbranch_vccnz L_rare{ret}\nL_back{ret}:")
    def iteration3(seg, i, ret):
        last = i == NB-3; snd = list(range(8, 16)); bg_ = dbg_
        mf = [qk(i+2, g) for g in range(32)] + pvlist(i, snd)
        mf[47].extra = set(R("a", aVF+32 if last else aKF, 4*wgrp)); mf[0].extra = set()
        sca = {}; dm = []
        if not last:
            for k in range(1, 8):
                g = 2*k - 1 + (1 if k >= 4 else 0)
                x = dmaV(i+2 + k//4, k % 4); addf(sca, g-1, x[0]); dm.append((x[1], g-3, g))
            addf(sca, 6, *advV(i+2))
        late_dm = []
        if i == dpf or n12:
            for kk in (range(n12, 9) if last else range(n12) if n12 else range(9)):
                if kk < 8: y = parse(f"buffer_load_dwordx4 a[192:195], v{vOg}, s[{sO}:{sO+3}], s{sT0} offen offset:{512*(kk%2)}{ppol}")
                else: y = parse(f"buffer_load_dwordx4 a[192:195], v{vSt}, s[{sW}:{sW+3}], s{sMb} offen offset:256")
                g = (1 + 3*(kk-n12)) if last else (bg_ + 1 + (12*kk)//n12) if n12 else (16 + 2*kk); y.wr = set()
                (late_dm if n12 and not last else dm).append((y, g-3, g))
                if kk % 2 == 1 and kk < 7: (late_dm if n12 and not last else dm).append((parse(f"s_add_u32 s{sT0}, s{sT0}, 4096"), g-3, g))
        addf(sca, bg_, parse(f"s_waitcnt vmcnt({9 if last else 21 if i == dpf else 12})"), parse("s_barrier"))
        nxt = [vread(i+1, dt, kt) for dt in range(8, 8+NV0) for kt in range(2)] if last else [kread(i+3, j) for j in range(NK0)]
        rd = spread([kread(i+2, j) for j in range(NK0, 16)] + [vread(i, dt, kt) for dt in snd for kt in range(2)], 0, bg_-1)
        if last: rd += [(y, max(bg_+4, 34+2*(k//2)) + k*0.6, max(bg_+4, 34+2*(k//2))) for k, y in enumerate(nxt)]
        else: rd += [(y, t, bg_+1) for (y, t, _) in spread(nxt, bg_+1, 45)]
        tg = []
        if last:
            tV = [parse(f"v_add_u32 v{vVa}, s{sDV}, v{vVa}"), parse(f"s_sub_u32 s{sDV}, 0, s{sDV}")]
            tg = [(tV[0], bg_, bg_+2)]; addf(sca, bg_+5, tV[1])
        q = softmax_q(i+1) + [parse(f"v_max_f32 v{vMx}, v{vLb}, v{vLb+1}"), parse(f"v_cmp_lt_f32 vcc, s{sThr}, v{vMx}")]
        n0 = len(seg.ins)
        schedule(seg, mf, [dm + late_dm, rd, tg, spread(q, 0, 44)], sca, label=f"it{i}", lastempty=True)
        tx = [x.text for x in seg.ins[n0:]]
        if last: assert tx.index(vread(i, 15, 1).text) < tx.index(tV[0].text) < tx.index(nxt[0].text) and tx.index(tV[0].text) < tx.index(tV[1].text)
        assert tx.index("s_barrier") < len(tx) - 1 - tx[::-1].index(nxt[0].text)
        assert all(seg.ins.index(y[0]) < n0 + tx.index("s_barrier") for y in dm)
        seg.a(f"s_cbranch_vccnz L_rare{ret}\nL_back{ret}:")
    vm = []
    def vmwait(name, extra=""):
        k = max(j for j, x in enumerate(vm) if x == name)
        a(f"s_waitcnt vmcnt({len(vm)-1-k}){extra}")
    fill = [f"s_add_u32 s{sQ}, s4, s{sT1}\ns_addc_u32 s{sQ+1}, s5, 0", f"s_mov_b32 s{sW}, s14\ns_mov_b32 s{sW+1}, s15",
            f"s_add_u32 s{sV}, s8, s{sT0}\ns_addc_u32 s{sV+1}, s9, 0", f"s_mov_b32 s{sV+2}, {NB*16384}\ns_mov_b32 s{sV+3}, 0x20000",
            f"s_add_u32 s{sO}, s10, s{sT1}\ns_addc_u32 s{sO+1}, s11, 0", f"s_mov_b32 s{sO+2}, 65536\ns_mov_b32 s{sO+3}, 0x20000",
            f"s_xor_b32 s{sPw}, s{sMb}, {pxor*8192}"]
    a(f"s_add_u32 s{sK}, s6, s{sT0}\ns_addc_u32 s{sK+1}, s7, 0")
    def publish(t0, t1):
        a(f"v_readlane_b32 s{t0}, v8, 0\nv_readlane_b32 s{t1}, v8, 1\nv_mov_b32 v9, 0")
        a(f"s_and_b32 s{t1}, s{t1}, 0xffffff00\ns_add_u32 s{t1}, s{t1}, 0x100\ns_or_b32 s{t1}, s{t1}, s{sXcc}")
        a(f"s_xor_b32 s3, s{t1}, s{t0}\ns_cmp_lt_u32 s3, 0x100\ns_cselect_b32 s3, 0x100, 0\ns_add_u32 s{sCh}, s{t1}, s3\nv_mov_b32 v8, s{sCh}")
        a(f"buffer_store_dword v8, v9, s[{sW}:{sW+3}], s{sMb} offen offset:128 sc1")
    mbload = f"s_mov_b64 exec, 3\nbuffer_load_dword v8, v3, s[{sW}:{sW+3}], s{sMb} offen sc1\ns_mov_b64 exec, -1"
    if stag is not None:
        a(f"s_mov_b32 s{sW}, s14\ns_mov_b32 s{sW+1}, s15"); a(mbload); vm.append("mb")
        a(f"s_bitcmp1_b32 s2, {stag}\ns_cbranch_scc0 L_early\ns_waitcnt vmcnt(0)"); publish(36, 37); a("L_early:")
    def kvblock(f, adv, n, name, filler=None):
        for j in range(4):
            x = f(n, j)
            if not (name == "K0" and j == 0): pro.add(x[0]); (filler() if filler else a("s_nop 0"))
            pro.add(x[1]); vm.append(name)
        for x in adv(n): pro.add(x)
    def qdma(c, u):
        return [parse(f"s_add_u32 m0, s{sX}, {1024*(4*c+u)}"), parse(f"s_add_u32 s3, s{sOo}, {4096*u+128*c}"),
                parse(f"buffer_load_dwordx4 v{6+u%2}, s[{sQ}:{sQ+3}], s3 offen{polQ} lds")]
    def qblock(c):
        for u in range(4):
            for x in qdma(c, u): pro.add(x)
            vm.append(f"Q{c}")
    if ttouch:
        a("\n".join(fill)); fill = ["s_nop 0"]*7
        a("s_mov_b64 exec, 1")
        for srd, so in ((sK, sOK), (sQ, sOo), (sV, sOV), (sO, sOo))[:ttouch]:
            y = parse(f"buffer_load_dword a192, v{vDma}, s[{srd}:{srd+3}], s{so} offen{polK}"); y.wr = set(); pro.add(y); vm.append("tt")
        a("s_mov_b64 exec, -1")
    kvblock(dmaK, advK, 0, "K0", lambda: a(fill.pop(0)))
    if k1late:
        a("\n".join(fill)); fill = []
    else: kvblock(dmaK, advK, 1, "K1", lambda: a(fill.pop(0)))
    assert not fill
    if stag is None: a(mbload); vm.append("mb")
    qblock(0)
    if k1late: qblock(1)
    setup()
    qblock(2 if k1late else 1)
    fstamp(pro)
    vmwait("mb" if stag is None else "K0" if k1late else "K1"); a("s_barrier")
    stamp(pro)
    def k01read(n, j):
        r = (aKF if n == 0 else aVF) + 4*j
        return parse(f"ds_read_b128 a[{r}:{r+3}], v{vKa} offset:{n*KS+64*(j//2)+512*(j%2)}")
    def kgrp(c): return [k01read(n, j) for j in range(4*c, 4*c+4) for n in range(1 if k1late else 2)]
    def qraw(f): return 96 + 16*((f//4) % 2) + 4*(f % 4)
    def qgrp(c): return [parse(f"ds_read_b128 v[{qraw(f)}:{qraw(f)+3}], v{28+2*((f//2)%2)+f%2} offset:{4096*c}") for f in range(4*c, 4*c+4)]
    def presc(r):
        x = 32 + 2*(r % 8); q = qraw(r//4) + r % 4
        return [parse(t) for t in (f"v_lshlrev_b32 v{x}, 16, v{q}", f"v_and_b32 v{x+1}, 0xffff0000, v{q}",
                f"v_pk_mul_f32 v[{x}:{x+1}], v[{x}:{x+1}], v[2:3] op_sel_hi:[1,0]",
                f"v_cvt_pk_bf16_f32 v{x}, v{x}, v{x+1}", f"v_accvgpr_write_b32 a{aQ+r}, v{x}")]
    def mgrp(c, blocks=(0, 1)):
        L = []
        for t in (2*c, 2*c+1):
            for kt in range(2):
                for n in blocks:
                    for qt in range(2):
                        S = vS[n] + 8*qt + 4*kt; f = (aKF if n == 0 else aVF) + 4*(2*t+kt); qf = aQ + 4*(2*t+qt)
                        L.append(parse(f"v_mfma_f32_16x16x32_bf16 v[{S}:{S+3}], a[{f}:{f+3}], a[{qf}:{qf+3}], " + (f"v[{S}:{S+3}]" if t else "0")))
        return L
    for x in kgrp(0): pro.add(x)
    if not k1late: qblock(2)
    if stag is None: publish(sT0, sT1); vm.append("pub")
    else:
        a(f"s_bitcmp1_b32 s2, {stag}\ns_cbranch_scc1 L_pubdone"); publish(sT0, sT1); a("L_pubdone:")
    a("v_mov_b32 v3, 0")
    items = [("Q3", lambda j: qdma(3, j), []), ("K2", lambda j: dmaK(2, j), advK(2)), ("V0", lambda j: dmaV(0, j), advV(0)),
             ("V1", lambda j: dmaV(1, j), advV(1)) if lazy < 2 else (None, None, []), (None, None, [])]
    if k1late: items = [items[0], ("K1", lambda j: dmaK(1, j), advK(1)), items[1], items[2]]
    zq = [parse(f"v_mov_b32 v{vO+r}, 0") for r in range(zsplit[0], zsplit[1])]
    for c in range(4 if p2 else 5):
        name, f_, adv = items[c]
        if c < 4:
            vmwait(f"Q{c}")
            if c in (0, 3): fstamp(pro)
            for x in qgrp(c): pro.add(x)
            pq = [x for r in range(16*c, 16*c+16) for x in presc(r)]
        else: pq = zq
        kr = kgrp(c+1) if c < 3 else []
        if c == 0:
            for j in range(4):
                x = f_(j)
                for y in x[:-1]: pro.add(y)
                for y in kr[len(kr)//4*j:len(kr)//4*(j+1)]: pro.add(y)
                for _ in range(20): pro.add(pq.pop(0))
                pro.add(x[-1]); vm.append(name)
        else:
            sca = {}; dm = []; st = 2 if p2 else 4
            for j in range(4 if name else 0):
                x = f_(j); addf(sca, st*j, *x[:-1]); dm.append((x[-1], st*j-2, st*j+1)); vm.append(name)
            mf = mgrp(c-1, (0,)) if p2 else mgrp(c-1)
            schedule(pro, mf, [dm, spread(kr, 0, len(mf)-2) if kr else [], spread(pq, 0, len(mf)-1) if pq else []], sca, label=f"S{c}", cap=12 if p2 else 6)
        for x in adv: pro.add(x)
    fstamp(pro)
    NTRIP = ((NB-4)//2 if peel else (NB-2)//2) - (nser//2 if tpl else 0)
    scal = Seg("x")
    scal.a(f"s_mov_b32 s{sCnt}, {NTRIP-1 if tpl else NTRIP}")
    if tpl: a(f"s_mov_b32 s{sThr}, {f2u(2.0**T):#x}")
    scal.a(f"s_lshl_b32 s{sX}, s{sKh}, 8\ns_add_u32 s{sX}, s{sOo}, s{sX}\ns_xor_b32 s{sOo}, s{sX}, 256")
    if pcont: scal.a(f"s_lshl_b32 s{sT0}, s{sKh}, 15\ns_lshl_b32 s3, s{sWv}, 13\ns_add_u32 s{sT0}, s{sT0}, s3")
    else: scal.a(f"s_mov_b32 s{sT0}, s{sX}")
    post_ops = Seg("x"); post2 = Seg("x")
    rowmax(post_ops, vS[0], False)
    for qt, d in ((0, 1), (1, 4)):
        for r in range(8): post_ops.a(f"v_sub_f32 v{(vTmp if dsm0 else vS[0])+8*qt+r}, v{vS[0]+8*qt+r}, v{d}")
    if dsm0: post_ops.a(f"v_mov_b32 v{vLb}, 0\nv_mov_b32 v{vLb+1}, 0")
    else:
        for x in softmax_q(0, merge=False, pipe=True): post_ops.add(x)
    for qt, d in ((0, 1), (1, 4)):
        for r in range(4): post_ops.a(f"v_sub_f32 v{vCn+4*qt+r}, 0, v{d}")
        for r in range(8): post2.a(f"v_sub_f32 v{vS[1]+8*qt+r}, v{vS[1]+8*qt+r}, v{d}")
    tK = [parse(f"v_add_u32 v{vKa}, s{sDK}, v{vKa}"), parse(f"s_sub_u32 s{sDK}, 0, s{sDK}")]
    if p2:
        mf = mgrp(3, (0,)) + [x for c in range(4) for x in mgrp(c, (1,))]
        sca = {}; dm = []
        for k, x in enumerate(scal.ins): addf(sca, min(k, k1bar-1 if k1late else 3), x)
        k1r = []
        if k1late:
            kk_ = max(j for j, x in enumerate(vm) if x == "K1")
            addf(sca, k1bar, parse(f"s_waitcnt vmcnt({len(vm)-1-kk_}) lgkmcnt(0)"), parse("s_barrier"))
            k1r = [(k01read(1, j), k1bar + 1 + (j if j < 4 else 2*j-4), k1bar+1) for j in range(16)]
            for g_ in range(8, 40, 4): mf[g_].extra = set(R("a", aVF + 4*((g_-8)//2), 8))
            nd = 12 - 4*k4late; stp = 3 if nd == 12 else 4 if nd == 8 else 8
            for k in range(nd):
                x = dmaV(1, k) if k < 4 else dmaK(3 + (k-4)//4, k % 4); g = k1bar + 3 + stp*k
                addf(sca, g-1, x[0]); dm.append((x[1], g-3, g)); vm.append("V1" if k < 4 else "K3" if k < 8 else "K4")
            addf(sca, k1bar+3+stp*3+1, *advV(1))
            if nd >= 8: addf(sca, k1bar+3+stp*7+1, *advK(3))
            if nd == 12: addf(sca, 39, *[post(y) for y in advK(4)])
        elif not lazy:
            addf(sca, 4, parse("s_waitcnt lgkmcnt(0)"), parse("s_barrier"))
            for k in range(8):
                x = dmaK(3 + k//4, k % 4); g = 6 + 4*k
                addf(sca, g-1, x[0]); dm.append((x[1], g-3, g)); vm.append("K3" if k < 4 else "K4")
            addf(sca, 19, *advK(3)); addf(sca, 36, *advK(4))
        schedule(pro, mf, [dm, k1r, [(x, 0, 0) for x in zq], spread(post_ops.ins, 10, 39)], sca, label="S4", cap=5)
        stamp(pro)
        for x in tK: pro.add(x)
        vmwait("V0"); a("s_barrier")
        po = post2.ins
    else:
        for x in scal.ins + tK: pro.add(x)
        po = post_ops.ins + post2.ins
        if not mergeb:
            a("s_barrier")
            stamp(pro)
            def take(n):
                for _ in range(min(n, len(po))): pro.add(po.pop(0))
            kvblock(dmaK, advK, 3, "K3", lambda: take(12))
            kvblock(dmaK, advK, 4, "K4", lambda: take(12))
            take(1000)
            vmwait("V0"); a("s_barrier")
        else:
            stamp(pro)
            for x in po: pro.add(x)
            po = []
            vmwait("V0"); a("s_barrier")
    for j in range(NK0): pro.add(kread(2, j))
    if lazy >= 2: kvblock(dmaV, advV, 1, "V1")
    if mergeb or lazy:
        kvblock(dmaK, advK, 3, "K3"); kvblock(dmaK, advK, 4, "K4")
    if prefmode == 2:
        for kk in range(8):
            y = parse(f"buffer_load_dwordx4 a[192:195], v{vOg}, s[{sO}:{sO+3}], s{sT0} offen offset:{512*(kk%2)}{ppol}"); y.wr = set(); pro.add(y)
            if kk % 2: a(f"s_add_u32 s{sT0}, s{sT0}, 4096")
    x = dmaV(2, 0); pro.add(x[0]); a(f"buffer_load_dword v2, v3, s[{sW}:{sW+3}], s{sPw} offen offset:128 sc1"); pro.add(x[1])
    for x in po: pro.add(x)
    for r in range(zsplit[1], zsplit[2]): a(f"v_mov_b32 v{vO+r}, 0")
    a(f"s_waitcnt lgkmcnt({NK0-wgrp})")
    fstamp(pro)
    stamp(pro)
    def sm0_block(zs):
        X, E_ = vTmp, vTmp+16
        for r in range(17):
            if r < 16: zs.a(f"v_exp_f32 v{E_+r}, v{X+r}")
            if r >= 1: zs.a(f"v_add_f32 v{vL+(r-1)//8}, v{vL+(r-1)//8}, v{E_+r-1}" if r < 16 else f"s_nop 0\nv_add_f32 v{vL+1}, v{vL+1}, v{E_+15}")
            if r >= 2 and r % 2 == 0: zs.a(f"v_cvt_pk_bf16_f32 v{vP[0]+r//2-1}, v{E_+r-2}, v{E_+r-1}")
    warm = Seg("warm")
    if tpl:
        inl0 = {}
        if nser and zsplit[2] < 128:
            per = (128 - zsplit[2]) // len(tzs)
            for n_, zg in enumerate(tzs):
                zs = Seg("x"); r0 = zsplit[2] + n_*per
                assert zg < 32 + 2*(r0//8)
                if n_ == 0 and dsm0: sm0_block(zs)
                for r in range(r0, r0+per): zs.a(f"v_mov_b32 v{vO+r}, 0")
                inl0[zg] = zs.ins
        for i in range(nser): iteration2(warm, i, 5+i, serial=sergap[i], inl=inl0 if i == 0 else None, xk=(i+4,) if i == kcatch and k1late and k4late else (), kl=4 if i < kcatch and k1late and k4late else 5)
    body = Seg("loop"); body.a("L_loop:")
    if tpl: iteration2(body, 0, 0, zsites=zsplit[2] < 128 and not nser); iteration2(body, 1, 1, loopend=True)
    else: iteration(body, 0, 0); iteration(body, 1, 1, loopend=True)
    if stamps == 2:
        body.a(f"s_waitcnt lgkmcnt(0)\ns_memtime s[64:65]\ns_memrealtime s[66:67]\ns_sub_u32 m0, {15+NTRIP}, s{sCnt}\ns_cmp_lg_u32 s{sCnt}, 0\ns_waitcnt lgkmcnt(0)\nv_writelane_b32 v10, s64, m0\nv_writelane_b32 v11, s66, m0")
    zseg = Seg("zero")
    if zsplit[2] < 128 and not (tpl and nser):
        zgs = tzs if tpl else zgap if isinstance(zgap, tuple) else (zgap,)
        per = (128 - zsplit[2]) // len(zgs)
        for n_, zg in enumerate(zgs):
            r0 = zsplit[2] + n_*per
            assert zg < 32 + 2*(r0//8)
            if not tpl:
                mi = [k for k, x in enumerate(body.ins) if x.kind == "mfma"]
                k = mi[zg]
                body.ins[k+1:k+1] = [parse(f"s_cbranch_scc1 L_zero{n_}"), parse(f"L_zback{n_}:")]
                k = mi[zg-1]
                for y in body.ins[k+1:mi[zg]]: assert y.kind != "salu"
            if n_ == 0 and not peel:
                mask = (1 << NTRIP) | sum(1 << t for t in ptrips)
                body.ins[k+1:k+1] = [parse(f"s_bitcmp1_b32 {mask}, s{sCnt}")]
                zseg.a(f"L_zero{n_}:\ns_cmp_eq_u32 s{sCnt}, {NTRIP}\ns_cbranch_scc1 L_zero{n_}b")
                for kk in range(3):
                    y = parse(f"buffer_load_dwordx4 a[192:195], v{vDma if pcont else vOg}, s[{sO}:{sO+3}], s{sT0} offen{ppol}"); y.wr = set(); zseg.add(y)
                    if pcont: zseg.a(f"s_add_u32 s{sT0}, s{sT0}, 1024")
                    else: zseg.a(f"s_xor_b32 s{sT0}, s{sT0}, 512\ns_bitcmp1_b32 s{sT0}, 9\ns_cselect_b32 s3, 0, 4096\ns_add_u32 s{sT0}, s{sT0}, s3")
                    if kk == 1:
                        zseg.a(f"s_cmp_lg_u32 s{sCnt}, {ptrips[-1]}\ns_cbranch_scc1 L_pf3")
                        y = parse(f"buffer_load_dwordx4 a[192:195], v{vSt}, s[{sW}:{sW+3}], s{sMb} offen offset:256"); y.wr = set(); zseg.add(y)
                        zseg.a(f"s_branch L_zback{n_}\nL_pf3:")
                zseg.a(f"s_branch L_zback{n_}\nL_zero{n_}b:")
            else:
                if not tpl: body.ins[k+1:k+1] = [parse(f"s_cmp_eq_u32 s{sCnt}, {NTRIP}")]
                zseg.a(f"L_zero{n_}:")
            if n_ == 0 and dsm0: sm0_block(zseg)
            for r in range(r0, r0+per): zseg.a(f"v_mov_b32 v{vO+r}, 0")
            zseg.a(f"s_nop 1\ns_branch L_zback{n_}")
    if xpad2:
        for n_, (trip, gi, nn) in enumerate(xpad2):
            mi = [k for k, x in enumerate(body.ins) if x.kind == "mfma"]
            k = mi[gi]
            body.ins[k+1:k+1] = [parse(f"s_cmp_eq_u32 s{sCnt}, {NTRIP-trip-(1 if tpl else 0)}"), parse(f"s_cbranch_scc1 L_xq{n_}"), parse(f"L_xqb{n_}:")]
            zseg.a(f"L_xq{n_}:")
            for _ in range(nn): zseg.a("s_nop 15")
            zseg.a(f"s_branch L_xqb{n_}")
    if xpad:
        nb = []; mcount = 0; lab = 0
        for x in body.ins:
            nb.append(x)
            if x.kind == "mfma":
                it = mcount // 64; g = mcount % 64; mcount += 1
                step = 64 // xpad[3]
                if g % step == step//2 - 2:
                    thr = xpad[it]
                    nb += [parse(f"s_cmp_ge_u32 s{sCnt}, {thr}"), parse(f"s_cbranch_scc0 L_xp{lab}")] + [parse("s_nop 15") for _ in range(xpad[2])] + [parse(f"L_xp{lab}:")]
                    lab += 1
        body.ins = nb
    if not tpl: body.a(f"s_cbranch_scc1 L_loop")
    tail = Seg("tail"); e = tail.a
    e("L_tail:")
    if dfr: iteration3(tail, NB-4, 3); iteration3(tail, NB-3, 4)
    elif tpl: iteration2(tail, NB-4, 3, pref=True); iteration2(tail, NB-3, 4, pref=True)
    elif peel: iteration(tail, NB-4, 3, pref=True); iteration(tail, NB-3, 4, pref=True)
    stamp(tail)
    i = NB-2
    snd = list(range(8, 16)); own = list(range(8))
    sq15 = softmax_q(i+1) + checkops()
    if not peel:
        for dt in range(8, 8+NV0):
            for kt in range(2): tail.add(vread(i, dt, kt))
        for x in (sq15[0], sq15[1], sq15[2], sq15[5], sq15[3], sq15[4]): tail.add(x)
        sq15 = sq15[6:]
    rd = spread([vread(i, dt, kt) for dt in range(8+NV0, 16) for kt in range(2)], 0, 6)
    rd += [(y, t, btx+1) for (y, t, _) in spread([vread(i+1, dt, kt, dt-8) for dt in snd for kt in range(2)], btx+1, 15)]
    sca = {btx: [parse("s_waitcnt vmcnt(0)" if prefw is not None else "s_waitcnt vmcnt(9)" if pref13 else "s_waitcnt vmcnt(5)" if peel and not (pref12 and prefmode == 1) else "s_waitcnt vmcnt(0)"), parse("s_barrier")]}
    if dfr:
        sca = {btx: []}
        rd = spread([vread(i, dt, kt) for dt in range(8+NV0, 16) for kt in range(2)] + [vread(i+1, dt, kt, dt-8) for dt in snd for kt in range(2)], 0, 14)
    if stamps and fine:
        t1 = Seg("x"); fstamp(t1); t2 = Seg("x"); fstamp(t2)
        sca[btx] = t1.ins + sca[btx] + t2.ins
    mf = pvlist(i, snd)
    if peel: mf[0].extra = set()
    schedule(tail, mf, [rd, spread(sq15, 0, 15)], sca, label="X", cap=5)
    e(f"v_readfirstlane_b32 s{sT1}, v2\ns_cbranch_vccnz L_rare2\nL_back2:")
    fstamp(tail)
    e(f"s_and_b32 s3, s{sT1}, 0xff")
    def rcv(k): return vTmp + 4*k
    def xa(k):
        if xsw: return f"v{(vOg, 1)[k % 2]}, s[{sO}:{sO+3}], s{sOo} offen"
        return f"v{vOg}, s[{sO}:{sO+3}], s{sOo} offen offset:{512*(k%2)}"
    if xsw: e(f"s_and_b32 s36, s{sWv}, 1\ns_lshl_b32 s36, s36, 9\nv_add_u32 v{vOg}, s36, v{vOg}\nv_xor_b32 v1, 0x200, v{vOg}")
    pollb = Seg("pollb")
    if h2:
        sOo2, sX2, sChB = 62, 63, 38
        vG = 64
        def xaddr(k, b0, b1): return f"v21, s[{sO}:{sO+3}], s{b1 if (k % 4) >> 1 else b0} offen offset:{512*(k & 1) + 128*(k//4)}"
        e(f"s_add_u32 s{sOo2}, s{sOo}, 8192\ns_add_u32 s{sX2}, s{sX}, 8192\ns_xor_b32 s{sChB}, s{sCh}, 0x80\nv_xor_b32 v1, 0x80, v2")
        sends = []
        if fast: e(f"s_cmp_eq_u32 s3, s{sXcc}\ns_cbranch_scc1 L_sendfast")
        lo, hi = [0, 1, 2, 3], [4, 5, 6, 7]
        for var in (("slow", " sc1"), ("fast", "")) if fast else (("slow", " sc1"),):
            sg = Seg("send_"+var[0]); sends.append(sg)
            if var[0] == "fast": sg.a("L_sendfast:")
            st = mergeops() + [parse(t) for t in (f"v_mov_b32 v6, v{vL}", f"v_mov_b32 v7, v{vL+1}", f"v_mov_b32 v4, v{vCn}", f"v_mov_b32 v5, v{vCn+4}",
                  f"v_permlane16_swap_b32 v6, v{vL}", f"v_permlane16_swap_b32 v7, v{vL+1}", f"v_add_f32 v{vL}, v6, v{vL}", f"v_add_f32 v{vL+1}, v7, v{vL+1}",
                  f"v_mov_b32 v6, v{vL}", f"v_mov_b32 v7, v{vL+1}", "s_nop 0", f"v_permlane32_swap_b32 v6, v{vL}", f"v_permlane32_swap_b32 v7, v{vL+1}",
                  f"v_add_f32 v6, v6, v{vL}", f"v_add_f32 v7, v7, v{vL+1}")]
            mf = pvlist(i+1, snd, own) + pvlist(i, lo, [d+8 for d in lo]) + pvlist(i+1, lo)
            rows = {g: [] for g in range(32)}
            for k, x in enumerate(st): rows[min(3, k*4//len(st))].append(x)
            rows[4].append(parse(f"buffer_store_dwordx4 v[4:7], v{vSt}, s[{sW}:{sW+3}], s{sPw} offen offset:256{var[1]}"))
            rr = [vread(i, dt, kt, dt+8) for dt in lo for kt in range(2)] + [vread(i+1, dt, kt) for dt in lo for kt in range(2)]
            r2 = [vread(i, dt, kt, dt+8) for dt in hi for kt in range(2)] + [vread(i+1, dt, kt) for dt in hi for kt in range(2)]
            for k in range(8):
                o = vO + 8*(8+k)
                rows[2*k+4] += [parse(f"v_cvt_pk_bf16_f32 v{vTmp+4*k+x}, v{o+2*x}, v{o+2*x+1}") for x in range(4)]
                rows[2*k+5] += [parse(f"buffer_store_dwordx4 v[{vTmp+4*k}:{vTmp+4*k+3}], {xaddr(k, sOo, sOo2)}{var[1]}")] + rr[2*k:2*k+2]
            for k, x in enumerate(r2): rows[20 + k*12//16].append(x)
            if var[0] == "slow": nf0 = nf[0]; st0 = nst[0]
            nf[0] = nf0; nst[0] = st0
            tg = Seg("x"); tg.a(f"s_waitcnt vmcnt(4)\nbuffer_store_dword v2, v3, s[{sW}:{sW+3}], s{sPw} offen{var[1]}")
            rows[tga] = tg.ins + rows[tga]
            for g in range(32):
                sg.add(mf[g])
                for x in rows[g]: sg.add(x)
            fstamp(sg); sg.a("s_waitcnt vmcnt(0)"); stamp(sg)
            sg.a(f"buffer_store_dword v1, v3, s[{sW}:{sW+3}], s{sPw} offen{var[1]}")
            fstamp(sg)
            if var[0] == "slow" and fast: sg.a("s_branch L_sent")
        fin = Seg("final"); e = fin.a
        e("L_sent:")
        e(f"s_mov_b32 s{sCnt}, 0x200000")
        e("L_poll:")
        e(f"s_sub_u32 s{sCnt}, s{sCnt}, 1\ns_cbranch_scc1 L_pollok")
        e(f"buffer_load_dword v8, v3, s[{sW}:{sW+3}], s{sMb} offen{xpoll}\ns_waitcnt vmcnt(0)\nv_readfirstlane_b32 s36, v8\ns_xor_b32 s3, s36, s{sCh}\ns_andn2_b32 s3, s3, 0x80\ns_cbranch_scc1 L_poll")
        e("L_pollok:")
        stamp(fin)
        e(f"buffer_load_dwordx4 v[{vG}:{vG+3}], v{vSt}, s[{sW}:{sW+3}], s{sMb} offen offset:256{xld}")
        for k in lo: e(f"buffer_load_dwordx4 v[{vTmp+4*k}:{vTmp+4*k+3}], {xaddr(k, sX, sX2)}{xld}")
        for x in pvlist(i, hi, [d+8 for d in hi]): fin.add(x)
        e(f"s_cmp_eq_u32 s36, s{sChB}\ns_cbranch_scc0 L_pollb\nL_pollbok:")
        pollb.a(f"L_pollb:\ns_sub_u32 s{sCnt}, s{sCnt}, 1\ns_cbranch_scc1 L_pollbok")
        pollb.a(f"buffer_load_dword v8, v3, s[{sW}:{sW+3}], s{sMb} offen{xpoll}\ns_waitcnt vmcnt(0)\nv_readfirstlane_b32 s36, v8\ns_nop 1\ns_cmp_eq_u32 s36, s{sChB}\ns_cbranch_scc0 L_pollb\ns_branch L_pollbok")
        for k in hi: e(f"buffer_load_dwordx4 v[{vTmp+4*k}:{vTmp+4*k+3}], {xaddr(k, sX, sX2)}{xld}")
        e(f"buffer_load_dword v2, v3, s[{sW}:{sW+3}], s{sPw} offen offset:128 sc1")
        for x in pvlist(i+1, hi): fin.add(x)
        fstamp(fin); fstamp(fin)
        for qt in range(2):
            fo, fx, t = vG+4+2*qt, vG+8+2*qt, vG+12+qt
            e(f"v_min_f32 v{t}, v{4+qt}, v{vG+qt}\nv_sub_f32 v{fo}, v{t}, v{4+qt}\nv_sub_f32 v{fx}, v{t}, v{vG+qt}\nv_exp_f32 v{fo}, v{fo}\nv_exp_f32 v{fx}, v{fx}")
        for qt in range(2):
            fo, fx, t = vG+4+2*qt, vG+8+2*qt, vG+12+qt
            e(f"v_mul_f32 v{t}, v{fo}, v{6+qt}\nv_fma_f32 v{t}, v{fx}, v{vG+2+qt}, v{t}\nv_rcp_f32 v{t}, v{t}")
        for qt in range(2):
            fo, fx, t = vG+4+2*qt, vG+8+2*qt, vG+12+qt
            e(f"v_mul_f32 v{fo}, v{fo}, v{t}\nv_mul_f32 v{fx}, v{fx}, v{t}")
        stq = []
        for n_, (h, qt) in enumerate(((0, 0), (0, 1), (1, 0), (1, 1))):
            fo, fx = vG+4+2*qt, vG+8+2*qt
            for k, dt in enumerate(range(4*h, 4*h+4)):
                o = vO + 8*dt + 4*qt; p = vTmp + 4*dt + 2*qt; u = 48 + 4*((2*dt+qt) % 4)
                e(f"v_lshlrev_b32 v{u}, 16, v{p}\nv_and_b32 v{u+1}, 0xffff0000, v{p}\nv_lshlrev_b32 v{u+2}, 16, v{p+1}\nv_and_b32 v{u+3}, 0xffff0000, v{p+1}")
                for x in range(4): e(f"v_mul_f32 v{o+x}, v{fo}, v{o+x}")
                for x in range(4): e(f"v_fmac_f32 v{o+x}, v{fx}, v{u+x}")
                e(f"v_cvt_pk_bf16_f32 v{o}, v{o}, v{o+1}\nv_cvt_pk_bf16_f32 v{o+1}, v{o+2}, v{o+3}")
                if k in (1, 2) and stq: e(stq.pop(0))
            for dt in range(4*h, 4*h+4):
                o = vO + 8*dt + 4*qt
                e(f"ds_write_b64 v{vEw}, v[{o}:{o+1}] offset:{4352*qt+32*dt}")
            for m in range(2):
                r = 192 + 8*n_ + 4*m
                e(f"ds_read_b128 v[{r}:{r+3}], v{vEr} offset:{272*(16*qt+8*m)+128*h}")
                stq.append(f"buffer_store_dwordx4 v[{r}:{r+3}], v21, s[{sO}:{sO+3}], s{sX2 if m else sX} offen offset:{512*qt+128*h}{polO}")
        fstamp(fin)
        for x in stq: e(x)
        e(f"v_readfirstlane_b32 s3, v2\ns_cmp_eq_u32 s3, s{sT1}\ns_cbranch_scc1 L_tagok")
        e(f"v_xor_b32 v2, 0x80, v2\nbuffer_wbl2 sc1\ns_waitcnt vmcnt(0)\nbuffer_store_dword v2, v3, s[{sW}:{sW+3}], s{sPw} offen sc1")
        e("L_tagok:")
        fstamp(fin)
    else:
        sends = []
        if fast: e(f"s_cmp_eq_u32 s3, s{sXcc}\ns_cbranch_scc1 L_sendfast")
        for var in (("slow", " sc1"), ("fast", "")) if fast else (("slow", " sc1"),):
            sg = Seg("send_"+var[0]); sends.append(sg)
            if var[0] == "fast": sg.a("L_sendfast:")
            st = mergeops() + [parse(t) for t in (f"v_mov_b32 v6, v{vL}", f"v_mov_b32 v7, v{vL+1}", f"v_mov_b32 v4, v{vCn}", f"v_mov_b32 v5, v{vCn+4}",
                  f"v_permlane16_swap_b32 v6, v{vL}", f"v_permlane16_swap_b32 v7, v{vL+1}", f"v_add_f32 v{vL}, v6, v{vL}", f"v_add_f32 v{vL+1}, v7, v{vL+1}",
                  f"v_mov_b32 v6, v{vL}", f"v_mov_b32 v7, v{vL+1}", "s_nop 0", f"v_permlane32_swap_b32 v6, v{vL}", f"v_permlane32_swap_b32 v7, v{vL+1}",
                  f"v_add_f32 v6, v6, v{vL}", f"v_add_f32 v7, v7, v{vL+1}",
                  f"buffer_store_dwordx4 v[4:7], v{vSt}, s[{sW}:{sW+3}], s{sPw} offen offset:256{var[1]}")]
            q = []
            for k in range(8):
                o = vO + 8*(8+k); g0 = 2*k + 1 + 3
                for x in range(4): q.append((parse(f"v_cvt_pk_bf16_f32 v{vTmp+4*k+x}, v{o+2*x}, v{o+2*x+1}"), g0-2, g0))
                q.append((parse(f"buffer_store_dwordx4 v[{vTmp+4*k}:{vTmp+4*k+3}], {xa(k)}{var[1]}"), g0-2, g0))
                if k % 2 == 1 and k < 7: q.append((parse(f"s_add_u32 s{sOo}, s{sOo}, 4096"), g0-2, g0))
            rd = spread([vread(i, dt, kt, dt+8) for dt in own for kt in range(2)], 1, 20)
            rd += [(y, t, 17) for (y, t, _) in spread([vread(i+1, dt, kt) for dt in own for kt in range(2)], 21, 38)]
            mf = pvlist(i+1, snd, own) + pvlist(i, own, snd) + pvlist(i+1, own)
            if var[0] == "slow": nf0 = nf[0]; st0 = nst[0]
            nf[0] = nf0; nst[0] = st0
            tg = Seg("x"); fstamp(tg); tg.a("s_waitcnt vmcnt(0)"); stamp(tg)
            tg.a(f"buffer_store_dword v2, v3, s[{sW}:{sW+3}], s{sPw} offen{var[1]}")
            if dfr:
                mf = pvlist(i+1, snd, own) + pvlist(i-2, own, snd) + pvlist(i-1, own) + pvlist(i, own, snd) + pvlist(i+1, own)
                rows = {g: [] for g in range(80)}
                nst_ = len(st) - 1
                for k, x in enumerate(st[:-1]): rows[min(3, k*4//nst_)].append(x)
                rows[0].insert(0, parse(f"v_add_u32 v1, s{sDV}, v{vVa}"))
                rows[4].append(st[-1])
                rb = [[vread(i-2+n_, dt, kt, dt + (8 if n_ % 2 == 0 else 0), 1 if n_ < 2 else vVa) for dt in own for kt in range(2)] for n_ in range(4)]
                for k in range(8):
                    o = vO + 8*(8+k)
                    rows[2*k+4] += [parse(f"v_cvt_pk_bf16_f32 v{o+x}, v{o+2*x}, v{o+2*x+1}") for x in range(4)]
                    rows[2*k+5] += [parse(f"buffer_store_dwordx4 v[{o}:{o+3}], {xa(k)}{var[1]}")] + rb[0][2*k:2*k+2]
                    if k % 2 == 1 and k < 7: rows[2*k+5].append(parse(f"s_add_u32 s{sOo}, s{sOo}, 4096"))
                for k, x in enumerate(rb[1]): rows[20 + k*10//16].append(x)
                for k, x in enumerate(rb[2]): rows[34 + k*13//16].append(x)
                for k, x in enumerate(rb[3]): rows[50 + k*13//16].append(x)
                rows[dtag] += tg.ins
                for g in range(80):
                    sg.add(mf[g])
                    for x in rows[g]: sg.add(x)
            elif y2:
                rows = {g: [] for g in range(48)}
                r14 = [vread(i, dt, kt, dt+8) for dt in own for kt in range(2)]; r15 = [vread(i+1, dt, kt) for dt in own for kt in range(2)]
                nst_ = len(st) - 1
                for k, x in enumerate(st[:-1]): rows[min(3, k*4//nst_)].append(x)
                tiles = [[y[0] for y in q[a_:b_]] for a_, b_ in zip([0,5,11,16,22,27,33,38], [5,11,16,22,27,33,38,43])]
                for k in range(8):
                    rows[2*k+4] += tiles[k][:4]
                    rows[2*k+5] += tiles[k][4:5] + r14[2*k:2*k+2] + tiles[k][5:]
                rows[1] = r14[:0] + rows[1]
                rows[4] = [st[-1]] + rows[4]
                for k, x in enumerate(r15): rows[20 + k].append(x)
                rows[tagg] += tg.ins
                for g in range(48):
                    sg.add(mf[g])
                    for x in rows[g]: sg.add(x)
            else:
                sca = {tagg: [post(x) for x in tg.ins]}
                schedule(sg, mf, [rd, q, spread(st, 0, 4)], sca, label="YZ", cap=3)
            fstamp(sg)
            if var[0] == "slow" and fast: sg.a("s_branch L_sent")
        fin = Seg("final"); e = fin.a
        e("L_sent:")
        e(f"s_mov_b32 s{sCnt}, 0x200000")
        e("L_poll:")
        e(f"s_sub_u32 s{sCnt}, s{sCnt}, 1\ns_cbranch_scc1 L_pollok")
        e(f"buffer_load_dword v8, v3, s[{sW}:{sW+3}], s{sMb} offen{xpoll}\ns_waitcnt vmcnt(0)\nv_readfirstlane_b32 s3, v8\ns_cmp_lg_u32 s3, s{sCh}\ns_cbranch_scc1 L_poll")
        e("L_pollok:")
        stamp(fin)
        e(f"s_mov_b32 s{sOo}, s{sX}")
        def xloads(pol):
            e(f"buffer_load_dwordx4 v[32:35], v{vSt}, s[{sW}:{sW+3}], s{sMb} offen offset:256{pol}")
            for k in range(8):
                e(f"buffer_load_dwordx4 v[{rcv(k)}:{rcv(k)+3}], {xa(k)}{pol}")
                if k % 2 == 1 and k < 7: e(f"s_add_u32 s{sOo}, s{sOo}, 4096")
        xloads(xld)
        e(f"buffer_load_dword v2, v3, s[{sW}:{sW+3}], s{sPw} offen offset:128 sc1")
        fstamp(fin, 9); fstamp(fin, 0)
        for qt in range(2):
            fo, fx, t = 36+2*qt, 40+2*qt, 44+qt
            e(f"v_min_f32 v{t}, v{4+qt}, v{32+qt}\nv_sub_f32 v{fo}, v{t}, v{4+qt}\nv_sub_f32 v{fx}, v{t}, v{32+qt}\nv_exp_f32 v{fo}, v{fo}\nv_exp_f32 v{fx}, v{fx}")
        for qt in range(2):
            fo, fx, t = 36+2*qt, 40+2*qt, 44+qt
            e(f"v_mul_f32 v{t}, v{fo}, v{6+qt}\nv_fma_f32 v{t}, v{fx}, v{34+qt}, v{t}\nv_rcp_f32 v{t}, v{t}")
        for qt in range(2):
            fo, fx, t = 36+2*qt, 40+2*qt, 44+qt
            e(f"v_mul_f32 v{fo}, v{fo}, v{t}\nv_mul_f32 v{fx}, v{fx}, v{t}")
        for r in range(0, 64, 2):
            fo = 36 + 2*((r//4) % 2)
            e(f"v_pk_mul_f32 v[{vO+r}:{vO+r+1}], v[{vO+r}:{vO+r+1}], v[{fo}:{fo+1}] op_sel_hi:[1,0]")
        def comb(dt, qt):
            o = vO + 8*dt + 4*qt; p = rcv(dt) + 2*qt; u = 48 + 4*((2*dt+qt) % 4); fx = 40+2*qt
            e(f"v_lshlrev_b32 v{u}, 16, v{p}\nv_and_b32 v{u+1}, 0xffff0000, v{p}\nv_lshlrev_b32 v{u+2}, 16, v{p+1}\nv_and_b32 v{u+3}, 0xffff0000, v{p+1}")
            e(f"v_pk_fma_f32 v[{o}:{o+1}], v[{u}:{u+1}], v[{fx}:{fx+1}], v[{o}:{o+1}] op_sel_hi:[1,0,1]")
            e(f"v_pk_fma_f32 v[{o+2}:{o+3}], v[{u+2}:{u+3}], v[{fx}:{fx+1}], v[{o+2}:{o+3}] op_sel_hi:[1,0,1]")
            e(f"v_cvt_pk_bf16_f32 v{o}, v{o}, v{o+1}\nv_cvt_pk_bf16_f32 v{o+1}, v{o+2}, v{o+3}")
        def dsw(dt, qt):
            o = vO + 8*dt + 4*qt
            e(f"ds_write_b64 v{vEw}, v[{o}:{o+1}] offset:{4352*qt+32*dt}")
        def retag():
            e(f"v_readfirstlane_b32 s3, v2\ns_cmp_eq_u32 s3, s{sT1}\ns_cbranch_scc1 L_tagok")
            e(f"buffer_wbl2 sc1\ns_waitcnt vmcnt(0)\nbuffer_store_dword v2, v3, s[{sW}:{sW+3}], s{sPw} offen sc1")
            e("L_tagok:")
        if q4:
            e(f"s_add_u32 s{sOo}, s{sX}, 8192")
            stq = []
            for n_, (h, qt) in enumerate(((0, 0), (0, 1), (1, 0), (1, 1))):
                for k, dt in enumerate(range(4*h, 4*h+4)):
                    comb(dt, qt)
                    if k in (1, 2) and stq: e(stq.pop(0))
                for dt in range(4*h, 4*h+4): dsw(dt, qt)
                for m in range(2):
                    r = 192 + 8*n_ + 4*m
                    e(f"ds_read_b128 v[{r}:{r+3}], v{vEr} offset:{272*(16*qt+8*m)+128*h}")
                    stq.append(f"buffer_store_dwordx4 v[{r}:{r+3}], v21, s[{sO}:{sO+3}], s{sOo if m else sX} offen offset:{512*qt+128*h}{polO}")
                if n_ == 0: e("s_waitcnt vmcnt(1)")
            fstamp(fin)
            for x in stq: e(x)
            retag()
        else:
            for dt in range(8):
                for qt in range(2):
                    comb(dt, qt)
                    if qt == 1 and dt % 2 == 1:
                        for d2 in (dt-1, dt):
                            for q2 in range(2): dsw(d2, q2)
            fstamp(fin)
            korder = [0, 4, 1, 5, 2, 6, 3, 7]
            for n_, k in enumerate(korder): e(f"ds_read_b128 v[{192+4*n_}:{192+4*n_+3}], v{vEr} offset:{1088*k}")
            retag()
            for k in range(8):
                e(f"buffer_store_dwordx4 v[{192+4*k}:{192+4*k+3}], v{vOg}, s[{sO}:{sO+3}], s{sX} offen offset:{512*(k%2)}{polO}")
                if k % 2 == 1 and k < 7: e(f"s_add_u32 s{sX}, s{sX}, 4096")
        fstamp(fin)
    endseg = Seg("end"); e = endseg.a
    if stamps:
        e("s_waitcnt vmcnt(0)")
        stamp(endseg)
        e(f"s_lshl_b32 s3, s2, 2\ns_add_u32 s3, s3, s{sWv}\ns_lshl_b32 s3, s3, 9\nv_lshlrev_b32 v{vSt}, 3, v0")
        e(f"buffer_store_dwordx2 v[10:11], v{vSt}, s[{sW}:{sW+3}], s3 offen")
    if probe is not None:
        e("s_waitcnt vmcnt(0)")
        stamp(endseg)
        e(f"s_sub_u32 s94, s94, s96\ns_add_u32 s94, s94, 2500\nL_pad:\ns_memrealtime s[98:99]\ns_waitcnt lgkmcnt(0)\ns_sub_u32 s3, s98, s96\ns_cmp_lt_u32 s3, s94\ns_cbranch_scc1 L_pad")
    if padto:
        e(f"s_waitcnt vmcnt(0)\nL_pad:\ns_memrealtime s[98:99]\ns_waitcnt lgkmcnt(0)\ns_sub_u32 s3, s98, s96\ns_cmp_lt_u32 s3, {int(padto*100)}\ns_cbranch_scc1 L_pad")
    e("L_end:\ns_endpgm")
    rares = []
    for ret, i in ((0, 0), (1, 1), (2, NB-2), (3, NB-4), (4, NB-3))[:5 if peel else 3] + tuple((5+k, k) for k in range(nser if tpl else 0)):
        r = Seg(f"rare{ret}"); e = r.a
        S = vS[(i+1)%2]; S2 = vS[i%2]
        e(f"L_rare{ret}:")
        rowmax(r, S, True)
        e("v_exp_f32 v6, -v1\nv_exp_f32 v7, -v4")
        for qt, d, al in ((0, 1, 6), (1, 4, 7)):
            for k in range(4): e(f"v_sub_f32 v{vCn+4*qt+k}, v{vCn+4*qt+k}, v{d}")
            for k in range(8): e(f"v_sub_f32 v{S+8*qt+k}, v{S+8*qt+k}, v{d}")
            if ret != 2:
                for k in range(8): e(f"v_sub_f32 v{S2+8*qt+k}, v{S2+8*qt+k}, v{d}")
            e(f"v_mul_f32 v{vL+qt}, v{al}, v{vL+qt}")
        pend = [NB-2] if ret == 2 else []
        if dfr and ret in (2, 3, 4): pend = list(range(NB-4, i+1))
        for n in pend:
            for k in range(8):
                p = Pbuf(n) + k; al = 6 + k//4
                e(f"v_lshlrev_b32 v{vPf}, 16, v{p}\nv_and_b32 v{vPf+1}, 0xffff0000, v{p}\nv_mul_f32 v{vPf}, v{al}, v{vPf}\nv_mul_f32 v{vPf+1}, v{al}, v{vPf+1}\nv_cvt_pk_bf16_f32 v{p}, v{vPf}, v{vPf+1}")
        for x in softmax_q(i+1, merge=False, pipe=True): r.add(x)
        for k in range(128): e(f"v_mul_f32 v{vO+k}, v{6+(k//4)%2}, v{vO+k}")
        e(f"s_nop 1\ns_branch L_back{ret}")
        rares.append(r)
    if "oob" in exp: pro.a(f"s_mov_b32 s{sK+2}, 0\ns_mov_b32 s{sV+2}, 0")
    if "l2hot" in exp:
        for x in body.ins:
            if x.text.startswith(f"s_add_u32 s{sOK}, s{sOK}, 16384") or x.text.startswith(f"s_add_u32 s{sOV}, s{sOV}, 16384"): x.text = "s_nop 0"
    if exp:
        nb = []
        for x in body.ins:
            if "nolds" in exp and x.kind == "dsr": continue
            if "novalu" in exp and x.kind in ("valu","trans") and not x.text.startswith("v_add_u32") and not x.text.startswith("v_cmp") and not x.text.startswith("v_writelane"): continue
            if "nodma" in exp and x.kind == "dma": continue
            if "nomfma" in exp and x.kind == "mfma": continue
            if "nobar" in exp and (x.kind == "barrier" or (x.kind == "wait" and x.vm is not None)): continue
            if "nomax" in exp and x.text.startswith("v_max"): continue
            nb.append(x)
        body.ins = nb
    order = [pro, warm, body, tail] + sends + [fin, endseg, pollb, zseg] + rares
    traces = [[pro, warm, body, body, body, tail, s, fin, endseg] for s in sends]
    fix_waits(traces, verbose)
    for s in order: merge_waits(s)
    fix_waits(traces, verbose)
    def upto(seg, lab):
        s = Seg(seg.name+"_pre"); k = [i.text for i in seg.ins].index(lab); s.ins = seg.ins[:k]
        s2 = Seg(seg.name+"_post"); s2.ins = seg.ins[k:]; return s, s2
    pw = [pro, warm]
    cases = [(0, body, pw+[body], [body]), (1, body, pw+[body], [body]), (1, body, pw+[body], [tail]), (2, tail, pw+[body], [sends[0]])]
    if peel: cases += [(3, tail, pw+[body], []), (4, tail, pw+[body], [])]
    cases += [(5+k, warm, [pro], [body]) for k in range(nser if tpl else 0)]
    for ret, seg, prev, nxt in cases:
        p, q = upto(seg, f"L_back{ret}:")
        n0 = [len(x.ins) for x in [p, q] + nxt]
        fix_waits([prev + [p, rares[ret], q] + nxt], verbose)
        assert exp or [len(x.ins) for x in [p, q] + nxt] == n0, "rare path needs extra waits outside"
    if zseg.ins and not xpad2:
        labs = [k for k, x in enumerate(zseg.ins) if x.kind == "label" and x.text.startswith("L_zero") and not x.text.endswith("b:")] + [len(zseg.ins)]
        parts = []
        for n_ in range(len(labs)-1):
            zp = Seg(f"zero{n_}"); zp.ins = zseg.ins[labs[n_]:labs[n_+1]]; parts.append(zp)
            p, q = upto(body, f"L_zback{n_}:")
            n0 = [len(p.ins), len(q.ins)]
            fix_waits([[pro, warm, p, zp, q]], verbose)
            assert exp or [len(p.ins), len(q.ins)] == n0, "zero block needs extra waits outside"
        zseg.ins = [x for zp in parts for x in zp.ins]
    lds = SPARE + KS
    txt = header + f"; @launch grid=(256,1,1) block=(256,1,1) lds={lds}\n"
    txt += f'.amdgcn_target "amdgcn-amd-amdhsa--gfx950"\n.text\n.globl {KN}\n.p2align 8\n.type {KN},@function\n{KN}:\n'
    body_txt = emit(order)
    if align is not None:
        body_txt = body_txt.replace("L_loop:\n", f".p2align {align[0]}\n" + "  s_nop 0\n"*align[1] + "L_loop:\n")
    txt += body_txt + "\nL_codeend:\n"
    txt += f'''.section .rodata,"a"
.p2align 6
.amdhsa_kernel {KN}
  .amdhsa_next_free_vgpr 452
  .amdhsa_next_free_sgpr 102
  .amdhsa_accum_offset 256
  .amdhsa_group_segment_fixed_size 0
  .amdhsa_kernarg_size 48
  .amdhsa_user_sgpr_count 2
  .amdhsa_user_sgpr_kernarg_segment_ptr 1
  .amdhsa_system_sgpr_workgroup_id_x 1
.end_amdhsa_kernel
'''
    return txt
if __name__ == "__main__":
    kw = eval("dict(" + (sys.argv[1] if len(sys.argv) > 1 else "") + ")")
    print(gen(**kw))
```

```python
import sys, math, struct
from asmlib import *
KN = "standalone__gqa_softmax__near_ridge_kernel"
def f2u(x): return struct.unpack("<I", struct.pack("<f", x))[0]
RS = 1056; KS = VS = 16*RS
KB = [i*KS for i in range(4)]
VB = [4*KS + i*VS for i in range(4)]
SPARE = 8*KS
C_SCALE = math.log2(math.e)/16.0
NB = 16
vOg, vEw, vEr, vSt = 12, 13, 14, 15
vKa, vVa, vDma, vDmaV, vMx = 16, 17, 18, 19, 20
vL = 22
vLb = 8
vPf = 80
vCn = 24
vP = [32, 40]; vS = [48, 64]; vTmp = 96; vO = 128
aQ, aKF, aVF = 0, 64, 128
sQ, sK, sV, sO, sW = 16, 20, 24, 28, 32
sWv, sOK, sOV, sMK, sMV, sCnt, sC, sDK, sDV, sXcc, sKh, sT0, sT1, sOo, sX = 40,41,42,43,44,45,46,47,48,49,50,51,52,53,54
sDK2, sDV2, sPw, sMb, sCh = 55, 56, 57, 58, 59
XBASE = 1 << 20

def gen(polK=" nt", polV=" nt", polQ="", ndef=0, polO="", stamps=False, T=8.0, verbose=False, header="", padto=0, exp=(),
        fast=True, pxor=16, bg=53, dmagaps=(57,1,9,17,25,33,41,49), npre=5, wgrp=2, smend=60, late=1.6, xld=' sc1', xpoll=' sc1', fine=False, xpad=None, xstag=0, probe=None, cpf=True, btx=7, tagg=36, nq0=11, zsplit=(0,0,0), zgap=(30,46), otouch=False, peel=True, mergeb=False, prefmode=1, stag=None, p2=True, xdelay=None, dfr=True, dpf=13, n12=0, dbg_=33, dtag=68, xsw=False, prefw=None, h2=False, tga=21,  k1late=True, k4late=0, kcatch=0, k1bar=2, y2=True, nser=4, sergap=(60,)*8, cskip=('L_end','L_end'), ttouch=0, tpl=True, tE=(0,4,8,12,16,20,24,28,32,36,40,43,46,50,53,56), tD=(54,2,9,17,25,33,38,45), tbg=49, tdbl=(14,30), tzs=(30,42), align=None, pref13=True, q4=True, ilv=None, dsm0=True, lazy=0, pref12=False, xpad2=None, st256=True, ptrips=(4,3,2), pcont=False, ppol=''):
    nst = [0]
    def stamp(seg):
        if probe is not None:
            if nst[0] == probe: seg.a("s_waitcnt lgkmcnt(0)\ns_memrealtime s[94:95]\ns_waitcnt lgkmcnt(0)")
            nst[0] += 1
        if stamps:
            seg.a(f"s_waitcnt lgkmcnt(0)\ns_memtime s[64:65]\ns_memrealtime s[66:67]\ns_waitcnt lgkmcnt(0)\nv_writelane_b32 v10, s64, {nst[0]}\nv_writelane_b32 v11, s66, {nst[0]}"); nst[0] += 1
    nf = [32]
    def fstamp(seg, vm=None):
        if stamps and fine:
            if vm is not None: seg.a(f"s_waitcnt vmcnt({vm})")
            sv = nst[0]; nst[0] = nf[0]; stamp(seg); nf[0] += 1; nst[0] = sv
    pro = Seg("prologue"); a = pro.a
    a(f"s_cmp_ge_u32 s2, 256\ns_cbranch_scc1 L_end")
    a("s_load_dwordx8 s[4:11], s[0:1], 0\ns_load_dwordx2 s[14:15], s[0:1], 40")
    if padto or probe is not None: a("s_memrealtime s[96:97]")
    stamp(pro)
    if xdelay is not None:
        a(f"s_bitcmp1_b32 s2, {xdelay}\ns_cbranch_scc0 L_nodly\ns_mov_b32 s3, 12\nL_dly:\ns_sleep 127\ns_sub_u32 s3, s3, 1\ns_cbranch_scc0 L_dly\nL_nodly:")
    if xstag:
        a(f"s_bitcmp1_b32 s2, 5\ns_cbranch_scc0 L_nostag\ns_sleep {xstag}\nL_nostag:")
    a("v_lshrrev_b32 v1, 6, v0\nv_and_b32 v0, 63, v0")
    a(f"v_readfirstlane_b32 s{sWv}, v1")
    if cpf:
        a(f"s_getpc_b64 s[36:37]\ns_lshr_b32 s3, s2, 3\ns_lshl_b32 s3, s3, 2\nv_add_u32 v4, s3, v1\nv_lshlrev_b32 v4, 1, v4\nv_add_u32 v4, v4, v0\nv_lshlrev_b32 v4, 7, v4")
        if cskip and cskip[0] != cskip[1]:
            a(f"v_mov_b32 v5, {cskip[1]}-{cskip[0]}\nv_cmp_le_u32 vcc, {cskip[0]}-{KN}, v4\nv_cndmask_b32 v5, 0, v5, vcc\nv_add_u32 v4, v4, v5")
        a(f"v_min_u32 v4, {'L_end' if cskip else 'L_codeend'}-{KN}-256, v4\nv_mov_b32 v5, s37\nv_add_co_u32 v4, vcc, s36, v4\ns_nop 1\nv_addc_co_u32 v5, vcc, 0, v5, vcc")
        a("s_mov_b64 exec, 3")
        y = I("global_load_dword a192, v[4:5], off", "vld", rd=["v4", "v5"]); pro.add(y)
        a("s_mov_b64 exec, -1")
    a(f"v_lshlrev_b32 v{vDma}, 4, v0")
    if pxor == 16:
        a(f"s_mov_b32 s{sX}, s2")
    else:
        a(f"s_and_b32 s{sX}, s2, 0xee\ns_bfe_u32 s3, s2, 0x10004\ns_or_b32 s{sX}, s{sX}, s3\ns_and_b32 s3, s2, 1\ns_lshl_b32 s3, s3, 4\ns_or_b32 s{sX}, s{sX}, s3")
    a(f"s_and_b32 s{sT0}, s{sX}, 7\ns_lshr_b32 s{sT1}, s{sX}, 3\ns_lshl_b32 s{sT0}, s{sT0}, 3")
    a(f"s_lshr_b32 s3, s{sT1}, 2\ns_add_u32 s{sT0}, s{sT0}, s3")
    a(f"s_bfe_u32 s{sKh}, s{sT1}, 0x10001")
    a(f"s_and_b32 s{sT1}, s{sT1}, 1\ns_lshl_b32 s3, s{sT0}, 1\ns_add_u32 s{sT1}, s{sT1}, s3")
    a(f"s_lshl_b32 s{sT1}, s{sT1}, 16")
    a(f"s_lshl_b32 s{sT0}, s{sT0}, 19\ns_lshl_b32 s3, s{sKh}, 18\ns_add_u32 s{sT0}, s{sT0}, s3")
    a(f"s_mov_b32 s{sX}, {KB[3]}\ns_cmp_eq_u32 s{sWv}, 1\ns_cselect_b32 s{sX}, {VB[2]}, s{sX}")
    a(f"s_cmp_eq_u32 s{sWv}, 2\ns_cselect_b32 s{sX}, {VB[3]}, s{sX}\ns_cmp_eq_u32 s{sWv}, 3\ns_cselect_b32 s{sX}, {SPARE}, s{sX}")
    a(f"s_lshl_b32 s{sOo}, s{sWv}, 14")
    a(f"s_lshl_b32 s{sOK}, s{sWv}, 12\ns_mov_b32 s{sOV}, s{sOK}")
    a(f"s_mul_i32 s{sMK}, s{sWv}, {4*RS}\ns_add_u32 s{sMV}, s{sMK}, {VB[0]}")
    a(f"s_mov_b32 s{sQ+2}, 65536\ns_mov_b32 s{sQ+3}, 0x20000\ns_mov_b32 s{sK+2}, {NB*16384}\ns_mov_b32 s{sK+3}, 0x20000\ns_mov_b32 m0, s{sMK}")
    a(f"s_mov_b32 s{sDK2}, {2*KS}\ns_mov_b32 s{sDV2}, {2*VS}\ns_mov_b32 s{sDK}, {2*KS}\ns_mov_b32 s{sDV}, {2*VS}")
    a(f"s_lshl_b32 s{sMb}, s2, 2\ns_add_u32 s{sMb}, s{sMb}, s{sWv}\ns_lshl_b32 s{sMb}, s{sMb}, 11\ns_add_u32 s{sMb}, s{sMb}, {XBASE}")
    a(f"s_mov_b32 s{sW+2}, {3*XBASE}\ns_mov_b32 s{sW+3}, 0x20000\nv_lshlrev_b32 v3, 7, v0")
    a(f"s_getreg_b32 s{sXcc}, hwreg(HW_REG_XCC_ID)\ns_and_b32 s{sXcc}, s{sXcc}, 15")
    a("v_lshrrev_b32 v6, 3, v0\nv_and_b32 v7, 6, v6\nv_xor_b32 v7, v7, v0\nv_and_b32 v7, 7, v7\nv_lshlrev_b32 v7, 4, v7\nv_lshl_add_u32 v6, v6, 9, v7\nv_xor_b32 v7, 0x200, v6")
    a("s_waitcnt lgkmcnt(0)")
    fstamp(pro)
    def epi_addr(a):
        a(f"v_and_b32 v1, 15, v0\nv_lshrrev_b32 v4, 4, v0\ns_mul_i32 s3, s{sWv}, 8704")
        a(f"v_mul_u32_u24 v5, 272, v1\nv_lshlrev_b32 v21, 3, v4\nv_add3_u32 v{vEw}, v5, v21, s3")
        a(f"v_lshlrev_b32 v21, 4, v1\nv_mul_u32_u24 v5, 272, v4\nv_add3_u32 v{vEr}, v5, v21, s3")
        a(f"v_lshl_add_u32 v{vOg}, v4, 10, v21\nv_mov_b32 v{vSt}, " + ("v21" if st256 else f"v{vDma}"))
        if q4:
            a(f"v_lshrrev_b32 v5, 3, v0\nv_and_b32 v21, 7, v0\nv_lshlrev_b32 v21, 4, v21\nv_mul_u32_u24 v{vEr}, 272, v5\nv_add3_u32 v{vEr}, v{vEr}, v21, s3\nv_lshl_add_u32 v21, v5, 10, v21")
    def setup():
        a(f"s_lshl_b32 s3, s{sKh}, 8\nv_xor_b32 v{vDmaV}, s3, v{vDma}")
        a(f"v_and_b32 v1, 15, v0\nv_lshrrev_b32 v4, 4, v0")
        a(f"v_mul_u32_u24 v2, {RS}, v1\nv_lshl_add_u32 v{vKa}, v4, 4, v2")
        a(f"v_lshrrev_b32 v2, 2, v0\nv_mul_u32_u24 v2, {RS}, v2\nv_and_b32 v3, 3, v0\nv_lshl_add_u32 v2, v3, 3, v2\nv_add_u32 v{vVa}, {VB[0]}, v2")
        a(f"v_lshlrev_b32 v3, 1, v3\nv_lshrrev_b32 v2, 2, v1\nv_and_b32 v5, 1, v2\nv_xor_b32 v5, v5, v3\nv_lshlrev_b32 v5, 7, v5\nv_lshl_add_u32 v5, v2, 10, v5")
        a(f"v_xor_b32 v3, v3, v4\nv_lshl_add_u32 v5, v3, 4, v5")
        a(f"v_add_u32 v28, s{sX}, v5\nv_xor_b32 v3, 128, v5\nv_add_u32 v29, s{sX}, v3\nv_xor_b32 v3, 64, v5\nv_add_u32 v30, s{sX}, v3\nv_xor_b32 v3, 0xc0, v5\nv_add_u32 v31, s{sX}, v3")
        epi_addr(a)
        a(f"s_mov_b32 s{sC}, {f2u(C_SCALE):#x}")
        a(f"v_mov_b32 v{vL}, 0\nv_mov_b32 v{vL+1}, 0\nv_mov_b32 v2, s{sC}")
        for r in range(zsplit[0]): a(f"v_mov_b32 v{vO+r}, 0")
    early = [ndef]
    def dmaK(n, j): return [parse(f"s_add_u32 m0, s{sMK}, {(n%2)*KS+32*j}"),
                            parse(f"buffer_load_dwordx4 v{vDma}, s[{sK}:{sK+3}], s{sOK} offen offset:{1024*j}{'' if n < early[0] else polK} lds")]
    def dmaV(n, j): return [parse(f"s_add_u32 m0, s{sMV}, {(2 if dfr and n == NB-1 else n%2)*VS+32*j}"),
                            parse(f"buffer_load_dwordx4 v{vDmaV}, s[{sV}:{sV+3}], s{sOV} offen offset:{1024*j}{'' if n < early[0] - 3 else polV} lds")]
    def advK(n):
        L = [parse(f"s_add_u32 s{sOK}, s{sOK}, 16384")]
        if n % 2 == 1: L += [parse(f"s_add_u32 s{sMK}, s{sMK}, s{sDK2}"), parse(f"s_sub_u32 s{sDK2}, 0, s{sDK2}")]
        return L
    def advV(n):
        L = [parse(f"s_add_u32 s{sOV}, s{sOV}, 16384")]
        if n % 2 == 1: L += [parse(f"s_add_u32 s{sMV}, s{sMV}, s{sDV2}"), parse(f"s_sub_u32 s{sDV2}, 0, s{sDV2}")]
        return L
    def block(seg, f, adv, n):
        for j in range(4):
            x = f(n, j); seg.add(x[0]); seg.a("s_nop 0"); seg.add(x[1])
        for x in adv(n): seg.add(x)
    def Pbuf(n): return (112, 120)[n-(NB-2)] if dfr and n >= NB-2 else vP[n%2]
    def kread(n, j): return parse(f"ds_read_b128 a[{aKF+4*j}:{aKF+4*j+3}], v{vKa} offset:{(n%2)*KS+64*(j//2)+512*(j%2)}")
    def vread(n, dt, kt, slot=None, va=vVa):
        r = aVF + 4*(dt if slot is None else slot) + 2*kt
        return parse(f"ds_read_b64_tr_b16 a[{r}:{r+1}], v{va} offset:{(2 if dfr and n == NB-1 else n%2)*VS+512*kt+32*dt}")
    def qk(n, g, first0=False):
        j, qt = g//2, g % 2; t, kt = j//2, j % 2
        S = vS[n%2] + 8*qt + 4*kt; f = aKF+4*j; qf = aQ + 4*(2*t+qt)
        c = f"v[{S}:{S+3}]" if t else ("0" if first0 else f"v[{vCn+4*qt}:{vCn+4*qt+3}]")
        i = parse(f"v_mfma_f32_16x16x32_bf16 v[{S}:{S+3}], a[{f}:{f+3}], a[{qf}:{qf+3}], {c}")
        if g % (2*wgrp) == 0: i.extra = set(R("a", f, 4*wgrp))
        return i
    def pv(n, dt, qt, grp=None, slot=None):
        f = aVF+4*(dt if slot is None else slot); o = vO+8*dt+4*qt; p = Pbuf(n)+4*qt
        i = parse(f"v_mfma_f32_16x16x32_bf16 v[{o}:{o+3}], a[{f}:{f+3}], v[{p}:{p+3}], v[{o}:{o+3}]")
        for d2 in (grp or ()): i.extra |= set(R("a", aVF+4*d2, 4))
        return i
    def pvlist(n, dts, slots=None):
        L = []; slots = slots or dts
        for k, dt in enumerate(dts):
            L.append(pv(n, dt, 0, slots[k:k+wgrp] if k % wgrp == 0 else None, slots[k])); L.append(pv(n, dt, 1, None, slots[k]))
        return L
    def checkops():
        return [parse(f"v_max_f32 v{vMx}, v{vLb}, v{vLb+1}"), parse(f"v_cmp_lt_f32 vcc, {f2u(2.0**T):#x}, v{vMx}")]
    def mergeops(): return [parse(f"v_add_f32 v{vL+qt}, v{vL+qt}, v{vLb+qt}") for qt in range(2)]
    def softmax_q(n, merge=True, pipe=False):
        S = vS[n%2]; P = Pbuf(n)
        E = lambda r: parse(f"v_exp_f32 v{vPf+r}, v{S+r}")
        def A(r):
            if r % 8 == 1: return parse(f"v_add_f32 v{vLb+r//8}, v{vPf+r-1}, v{vPf+r}")
            return parse(f"v_add_f32 v{vLb+r//8}, v{vLb+r//8}, v{vPf+r}")
        Cv = lambda p: parse(f"v_cvt_pk_bf16_f32 v{P+p}, v{vPf+2*p}, v{vPf+2*p+1}")
        q = []
        if pipe:
            for r in range(17):
                if r < 16: q.append(E(r))
                if r >= 1 and (r-1) % 8: q.append(A(r-1))
                if r >= 2 and r % 2 == 0: q.append(Cv(r//2-1))
            return q
        mg = mergeops() if merge else []
        for r in range(16):
            q.append(E(r))
            if r % 8 == 0:
                if mg: q.append(mg.pop(0))
            else: q.append(A(r))
            if r % 2 == 1: q.append(Cv(r//2))
        return q
    def spread(ops, g0, g1):
        tot = sum(x.cost for x in ops); c = 0; out = []
        for x in ops:
            out.append((x, g0 + (g1-g0)*c/max(tot-ops[-1].cost, 1), g0)); c += x.cost
        return out
    def post(x): x.tag = "post"; return x
    def schedule(seg, mf, streams, sca, label="", cap=2, lastempty=False):
        n = len(mf); streams = [list(s) for s in streams if s]
        nm = n
        if lastempty: n -= 1
        for g in range(nm):
            seg.add(mf[g])
            s_ = sca.get(g, [])
            pre = [x for x in s_ if x.tag != "post"]; pst = [x for x in s_ if x.tag == "post"]
            wsh = 1 if (g+1 < nm and mf[g+1].extra) else 0
            free = cap - max(0, len(pre)+wsh-1) - len([x for x in pst if x.kind != "label"])
            mem = []; val = []
            while True:
                cands = [s for s in streams if s and s[0][2] <= g]
                if val: cands = [s for s in cands if s[0][0].kind not in ("dsr","dsw","dma","vst","vld")] + [s for s in cands if s[0][0].kind in ("dsr","dsw","dma","vst","vld")]
                cands.sort(key=lambda s: s[0][1])
                pick = None
                for s in cands:
                    x, tg, _ = s[0]
                    if g < n-1 and tg > g + 1.0 and (mem or val): continue
                    if g < n-1 and tg > g + 2.0: continue
                    if val and val[-1].kind == "trans" and (x.rd & val[-1].wr) and g < n-1: continue
                    if x.cost <= free or tg <= g - late or g == n-1: pick = s; break
                if pick is None: break
                x = pick.pop(0)[0]; free -= x.cost
                (mem if x.kind in ("dsr","dsw","dma","vld") else val).append(x)
            row = pre + mem + val + pst
            for x in row: seg.add(x)
            if verbose: print(f"; {label} gap{g}: " + "".join({"dsr":"t","dma":"d","trans":"e","valu":"v","salu":"s","wait":"w","barrier":"B","vst":"S"}.get(x.kind, "?") for x in row))
        assert not any(streams)
    def addf(d, g, *xs): d.setdefault(g, []).extend(xs)
    def rowmax(seg, S, zero):
        for qt, d, t in ((0, 1, 6), (1, 4, 7)):
            b = S + 8*qt
            seg.a(f"v_max3_f32 v{d}, v{b}, v{b+1}, v{b+2}\nv_max3_f32 v{d}, v{d}, v{b+3}, v{b+4}\nv_max3_f32 v{d}, v{d}, v{b+5}, v{b+6}")
            seg.a(f"v_max3_f32 v{d}, v{d}, v{b+7}, 0" if zero else f"v_max_f32 v{d}, v{d}, v{b+7}")
        seg.a("v_mov_b32 v6, v1\nv_mov_b32 v7, v4\nv_permlane16_swap_b32 v6, v1\nv_permlane16_swap_b32 v7, v4\nv_max_f32 v1, v1, v6\nv_max_f32 v4, v4, v7")
        seg.a("v_mov_b32 v6, v1\nv_mov_b32 v7, v4\nv_permlane32_swap_b32 v6, v1\nv_permlane32_swap_b32 v7, v4\nv_max_f32 v1, v1, v6\nv_max_f32 v4, v4, v7")
    NV0 = 4 if tpl else 3
    NK0 = 8 if tpl else 5 if ilv else 6
    def nosh(g):
        while g % (2*wgrp) == 2*wgrp-1: g += 1
        return g
    def iteration(seg, i, ret, do_pv=True, loopend=False, pref=False):
        sca = {}; dm = []
        mf = [qk(i+2, g) for g in range(32)]
        tK = [parse(f"v_add_u32 v{vKa}, s{sDK}, v{vKa}"), parse(f"s_sub_u32 s{sDK}, 0, s{sDK}")]
        tV = [parse(f"v_add_u32 v{vVa}, s{sDV}, v{vVa}"), parse(f"s_sub_u32 s{sDV}, 0, s{sDV}")]
        def place(g, xs):
            for x in xs:
                g = nosh(g)
                while g in sca: g = nosh(g+1)
                addf(sca, g, x); g += 1
            return g
        if do_pv:
            mf += pvlist(i, list(range(16)))
            mf[63].extra = set(R("a", aKF, 4*wgrp))
            mf[0].extra = set()
            dp = dmagaps
            nvm = 12
            if pref and pref12 and prefmode == 1: nvm = 13 if i == NB-3 else 17
            if pref and pref13 and prefmode == 1: nvm = 12 if i == NB-3 else 8
            addf(sca, bg, parse(f"s_waitcnt vmcnt({nvm})"), parse("s_barrier"))
            if loopend:
                addf(sca, 60, parse(f"s_sub_u32 s{sCnt}, s{sCnt}, 1"))
                if ilv: addf(sca, 63, parse(f"s_cmp_lg_u32 s{sCnt}, 0"))
                else: addf(sca, 61, parse(f"s_cmp_lg_u32 s{sCnt}, 0"))
            last = i == NB-3
            for k in range(1, 8):
                if pref and k >= 4 and prefmode == 1:
                    if pref12 or pref13:
                        kks = [] if last != pref13 else [(2*(k-4), dp[k]-4), (2*(k-4)+1, dp[k])]
                    else: kks = [(4*(i % 2) + k - 4, dp[k])]
                    for kk, gg in kks:
                        y = parse(f"buffer_load_dwordx4 a[192:195], v{vOg}, s[{sO}:{sO+3}], s{sT0} offen offset:{512*(kk%2)}{ppol}"); y.wr = set()
                        if kk % 2 == 1: addf(sca, gg+1, parse(f"s_add_u32 s{sT0}, s{sT0}, 4096"))
                        dm.append((y, gg-3, gg))
                    if pref12 and not last and k == 7:
                        y = parse(f"buffer_load_dwordx4 a[192:195], v{vSt}, s[{sW}:{sW+3}], s{sMb} offen offset:256"); y.wr = set()
                        dm.append((y, dp[k]-1, dp[k]+2))
                    continue
                x = dmaV(i+2, k) if k < 4 else dmaK(i+5, k-4)
                addf(sca, dp[k]-1, x[0]); dm.append((x[1], dp[k]-3, dp[k]))
            if last:
                if not (pref12 and prefmode == 1):
                    y = parse(f"buffer_load_dwordx4 a[192:195], v{vSt}, s[{sW}:{sW+3}], s{sMb} offen offset:256"); y.wr = set()
                    dm.append((y, dp[0]-3, dp[0]))
            else:
                x = dmaV(i+3, 0); addf(sca, dp[0]-1, x[0]); dm.append((x[1], dp[0]-3, dp[0]))
            if not last: assert place(dp[3]+1, advV(i+2)) < dp[0]
            if not (pref and prefmode == 1): assert place(dp[7]+1, advK(i+5)) <= 60
            r1 = [kread(i+2, j) for j in range(NK0, 16)] + [vread(i, dt, kt) for dt in range(16) for kt in range(2)]
            nxt = [vread(i+1, dt, kt) for dt in range(8, 8+NV0) for kt in range(2)] if last else [kread(i+3, j) for j in range(NK0)]
            if last: mf[63].extra = set(R("a", aVF+32, 4*wgrp))
            rd = spread(r1, 0, bg-1) + [(y, t, bg+(2 if last else 1)) for (y, t, _) in spread(nxt, bg+1, 61)]
            rdv = []
            if ilv:
                lead = 64 - (bg+1)
                rd = [(kread(i+2, j), 2*j - lead, 0) for j in range(NK0, 16)]
                k_end = 30 - lead
                nslow = int(k_end * ilv[0])
                vr = [vread(i, dt, kt) for dt in range(16) for kt in range(2)]
                rdv = spread(vr[:nslow], 1, k_end) + [(y, t, 0) for (y, t, _) in spread(vr[nslow:], k_end+1, ilv[1])]
                if last: rdv += [(y, t, bg+2) for (y, t, _) in spread(nxt, ilv[1]+1.5, 62)]
                else: rd += [(y, bg+1+2*j, bg+1) for j, y in enumerate(nxt)]
            tg = []
            if i % 2 == 1:
                if ilv: tg = [(tK[0], 26, 26), (tV[0], ilv[1], ilv[1]+1)]; place(29, [tK[1]]); addf(sca, 62, post(tV[1]))
                else: tg = [(tK[0], 16, 16), (tV[0], bg-1, bg+1)]; place(21, [tK[1]]); assert place(bg+4, [tV[1]]) <= 60
            n0 = len(seg.ins)
            schedule(seg, mf, [dm, rd, rdv, tg, spread(softmax_q(i+1) + checkops(), 0, smend)], sca, label=f"it{i}", lastempty=True)
            tx = [x.text for x in seg.ins[n0:]]
            if i % 2 == 1:
                assert tx.index(kread(i+2, 15).text) < tx.index(tK[0].text) < tx.index(tK[1].text) < tx.index(nxt[0].text)
                assert tx.index(vread(i, 15, 1).text) < tx.index(tV[0].text) < tx.index(tV[1].text)
                if last: assert tx.index(tV[0].text) < tx.index(nxt[0].text)
            assert tx.index("s_barrier") < len(tx) - 1 - tx[::-1].index(nxt[0].text)
            seg.a(f"s_cbranch_vccnz L_rare{ret}\nL_back{ret}:")
        else:
            for k, g in enumerate((1, 5, 9, 13, 17, 21, 25, 29)):
                x = dmaV(i+2, k) if k < 4 else dmaK(i+5, k-4)
                addf(sca, g-1, x[0]); dm.append((x[1], g-3, g))
            place(14, advV(i+2)); place(30, advK(i+5))
            rd = spread([kread(i+2, j) for j in range(NK0, 16)], 0, 16)
            schedule(seg, mf, [dm, rd, spread(softmax_q(i+1, merge=False), 0, 31)], sca, label=f"it{i}")
            seg.add(tK[0]); seg.add(tK[1])
            seg.a("s_waitcnt vmcnt(12)\ns_barrier")
            for j in range(NK0): seg.add(kread(i+3, j))
            x = dmaV(i+3, 0); seg.add(x[0]); seg.a(f"buffer_load_dword v2, v3, s[{sW}:{sW+3}], s{sPw} offen offset:128 sc1"); seg.add(x[1])
            if otouch:
                y = parse(f"buffer_load_dword a192, v3, s[{sO}:{sO+3}], s{sOo} offen"); y.wr = set(); seg.add(y)
            seg.a(f"s_waitcnt lgkmcnt({NK0-wgrp})")
    sThr, sThr2 = 60, 61
    def iteration2(seg, i, ret, loopend=False, pref=False, zsites=False, serial=None, inl=None, xk=(), kl=5):
        last = i == NB-3; bg_ = tbg
        mf = [qk(i+2, g) for g in range(32)] + pvlist(i, list(range(16)))
        mf[63].extra = set(R("a", aVF+32 if last else aKF, 4*wgrp)); mf[0].extra = set()
        sh = {g: [] for g in range(64)}; mem = {g: [] for g in range(64)}; val = {g: [] for g in range(64)}
        resv = {g for g in range(63) if mf[g+1].extra}
        def place(g, xs):
            for x in xs:
                while g in resv or sh[g] or g == bg_: g += 1
                assert g < 63
                sh[g].append(x); g += 1
            return g
        nvm = 12
        if pref and prefmode == 1: nvm = 12 if last else 8
        if pref and prefw is not None: nvm = 4 if last else 8
        if serial is not None and i == prefw: nvm = 21
        if kl == 4: nvm = 8
        assert bg_-1 not in resv or True
        sh[bg_ if (bg_-1) in resv else bg_-1].append(parse(f"s_waitcnt vmcnt({nvm})")); sh[bg_].append(parse("s_barrier"))
        if zsites:
            for n_, zg in enumerate(tzs):
                assert zg not in resv and zg-1 not in resv and zg not in tD and zg-1 not in tD
                sh[zg-1].append(parse(f"s_cmp_eq_u32 s{sCnt}, {NTRIP-1}")); sh[zg] += [parse(f"s_cbranch_scc1 L_zero{n_}"), parse(f"L_zback{n_}:")]
        nxt = [vread(i+1, dt, kt) for dt in range(8, 8+NV0) for kt in range(2)] if last else [kread(i+3, j) for j in range(NK0)]
        reads = [kread(i+2, j) for j in range(NK0, 16)] + [vread(i, dt, kt) for dt in range(16) for kt in range(2)] + nxt
        slots = []
        for g in range(63):
            if g not in tE and g != bg_: slots += [g, g] if g in tdbl else [g]
        assert len(slots) == len(reads), (len(slots), len(reads))
        for g, x in zip(slots, reads): mem[g].append(x)
        gpos = {x.text: g for g, x in zip(slots[:40], reads[:40])}
        assert slots[40] > bg_
        def putv(g, y): mem[g].append(y)
        for k in range(8):
            g = tD[k]; assert g not in resv and g not in tE and not sh[g]
            if k == 0:
                if last and prefw is not None: pass
                elif last:
                    y = parse(f"buffer_load_dwordx4 a[192:195], v{vSt}, s[{sW}:{sW+3}], s{sMb} offen offset:256"); y.wr = set(); putv(g, y)
                else: x = dmaV(i+3, 0); sh[g].append(x[0]); putv(g, x[1])
            elif k >= 4 and pref and prefmode == 1:
                pass
            else:
                x = dmaV(i+2, k) if k < 4 else dmaK(i+kl, k-4); sh[g].append(x[0]); putv(g, x[1])
        g = 1
        for n in xk:
            for j in range(4):
                while g in resv or sh[g] or g in tD or len(mem[g]) != 1: g += 1
                x = dmaK(n, j); sh[g].append(x[0]); putv(g, x[1]); g += 1
            g = place(g, advK(n))
        assert g <= tD[4]
        thr = f"s{sThr}"
        if loopend:
            g = 56
            while g in resv or sh[g] or g+1 in resv or sh[g+1]: g += 1
            sh[g].append(parse(f"s_sub_u32 s{sCnt}, s{sCnt}, 1")); sh[g+1].append(parse(f"s_cselect_b32 s{sThr2}, -1.0, s{sThr}")); thr = f"s{sThr2}"
        if not last: assert place(tD[3]+1, advV(i+2)) <= tD[0]
        if not (pref and prefmode == 1): assert place(tD[7]+1, advK(i+kl)) <= 63
        q = softmax_q(i+1) + [parse(f"v_max_f32 v{vMx}, v{vLb}, v{vLb+1}"), parse(f"v_cmp_lt_f32 vcc, {thr}, v{vMx}")]
        blk = []
        if serial is not None:
            blk = mergeops() + softmax_q(i+1, merge=False, pipe=True) + q[-2:]; q = []
        ex = [x for x in q if x.kind == "trans"]; ot = []; ne = 0
        for x in q:
            if x.kind == "trans": ne += 1
            else: ot.append((x, tE[ne-1]+1))
        for g, x in zip(tE, ex): val[g].append(x)
        if i % 2 == 1:
            tK = [parse(f"v_add_u32 v{vKa}, s{sDK}, v{vKa}"), parse(f"s_sub_u32 s{sDK}, 0, s{sDK}")]
            tV = [parse(f"v_add_u32 v{vVa}, s{sDV}, v{vVa}"), parse(f"s_sub_u32 s{sDV}, 0, s{sDV}")]
            gk = gpos[kread(i+2, 15).text]; gv = slots[39]
            for t, g0 in ((tK, gk), (tV, gv)):
                g = g0
                while (g in tE or g == bg_ or len(mem[g]) + len(val[g]) >= 2) and not (t is tV and last): g += 1
                if t is tV and last: assert g < slots[40]
                val[g].append(t[0]); place(g+1, [t[1]])
        g = 0
        for x, e0 in ot:
            g = max(g, e0)
            while g in tE or g == bg_ or len(mem[g]) + len(val[g]) >= 2: g += 1
            assert g < 62, (i, x.text)
            val[g].append(x); g += 1
        if serial is not None and i == prefw:
            cand = [g for g in range(0, tD[3]) if len(mem[g]) + len(val[g]) < 2][:9]
            assert len(cand) == 9
            for kk, g in enumerate(cand):
                if kk < 8: y = parse(f"buffer_load_dwordx4 a[192:195], v{vOg}, s[{sO}:{sO+3}], s{sT0} offen offset:{512*(kk%2)}{ppol}")
                else: y = parse(f"buffer_load_dwordx4 a[192:195], v{vSt}, s[{sW}:{sW+3}], s{sMb} offen offset:256")
                y.wr = set(); putv(g, y)
                if kk % 2 == 1 and kk < 7: val[g].append(parse(f"s_add_u32 s{sT0}, s{sT0}, 4096"))
        if last and pref and prefmode == 1 and prefw is None:
            cand = [g for g in range(tD[3]+1, bg_-1) if g not in tE and len(mem[g]) + len(val[g]) < 2]
            extra = [g for g in range(tD[3]+1, bg_-1) if g not in tE and g not in cand and g not in tdbl]
            while len(cand) < 8: cand.append(extra.pop(len(extra)//2))
            cand.sort(); cand = cand[:8]
            for kk, g in enumerate(cand):
                y = parse(f"buffer_load_dwordx4 a[192:195], v{vOg}, s[{sO}:{sO+3}], s{sT0} offen offset:{512*(kk%2)}{ppol}"); y.wr = set(); putv(g, y)
                if kk % 2 == 1 and kk < 7: val[g].append(parse(f"s_add_u32 s{sT0}, s{sT0}, 4096"))
        for g in range(64):
            seg.add(mf[g])
            row = sh[g] + [x for x in mem[g] if x.kind == "dsr"] + [x for x in mem[g] if x.kind != "dsr"] + val[g] + (blk if g == serial else []) + ((inl or {}).get(g) or [])
            for x in row: seg.add(x)
            if verbose: print(f"; it{i} gap{g}: " + ("w" if g in resv else "") + "".join({"dsr":"t","dma":"d","vld":"d","trans":"e","valu":"v","salu":"s","wait":"W","barrier":"B","branch":"x","label":""}.get(x.kind, "?") for x in row))
        if loopend:
            seg.a(f"s_cbranch_vccz L_loop\nv_cmp_lt_f32 vcc, s{sThr}, v{vMx}\ns_cmp_lt_i32 s{sCnt}, 0\ns_cbranch_vccnz L_rare{ret}\nL_back{ret}:\ns_cbranch_scc0 L_loop")
        else: seg.a(f"s_cbranch_vccnz L_rare{ret}\nL_back{ret}:")
    def iteration3(seg, i, ret):
        last = i == NB-3; snd = list(range(8, 16)); bg_ = dbg_
        mf = [qk(i+2, g) for g in range(32)] + pvlist(i, snd)
        mf[47].extra = set(R("a", aVF+32 if last else aKF, 4*wgrp)); mf[0].extra = set()
        sca = {}; dm = []
        if not last:
            for k in range(1, 8):
                g = 2*k - 1 + (1 if k >= 4 else 0)
                x = dmaV(i+2 + k//4, k % 4); addf(sca, g-1, x[0]); dm.append((x[1], g-3, g))
            addf(sca, 6, *advV(i+2))
        late_dm = []
        if i == dpf or n12:
            for kk in (range(n12, 9) if last else range(n12) if n12 else range(9)):
                if kk < 8: y = parse(f"buffer_load_dwordx4 a[192:195], v{vOg}, s[{sO}:{sO+3}], s{sT0} offen offset:{512*(kk%2)}{ppol}")
                else: y = parse(f"buffer_load_dwordx4 a[192:195], v{vSt}, s[{sW}:{sW+3}], s{sMb} offen offset:256")
                g = (1 + 3*(kk-n12)) if last else (bg_ + 1 + (12*kk)//n12) if n12 else (16 + 2*kk); y.wr = set()
                (late_dm if n12 and not last else dm).append((y, g-3, g))
                if kk % 2 == 1 and kk < 7: (late_dm if n12 and not last else dm).append((parse(f"s_add_u32 s{sT0}, s{sT0}, 4096"), g-3, g))
        addf(sca, bg_, parse(f"s_waitcnt vmcnt({9 if last else 21 if i == dpf else 12})"), parse("s_barrier"))
        nxt = [vread(i+1, dt, kt) for dt in range(8, 8+NV0) for kt in range(2)] if last else [kread(i+3, j) for j in range(NK0)]
        rd = spread([kread(i+2, j) for j in range(NK0, 16)] + [vread(i, dt, kt) for dt in snd for kt in range(2)], 0, bg_-1)
        if last: rd += [(y, max(bg_+4, 34+2*(k//2)) + k*0.6, max(bg_+4, 34+2*(k//2))) for k, y in enumerate(nxt)]
        else: rd += [(y, t, bg_+1) for (y, t, _) in spread(nxt, bg_+1, 45)]
        tg = []
        if last:
            tV = [parse(f"v_add_u32 v{vVa}, s{sDV}, v{vVa}"), parse(f"s_sub_u32 s{sDV}, 0, s{sDV}")]
            tg = [(tV[0], bg_, bg_+2)]; addf(sca, bg_+5, tV[1])
        q = softmax_q(i+1) + [parse(f"v_max_f32 v{vMx}, v{vLb}, v{vLb+1}"), parse(f"v_cmp_lt_f32 vcc, s{sThr}, v{vMx}")]
        n0 = len(seg.ins)
        schedule(seg, mf, [dm + late_dm, rd, tg, spread(q, 0, 44)], sca, label=f"it{i}", lastempty=True)
        tx = [x.text for x in seg.ins[n0:]]
        if last: assert tx.index(vread(i, 15, 1).text) < tx.index(tV[0].text) < tx.index(nxt[0].text) and tx.index(tV[0].text) < tx.index(tV[1].text)
        assert tx.index("s_barrier") < len(tx) - 1 - tx[::-1].index(nxt[0].text)
        assert all(seg.ins.index(y[0]) < n0 + tx.index("s_barrier") for y in dm)
        seg.a(f"s_cbranch_vccnz L_rare{ret}\nL_back{ret}:")
    vm = []
    def vmwait(name, extra=""):
        k = max(j for j, x in enumerate(vm) if x == name)
        a(f"s_waitcnt vmcnt({len(vm)-1-k}){extra}")
    fill = [f"s_add_u32 s{sQ}, s4, s{sT1}\ns_addc_u32 s{sQ+1}, s5, 0", f"s_mov_b32 s{sW}, s14\ns_mov_b32 s{sW+1}, s15",
            f"s_add_u32 s{sV}, s8, s{sT0}\ns_addc_u32 s{sV+1}, s9, 0", f"s_mov_b32 s{sV+2}, {NB*16384}\ns_mov_b32 s{sV+3}, 0x20000",
            f"s_add_u32 s{sO}, s10, s{sT1}\ns_addc_u32 s{sO+1}, s11, 0", f"s_mov_b32 s{sO+2}, 65536\ns_mov_b32 s{sO+3}, 0x20000",
            f"s_xor_b32 s{sPw}, s{sMb}, {pxor*8192}"]
    a(f"s_add_u32 s{sK}, s6, s{sT0}\ns_addc_u32 s{sK+1}, s7, 0")
    def publish(t0, t1):
        a(f"v_readlane_b32 s{t0}, v8, 0\nv_readlane_b32 s{t1}, v8, 1\nv_mov_b32 v9, 0")
        a(f"s_and_b32 s{t1}, s{t1}, 0xffffff00\ns_add_u32 s{t1}, s{t1}, 0x100\ns_or_b32 s{t1}, s{t1}, s{sXcc}")
        a(f"s_xor_b32 s3, s{t1}, s{t0}\ns_cmp_lt_u32 s3, 0x100\ns_cselect_b32 s3, 0x100, 0\ns_add_u32 s{sCh}, s{t1}, s3\nv_mov_b32 v8, s{sCh}")
        a(f"buffer_store_dword v8, v9, s[{sW}:{sW+3}], s{sMb} offen offset:128 sc1")
    mbload = f"s_mov_b64 exec, 3\nbuffer_load_dword v8, v3, s[{sW}:{sW+3}], s{sMb} offen sc1\ns_mov_b64 exec, -1"
    if stag is not None:
        a(f"s_mov_b32 s{sW}, s14\ns_mov_b32 s{sW+1}, s15"); a(mbload); vm.append("mb")
        a(f"s_bitcmp1_b32 s2, {stag}\ns_cbranch_scc0 L_early\ns_waitcnt vmcnt(0)"); publish(36, 37); a("L_early:")
    def kvblock(f, adv, n, name, filler=None):
        for j in range(4):
            x = f(n, j)
            if not (name == "K0" and j == 0): pro.add(x[0]); (filler() if filler else a("s_nop 0"))
            pro.add(x[1]); vm.append(name)
        for x in adv(n): pro.add(x)
    def qdma(c, u):
        return [parse(f"s_add_u32 m0, s{sX}, {1024*(4*c+u)}"), parse(f"s_add_u32 s3, s{sOo}, {4096*u+128*c}"),
                parse(f"buffer_load_dwordx4 v{6+u%2}, s[{sQ}:{sQ+3}], s3 offen{polQ} lds")]
    def qblock(c):
        for u in range(4):
            for x in qdma(c, u): pro.add(x)
            vm.append(f"Q{c}")
    if ttouch:
        a("\n".join(fill)); fill = ["s_nop 0"]*7
        a("s_mov_b64 exec, 1")
        for srd, so in ((sK, sOK), (sQ, sOo), (sV, sOV), (sO, sOo))[:ttouch]:
            y = parse(f"buffer_load_dword a192, v{vDma}, s[{srd}:{srd+3}], s{so} offen{polK}"); y.wr = set(); pro.add(y); vm.append("tt")
        a("s_mov_b64 exec, -1")
    kvblock(dmaK, advK, 0, "K0", lambda: a(fill.pop(0)))
    if k1late:
        a("\n".join(fill)); fill = []
    else: kvblock(dmaK, advK, 1, "K1", lambda: a(fill.pop(0)))
    assert not fill
    if stag is None: a(mbload); vm.append("mb")
    qblock(0)
    if k1late: qblock(1)
    setup()
    qblock(2 if k1late else 1)
    fstamp(pro)
    vmwait("mb" if stag is None else "K0" if k1late else "K1"); a("s_barrier")
    stamp(pro)
    def k01read(n, j):
        r = (aKF if n == 0 else aVF) + 4*j
        return parse(f"ds_read_b128 a[{r}:{r+3}], v{vKa} offset:{n*KS+64*(j//2)+512*(j%2)}")
    def kgrp(c): return [k01read(n, j) for j in range(4*c, 4*c+4) for n in range(1 if k1late else 2)]
    def qraw(f): return 96 + 16*((f//4) % 2) + 4*(f % 4)
    def qgrp(c): return [parse(f"ds_read_b128 v[{qraw(f)}:{qraw(f)+3}], v{28+2*((f//2)%2)+f%2} offset:{4096*c}") for f in range(4*c, 4*c+4)]
    def presc(r):
        x = 32 + 2*(r % 8); q = qraw(r//4) + r % 4
        return [parse(t) for t in (f"v_lshlrev_b32 v{x}, 16, v{q}", f"v_and_b32 v{x+1}, 0xffff0000, v{q}",
                f"v_pk_mul_f32 v[{x}:{x+1}], v[{x}:{x+1}], v[2:3] op_sel_hi:[1,0]",
                f"v_cvt_pk_bf16_f32 v{x}, v{x}, v{x+1}", f"v_accvgpr_write_b32 a{aQ+r}, v{x}")]
    def mgrp(c, blocks=(0, 1)):
        L = []
        for t in (2*c, 2*c+1):
            for kt in range(2):
                for n in blocks:
                    for qt in range(2):
                        S = vS[n] + 8*qt + 4*kt; f = (aKF if n == 0 else aVF) + 4*(2*t+kt); qf = aQ + 4*(2*t+qt)
                        L.append(parse(f"v_mfma_f32_16x16x32_bf16 v[{S}:{S+3}], a[{f}:{f+3}], a[{qf}:{qf+3}], " + (f"v[{S}:{S+3}]" if t else "0")))
        return L
    for x in kgrp(0): pro.add(x)
    if not k1late: qblock(2)
    if stag is None: publish(sT0, sT1); vm.append("pub")
    else:
        a(f"s_bitcmp1_b32 s2, {stag}\ns_cbranch_scc1 L_pubdone"); publish(sT0, sT1); a("L_pubdone:")
    a("v_mov_b32 v3, 0")
    items = [("Q3", lambda j: qdma(3, j), []), ("K2", lambda j: dmaK(2, j), advK(2)), ("V0", lambda j: dmaV(0, j), advV(0)),
             ("V1", lambda j: dmaV(1, j), advV(1)) if lazy < 2 else (None, None, []), (None, None, [])]
    if k1late: items = [items[0], ("K1", lambda j: dmaK(1, j), advK(1)), items[1], items[2]]
    zq = [parse(f"v_mov_b32 v{vO+r}, 0") for r in range(zsplit[0], zsplit[1])]
    for c in range(4 if p2 else 5):
        name, f_, adv = items[c]
        if c < 4:
            vmwait(f"Q{c}")
            if c in (0, 3): fstamp(pro)
            for x in qgrp(c): pro.add(x)
            pq = [x for r in range(16*c, 16*c+16) for x in presc(r)]
        else: pq = zq
        kr = kgrp(c+1) if c < 3 else []
        if c == 0:
            for j in range(4):
                x = f_(j)
                for y in x[:-1]: pro.add(y)
                for y in kr[len(kr)//4*j:len(kr)//4*(j+1)]: pro.add(y)
                for _ in range(20): pro.add(pq.pop(0))
                pro.add(x[-1]); vm.append(name)
        else:
            sca = {}; dm = []; st = 2 if p2 else 4
            for j in range(4 if name else 0):
                x = f_(j); addf(sca, st*j, *x[:-1]); dm.append((x[-1], st*j-2, st*j+1)); vm.append(name)
            mf = mgrp(c-1, (0,)) if p2 else mgrp(c-1)
            schedule(pro, mf, [dm, spread(kr, 0, len(mf)-2) if kr else [], spread(pq, 0, len(mf)-1) if pq else []], sca, label=f"S{c}", cap=12 if p2 else 6)
        for x in adv: pro.add(x)
    fstamp(pro)
    NTRIP = ((NB-4)//2 if peel else (NB-2)//2) - (nser//2 if tpl else 0)
    scal = Seg("x")
    scal.a(f"s_mov_b32 s{sCnt}, {NTRIP-1 if tpl else NTRIP}")
    if tpl: a(f"s_mov_b32 s{sThr}, {f2u(2.0**T):#x}")
    scal.a(f"s_lshl_b32 s{sX}, s{sKh}, 8\ns_add_u32 s{sX}, s{sOo}, s{sX}\ns_xor_b32 s{sOo}, s{sX}, 256")
    if pcont: scal.a(f"s_lshl_b32 s{sT0}, s{sKh}, 15\ns_lshl_b32 s3, s{sWv}, 13\ns_add_u32 s{sT0}, s{sT0}, s3")
    else: scal.a(f"s_mov_b32 s{sT0}, s{sX}")
    post_ops = Seg("x"); post2 = Seg("x")
    rowmax(post_ops, vS[0], False)
    for qt, d in ((0, 1), (1, 4)):
        for r in range(8): post_ops.a(f"v_sub_f32 v{(vTmp if dsm0 else vS[0])+8*qt+r}, v{vS[0]+8*qt+r}, v{d}")
    if dsm0: post_ops.a(f"v_mov_b32 v{vLb}, 0\nv_mov_b32 v{vLb+1}, 0")
    else:
        for x in softmax_q(0, merge=False, pipe=True): post_ops.add(x)
    for qt, d in ((0, 1), (1, 4)):
        for r in range(4): post_ops.a(f"v_sub_f32 v{vCn+4*qt+r}, 0, v{d}")
        for r in range(8): post2.a(f"v_sub_f32 v{vS[1]+8*qt+r}, v{vS[1]+8*qt+r}, v{d}")
    tK = [parse(f"v_add_u32 v{vKa}, s{sDK}, v{vKa}"), parse(f"s_sub_u32 s{sDK}, 0, s{sDK}")]
    if p2:
        mf = mgrp(3, (0,)) + [x for c in range(4) for x in mgrp(c, (1,))]
        sca = {}; dm = []
        for k, x in enumerate(scal.ins): addf(sca, min(k, k1bar-1 if k1late else 3), x)
        k1r = []
        if k1late:
            kk_ = max(j for j, x in enumerate(vm) if x == "K1")
            addf(sca, k1bar, parse(f"s_waitcnt vmcnt({len(vm)-1-kk_}) lgkmcnt(0)"), parse("s_barrier"))
            k1r = [(k01read(1, j), k1bar + 1 + (j if j < 4 else 2*j-4), k1bar+1) for j in range(16)]
            for g_ in range(8, 40, 4): mf[g_].extra = set(R("a", aVF + 4*((g_-8)//2), 8))
            nd = 12 - 4*k4late; stp = 3 if nd == 12 else 4 if nd == 8 else 8
            for k in range(nd):
                x = dmaV(1, k) if k < 4 else dmaK(3 + (k-4)//4, k % 4); g = k1bar + 3 + stp*k
                addf(sca, g-1, x[0]); dm.append((x[1], g-3, g)); vm.append("V1" if k < 4 else "K3" if k < 8 else "K4")
            addf(sca, k1bar+3+stp*3+1, *advV(1))
            if nd >= 8: addf(sca, k1bar+3+stp*7+1, *advK(3))
            if nd == 12: addf(sca, 39, *[post(y) for y in advK(4)])
        elif not lazy:
            addf(sca, 4, parse("s_waitcnt lgkmcnt(0)"), parse("s_barrier"))
            for k in range(8):
                x = dmaK(3 + k//4, k % 4); g = 6 + 4*k
                addf(sca, g-1, x[0]); dm.append((x[1], g-3, g)); vm.append("K3" if k < 4 else "K4")
            addf(sca, 19, *advK(3)); addf(sca, 36, *advK(4))
        schedule(pro, mf, [dm, k1r, [(x, 0, 0) for x in zq], spread(post_ops.ins, 10, 39)], sca, label="S4", cap=5)
        stamp(pro)
        for x in tK: pro.add(x)
        vmwait("V0"); a("s_barrier")
        po = post2.ins
    else:
        for x in scal.ins + tK: pro.add(x)
        po = post_ops.ins + post2.ins
        if not mergeb:
            a("s_barrier")
            stamp(pro)
            def take(n):
                for _ in range(min(n, len(po))): pro.add(po.pop(0))
            kvblock(dmaK, advK, 3, "K3", lambda: take(12))
            kvblock(dmaK, advK, 4, "K4", lambda: take(12))
            take(1000)
            vmwait("V0"); a("s_barrier")
        else:
            stamp(pro)
            for x in po: pro.add(x)
            po = []
            vmwait("V0"); a("s_barrier")
    for j in range(NK0): pro.add(kread(2, j))
    if lazy >= 2: kvblock(dmaV, advV, 1, "V1")
    if mergeb or lazy:
        kvblock(dmaK, advK, 3, "K3"); kvblock(dmaK, advK, 4, "K4")
    if prefmode == 2:
        for kk in range(8):
            y = parse(f"buffer_load_dwordx4 a[192:195], v{vOg}, s[{sO}:{sO+3}], s{sT0} offen offset:{512*(kk%2)}{ppol}"); y.wr = set(); pro.add(y)
            if kk % 2: a(f"s_add_u32 s{sT0}, s{sT0}, 4096")
    x = dmaV(2, 0); pro.add(x[0]); a(f"buffer_load_dword v2, v3, s[{sW}:{sW+3}], s{sPw} offen offset:128 sc1"); pro.add(x[1])
    for x in po: pro.add(x)
    for r in range(zsplit[1], zsplit[2]): a(f"v_mov_b32 v{vO+r}, 0")
    a(f"s_waitcnt lgkmcnt({NK0-wgrp})")
    fstamp(pro)
    stamp(pro)
    def sm0_block(zs):
        X, E_ = vTmp, vTmp+16
        for r in range(17):
            if r < 16: zs.a(f"v_exp_f32 v{E_+r}, v{X+r}")
            if r >= 1: zs.a(f"v_add_f32 v{vL+(r-1)//8}, v{vL+(r-1)//8}, v{E_+r-1}" if r < 16 else f"s_nop 0\nv_add_f32 v{vL+1}, v{vL+1}, v{E_+15}")
            if r >= 2 and r % 2 == 0: zs.a(f"v_cvt_pk_bf16_f32 v{vP[0]+r//2-1}, v{E_+r-2}, v{E_+r-1}")
    warm = Seg("warm")
    if tpl:
        inl0 = {}
        if nser and zsplit[2] < 128:
            per = (128 - zsplit[2]) // len(tzs)
            for n_, zg in enumerate(tzs):
                zs = Seg("x"); r0 = zsplit[2] + n_*per
                assert zg < 32 + 2*(r0//8)
                if n_ == 0 and dsm0: sm0_block(zs)
                for r in range(r0, r0+per): zs.a(f"v_mov_b32 v{vO+r}, 0")
                inl0[zg] = zs.ins
        for i in range(nser): iteration2(warm, i, 5+i, serial=sergap[i], inl=inl0 if i == 0 else None, xk=(i+4,) if i == kcatch and k1late and k4late else (), kl=4 if i < kcatch and k1late and k4late else 5)
    early[0] = 0
    body = Seg("loop"); body.a("L_loop:")
    if tpl: iteration2(body, 0, 0, zsites=zsplit[2] < 128 and not nser); iteration2(body, 1, 1, loopend=True)
    else: iteration(body, 0, 0); iteration(body, 1, 1, loopend=True)
    if stamps == 2:
        body.a(f"s_waitcnt lgkmcnt(0)\ns_memtime s[64:65]\ns_memrealtime s[66:67]\ns_sub_u32 m0, {15+NTRIP}, s{sCnt}\ns_cmp_lg_u32 s{sCnt}, 0\ns_waitcnt lgkmcnt(0)\nv_writelane_b32 v10, s64, m0\nv_writelane_b32 v11, s66, m0")
    zseg = Seg("zero")
    if zsplit[2] < 128 and not (tpl and nser):
        zgs = tzs if tpl else zgap if isinstance(zgap, tuple) else (zgap,)
        per = (128 - zsplit[2]) // len(zgs)
        for n_, zg in enumerate(zgs):
            r0 = zsplit[2] + n_*per
            assert zg < 32 + 2*(r0//8)
            if not tpl:
                mi = [k for k, x in enumerate(body.ins) if x.kind == "mfma"]
                k = mi[zg]
                body.ins[k+1:k+1] = [parse(f"s_cbranch_scc1 L_zero{n_}"), parse(f"L_zback{n_}:")]
                k = mi[zg-1]
                for y in body.ins[k+1:mi[zg]]: assert y.kind != "salu"
            if n_ == 0 and not peel:
                mask = (1 << NTRIP) | sum(1 << t for t in ptrips)
                body.ins[k+1:k+1] = [parse(f"s_bitcmp1_b32 {mask}, s{sCnt}")]
                zseg.a(f"L_zero{n_}:\ns_cmp_eq_u32 s{sCnt}, {NTRIP}\ns_cbranch_scc1 L_zero{n_}b")
                for kk in range(3):
                    y = parse(f"buffer_load_dwordx4 a[192:195], v{vDma if pcont else vOg}, s[{sO}:{sO+3}], s{sT0} offen{ppol}"); y.wr = set(); zseg.add(y)
                    if pcont: zseg.a(f"s_add_u32 s{sT0}, s{sT0}, 1024")
                    else: zseg.a(f"s_xor_b32 s{sT0}, s{sT0}, 512\ns_bitcmp1_b32 s{sT0}, 9\ns_cselect_b32 s3, 0, 4096\ns_add_u32 s{sT0}, s{sT0}, s3")
                    if kk == 1:
                        zseg.a(f"s_cmp_lg_u32 s{sCnt}, {ptrips[-1]}\ns_cbranch_scc1 L_pf3")
                        y = parse(f"buffer_load_dwordx4 a[192:195], v{vSt}, s[{sW}:{sW+3}], s{sMb} offen offset:256"); y.wr = set(); zseg.add(y)
                        zseg.a(f"s_branch L_zback{n_}\nL_pf3:")
                zseg.a(f"s_branch L_zback{n_}\nL_zero{n_}b:")
            else:
                if not tpl: body.ins[k+1:k+1] = [parse(f"s_cmp_eq_u32 s{sCnt}, {NTRIP}")]
                zseg.a(f"L_zero{n_}:")
            if n_ == 0 and dsm0: sm0_block(zseg)
            for r in range(r0, r0+per): zseg.a(f"v_mov_b32 v{vO+r}, 0")
            zseg.a(f"s_nop 1\ns_branch L_zback{n_}")
    if xpad2:
        for n_, (trip, gi, nn) in enumerate(xpad2):
            mi = [k for k, x in enumerate(body.ins) if x.kind == "mfma"]
            k = mi[gi]
            body.ins[k+1:k+1] = [parse(f"s_cmp_eq_u32 s{sCnt}, {NTRIP-trip-(1 if tpl else 0)}"), parse(f"s_cbranch_scc1 L_xq{n_}"), parse(f"L_xqb{n_}:")]
            zseg.a(f"L_xq{n_}:")
            for _ in range(nn): zseg.a("s_nop 15")
            zseg.a(f"s_branch L_xqb{n_}")
    if xpad:
        nb = []; mcount = 0; lab = 0
        for x in body.ins:
            nb.append(x)
            if x.kind == "mfma":
                it = mcount // 64; g = mcount % 64; mcount += 1
                step = 64 // xpad[3]
                if g % step == step//2 - 2:
                    thr = xpad[it]
                    nb += [parse(f"s_cmp_ge_u32 s{sCnt}, {thr}"), parse(f"s_cbranch_scc0 L_xp{lab}")] + [parse("s_nop 15") for _ in range(xpad[2])] + [parse(f"L_xp{lab}:")]
                    lab += 1
        body.ins = nb
    if not tpl: body.a(f"s_cbranch_scc1 L_loop")
    tail = Seg("tail"); e = tail.a
    e("L_tail:")
    if dfr: iteration3(tail, NB-4, 3); iteration3(tail, NB-3, 4)
    elif tpl: iteration2(tail, NB-4, 3, pref=True); iteration2(tail, NB-3, 4, pref=True)
    elif peel: iteration(tail, NB-4, 3, pref=True); iteration(tail, NB-3, 4, pref=True)
    stamp(tail)
    i = NB-2
    snd = list(range(8, 16)); own = list(range(8))
    sq15 = softmax_q(i+1) + checkops()
    if not peel:
        for dt in range(8, 8+NV0):
            for kt in range(2): tail.add(vread(i, dt, kt))
        for x in (sq15[0], sq15[1], sq15[2], sq15[5], sq15[3], sq15[4]): tail.add(x)
        sq15 = sq15[6:]
    rd = spread([vread(i, dt, kt) for dt in range(8+NV0, 16) for kt in range(2)], 0, 6)
    rd += [(y, t, btx+1) for (y, t, _) in spread([vread(i+1, dt, kt, dt-8) for dt in snd for kt in range(2)], btx+1, 15)]
    sca = {btx: [parse("s_waitcnt vmcnt(0)" if prefw is not None else "s_waitcnt vmcnt(9)" if pref13 else "s_waitcnt vmcnt(5)" if peel and not (pref12 and prefmode == 1) else "s_waitcnt vmcnt(0)"), parse("s_barrier")]}
    if dfr:
        sca = {btx: []}
        rd = spread([vread(i, dt, kt) for dt in range(8+NV0, 16) for kt in range(2)] + [vread(i+1, dt, kt, dt-8) for dt in snd for kt in range(2)], 0, 14)
    if stamps and fine:
        t1 = Seg("x"); fstamp(t1); t2 = Seg("x"); fstamp(t2)
        sca[btx] = t1.ins + sca[btx] + t2.ins
    mf = pvlist(i, snd)
    if peel: mf[0].extra = set()
    schedule(tail, mf, [rd, spread(sq15, 0, 15)], sca, label="X", cap=5)
    e(f"v_readfirstlane_b32 s{sT1}, v2\ns_cbranch_vccnz L_rare2\nL_back2:")
    fstamp(tail)
    e(f"s_and_b32 s3, s{sT1}, 0xff")
    def rcv(k): return vTmp + 4*k
    def xa(k):
        if xsw: return f"v{(vOg, 1)[k % 2]}, s[{sO}:{sO+3}], s{sOo} offen"
        return f"v{vOg}, s[{sO}:{sO+3}], s{sOo} offen offset:{512*(k%2)}"
    if xsw: e(f"s_and_b32 s36, s{sWv}, 1\ns_lshl_b32 s36, s36, 9\nv_add_u32 v{vOg}, s36, v{vOg}\nv_xor_b32 v1, 0x200, v{vOg}")
    pollb = Seg("pollb")
    if h2:
        sOo2, sX2, sChB = 62, 63, 38
        vG = 64
        def xaddr(k, b0, b1): return f"v21, s[{sO}:{sO+3}], s{b1 if (k % 4) >> 1 else b0} offen offset:{512*(k & 1) + 128*(k//4)}"
        e(f"s_add_u32 s{sOo2}, s{sOo}, 8192\ns_add_u32 s{sX2}, s{sX}, 8192\ns_xor_b32 s{sChB}, s{sCh}, 0x80\nv_xor_b32 v1, 0x80, v2")
        sends = []
        if fast: e(f"s_cmp_eq_u32 s3, s{sXcc}\ns_cbranch_scc1 L_sendfast")
        lo, hi = [0, 1, 2, 3], [4, 5, 6, 7]
        for var in (("slow", " sc1"), ("fast", "")) if fast else (("slow", " sc1"),):
            sg = Seg("send_"+var[0]); sends.append(sg)
            if var[0] == "fast": sg.a("L_sendfast:")
            st = mergeops() + [parse(t) for t in (f"v_mov_b32 v6, v{vL}", f"v_mov_b32 v7, v{vL+1}", f"v_mov_b32 v4, v{vCn}", f"v_mov_b32 v5, v{vCn+4}",
                  f"v_permlane16_swap_b32 v6, v{vL}", f"v_permlane16_swap_b32 v7, v{vL+1}", f"v_add_f32 v{vL}, v6, v{vL}", f"v_add_f32 v{vL+1}, v7, v{vL+1}",
                  f"v_mov_b32 v6, v{vL}", f"v_mov_b32 v7, v{vL+1}", "s_nop 0", f"v_permlane32_swap_b32 v6, v{vL}", f"v_permlane32_swap_b32 v7, v{vL+1}",
                  f"v_add_f32 v6, v6, v{vL}", f"v_add_f32 v7, v7, v{vL+1}")]
            mf = pvlist(i+1, snd, own) + pvlist(i, lo, [d+8 for d in lo]) + pvlist(i+1, lo)
            rows = {g: [] for g in range(32)}
            for k, x in enumerate(st): rows[min(3, k*4//len(st))].append(x)
            rows[4].append(parse(f"buffer_store_dwordx4 v[4:7], v{vSt}, s[{sW}:{sW+3}], s{sPw} offen offset:256{var[1]}"))
            rr = [vread(i, dt, kt, dt+8) for dt in lo for kt in range(2)] + [vread(i+1, dt, kt) for dt in lo for kt in range(2)]
            r2 = [vread(i, dt, kt, dt+8) for dt in hi for kt in range(2)] + [vread(i+1, dt, kt) for dt in hi for kt in range(2)]
            for k in range(8):
                o = vO + 8*(8+k)
                rows[2*k+4] += [parse(f"v_cvt_pk_bf16_f32 v{vTmp+4*k+x}, v{o+2*x}, v{o+2*x+1}") for x in range(4)]
                rows[2*k+5] += [parse(f"buffer_store_dwordx4 v[{vTmp+4*k}:{vTmp+4*k+3}], {xaddr(k, sOo, sOo2)}{var[1]}")] + rr[2*k:2*k+2]
            for k, x in enumerate(r2): rows[20 + k*12//16].append(x)
            if var[0] == "slow": nf0 = nf[0]; st0 = nst[0]
            nf[0] = nf0; nst[0] = st0
            tg = Seg("x"); tg.a(f"s_waitcnt vmcnt(4)\nbuffer_store_dword v2, v3, s[{sW}:{sW+3}], s{sPw} offen{var[1]}")
            rows[tga] = tg.ins + rows[tga]
            for g in range(32):
                sg.add(mf[g])
                for x in rows[g]: sg.add(x)
            fstamp(sg); sg.a("s_waitcnt vmcnt(0)"); stamp(sg)
            sg.a(f"buffer_store_dword v1, v3, s[{sW}:{sW+3}], s{sPw} offen{var[1]}")
            fstamp(sg)
            if var[0] == "slow" and fast: sg.a("s_branch L_sent")
        fin = Seg("final"); e = fin.a
        e("L_sent:")
        e(f"s_mov_b32 s{sCnt}, 0x200000")
        e("L_poll:")
        e(f"s_sub_u32 s{sCnt}, s{sCnt}, 1\ns_cbranch_scc1 L_pollok")
        e(f"buffer_load_dword v8, v3, s[{sW}:{sW+3}], s{sMb} offen{xpoll}\ns_waitcnt vmcnt(0)\nv_readfirstlane_b32 s36, v8\ns_xor_b32 s3, s36, s{sCh}\ns_andn2_b32 s3, s3, 0x80\ns_cbranch_scc1 L_poll")
        e("L_pollok:")
        stamp(fin)
        e(f"buffer_load_dwordx4 v[{vG}:{vG+3}], v{vSt}, s[{sW}:{sW+3}], s{sMb} offen offset:256{xld}")
        for k in lo: e(f"buffer_load_dwordx4 v[{vTmp+4*k}:{vTmp+4*k+3}], {xaddr(k, sX, sX2)}{xld}")
        for x in pvlist(i, hi, [d+8 for d in hi]): fin.add(x)
        e(f"s_cmp_eq_u32 s36, s{sChB}\ns_cbranch_scc0 L_pollb\nL_pollbok:")
        pollb.a(f"L_pollb:\ns_sub_u32 s{sCnt}, s{sCnt}, 1\ns_cbranch_scc1 L_pollbok")
        pollb.a(f"buffer_load_dword v8, v3, s[{sW}:{sW+3}], s{sMb} offen{xpoll}\ns_waitcnt vmcnt(0)\nv_readfirstlane_b32 s36, v8\ns_nop 1\ns_cmp_eq_u32 s36, s{sChB}\ns_cbranch_scc0 L_pollb\ns_branch L_pollbok")
        for k in hi: e(f"buffer_load_dwordx4 v[{vTmp+4*k}:{vTmp+4*k+3}], {xaddr(k, sX, sX2)}{xld}")
        e(f"buffer_load_dword v2, v3, s[{sW}:{sW+3}], s{sPw} offen offset:128 sc1")
        for x in pvlist(i+1, hi): fin.add(x)
        fstamp(fin); fstamp(fin)
        for qt in range(2):
            fo, fx, t = vG+4+2*qt, vG+8+2*qt, vG+12+qt
            e(f"v_min_f32 v{t}, v{4+qt}, v{vG+qt}\nv_sub_f32 v{fo}, v{t}, v{4+qt}\nv_sub_f32 v{fx}, v{t}, v{vG+qt}\nv_exp_f32 v{fo}, v{fo}\nv_exp_f32 v{fx}, v{fx}")
        for qt in range(2):
            fo, fx, t = vG+4+2*qt, vG+8+2*qt, vG+12+qt
            e(f"v_mul_f32 v{t}, v{fo}, v{6+qt}\nv_fma_f32 v{t}, v{fx}, v{vG+2+qt}, v{t}\nv_rcp_f32 v{t}, v{t}")
        for qt in range(2):
            fo, fx, t = vG+4+2*qt, vG+8+2*qt, vG+12+qt
            e(f"v_mul_f32 v{fo}, v{fo}, v{t}\nv_mul_f32 v{fx}, v{fx}, v{t}")
        stq = []
        for n_, (h, qt) in enumerate(((0, 0), (0, 1), (1, 0), (1, 1))):
            fo, fx = vG+4+2*qt, vG+8+2*qt
            for k, dt in enumerate(range(4*h, 4*h+4)):
                o = vO + 8*dt + 4*qt; p = vTmp + 4*dt + 2*qt; u = 48 + 4*((2*dt+qt) % 4)
                e(f"v_lshlrev_b32 v{u}, 16, v{p}\nv_and_b32 v{u+1}, 0xffff0000, v{p}\nv_lshlrev_b32 v{u+2}, 16, v{p+1}\nv_and_b32 v{u+3}, 0xffff0000, v{p+1}")
                for x in range(4): e(f"v_mul_f32 v{o+x}, v{fo}, v{o+x}")
                for x in range(4): e(f"v_fmac_f32 v{o+x}, v{fx}, v{u+x}")
                e(f"v_cvt_pk_bf16_f32 v{o}, v{o}, v{o+1}\nv_cvt_pk_bf16_f32 v{o+1}, v{o+2}, v{o+3}")
                if k in (1, 2) and stq: e(stq.pop(0))
            for dt in range(4*h, 4*h+4):
                o = vO + 8*dt + 4*qt
                e(f"ds_write_b64 v{vEw}, v[{o}:{o+1}] offset:{4352*qt+32*dt}")
            for m in range(2):
                r = 192 + 8*n_ + 4*m
                e(f"ds_read_b128 v[{r}:{r+3}], v{vEr} offset:{272*(16*qt+8*m)+128*h}")
                stq.append(f"buffer_store_dwordx4 v[{r}:{r+3}], v21, s[{sO}:{sO+3}], s{sX2 if m else sX} offen offset:{512*qt+128*h}{polO}")
        fstamp(fin)
        for x in stq: e(x)
        e(f"v_readfirstlane_b32 s3, v2\ns_cmp_eq_u32 s3, s{sT1}\ns_cbranch_scc1 L_tagok")
        e(f"v_xor_b32 v2, 0x80, v2\nbuffer_wbl2 sc1\ns_waitcnt vmcnt(0)\nbuffer_store_dword v2, v3, s[{sW}:{sW+3}], s{sPw} offen sc1")
        e("L_tagok:")
        fstamp(fin)
    else:
        sends = []
        if fast: e(f"s_cmp_eq_u32 s3, s{sXcc}\ns_cbranch_scc1 L_sendfast")
        for var in (("slow", " sc1"), ("fast", "")) if fast else (("slow", " sc1"),):
            sg = Seg("send_"+var[0]); sends.append(sg)
            if var[0] == "fast": sg.a("L_sendfast:")
            st = mergeops() + [parse(t) for t in (f"v_mov_b32 v6, v{vL}", f"v_mov_b32 v7, v{vL+1}", f"v_mov_b32 v4, v{vCn}", f"v_mov_b32 v5, v{vCn+4}",
                  f"v_permlane16_swap_b32 v6, v{vL}", f"v_permlane16_swap_b32 v7, v{vL+1}", f"v_add_f32 v{vL}, v6, v{vL}", f"v_add_f32 v{vL+1}, v7, v{vL+1}",
                  f"v_mov_b32 v6, v{vL}", f"v_mov_b32 v7, v{vL+1}", "s_nop 0", f"v_permlane32_swap_b32 v6, v{vL}", f"v_permlane32_swap_b32 v7, v{vL+1}",
                  f"v_add_f32 v6, v6, v{vL}", f"v_add_f32 v7, v7, v{vL+1}",
                  f"buffer_store_dwordx4 v[4:7], v{vSt}, s[{sW}:{sW+3}], s{sPw} offen offset:256{var[1]}")]
            q = []
            for k in range(8):
                o = vO + 8*(8+k); g0 = 2*k + 1 + 3
                for x in range(4): q.append((parse(f"v_cvt_pk_bf16_f32 v{vTmp+4*k+x}, v{o+2*x}, v{o+2*x+1}"), g0-2, g0))
                q.append((parse(f"buffer_store_dwordx4 v[{vTmp+4*k}:{vTmp+4*k+3}], {xa(k)}{var[1]}"), g0-2, g0))
                if k % 2 == 1 and k < 7: q.append((parse(f"s_add_u32 s{sOo}, s{sOo}, 4096"), g0-2, g0))
            rd = spread([vread(i, dt, kt, dt+8) for dt in own for kt in range(2)], 1, 20)
            rd += [(y, t, 17) for (y, t, _) in spread([vread(i+1, dt, kt) for dt in own for kt in range(2)], 21, 38)]
            mf = pvlist(i+1, snd, own) + pvlist(i, own, snd) + pvlist(i+1, own)
            if var[0] == "slow": nf0 = nf[0]; st0 = nst[0]
            nf[0] = nf0; nst[0] = st0
            tg = Seg("x"); fstamp(tg); tg.a("s_waitcnt vmcnt(0)"); stamp(tg)
            tg.a(f"buffer_store_dword v2, v3, s[{sW}:{sW+3}], s{sPw} offen{var[1]}")
            if dfr:
                mf = pvlist(i+1, snd, own) + pvlist(i-2, own, snd) + pvlist(i-1, own) + pvlist(i, own, snd) + pvlist(i+1, own)
                rows = {g: [] for g in range(80)}
                nst_ = len(st) - 1
                for k, x in enumerate(st[:-1]): rows[min(3, k*4//nst_)].append(x)
                rows[0].insert(0, parse(f"v_add_u32 v1, s{sDV}, v{vVa}"))
                rows[4].append(st[-1])
                rb = [[vread(i-2+n_, dt, kt, dt + (8 if n_ % 2 == 0 else 0), 1 if n_ < 2 else vVa) for dt in own for kt in range(2)] for n_ in range(4)]
                for k in range(8):
                    o = vO + 8*(8+k)
                    rows[2*k+4] += [parse(f"v_cvt_pk_bf16_f32 v{o+x}, v{o+2*x}, v{o+2*x+1}") for x in range(4)]
                    rows[2*k+5] += [parse(f"buffer_store_dwordx4 v[{o}:{o+3}], {xa(k)}{var[1]}")] + rb[0][2*k:2*k+2]
                    if k % 2 == 1 and k < 7: rows[2*k+5].append(parse(f"s_add_u32 s{sOo}, s{sOo}, 4096"))
                for k, x in enumerate(rb[1]): rows[20 + k*10//16].append(x)
                for k, x in enumerate(rb[2]): rows[34 + k*13//16].append(x)
                for k, x in enumerate(rb[3]): rows[50 + k*13//16].append(x)
                rows[dtag] += tg.ins
                for g in range(80):
                    sg.add(mf[g])
                    for x in rows[g]: sg.add(x)
            elif y2:
                rows = {g: [] for g in range(48)}
                r14 = [vread(i, dt, kt, dt+8) for dt in own for kt in range(2)]; r15 = [vread(i+1, dt, kt) for dt in own for kt in range(2)]
                nst_ = len(st) - 1
                for k, x in enumerate(st[:-1]): rows[min(3, k*4//nst_)].append(x)
                tiles = [[y[0] for y in q[a_:b_]] for a_, b_ in zip([0,5,11,16,22,27,33,38], [5,11,16,22,27,33,38,43])]
                for k in range(8):
                    rows[2*k+4] += tiles[k][:4]
                    rows[2*k+5] += tiles[k][4:5] + r14[2*k:2*k+2] + tiles[k][5:]
                rows[1] = r14[:0] + rows[1]
                rows[4] = [st[-1]] + rows[4]
                for k, x in enumerate(r15): rows[20 + k].append(x)
                rows[tagg] += tg.ins
                for g in range(48):
                    sg.add(mf[g])
                    for x in rows[g]: sg.add(x)
            else:
                sca = {tagg: [post(x) for x in tg.ins]}
                schedule(sg, mf, [rd, q, spread(st, 0, 4)], sca, label="YZ", cap=3)
            fstamp(sg)
            if var[0] == "slow" and fast: sg.a("s_branch L_sent")
        fin = Seg("final"); e = fin.a
        e("L_sent:")
        e(f"s_mov_b32 s{sCnt}, 0x200000")
        e("L_poll:")
        e(f"s_sub_u32 s{sCnt}, s{sCnt}, 1\ns_cbranch_scc1 L_pollok")
        e(f"buffer_load_dword v8, v3, s[{sW}:{sW+3}], s{sMb} offen{xpoll}\ns_waitcnt vmcnt(0)\nv_readfirstlane_b32 s3, v8\ns_cmp_lg_u32 s3, s{sCh}\ns_cbranch_scc1 L_poll")
        e("L_pollok:")
        stamp(fin)
        e(f"s_mov_b32 s{sOo}, s{sX}")
        def xloads(pol):
            e(f"buffer_load_dwordx4 v[32:35], v{vSt}, s[{sW}:{sW+3}], s{sMb} offen offset:256{pol}")
            for k in range(8):
                e(f"buffer_load_dwordx4 v[{rcv(k)}:{rcv(k)+3}], {xa(k)}{pol}")
                if k % 2 == 1 and k < 7: e(f"s_add_u32 s{sOo}, s{sOo}, 4096")
        xloads(xld)
        e(f"buffer_load_dword v2, v3, s[{sW}:{sW+3}], s{sPw} offen offset:128 sc1")
        fstamp(fin, 9); fstamp(fin, 0)
        for qt in range(2):
            fo, fx, t = 36+2*qt, 40+2*qt, 44+qt
            e(f"v_min_f32 v{t}, v{4+qt}, v{32+qt}\nv_sub_f32 v{fo}, v{t}, v{4+qt}\nv_sub_f32 v{fx}, v{t}, v{32+qt}\nv_exp_f32 v{fo}, v{fo}\nv_exp_f32 v{fx}, v{fx}")
        for qt in range(2):
            fo, fx, t = 36+2*qt, 40+2*qt, 44+qt
            e(f"v_mul_f32 v{t}, v{fo}, v{6+qt}\nv_fma_f32 v{t}, v{fx}, v{34+qt}, v{t}\nv_rcp_f32 v{t}, v{t}")
        for qt in range(2):
            fo, fx, t = 36+2*qt, 40+2*qt, 44+qt
            e(f"v_mul_f32 v{fo}, v{fo}, v{t}\nv_mul_f32 v{fx}, v{fx}, v{t}")
        for r in range(0, 64, 2):
            fo = 36 + 2*((r//4) % 2)
            e(f"v_pk_mul_f32 v[{vO+r}:{vO+r+1}], v[{vO+r}:{vO+r+1}], v[{fo}:{fo+1}] op_sel_hi:[1,0]")
        def comb(dt, qt):
            o = vO + 8*dt + 4*qt; p = rcv(dt) + 2*qt; u = 48 + 4*((2*dt+qt) % 4); fx = 40+2*qt
            e(f"v_lshlrev_b32 v{u}, 16, v{p}\nv_and_b32 v{u+1}, 0xffff0000, v{p}\nv_lshlrev_b32 v{u+2}, 16, v{p+1}\nv_and_b32 v{u+3}, 0xffff0000, v{p+1}")
            e(f"v_pk_fma_f32 v[{o}:{o+1}], v[{u}:{u+1}], v[{fx}:{fx+1}], v[{o}:{o+1}] op_sel_hi:[1,0,1]")
            e(f"v_pk_fma_f32 v[{o+2}:{o+3}], v[{u+2}:{u+3}], v[{fx}:{fx+1}], v[{o+2}:{o+3}] op_sel_hi:[1,0,1]")
            e(f"v_cvt_pk_bf16_f32 v{o}, v{o}, v{o+1}\nv_cvt_pk_bf16_f32 v{o+1}, v{o+2}, v{o+3}")
        def dsw(dt, qt):
            o = vO + 8*dt + 4*qt
            e(f"ds_write_b64 v{vEw}, v[{o}:{o+1}] offset:{4352*qt+32*dt}")
        def retag():
            e(f"v_readfirstlane_b32 s3, v2\ns_cmp_eq_u32 s3, s{sT1}\ns_cbranch_scc1 L_tagok")
            e(f"buffer_wbl2 sc1\ns_waitcnt vmcnt(0)\nbuffer_store_dword v2, v3, s[{sW}:{sW+3}], s{sPw} offen sc1")
            e("L_tagok:")
        if q4:
            e(f"s_add_u32 s{sOo}, s{sX}, 8192")
            stq = []
            for n_, (h, qt) in enumerate(((0, 0), (0, 1), (1, 0), (1, 1))):
                for k, dt in enumerate(range(4*h, 4*h+4)):
                    comb(dt, qt)
                    if k in (1, 2) and stq: e(stq.pop(0))
                for dt in range(4*h, 4*h+4): dsw(dt, qt)
                for m in range(2):
                    r = 192 + 8*n_ + 4*m
                    e(f"ds_read_b128 v[{r}:{r+3}], v{vEr} offset:{272*(16*qt+8*m)+128*h}")
                    stq.append(f"buffer_store_dwordx4 v[{r}:{r+3}], v21, s[{sO}:{sO+3}], s{sOo if m else sX} offen offset:{512*qt+128*h}{polO}")
                if n_ == 0: e("s_waitcnt vmcnt(1)")
            fstamp(fin)
            for x in stq: e(x)
            retag()
        else:
            for dt in range(8):
                for qt in range(2):
                    comb(dt, qt)
                    if qt == 1 and dt % 2 == 1:
                        for d2 in (dt-1, dt):
                            for q2 in range(2): dsw(d2, q2)
            fstamp(fin)
            korder = [0, 4, 1, 5, 2, 6, 3, 7]
            for n_, k in enumerate(korder): e(f"ds_read_b128 v[{192+4*n_}:{192+4*n_+3}], v{vEr} offset:{1088*k}")
            retag()
            for k in range(8):
                e(f"buffer_store_dwordx4 v[{192+4*k}:{192+4*k+3}], v{vOg}, s[{sO}:{sO+3}], s{sX} offen offset:{512*(k%2)}{polO}")
                if k % 2 == 1 and k < 7: e(f"s_add_u32 s{sX}, s{sX}, 4096")
        fstamp(fin)
    endseg = Seg("end"); e = endseg.a
    if stamps:
        e("s_waitcnt vmcnt(0)")
        stamp(endseg)
        e(f"s_lshl_b32 s3, s2, 2\ns_add_u32 s3, s3, s{sWv}\ns_lshl_b32 s3, s3, 9\nv_lshlrev_b32 v{vSt}, 3, v0")
        e(f"buffer_store_dwordx2 v[10:11], v{vSt}, s[{sW}:{sW+3}], s3 offen")
    if probe is not None:
        e("s_waitcnt vmcnt(0)")
        stamp(endseg)
        e(f"s_sub_u32 s94, s94, s96\ns_add_u32 s94, s94, 2500\nL_pad:\ns_memrealtime s[98:99]\ns_waitcnt lgkmcnt(0)\ns_sub_u32 s3, s98, s96\ns_cmp_lt_u32 s3, s94\ns_cbranch_scc1 L_pad")
    if padto:
        e(f"s_waitcnt vmcnt(0)\nL_pad:\ns_memrealtime s[98:99]\ns_waitcnt lgkmcnt(0)\ns_sub_u32 s3, s98, s96\ns_cmp_lt_u32 s3, {int(padto*100)}\ns_cbranch_scc1 L_pad")
    e("L_end:\ns_endpgm")
    rares = []
    for ret, i in ((0, 0), (1, 1), (2, NB-2), (3, NB-4), (4, NB-3))[:5 if peel else 3] + tuple((5+k, k) for k in range(nser if tpl else 0)):
        r = Seg(f"rare{ret}"); e = r.a
        S = vS[(i+1)%2]; S2 = vS[i%2]
        e(f"L_rare{ret}:")
        rowmax(r, S, True)
        e("v_exp_f32 v6, -v1\nv_exp_f32 v7, -v4")
        for qt, d, al in ((0, 1, 6), (1, 4, 7)):
            for k in range(4): e(f"v_sub_f32 v{vCn+4*qt+k}, v{vCn+4*qt+k}, v{d}")
            for k in range(8): e(f"v_sub_f32 v{S+8*qt+k}, v{S+8*qt+k}, v{d}")
            if ret != 2:
                for k in range(8): e(f"v_sub_f32 v{S2+8*qt+k}, v{S2+8*qt+k}, v{d}")
            e(f"v_mul_f32 v{vL+qt}, v{al}, v{vL+qt}")
        pend = [NB-2] if ret == 2 else []
        if dfr and ret in (2, 3, 4): pend = list(range(NB-4, i+1))
        for n in pend:
            for k in range(8):
                p = Pbuf(n) + k; al = 6 + k//4
                e(f"v_lshlrev_b32 v{vPf}, 16, v{p}\nv_and_b32 v{vPf+1}, 0xffff0000, v{p}\nv_mul_f32 v{vPf}, v{al}, v{vPf}\nv_mul_f32 v{vPf+1}, v{al}, v{vPf+1}\nv_cvt_pk_bf16_f32 v{p}, v{vPf}, v{vPf+1}")
        for x in softmax_q(i+1, merge=False, pipe=True): r.add(x)
        for k in range(128): e(f"v_mul_f32 v{vO+k}, v{6+(k//4)%2}, v{vO+k}")
        e(f"s_nop 1\ns_branch L_back{ret}")
        rares.append(r)
    if "oob" in exp: pro.a(f"s_mov_b32 s{sK+2}, 0\ns_mov_b32 s{sV+2}, 0")
    if "l2hot" in exp:
        for x in body.ins:
            if x.text.startswith(f"s_add_u32 s{sOK}, s{sOK}, 16384") or x.text.startswith(f"s_add_u32 s{sOV}, s{sOV}, 16384"): x.text = "s_nop 0"
    if exp:
        nb = []
        for x in body.ins:
            if "nolds" in exp and x.kind == "dsr": continue
            if "novalu" in exp and x.kind in ("valu","trans") and not x.text.startswith("v_add_u32") and not x.text.startswith("v_cmp") and not x.text.startswith("v_writelane"): continue
            if "nodma" in exp and x.kind == "dma": continue
            if "nomfma" in exp and x.kind == "mfma": continue
            if "nobar" in exp and (x.kind == "barrier" or (x.kind == "wait" and x.vm is not None)): continue
            if "nomax" in exp and x.text.startswith("v_max"): continue
            nb.append(x)
        body.ins = nb
    order = [pro, warm, body, tail] + sends + [fin, endseg, pollb, zseg] + rares
    traces = [[pro, warm, body, body, body, tail, s, fin, endseg] for s in sends]
    fix_waits(traces, verbose)
    for s in order: merge_waits(s)
    fix_waits(traces, verbose)
    def upto(seg, lab):
        s = Seg(seg.name+"_pre"); k = [i.text for i in seg.ins].index(lab); s.ins = seg.ins[:k]
        s2 = Seg(seg.name+"_post"); s2.ins = seg.ins[k:]; return s, s2
    pw = [pro, warm]
    cases = [(0, body, pw+[body], [body]), (1, body, pw+[body], [body]), (1, body, pw+[body], [tail]), (2, tail, pw+[body], [sends[0]])]
    if peel: cases += [(3, tail, pw+[body], []), (4, tail, pw+[body], [])]
    cases += [(5+k, warm, [pro], [body]) for k in range(nser if tpl else 0)]
    for ret, seg, prev, nxt in cases:
        p, q = upto(seg, f"L_back{ret}:")
        n0 = [len(x.ins) for x in [p, q] + nxt]
        fix_waits([prev + [p, rares[ret], q] + nxt], verbose)
        assert exp or [len(x.ins) for x in [p, q] + nxt] == n0, "rare path needs extra waits outside"
    if zseg.ins and not xpad2:
        labs = [k for k, x in enumerate(zseg.ins) if x.kind == "label" and x.text.startswith("L_zero") and not x.text.endswith("b:")] + [len(zseg.ins)]
        parts = []
        for n_ in range(len(labs)-1):
            zp = Seg(f"zero{n_}"); zp.ins = zseg.ins[labs[n_]:labs[n_+1]]; parts.append(zp)
            p, q = upto(body, f"L_zback{n_}:")
            n0 = [len(p.ins), len(q.ins)]
            fix_waits([[pro, warm, p, zp, q]], verbose)
            assert exp or [len(p.ins), len(q.ins)] == n0, "zero block needs extra waits outside"
        zseg.ins = [x for zp in parts for x in zp.ins]
    lds = SPARE + KS
    txt = header + f"; @launch grid=(256,1,1) block=(256,1,1) lds={lds}\n"
    txt += f'.amdgcn_target "amdgcn-amd-amdhsa--gfx950"\n.text\n.globl {KN}\n.p2align 8\n.type {KN},@function\n{KN}:\n'
    body_txt = emit(order)
    if align is not None:
        body_txt = body_txt.replace("L_loop:\n", f".p2align {align[0]}\n" + "  s_nop 0\n"*align[1] + "L_loop:\n")
    txt += body_txt + "\nL_codeend:\n"
    txt += f'''.section .rodata,"a"
.p2align 6
.amdhsa_kernel {KN}
  .amdhsa_next_free_vgpr 452
  .amdhsa_next_free_sgpr 102
  .amdhsa_accum_offset 256
  .amdhsa_group_segment_fixed_size 0
  .amdhsa_kernarg_size 48
  .amdhsa_user_sgpr_count 2
  .amdhsa_user_sgpr_kernarg_segment_ptr 1
  .amdhsa_system_sgpr_workgroup_id_x 1
.end_amdhsa_kernel
'''
    return txt
if __name__ == "__main__":
    kw = eval("dict(" + (sys.argv[1] if len(sys.argv) > 1 else "") + ")")
    print(gen(**kw))
```

```python
import sys, math, struct
from asmlib import *
KN = "standalone__gqa_softmax__near_ridge_kernel"
def f2u(x): return struct.unpack("<I", struct.pack("<f", x))[0]
RS = 1056; KS = VS = 16*RS
KB = [i*KS for i in range(4)]
VB = [4*KS + i*VS for i in range(4)]
SPARE = 8*KS
C_SCALE = math.log2(math.e)/16.0
NB = 16
vOg, vEw, vEr, vSt = 12, 13, 14, 15
vKa, vVa, vDma, vDmaV, vMx = 16, 17, 18, 19, 20
vL = 22
vLb = 8
vPf = 80
vCn = 24
vP = [32, 40]; vS = [48, 64]; vTmp = 96; vO = 128
aQ, aKF, aVF = 0, 64, 128
sQ, sK, sV, sO, sW = 16, 20, 24, 28, 32
sWv, sOK, sOV, sMK, sMV, sCnt, sC, sDK, sDV, sXcc, sKh, sT0, sT1, sOo, sX = 40,41,42,43,44,45,46,47,48,49,50,51,52,53,54
sDK2, sDV2, sPw, sMb, sCh = 55, 56, 57, 58, 59
XBASE = 1 << 20

def gen(polK=" nt", polV=" nt", polQ="", ndef=0, polO="", stamps=False, T=8.0, verbose=False, header="", padto=0, exp=(),
        fast=True, pxor=16, bg=53, dmagaps=(57,1,9,17,25,33,41,49), npre=5, wgrp=2, smend=60, late=1.6, xld=' sc1', xpoll=' sc1', fine=False, xpad=None, xstag=0, probe=None, cpf=True, btx=7, tagg=36, nq0=11, zsplit=(0,0,0), zgap=(30,46), otouch=False, peel=True, mergeb=False, prefmode=1, stag=None, p2=True, xdelay=None, dfr=True, dpf=13, n12=0, xst='', dbg_=33, dtag=68, xsw=False, prefw=None, h2=False, tga=21,  k1late=True, k4late=0, kcatch=0, k1bar=2, y2=True, nser=4, sergap=(60,)*8, cskip=('L_end','L_end'), ttouch=0, tpl=True, tE=(0,4,8,12,16,20,24,28,32,36,40,43,46,50,53,56), tD=(54,2,9,17,25,33,38,45), tbg=49, tdbl=(14,30), tzs=(30,42), align=None, pref13=True, q4=True, ilv=None, dsm0=True, lazy=0, pref12=False, xpad2=None, st256=True, ptrips=(4,3,2), pcont=False, ppol=''):
    nst = [0]
    def stamp(seg):
        if probe is not None:
            if nst[0] == probe: seg.a("s_waitcnt lgkmcnt(0)\ns_memrealtime s[94:95]\ns_waitcnt lgkmcnt(0)")
            nst[0] += 1
        if stamps:
            seg.a(f"s_waitcnt lgkmcnt(0)\ns_memtime s[64:65]\ns_memrealtime s[66:67]\ns_waitcnt lgkmcnt(0)\nv_writelane_b32 v10, s64, {nst[0]}\nv_writelane_b32 v11, s66, {nst[0]}"); nst[0] += 1
    nf = [32]
    def fstamp(seg, vm=None):
        if stamps and fine:
            if vm is not None: seg.a(f"s_waitcnt vmcnt({vm})")
            sv = nst[0]; nst[0] = nf[0]; stamp(seg); nf[0] += 1; nst[0] = sv
    pro = Seg("prologue"); a = pro.a
    a(f"s_cmp_ge_u32 s2, 256\ns_cbranch_scc1 L_end")
    a("s_load_dwordx8 s[4:11], s[0:1], 0\ns_load_dwordx2 s[14:15], s[0:1], 40")
    if padto or probe is not None: a("s_memrealtime s[96:97]")
    stamp(pro)
    if xdelay is not None:
        a(f"s_bitcmp1_b32 s2, {xdelay}\ns_cbranch_scc0 L_nodly\ns_mov_b32 s3, 12\nL_dly:\ns_sleep 127\ns_sub_u32 s3, s3, 1\ns_cbranch_scc0 L_dly\nL_nodly:")
    if xstag:
        a(f"s_bitcmp1_b32 s2, 5\ns_cbranch_scc0 L_nostag\ns_sleep {xstag}\nL_nostag:")
    a("v_lshrrev_b32 v1, 6, v0\nv_and_b32 v0, 63, v0")
    a(f"v_readfirstlane_b32 s{sWv}, v1")
    if cpf:
        a(f"s_getpc_b64 s[36:37]\ns_lshr_b32 s3, s2, 3\ns_lshl_b32 s3, s3, 2\nv_add_u32 v4, s3, v1\nv_lshlrev_b32 v4, 1, v4\nv_add_u32 v4, v4, v0\nv_lshlrev_b32 v4, 7, v4")
        if cskip and cskip[0] != cskip[1]:
            a(f"v_mov_b32 v5, {cskip[1]}-{cskip[0]}\nv_cmp_le_u32 vcc, {cskip[0]}-{KN}, v4\nv_cndmask_b32 v5, 0, v5, vcc\nv_add_u32 v4, v4, v5")
        a(f"v_min_u32 v4, {'L_end' if cskip else 'L_codeend'}-{KN}-256, v4\nv_mov_b32 v5, s37\nv_add_co_u32 v4, vcc, s36, v4\ns_nop 1\nv_addc_co_u32 v5, vcc, 0, v5, vcc")
        a("s_mov_b64 exec, 3")
        y = I("global_load_dword a192, v[4:5], off", "vld", rd=["v4", "v5"]); pro.add(y)
        a("s_mov_b64 exec, -1")
    a(f"v_lshlrev_b32 v{vDma}, 4, v0")
    if pxor == 16:
        a(f"s_mov_b32 s{sX}, s2")
    else:
        a(f"s_and_b32 s{sX}, s2, 0xee\ns_bfe_u32 s3, s2, 0x10004\ns_or_b32 s{sX}, s{sX}, s3\ns_and_b32 s3, s2, 1\ns_lshl_b32 s3, s3, 4\ns_or_b32 s{sX}, s{sX}, s3")
    a(f"s_and_b32 s{sT0}, s{sX}, 7\ns_lshr_b32 s{sT1}, s{sX}, 3\ns_lshl_b32 s{sT0}, s{sT0}, 3")
    a(f"s_lshr_b32 s3, s{sT1}, 2\ns_add_u32 s{sT0}, s{sT0}, s3")
    a(f"s_bfe_u32 s{sKh}, s{sT1}, 0x10001")
    a(f"s_and_b32 s{sT1}, s{sT1}, 1\ns_lshl_b32 s3, s{sT0}, 1\ns_add_u32 s{sT1}, s{sT1}, s3")
    a(f"s_lshl_b32 s{sT1}, s{sT1}, 16")
    a(f"s_lshl_b32 s{sT0}, s{sT0}, 19\ns_lshl_b32 s3, s{sKh}, 18\ns_add_u32 s{sT0}, s{sT0}, s3")
    a(f"s_mov_b32 s{sX}, {KB[3]}\ns_cmp_eq_u32 s{sWv}, 1\ns_cselect_b32 s{sX}, {VB[2]}, s{sX}")
    a(f"s_cmp_eq_u32 s{sWv}, 2\ns_cselect_b32 s{sX}, {VB[3]}, s{sX}\ns_cmp_eq_u32 s{sWv}, 3\ns_cselect_b32 s{sX}, {SPARE}, s{sX}")
    a(f"s_lshl_b32 s{sOo}, s{sWv}, 14")
    a(f"s_lshl_b32 s{sOK}, s{sWv}, 12\ns_mov_b32 s{sOV}, s{sOK}")
    a(f"s_mul_i32 s{sMK}, s{sWv}, {4*RS}\ns_add_u32 s{sMV}, s{sMK}, {VB[0]}")
    a(f"s_mov_b32 s{sQ+2}, 65536\ns_mov_b32 s{sQ+3}, 0x20000\ns_mov_b32 s{sK+2}, {NB*16384}\ns_mov_b32 s{sK+3}, 0x20000\ns_mov_b32 m0, s{sMK}")
    a(f"s_mov_b32 s{sDK2}, {2*KS}\ns_mov_b32 s{sDV2}, {2*VS}\ns_mov_b32 s{sDK}, {2*KS}\ns_mov_b32 s{sDV}, {2*VS}")
    a(f"s_lshl_b32 s{sMb}, s2, 2\ns_add_u32 s{sMb}, s{sMb}, s{sWv}\ns_lshl_b32 s{sMb}, s{sMb}, 11\ns_add_u32 s{sMb}, s{sMb}, {XBASE}")
    a(f"s_mov_b32 s{sW+2}, {3*XBASE}\ns_mov_b32 s{sW+3}, 0x20000\nv_lshlrev_b32 v3, 7, v0")
    a(f"s_getreg_b32 s{sXcc}, hwreg(HW_REG_XCC_ID)\ns_and_b32 s{sXcc}, s{sXcc}, 15")
    a("v_lshrrev_b32 v6, 3, v0\nv_and_b32 v7, 6, v6\nv_xor_b32 v7, v7, v0\nv_and_b32 v7, 7, v7\nv_lshlrev_b32 v7, 4, v7\nv_lshl_add_u32 v6, v6, 9, v7\nv_xor_b32 v7, 0x200, v6")
    a("s_waitcnt lgkmcnt(0)")
    fstamp(pro)
    def epi_addr(a):
        a(f"v_and_b32 v1, 15, v0\nv_lshrrev_b32 v4, 4, v0\ns_mul_i32 s3, s{sWv}, 8704")
        a(f"v_mul_u32_u24 v5, 272, v1\nv_lshlrev_b32 v21, 3, v4\nv_add3_u32 v{vEw}, v5, v21, s3")
        a(f"v_lshlrev_b32 v21, 4, v1\nv_mul_u32_u24 v5, 272, v4\nv_add3_u32 v{vEr}, v5, v21, s3")
        a(f"v_lshl_add_u32 v{vOg}, v4, 10, v21\nv_mov_b32 v{vSt}, " + ("v21" if st256 else f"v{vDma}"))
        if q4:
            a(f"v_lshrrev_b32 v5, 3, v0\nv_and_b32 v21, 7, v0\nv_lshlrev_b32 v21, 4, v21\nv_mul_u32_u24 v{vEr}, 272, v5\nv_add3_u32 v{vEr}, v{vEr}, v21, s3\nv_lshl_add_u32 v21, v5, 10, v21")
    def setup():
        a(f"s_lshl_b32 s3, s{sKh}, 8\nv_xor_b32 v{vDmaV}, s3, v{vDma}")
        a(f"v_and_b32 v1, 15, v0\nv_lshrrev_b32 v4, 4, v0")
        a(f"v_mul_u32_u24 v2, {RS}, v1\nv_lshl_add_u32 v{vKa}, v4, 4, v2")
        a(f"v_lshrrev_b32 v2, 2, v0\nv_mul_u32_u24 v2, {RS}, v2\nv_and_b32 v3, 3, v0\nv_lshl_add_u32 v2, v3, 3, v2\nv_add_u32 v{vVa}, {VB[0]}, v2")
        a(f"v_lshlrev_b32 v3, 1, v3\nv_lshrrev_b32 v2, 2, v1\nv_and_b32 v5, 1, v2\nv_xor_b32 v5, v5, v3\nv_lshlrev_b32 v5, 7, v5\nv_lshl_add_u32 v5, v2, 10, v5")
        a(f"v_xor_b32 v3, v3, v4\nv_lshl_add_u32 v5, v3, 4, v5")
        a(f"v_add_u32 v28, s{sX}, v5\nv_xor_b32 v3, 128, v5\nv_add_u32 v29, s{sX}, v3\nv_xor_b32 v3, 64, v5\nv_add_u32 v30, s{sX}, v3\nv_xor_b32 v3, 0xc0, v5\nv_add_u32 v31, s{sX}, v3")
        epi_addr(a)
        a(f"s_mov_b32 s{sC}, {f2u(C_SCALE):#x}")
        a(f"v_mov_b32 v{vL}, 0\nv_mov_b32 v{vL+1}, 0\nv_mov_b32 v2, s{sC}")
        for r in range(zsplit[0]): a(f"v_mov_b32 v{vO+r}, 0")
    early = [ndef]
    def dmaK(n, j): return [parse(f"s_add_u32 m0, s{sMK}, {(n%2)*KS+32*j}"),
                            parse(f"buffer_load_dwordx4 v{vDma}, s[{sK}:{sK+3}], s{sOK} offen offset:{1024*j}{'' if n < early[0] else polK} lds")]
    def dmaV(n, j): return [parse(f"s_add_u32 m0, s{sMV}, {(2 if dfr and n == NB-1 else n%2)*VS+32*j}"),
                            parse(f"buffer_load_dwordx4 v{vDmaV}, s[{sV}:{sV+3}], s{sOV} offen offset:{1024*j}{'' if n < early[0] - 3 else polV} lds")]
    def advK(n):
        L = [parse(f"s_add_u32 s{sOK}, s{sOK}, 16384")]
        if n % 2 == 1: L += [parse(f"s_add_u32 s{sMK}, s{sMK}, s{sDK2}"), parse(f"s_sub_u32 s{sDK2}, 0, s{sDK2}")]
        return L
    def advV(n):
        L = [parse(f"s_add_u32 s{sOV}, s{sOV}, 16384")]
        if n % 2 == 1: L += [parse(f"s_add_u32 s{sMV}, s{sMV}, s{sDV2}"), parse(f"s_sub_u32 s{sDV2}, 0, s{sDV2}")]
        return L
    def block(seg, f, adv, n):
        for j in range(4):
            x = f(n, j); seg.add(x[0]); seg.a("s_nop 0"); seg.add(x[1])
        for x in adv(n): seg.add(x)
    def Pbuf(n): return (112, 120)[n-(NB-2)] if dfr and n >= NB-2 else vP[n%2]
    def kread(n, j): return parse(f"ds_read_b128 a[{aKF+4*j}:{aKF+4*j+3}], v{vKa} offset:{(n%2)*KS+64*(j//2)+512*(j%2)}")
    def vread(n, dt, kt, slot=None, va=vVa):
        r = aVF + 4*(dt if slot is None else slot) + 2*kt
        return parse(f"ds_read_b64_tr_b16 a[{r}:{r+1}], v{va} offset:{(2 if dfr and n == NB-1 else n%2)*VS+512*kt+32*dt}")
    def qk(n, g, first0=False):
        j, qt = g//2, g % 2; t, kt = j//2, j % 2
        S = vS[n%2] + 8*qt + 4*kt; f = aKF+4*j; qf = aQ + 4*(2*t+qt)
        c = f"v[{S}:{S+3}]" if t else ("0" if first0 else f"v[{vCn+4*qt}:{vCn+4*qt+3}]")
        i = parse(f"v_mfma_f32_16x16x32_bf16 v[{S}:{S+3}], a[{f}:{f+3}], a[{qf}:{qf+3}], {c}")
        if g % (2*wgrp) == 0: i.extra = set(R("a", f, 4*wgrp))
        return i
    def pv(n, dt, qt, grp=None, slot=None):
        f = aVF+4*(dt if slot is None else slot); o = vO+8*dt+4*qt; p = Pbuf(n)+4*qt
        i = parse(f"v_mfma_f32_16x16x32_bf16 v[{o}:{o+3}], a[{f}:{f+3}], v[{p}:{p+3}], v[{o}:{o+3}]")
        for d2 in (grp or ()): i.extra |= set(R("a", aVF+4*d2, 4))
        return i
    def pvlist(n, dts, slots=None):
        L = []; slots = slots or dts
        for k, dt in enumerate(dts):
            L.append(pv(n, dt, 0, slots[k:k+wgrp] if k % wgrp == 0 else None, slots[k])); L.append(pv(n, dt, 1, None, slots[k]))
        return L
    def checkops():
        return [parse(f"v_max_f32 v{vMx}, v{vLb}, v{vLb+1}"), parse(f"v_cmp_lt_f32 vcc, {f2u(2.0**T):#x}, v{vMx}")]
    def mergeops(): return [parse(f"v_add_f32 v{vL+qt}, v{vL+qt}, v{vLb+qt}") for qt in range(2)]
    def softmax_q(n, merge=True, pipe=False):
        S = vS[n%2]; P = Pbuf(n)
        E = lambda r: parse(f"v_exp_f32 v{vPf+r}, v{S+r}")
        def A(r):
            if r % 8 == 1: return parse(f"v_add_f32 v{vLb+r//8}, v{vPf+r-1}, v{vPf+r}")
            return parse(f"v_add_f32 v{vLb+r//8}, v{vLb+r//8}, v{vPf+r}")
        Cv = lambda p: parse(f"v_cvt_pk_bf16_f32 v{P+p}, v{vPf+2*p}, v{vPf+2*p+1}")
        q = []
        if pipe:
            for r in range(17):
                if r < 16: q.append(E(r))
                if r >= 1 and (r-1) % 8: q.append(A(r-1))
                if r >= 2 and r % 2 == 0: q.append(Cv(r//2-1))
            return q
        mg = mergeops() if merge else []
        for r in range(16):
            q.append(E(r))
            if r % 8 == 0:
                if mg: q.append(mg.pop(0))
            else: q.append(A(r))
            if r % 2 == 1: q.append(Cv(r//2))
        return q
    def spread(ops, g0, g1):
        tot = sum(x.cost for x in ops); c = 0; out = []
        for x in ops:
            out.append((x, g0 + (g1-g0)*c/max(tot-ops[-1].cost, 1), g0)); c += x.cost
        return out
    def post(x): x.tag = "post"; return x
    def schedule(seg, mf, streams, sca, label="", cap=2, lastempty=False):
        n = len(mf); streams = [list(s) for s in streams if s]
        nm = n
        if lastempty: n -= 1
        for g in range(nm):
            seg.add(mf[g])
            s_ = sca.get(g, [])
            pre = [x for x in s_ if x.tag != "post"]; pst = [x for x in s_ if x.tag == "post"]
            wsh = 1 if (g+1 < nm and mf[g+1].extra) else 0
            free = cap - max(0, len(pre)+wsh-1) - len([x for x in pst if x.kind != "label"])
            mem = []; val = []
            while True:
                cands = [s for s in streams if s and s[0][2] <= g]
                if val: cands = [s for s in cands if s[0][0].kind not in ("dsr","dsw","dma","vst","vld")] + [s for s in cands if s[0][0].kind in ("dsr","dsw","dma","vst","vld")]
                cands.sort(key=lambda s: s[0][1])
                pick = None
                for s in cands:
                    x, tg, _ = s[0]
                    if g < n-1 and tg > g + 1.0 and (mem or val): continue
                    if g < n-1 and tg > g + 2.0: continue
                    if val and val[-1].kind == "trans" and (x.rd & val[-1].wr) and g < n-1: continue
                    if x.cost <= free or tg <= g - late or g == n-1: pick = s; break
                if pick is None: break
                x = pick.pop(0)[0]; free -= x.cost
                (mem if x.kind in ("dsr","dsw","dma","vld") else val).append(x)
            row = pre + mem + val + pst
            for x in row: seg.add(x)
            if verbose: print(f"; {label} gap{g}: " + "".join({"dsr":"t","dma":"d","trans":"e","valu":"v","salu":"s","wait":"w","barrier":"B","vst":"S"}.get(x.kind, "?") for x in row))
        assert not any(streams)
    def addf(d, g, *xs): d.setdefault(g, []).extend(xs)
    def rowmax(seg, S, zero):
        for qt, d, t in ((0, 1, 6), (1, 4, 7)):
            b = S + 8*qt
            seg.a(f"v_max3_f32 v{d}, v{b}, v{b+1}, v{b+2}\nv_max3_f32 v{d}, v{d}, v{b+3}, v{b+4}\nv_max3_f32 v{d}, v{d}, v{b+5}, v{b+6}")
            seg.a(f"v_max3_f32 v{d}, v{d}, v{b+7}, 0" if zero else f"v_max_f32 v{d}, v{d}, v{b+7}")
        seg.a("v_mov_b32 v6, v1\nv_mov_b32 v7, v4\nv_permlane16_swap_b32 v6, v1\nv_permlane16_swap_b32 v7, v4\nv_max_f32 v1, v1, v6\nv_max_f32 v4, v4, v7")
        seg.a("v_mov_b32 v6, v1\nv_mov_b32 v7, v4\nv_permlane32_swap_b32 v6, v1\nv_permlane32_swap_b32 v7, v4\nv_max_f32 v1, v1, v6\nv_max_f32 v4, v4, v7")
    NV0 = 4 if tpl else 3
    NK0 = 8 if tpl else 5 if ilv else 6
    def nosh(g):
        while g % (2*wgrp) == 2*wgrp-1: g += 1
        return g
    def iteration(seg, i, ret, do_pv=True, loopend=False, pref=False):
        sca = {}; dm = []
        mf = [qk(i+2, g) for g in range(32)]
        tK = [parse(f"v_add_u32 v{vKa}, s{sDK}, v{vKa}"), parse(f"s_sub_u32 s{sDK}, 0, s{sDK}")]
        tV = [parse(f"v_add_u32 v{vVa}, s{sDV}, v{vVa}"), parse(f"s_sub_u32 s{sDV}, 0, s{sDV}")]
        def place(g, xs):
            for x in xs:
                g = nosh(g)
                while g in sca: g = nosh(g+1)
                addf(sca, g, x); g += 1
            return g
        if do_pv:
            mf += pvlist(i, list(range(16)))
            mf[63].extra = set(R("a", aKF, 4*wgrp))
            mf[0].extra = set()
            dp = dmagaps
            nvm = 12
            if pref and pref12 and prefmode == 1: nvm = 13 if i == NB-3 else 17
            if pref and pref13 and prefmode == 1: nvm = 12 if i == NB-3 else 8
            addf(sca, bg, parse(f"s_waitcnt vmcnt({nvm})"), parse("s_barrier"))
            if loopend:
                addf(sca, 60, parse(f"s_sub_u32 s{sCnt}, s{sCnt}, 1"))
                if ilv: addf(sca, 63, parse(f"s_cmp_lg_u32 s{sCnt}, 0"))
                else: addf(sca, 61, parse(f"s_cmp_lg_u32 s{sCnt}, 0"))
            last = i == NB-3
            for k in range(1, 8):
                if pref and k >= 4 and prefmode == 1:
                    if pref12 or pref13:
                        kks = [] if last != pref13 else [(2*(k-4), dp[k]-4), (2*(k-4)+1, dp[k])]
                    else: kks = [(4*(i % 2) + k - 4, dp[k])]
                    for kk, gg in kks:
                        y = parse(f"buffer_load_dwordx4 a[192:195], v{vOg}, s[{sO}:{sO+3}], s{sT0} offen offset:{512*(kk%2)}{ppol}"); y.wr = set()
                        if kk % 2 == 1: addf(sca, gg+1, parse(f"s_add_u32 s{sT0}, s{sT0}, 4096"))
                        dm.append((y, gg-3, gg))
                    if pref12 and not last and k == 7:
                        y = parse(f"buffer_load_dwordx4 a[192:195], v{vSt}, s[{sW}:{sW+3}], s{sMb} offen offset:256"); y.wr = set()
                        dm.append((y, dp[k]-1, dp[k]+2))
                    continue
                x = dmaV(i+2, k) if k < 4 else dmaK(i+5, k-4)
                addf(sca, dp[k]-1, x[0]); dm.append((x[1], dp[k]-3, dp[k]))
            if last:
                if not (pref12 and prefmode == 1):
                    y = parse(f"buffer_load_dwordx4 a[192:195], v{vSt}, s[{sW}:{sW+3}], s{sMb} offen offset:256"); y.wr = set()
                    dm.append((y, dp[0]-3, dp[0]))
            else:
                x = dmaV(i+3, 0); addf(sca, dp[0]-1, x[0]); dm.append((x[1], dp[0]-3, dp[0]))
            if not last: assert place(dp[3]+1, advV(i+2)) < dp[0]
            if not (pref and prefmode == 1): assert place(dp[7]+1, advK(i+5)) <= 60
            r1 = [kread(i+2, j) for j in range(NK0, 16)] + [vread(i, dt, kt) for dt in range(16) for kt in range(2)]
            nxt = [vread(i+1, dt, kt) for dt in range(8, 8+NV0) for kt in range(2)] if last else [kread(i+3, j) for j in range(NK0)]
            if last: mf[63].extra = set(R("a", aVF+32, 4*wgrp))
            rd = spread(r1, 0, bg-1) + [(y, t, bg+(2 if last else 1)) for (y, t, _) in spread(nxt, bg+1, 61)]
            rdv = []
            if ilv:
                lead = 64 - (bg+1)
                rd = [(kread(i+2, j), 2*j - lead, 0) for j in range(NK0, 16)]
                k_end = 30 - lead
                nslow = int(k_end * ilv[0])
                vr = [vread(i, dt, kt) for dt in range(16) for kt in range(2)]
                rdv = spread(vr[:nslow], 1, k_end) + [(y, t, 0) for (y, t, _) in spread(vr[nslow:], k_end+1, ilv[1])]
                if last: rdv += [(y, t, bg+2) for (y, t, _) in spread(nxt, ilv[1]+1.5, 62)]
                else: rd += [(y, bg+1+2*j, bg+1) for j, y in enumerate(nxt)]
            tg = []
            if i % 2 == 1:
                if ilv: tg = [(tK[0], 26, 26), (tV[0], ilv[1], ilv[1]+1)]; place(29, [tK[1]]); addf(sca, 62, post(tV[1]))
                else: tg = [(tK[0], 16, 16), (tV[0], bg-1, bg+1)]; place(21, [tK[1]]); assert place(bg+4, [tV[1]]) <= 60
            n0 = len(seg.ins)
            schedule(seg, mf, [dm, rd, rdv, tg, spread(softmax_q(i+1) + checkops(), 0, smend)], sca, label=f"it{i}", lastempty=True)
            tx = [x.text for x in seg.ins[n0:]]
            if i % 2 == 1:
                assert tx.index(kread(i+2, 15).text) < tx.index(tK[0].text) < tx.index(tK[1].text) < tx.index(nxt[0].text)
                assert tx.index(vread(i, 15, 1).text) < tx.index(tV[0].text) < tx.index(tV[1].text)
                if last: assert tx.index(tV[0].text) < tx.index(nxt[0].text)
            assert tx.index("s_barrier") < len(tx) - 1 - tx[::-1].index(nxt[0].text)
            seg.a(f"s_cbranch_vccnz L_rare{ret}\nL_back{ret}:")
        else:
            for k, g in enumerate((1, 5, 9, 13, 17, 21, 25, 29)):
                x = dmaV(i+2, k) if k < 4 else dmaK(i+5, k-4)
                addf(sca, g-1, x[0]); dm.append((x[1], g-3, g))
            place(14, advV(i+2)); place(30, advK(i+5))
            rd = spread([kread(i+2, j) for j in range(NK0, 16)], 0, 16)
            schedule(seg, mf, [dm, rd, spread(softmax_q(i+1, merge=False), 0, 31)], sca, label=f"it{i}")
            seg.add(tK[0]); seg.add(tK[1])
            seg.a("s_waitcnt vmcnt(12)\ns_barrier")
            for j in range(NK0): seg.add(kread(i+3, j))
            x = dmaV(i+3, 0); seg.add(x[0]); seg.a(f"buffer_load_dword v2, v3, s[{sW}:{sW+3}], s{sPw} offen offset:128 sc1"); seg.add(x[1])
            if otouch:
                y = parse(f"buffer_load_dword a192, v3, s[{sO}:{sO+3}], s{sOo} offen"); y.wr = set(); seg.add(y)
            seg.a(f"s_waitcnt lgkmcnt({NK0-wgrp})")
    sThr, sThr2 = 60, 61
    nV0 = len([g for g in tD[:4] if g > tbg])
    def iteration2(seg, i, ret, loopend=False, pref=False, zsites=False, serial=None, inl=None, xk=(), kl=5):
        last = i == NB-3; bg_ = tbg
        mf = [qk(i+2, g) for g in range(32)] + pvlist(i, list(range(16)))
        mf[63].extra = set(R("a", aVF+32 if last else aKF, 4*wgrp)); mf[0].extra = set()
        sh = {g: [] for g in range(64)}; mem = {g: [] for g in range(64)}; val = {g: [] for g in range(64)}
        resv = {g for g in range(63) if mf[g+1].extra}
        def place(g, xs):
            for x in xs:
                while g in resv or sh[g] or g == bg_: g += 1
                assert g < 63
                sh[g].append(x); g += 1
            return g
        nvm = 12
        if pref and prefmode == 1: nvm = 12 if last else 8
        if pref and prefw is not None: nvm = 4 if last else 8
        if serial is not None and i == prefw: nvm = 21
        if kl == 4: nvm = 8
        assert bg_-1 not in resv or True
        sh[bg_ if (bg_-1) in resv else bg_-1].append(parse(f"s_waitcnt vmcnt({nvm})")); sh[bg_].append(parse("s_barrier"))
        if zsites:
            for n_, zg in enumerate(tzs):
                assert zg not in resv and zg-1 not in resv and zg not in tD and zg-1 not in tD
                sh[zg-1].append(parse(f"s_cmp_eq_u32 s{sCnt}, {NTRIP-1}")); sh[zg] += [parse(f"s_cbranch_scc1 L_zero{n_}"), parse(f"L_zback{n_}:")]
        nxt = [vread(i+1, dt, kt) for dt in range(8, 8+NV0) for kt in range(2)] if last else [kread(i+3, j) for j in range(NK0)]
        reads = [kread(i+2, j) for j in range(NK0, 16)] + [vread(i, dt, kt) for dt in range(16) for kt in range(2)] + nxt
        slots = []
        for g in range(63):
            if g not in tE and g != bg_: slots += [g, g] if g in tdbl else [g]
        assert len(slots) == len(reads), (len(slots), len(reads))
        for g, x in zip(slots, reads): mem[g].append(x)
        gpos = {x.text: g for g, x in zip(slots[:40], reads[:40])}
        assert slots[40] > bg_
        def putv(g, y): mem[g].append(y)
        for k in range(8):
            g = tD[k]; assert g not in resv and g not in tE and not sh[g]
            if k < nV0:
                assert g > bg_
                if last and (prefw is not None or k > 0): pass
                elif last:
                    y = parse(f"buffer_load_dwordx4 a[192:195], v{vSt}, s[{sW}:{sW+3}], s{sMb} offen offset:256"); y.wr = set(); putv(g, y)
                else: x = dmaV(i+3, k); sh[g].append(x[0]); putv(g, x[1])
            elif k >= 4 and pref and prefmode == 1:
                pass
            else:
                x = dmaV(i+2, k) if k < 4 else dmaK(i+kl, k-4); sh[g].append(x[0]); putv(g, x[1])
        g = 1
        for n in xk:
            for j in range(4):
                while g in resv or sh[g] or g in tD or len(mem[g]) != 1: g += 1
                x = dmaK(n, j); sh[g].append(x[0]); putv(g, x[1]); g += 1
            g = place(g, advK(n))
        assert g <= tD[4]
        thr = f"s{sThr}"
        if loopend:
            g = 56 if nV0 == 1 else 36
            while g in resv or sh[g] or g+1 in resv or sh[g+1]: g += 1
            sh[g].append(parse(f"s_sub_u32 s{sCnt}, s{sCnt}, 1")); sh[g+1].append(parse(f"s_cselect_b32 s{sThr2}, -1.0, s{sThr}")); thr = f"s{sThr2}"
        if not last: assert place(tD[3]+1 if nV0 < 4 else 1, advV(i+2)) <= tD[0]
        if not (pref and prefmode == 1): assert place(tD[7]+1, advK(i+kl)) <= 63
        q = softmax_q(i+1) + [parse(f"v_max_f32 v{vMx}, v{vLb}, v{vLb+1}"), parse(f"v_cmp_lt_f32 vcc, {thr}, v{vMx}")]
        blk = []
        if serial is not None:
            blk = mergeops() + softmax_q(i+1, merge=False, pipe=True) + q[-2:]; q = []
        ex = [x for x in q if x.kind == "trans"]; ot = []; ne = 0
        for x in q:
            if x.kind == "trans": ne += 1
            else: ot.append((x, tE[ne-1]+1))
        for g, x in zip(tE, ex): val[g].append(x)
        if i % 2 == 1:
            tK = [parse(f"v_add_u32 v{vKa}, s{sDK}, v{vKa}"), parse(f"s_sub_u32 s{sDK}, 0, s{sDK}")]
            tV = [parse(f"v_add_u32 v{vVa}, s{sDV}, v{vVa}"), parse(f"s_sub_u32 s{sDV}, 0, s{sDV}")]
            gk = gpos[kread(i+2, 15).text]; gv = slots[39]
            for t, g0 in ((tK, gk), (tV, gv)):
                g = g0
                while (g in tE or g == bg_ or len(mem[g]) + len(val[g]) >= 2) and not (t is tV and last): g += 1
                if t is tV and last: assert g < slots[40]
                val[g].append(t[0]); place(g+1, [t[1]])
        g = 0
        for x, e0 in ot:
            g = max(g, e0)
            while g in tE or g == bg_ or len(mem[g]) + len(val[g]) >= 2: g += 1
            assert g < 62, (i, x.text)
            val[g].append(x); g += 1
        if serial is not None and i == prefw:
            cand = [g for g in range(0, tD[3]) if len(mem[g]) + len(val[g]) < 2][:9]
            assert len(cand) == 9
            for kk, g in enumerate(cand):
                if kk < 8: y = parse(f"buffer_load_dwordx4 a[192:195], v{vOg}, s[{sO}:{sO+3}], s{sT0} offen offset:{512*(kk%2)}{ppol}")
                else: y = parse(f"buffer_load_dwordx4 a[192:195], v{vSt}, s[{sW}:{sW+3}], s{sMb} offen offset:256")
                y.wr = set(); putv(g, y)
                if kk % 2 == 1 and kk < 7: val[g].append(parse(f"s_add_u32 s{sT0}, s{sT0}, 4096"))
        if last and pref and prefmode == 1 and prefw is None:
            cand = [g for g in range(tD[3]+1, bg_-1) if g not in tE and len(mem[g]) + len(val[g]) < 2]
            extra = [g for g in range(tD[3]+1, bg_-1) if g not in tE and g not in cand and g not in tdbl]
            while len(cand) < 8: cand.append(extra.pop(len(extra)//2))
            cand.sort(); cand = cand[:8]
            for kk, g in enumerate(cand):
                y = parse(f"buffer_load_dwordx4 a[192:195], v{vOg}, s[{sO}:{sO+3}], s{sT0} offen offset:{512*(kk%2)}{ppol}"); y.wr = set(); putv(g, y)
                if kk % 2 == 1 and kk < 7: val[g].append(parse(f"s_add_u32 s{sT0}, s{sT0}, 4096"))
        for g in range(64):
            seg.add(mf[g])
            row = sh[g] + [x for x in mem[g] if x.kind == "dsr"] + [x for x in mem[g] if x.kind != "dsr"] + val[g] + (blk if g == serial else []) + ((inl or {}).get(g) or [])
            for x in row: seg.add(x)
            if verbose: print(f"; it{i} gap{g}: " + ("w" if g in resv else "") + "".join({"dsr":"t","dma":"d","vld":"d","trans":"e","valu":"v","salu":"s","wait":"W","barrier":"B","branch":"x","label":""}.get(x.kind, "?") for x in row))
        if loopend:
            seg.a(f"s_cbranch_vccz L_loop\nv_cmp_lt_f32 vcc, s{sThr}, v{vMx}\ns_cmp_lt_i32 s{sCnt}, 0\ns_cbranch_vccnz L_rare{ret}\nL_back{ret}:\ns_cbranch_scc0 L_loop")
        else: seg.a(f"s_cbranch_vccnz L_rare{ret}\nL_back{ret}:")
    def iteration3(seg, i, ret):
        last = i == NB-3; snd = list(range(8, 16)); bg_ = dbg_
        mf = [qk(i+2, g) for g in range(32)] + pvlist(i, snd)
        mf[47].extra = set(R("a", aVF+32 if last else aKF, 4*wgrp)); mf[0].extra = set()
        sca = {}; dm = []
        if not last:
            for k in range(nV0, 8):
                g = 2*k - 1 + (1 if k >= 4 else 0)
                x = dmaV(i+2 + k//4, k % 4); addf(sca, g-1, x[0]); dm.append((x[1], g-3, g))
            addf(sca, 6, *advV(i+2))
        late_dm = []
        if i == dpf or n12:
            for kk in (range(n12, 9) if last else range(n12) if n12 else range(9)):
                if kk < 8: y = parse(f"buffer_load_dwordx4 a[192:195], v{vOg}, s[{sO}:{sO+3}], s{sT0} offen offset:{512*(kk%2)}{ppol}")
                else: y = parse(f"buffer_load_dwordx4 a[192:195], v{vSt}, s[{sW}:{sW+3}], s{sMb} offen offset:256")
                g = (1 + 3*(kk-n12)) if last else (bg_ + 1 + (12*kk)//n12) if n12 else (16 + 2*kk); y.wr = set()
                (late_dm if n12 and not last else dm).append((y, g-3, g))
                if kk % 2 == 1 and kk < 7: (late_dm if n12 and not last else dm).append((parse(f"s_add_u32 s{sT0}, s{sT0}, 4096"), g-3, g))
        addf(sca, bg_, parse(f"s_waitcnt vmcnt({(9 if dpf > 0 else 0) if last else 21 if i == dpf else 12})"), parse("s_barrier"))
        nxt = [vread(i+1, dt, kt) for dt in range(8, 8+NV0) for kt in range(2)] if last else [kread(i+3, j) for j in range(NK0)]
        rd = spread([kread(i+2, j) for j in range(NK0, 16)] + [vread(i, dt, kt) for dt in snd for kt in range(2)], 0, bg_-1)
        if last: rd += [(y, max(bg_+4, 34+2*(k//2)) + k*0.6, max(bg_+4, 34+2*(k//2))) for k, y in enumerate(nxt)]
        else: rd += [(y, t, bg_+1) for (y, t, _) in spread(nxt, bg_+1, 45)]
        tg = []
        if last:
            tV = [parse(f"v_add_u32 v{vVa}, s{sDV}, v{vVa}"), parse(f"s_sub_u32 s{sDV}, 0, s{sDV}")]
            tg = [(tV[0], bg_, bg_+2)]; addf(sca, bg_+5, tV[1])
        q = softmax_q(i+1) + [parse(f"v_max_f32 v{vMx}, v{vLb}, v{vLb+1}"), parse(f"v_cmp_lt_f32 vcc, s{sThr}, v{vMx}")]
        n0 = len(seg.ins)
        schedule(seg, mf, [dm + late_dm, rd, tg, spread(q, 0, 44)], sca, label=f"it{i}", lastempty=True)
        tx = [x.text for x in seg.ins[n0:]]
        if last: assert tx.index(vread(i, 15, 1).text) < tx.index(tV[0].text) < tx.index(nxt[0].text) and tx.index(tV[0].text) < tx.index(tV[1].text)
        assert tx.index("s_barrier") < len(tx) - 1 - tx[::-1].index(nxt[0].text)
        assert all(seg.ins.index(y[0]) < n0 + tx.index("s_barrier") for y in dm)
        seg.a(f"s_cbranch_vccnz L_rare{ret}\nL_back{ret}:")
    vm = []
    def vmwait(name, extra=""):
        k = max(j for j, x in enumerate(vm) if x == name)
        a(f"s_waitcnt vmcnt({len(vm)-1-k}){extra}")
    fill = [f"s_add_u32 s{sQ}, s4, s{sT1}\ns_addc_u32 s{sQ+1}, s5, 0", f"s_mov_b32 s{sW}, s14\ns_mov_b32 s{sW+1}, s15",
            f"s_add_u32 s{sV}, s8, s{sT0}\ns_addc_u32 s{sV+1}, s9, 0", f"s_mov_b32 s{sV+2}, {NB*16384}\ns_mov_b32 s{sV+3}, 0x20000",
            f"s_add_u32 s{sO}, s10, s{sT1}\ns_addc_u32 s{sO+1}, s11, 0", f"s_mov_b32 s{sO+2}, 65536\ns_mov_b32 s{sO+3}, 0x20000",
            f"s_xor_b32 s{sPw}, s{sMb}, {pxor*8192}"]
    a(f"s_add_u32 s{sK}, s6, s{sT0}\ns_addc_u32 s{sK+1}, s7, 0")
    def publish(t0, t1):
        a(f"v_readlane_b32 s{t0}, v8, 0\nv_readlane_b32 s{t1}, v8, 1\nv_mov_b32 v9, 0")
        a(f"s_and_b32 s{t1}, s{t1}, 0xffffff00\ns_add_u32 s{t1}, s{t1}, 0x100\ns_or_b32 s{t1}, s{t1}, s{sXcc}")
        a(f"s_xor_b32 s3, s{t1}, s{t0}\ns_cmp_lt_u32 s3, 0x100\ns_cselect_b32 s3, 0x100, 0\ns_add_u32 s{sCh}, s{t1}, s3\nv_mov_b32 v8, s{sCh}")
        a(f"buffer_store_dword v8, v9, s[{sW}:{sW+3}], s{sMb} offen offset:128 sc1")
    mbload = f"s_mov_b64 exec, 3\nbuffer_load_dword v8, v3, s[{sW}:{sW+3}], s{sMb} offen sc1\ns_mov_b64 exec, -1"
    if stag is not None:
        a(f"s_mov_b32 s{sW}, s14\ns_mov_b32 s{sW+1}, s15"); a(mbload); vm.append("mb")
        a(f"s_bitcmp1_b32 s2, {stag}\ns_cbranch_scc0 L_early\ns_waitcnt vmcnt(0)"); publish(36, 37); a("L_early:")
    def kvblock(f, adv, n, name, filler=None):
        for j in range(4):
            x = f(n, j)
            if not (name == "K0" and j == 0): pro.add(x[0]); (filler() if filler else a("s_nop 0"))
            pro.add(x[1]); vm.append(name)
        for x in adv(n): pro.add(x)
    def qdma(c, u):
        return [parse(f"s_add_u32 m0, s{sX}, {1024*(4*c+u)}"), parse(f"s_add_u32 s3, s{sOo}, {4096*u+128*c}"),
                parse(f"buffer_load_dwordx4 v{6+u%2}, s[{sQ}:{sQ+3}], s3 offen{polQ} lds")]
    def qblock(c):
        for u in range(4):
            for x in qdma(c, u): pro.add(x)
            vm.append(f"Q{c}")
    if ttouch:
        a("\n".join(fill)); fill = ["s_nop 0"]*7
        a("s_mov_b64 exec, 1")
        for srd, so in ((sK, sOK), (sQ, sOo), (sV, sOV), (sO, sOo))[:ttouch]:
            y = parse(f"buffer_load_dword a192, v{vDma}, s[{srd}:{srd+3}], s{so} offen{polK}"); y.wr = set(); pro.add(y); vm.append("tt")
        a("s_mov_b64 exec, -1")
    kvblock(dmaK, advK, 0, "K0", lambda: a(fill.pop(0)))
    if k1late:
        a("\n".join(fill)); fill = []
    else: kvblock(dmaK, advK, 1, "K1", lambda: a(fill.pop(0)))
    assert not fill
    if stag is None: a(mbload); vm.append("mb")
    qblock(0)
    if k1late: qblock(1)
    setup()
    qblock(2 if k1late else 1)
    fstamp(pro)
    vmwait("mb" if stag is None else "K0" if k1late else "K1"); a("s_barrier")
    stamp(pro)
    def k01read(n, j):
        r = (aKF if n == 0 else aVF) + 4*j
        return parse(f"ds_read_b128 a[{r}:{r+3}], v{vKa} offset:{n*KS+64*(j//2)+512*(j%2)}")
    def kgrp(c): return [k01read(n, j) for j in range(4*c, 4*c+4) for n in range(1 if k1late else 2)]
    def qraw(f): return 96 + 16*((f//4) % 2) + 4*(f % 4)
    def qgrp(c): return [parse(f"ds_read_b128 v[{qraw(f)}:{qraw(f)+3}], v{28+2*((f//2)%2)+f%2} offset:{4096*c}") for f in range(4*c, 4*c+4)]
    def presc(r):
        x = 32 + 2*(r % 8); q = qraw(r//4) + r % 4
        return [parse(t) for t in (f"v_lshlrev_b32 v{x}, 16, v{q}", f"v_and_b32 v{x+1}, 0xffff0000, v{q}",
                f"v_pk_mul_f32 v[{x}:{x+1}], v[{x}:{x+1}], v[2:3] op_sel_hi:[1,0]",
                f"v_cvt_pk_bf16_f32 v{x}, v{x}, v{x+1}", f"v_accvgpr_write_b32 a{aQ+r}, v{x}")]
    def mgrp(c, blocks=(0, 1)):
        L = []
        for t in (2*c, 2*c+1):
            for kt in range(2):
                for n in blocks:
                    for qt in range(2):
                        S = vS[n] + 8*qt + 4*kt; f = (aKF if n == 0 else aVF) + 4*(2*t+kt); qf = aQ + 4*(2*t+qt)
                        L.append(parse(f"v_mfma_f32_16x16x32_bf16 v[{S}:{S+3}], a[{f}:{f+3}], a[{qf}:{qf+3}], " + (f"v[{S}:{S+3}]" if t else "0")))
        return L
    for x in kgrp(0): pro.add(x)
    if not k1late: qblock(2)
    if stag is None: publish(sT0, sT1); vm.append("pub")
    else:
        a(f"s_bitcmp1_b32 s2, {stag}\ns_cbranch_scc1 L_pubdone"); publish(sT0, sT1); a("L_pubdone:")
    a("v_mov_b32 v3, 0")
    items = [("Q3", lambda j: qdma(3, j), []), ("K2", lambda j: dmaK(2, j), advK(2)), ("V0", lambda j: dmaV(0, j), advV(0)),
             ("V1", lambda j: dmaV(1, j), advV(1)) if lazy < 2 else (None, None, []), (None, None, [])]
    if k1late: items = [items[0], ("K1", lambda j: dmaK(1, j), advK(1)), items[1], items[2]]
    zq = [parse(f"v_mov_b32 v{vO+r}, 0") for r in range(zsplit[0], zsplit[1])]
    for c in range(4 if p2 else 5):
        name, f_, adv = items[c]
        if c < 4:
            vmwait(f"Q{c}")
            if c in (0, 3): fstamp(pro)
            for x in qgrp(c): pro.add(x)
            pq = [x for r in range(16*c, 16*c+16) for x in presc(r)]
        else: pq = zq
        kr = kgrp(c+1) if c < 3 else []
        if c == 0:
            for j in range(4):
                x = f_(j)
                for y in x[:-1]: pro.add(y)
                for y in kr[len(kr)//4*j:len(kr)//4*(j+1)]: pro.add(y)
                for _ in range(20): pro.add(pq.pop(0))
                pro.add(x[-1]); vm.append(name)
        else:
            sca = {}; dm = []; st = 2 if p2 else 4
            for j in range(4 if name else 0):
                x = f_(j); addf(sca, st*j, *x[:-1]); dm.append((x[-1], st*j-2, st*j+1)); vm.append(name)
            mf = mgrp(c-1, (0,)) if p2 else mgrp(c-1)
            schedule(pro, mf, [dm, spread(kr, 0, len(mf)-2) if kr else [], spread(pq, 0, len(mf)-1) if pq else []], sca, label=f"S{c}", cap=12 if p2 else 6)
        for x in adv: pro.add(x)
    fstamp(pro)
    NTRIP = ((NB-4)//2 if peel else (NB-2)//2) - (nser//2 if tpl else 0)
    scal = Seg("x")
    scal.a(f"s_mov_b32 s{sCnt}, {NTRIP-1 if tpl else NTRIP}")
    if tpl: a(f"s_mov_b32 s{sThr}, {f2u(2.0**T):#x}")
    scal.a(f"s_lshl_b32 s{sX}, s{sKh}, 8\ns_add_u32 s{sX}, s{sOo}, s{sX}\ns_xor_b32 s{sOo}, s{sX}, 256")
    if pcont: scal.a(f"s_lshl_b32 s{sT0}, s{sKh}, 15\ns_lshl_b32 s3, s{sWv}, 13\ns_add_u32 s{sT0}, s{sT0}, s3")
    else: scal.a(f"s_mov_b32 s{sT0}, s{sX}")
    post_ops = Seg("x"); post2 = Seg("x")
    rowmax(post_ops, vS[0], False)
    for qt, d in ((0, 1), (1, 4)):
        for r in range(8): post_ops.a(f"v_sub_f32 v{(vTmp if dsm0 else vS[0])+8*qt+r}, v{vS[0]+8*qt+r}, v{d}")
    if dsm0: post_ops.a(f"v_mov_b32 v{vLb}, 0\nv_mov_b32 v{vLb+1}, 0")
    else:
        for x in softmax_q(0, merge=False, pipe=True): post_ops.add(x)
    for qt, d in ((0, 1), (1, 4)):
        for r in range(4): post_ops.a(f"v_sub_f32 v{vCn+4*qt+r}, 0, v{d}")
        for r in range(8): post2.a(f"v_sub_f32 v{vS[1]+8*qt+r}, v{vS[1]+8*qt+r}, v{d}")
    tK = [parse(f"v_add_u32 v{vKa}, s{sDK}, v{vKa}"), parse(f"s_sub_u32 s{sDK}, 0, s{sDK}")]
    if p2:
        mf = mgrp(3, (0,)) + [x for c in range(4) for x in mgrp(c, (1,))]
        sca = {}; dm = []
        for k, x in enumerate(scal.ins): addf(sca, min(k, k1bar-1 if k1late else 3), x)
        k1r = []
        if k1late:
            kk_ = max(j for j, x in enumerate(vm) if x == "K1")
            addf(sca, k1bar, parse(f"s_waitcnt vmcnt({len(vm)-1-kk_}) lgkmcnt(0)"), parse("s_barrier"))
            k1r = [(k01read(1, j), k1bar + 1 + (j if j < 4 else 2*j-4), k1bar+1) for j in range(16)]
            for g_ in range(8, 40, 4): mf[g_].extra = set(R("a", aVF + 4*((g_-8)//2), 8))
            nd = 12 - 4*k4late; stp = 3 if nd == 12 else 4 if nd == 8 else 8
            for k in range(nd):
                x = dmaV(1, k) if k < 4 else dmaK(3 + (k-4)//4, k % 4); g = k1bar + 3 + stp*k
                addf(sca, g-1, x[0]); dm.append((x[1], g-3, g)); vm.append("V1" if k < 4 else "K3" if k < 8 else "K4")
            addf(sca, k1bar+3+stp*3+1, *advV(1))
            if nd >= 8: addf(sca, k1bar+3+stp*7+1, *advK(3))
            if nd == 12: addf(sca, 39, *[post(y) for y in advK(4)])
        elif not lazy:
            addf(sca, 4, parse("s_waitcnt lgkmcnt(0)"), parse("s_barrier"))
            for k in range(8):
                x = dmaK(3 + k//4, k % 4); g = 6 + 4*k
                addf(sca, g-1, x[0]); dm.append((x[1], g-3, g)); vm.append("K3" if k < 4 else "K4")
            addf(sca, 19, *advK(3)); addf(sca, 36, *advK(4))
        schedule(pro, mf, [dm, k1r, [(x, 0, 0) for x in zq], spread(post_ops.ins, 10, 39)], sca, label="S4", cap=5)
        stamp(pro)
        for x in tK: pro.add(x)
        vmwait("V0"); a("s_barrier")
        po = post2.ins
    else:
        for x in scal.ins + tK: pro.add(x)
        po = post_ops.ins + post2.ins
        if not mergeb:
            a("s_barrier")
            stamp(pro)
            def take(n):
                for _ in range(min(n, len(po))): pro.add(po.pop(0))
            kvblock(dmaK, advK, 3, "K3", lambda: take(12))
            kvblock(dmaK, advK, 4, "K4", lambda: take(12))
            take(1000)
            vmwait("V0"); a("s_barrier")
        else:
            stamp(pro)
            for x in po: pro.add(x)
            po = []
            vmwait("V0"); a("s_barrier")
    for j in range(NK0): pro.add(kread(2, j))
    if lazy >= 2: kvblock(dmaV, advV, 1, "V1")
    if mergeb or lazy:
        kvblock(dmaK, advK, 3, "K3"); kvblock(dmaK, advK, 4, "K4")
    if prefmode == 2:
        for kk in range(8):
            y = parse(f"buffer_load_dwordx4 a[192:195], v{vOg}, s[{sO}:{sO+3}], s{sT0} offen offset:{512*(kk%2)}{ppol}"); y.wr = set(); pro.add(y)
            if kk % 2: a(f"s_add_u32 s{sT0}, s{sT0}, 4096")
    x = dmaV(2, 0); pro.add(x[0]); a(f"buffer_load_dword v2, v3, s[{sW}:{sW+3}], s{sPw} offen offset:128 sc1"); pro.add(x[1])
    for k in range(1, nV0 if tpl else 1):
        x = dmaV(2, k); pro.add(x[0]); a("s_nop 0"); pro.add(x[1])
    for x in po: pro.add(x)
    for r in range(zsplit[1], zsplit[2]): a(f"v_mov_b32 v{vO+r}, 0")
    a(f"s_waitcnt lgkmcnt({NK0-wgrp})")
    fstamp(pro)
    stamp(pro)
    def sm0_block(zs):
        X, E_ = vTmp, vTmp+16
        for r in range(17):
            if r < 16: zs.a(f"v_exp_f32 v{E_+r}, v{X+r}")
            if r >= 1: zs.a(f"v_add_f32 v{vL+(r-1)//8}, v{vL+(r-1)//8}, v{E_+r-1}" if r < 16 else f"s_nop 0\nv_add_f32 v{vL+1}, v{vL+1}, v{E_+15}")
            if r >= 2 and r % 2 == 0: zs.a(f"v_cvt_pk_bf16_f32 v{vP[0]+r//2-1}, v{E_+r-2}, v{E_+r-1}")
    warm = Seg("warm")
    if tpl:
        inl0 = {}
        if nser and zsplit[2] < 128:
            per = (128 - zsplit[2]) // len(tzs)
            for n_, zg in enumerate(tzs):
                zs = Seg("x"); r0 = zsplit[2] + n_*per
                assert zg < 32 + 2*(r0//8)
                if n_ == 0 and dsm0: sm0_block(zs)
                for r in range(r0, r0+per): zs.a(f"v_mov_b32 v{vO+r}, 0")
                inl0[zg] = zs.ins
        for i in range(nser): iteration2(warm, i, 5+i, serial=sergap[i], inl=inl0 if i == 0 else None, xk=(i+4,) if i == kcatch and k1late and k4late else (), kl=4 if i < kcatch and k1late and k4late else 5)
    early[0] = 0
    body = Seg("loop"); body.a("L_loop:")
    if tpl: iteration2(body, 0, 0, zsites=zsplit[2] < 128 and not nser); iteration2(body, 1, 1, loopend=True)
    else: iteration(body, 0, 0); iteration(body, 1, 1, loopend=True)
    if stamps == 2:
        body.a(f"s_waitcnt lgkmcnt(0)\ns_memtime s[64:65]\ns_memrealtime s[66:67]\ns_sub_u32 m0, {15+NTRIP}, s{sCnt}\ns_cmp_lg_u32 s{sCnt}, 0\ns_waitcnt lgkmcnt(0)\nv_writelane_b32 v10, s64, m0\nv_writelane_b32 v11, s66, m0")
    zseg = Seg("zero")
    if zsplit[2] < 128 and not (tpl and nser):
        zgs = tzs if tpl else zgap if isinstance(zgap, tuple) else (zgap,)
        per = (128 - zsplit[2]) // len(zgs)
        for n_, zg in enumerate(zgs):
            r0 = zsplit[2] + n_*per
            assert zg < 32 + 2*(r0//8)
            if not tpl:
                mi = [k for k, x in enumerate(body.ins) if x.kind == "mfma"]
                k = mi[zg]
                body.ins[k+1:k+1] = [parse(f"s_cbranch_scc1 L_zero{n_}"), parse(f"L_zback{n_}:")]
                k = mi[zg-1]
                for y in body.ins[k+1:mi[zg]]: assert y.kind != "salu"
            if n_ == 0 and not peel:
                mask = (1 << NTRIP) | sum(1 << t for t in ptrips)
                body.ins[k+1:k+1] = [parse(f"s_bitcmp1_b32 {mask}, s{sCnt}")]
                zseg.a(f"L_zero{n_}:\ns_cmp_eq_u32 s{sCnt}, {NTRIP}\ns_cbranch_scc1 L_zero{n_}b")
                for kk in range(3):
                    y = parse(f"buffer_load_dwordx4 a[192:195], v{vDma if pcont else vOg}, s[{sO}:{sO+3}], s{sT0} offen{ppol}"); y.wr = set(); zseg.add(y)
                    if pcont: zseg.a(f"s_add_u32 s{sT0}, s{sT0}, 1024")
                    else: zseg.a(f"s_xor_b32 s{sT0}, s{sT0}, 512\ns_bitcmp1_b32 s{sT0}, 9\ns_cselect_b32 s3, 0, 4096\ns_add_u32 s{sT0}, s{sT0}, s3")
                    if kk == 1:
                        zseg.a(f"s_cmp_lg_u32 s{sCnt}, {ptrips[-1]}\ns_cbranch_scc1 L_pf3")
                        y = parse(f"buffer_load_dwordx4 a[192:195], v{vSt}, s[{sW}:{sW+3}], s{sMb} offen offset:256"); y.wr = set(); zseg.add(y)
                        zseg.a(f"s_branch L_zback{n_}\nL_pf3:")
                zseg.a(f"s_branch L_zback{n_}\nL_zero{n_}b:")
            else:
                if not tpl: body.ins[k+1:k+1] = [parse(f"s_cmp_eq_u32 s{sCnt}, {NTRIP}")]
                zseg.a(f"L_zero{n_}:")
            if n_ == 0 and dsm0: sm0_block(zseg)
            for r in range(r0, r0+per): zseg.a(f"v_mov_b32 v{vO+r}, 0")
            zseg.a(f"s_nop 1\ns_branch L_zback{n_}")
    if xpad2:
        for n_, (trip, gi, nn) in enumerate(xpad2):
            mi = [k for k, x in enumerate(body.ins) if x.kind == "mfma"]
            k = mi[gi]
            body.ins[k+1:k+1] = [parse(f"s_cmp_eq_u32 s{sCnt}, {NTRIP-trip-(1 if tpl else 0)}"), parse(f"s_cbranch_scc1 L_xq{n_}"), parse(f"L_xqb{n_}:")]
            zseg.a(f"L_xq{n_}:")
            for _ in range(nn): zseg.a("s_nop 15")
            zseg.a(f"s_branch L_xqb{n_}")
    if xpad:
        nb = []; mcount = 0; lab = 0
        for x in body.ins:
            nb.append(x)
            if x.kind == "mfma":
                it = mcount // 64; g = mcount % 64; mcount += 1
                step = 64 // xpad[3]
                if g % step == step//2 - 2:
                    thr = xpad[it]
                    nb += [parse(f"s_cmp_ge_u32 s{sCnt}, {thr}"), parse(f"s_cbranch_scc0 L_xp{lab}")] + [parse("s_nop 15") for _ in range(xpad[2])] + [parse(f"L_xp{lab}:")]
                    lab += 1
        body.ins = nb
    if not tpl: body.a(f"s_cbranch_scc1 L_loop")
    tail = Seg("tail"); e = tail.a
    e("L_tail:")
    if dfr: iteration3(tail, NB-4, 3); iteration3(tail, NB-3, 4)
    elif tpl: iteration2(tail, NB-4, 3, pref=True); iteration2(tail, NB-3, 4, pref=True)
    elif peel: iteration(tail, NB-4, 3, pref=True); iteration(tail, NB-3, 4, pref=True)
    stamp(tail)
    i = NB-2
    snd = list(range(8, 16)); own = list(range(8))
    sq15 = softmax_q(i+1) + checkops()
    if not peel:
        for dt in range(8, 8+NV0):
            for kt in range(2): tail.add(vread(i, dt, kt))
        for x in (sq15[0], sq15[1], sq15[2], sq15[5], sq15[3], sq15[4]): tail.add(x)
        sq15 = sq15[6:]
    rd = spread([vread(i, dt, kt) for dt in range(8+NV0, 16) for kt in range(2)], 0, 6)
    rd += [(y, t, btx+1) for (y, t, _) in spread([vread(i+1, dt, kt, dt-8) for dt in snd for kt in range(2)], btx+1, 15)]
    sca = {btx: [parse("s_waitcnt vmcnt(0)" if prefw is not None else "s_waitcnt vmcnt(9)" if pref13 else "s_waitcnt vmcnt(5)" if peel and not (pref12 and prefmode == 1) else "s_waitcnt vmcnt(0)"), parse("s_barrier")]}
    if dfr:
        sca = {btx: []}
        rd = spread([vread(i, dt, kt) for dt in range(8+NV0, 16) for kt in range(2)] + [vread(i+1, dt, kt, dt-8) for dt in snd for kt in range(2)], 0, 14)
    if stamps and fine:
        t1 = Seg("x"); fstamp(t1); t2 = Seg("x"); fstamp(t2)
        sca[btx] = t1.ins + sca[btx] + t2.ins
    mf = pvlist(i, snd)
    if peel: mf[0].extra = set()
    schedule(tail, mf, [rd, spread(sq15, 0, 15)], sca, label="X", cap=5)
    e(f"v_readfirstlane_b32 s{sT1}, v2\ns_cbranch_vccnz L_rare2\nL_back2:")
    fstamp(tail)
    e(f"s_and_b32 s3, s{sT1}, 0xff")
    def rcv(k): return vTmp + 4*k
    def xa(k):
        if xsw: return f"v{(vOg, 1)[k % 2]}, s[{sO}:{sO+3}], s{sOo} offen"
        return f"v{vOg}, s[{sO}:{sO+3}], s{sOo} offen offset:{512*(k%2)}"
    if xsw: e(f"s_and_b32 s36, s{sWv}, 1\ns_lshl_b32 s36, s36, 9\nv_add_u32 v{vOg}, s36, v{vOg}\nv_xor_b32 v1, 0x200, v{vOg}")
    pollb = Seg("pollb")
    if h2:
        sOo2, sX2, sChB = 62, 63, 38
        vG = 64
        def xaddr(k, b0, b1): return f"v21, s[{sO}:{sO+3}], s{b1 if (k % 4) >> 1 else b0} offen offset:{512*(k & 1) + 128*(k//4)}"
        e(f"s_add_u32 s{sOo2}, s{sOo}, 8192\ns_add_u32 s{sX2}, s{sX}, 8192\ns_xor_b32 s{sChB}, s{sCh}, 0x80\nv_xor_b32 v1, 0x80, v2")
        sends = []
        if fast: e(f"s_cmp_eq_u32 s3, s{sXcc}\ns_cbranch_scc1 L_sendfast")
        lo, hi = [0, 1, 2, 3], [4, 5, 6, 7]
        for var in (("slow", " sc1"), ("fast", xst)) if fast else (("slow", " sc1"),):
            sg = Seg("send_"+var[0]); sends.append(sg)
            if var[0] == "fast": sg.a("L_sendfast:")
            st = mergeops() + [parse(t) for t in (f"v_mov_b32 v6, v{vL}", f"v_mov_b32 v7, v{vL+1}", f"v_mov_b32 v4, v{vCn}", f"v_mov_b32 v5, v{vCn+4}",
                  f"v_permlane16_swap_b32 v6, v{vL}", f"v_permlane16_swap_b32 v7, v{vL+1}", f"v_add_f32 v{vL}, v6, v{vL}", f"v_add_f32 v{vL+1}, v7, v{vL+1}",
                  f"v_mov_b32 v6, v{vL}", f"v_mov_b32 v7, v{vL+1}", "s_nop 0", f"v_permlane32_swap_b32 v6, v{vL}", f"v_permlane32_swap_b32 v7, v{vL+1}",
                  f"v_add_f32 v6, v6, v{vL}", f"v_add_f32 v7, v7, v{vL+1}")]
            mf = pvlist(i+1, snd, own) + pvlist(i, lo, [d+8 for d in lo]) + pvlist(i+1, lo)
            rows = {g: [] for g in range(32)}
            for k, x in enumerate(st): rows[min(3, k*4//len(st))].append(x)
            rows[4].append(parse(f"buffer_store_dwordx4 v[4:7], v{vSt}, s[{sW}:{sW+3}], s{sPw} offen offset:256{var[1]}"))
            rr = [vread(i, dt, kt, dt+8) for dt in lo for kt in range(2)] + [vread(i+1, dt, kt) for dt in lo for kt in range(2)]
            r2 = [vread(i, dt, kt, dt+8) for dt in hi for kt in range(2)] + [vread(i+1, dt, kt) for dt in hi for kt in range(2)]
            for k in range(8):
                o = vO + 8*(8+k)
                rows[2*k+4] += [parse(f"v_cvt_pk_bf16_f32 v{vTmp+4*k+x}, v{o+2*x}, v{o+2*x+1}") for x in range(4)]
                rows[2*k+5] += [parse(f"buffer_store_dwordx4 v[{vTmp+4*k}:{vTmp+4*k+3}], {xaddr(k, sOo, sOo2)}{var[1]}")] + rr[2*k:2*k+2]
            for k, x in enumerate(r2): rows[20 + k*12//16].append(x)
            if var[0] == "slow": nf0 = nf[0]; st0 = nst[0]
            nf[0] = nf0; nst[0] = st0
            tg = Seg("x"); tg.a(f"s_waitcnt vmcnt(4)\nbuffer_store_dword v2, v3, s[{sW}:{sW+3}], s{sPw} offen{var[1]}")
            rows[tga] = tg.ins + rows[tga]
            for g in range(32):
                sg.add(mf[g])
                for x in rows[g]: sg.add(x)
            fstamp(sg); sg.a("s_waitcnt vmcnt(0)"); stamp(sg)
            sg.a(f"buffer_store_dword v1, v3, s[{sW}:{sW+3}], s{sPw} offen{var[1]}")
            fstamp(sg)
            if var[0] == "slow" and fast: sg.a("s_branch L_sent")
        fin = Seg("final"); e = fin.a
        e("L_sent:")
        e(f"s_mov_b32 s{sCnt}, 0x200000")
        e("L_poll:")
        e(f"s_sub_u32 s{sCnt}, s{sCnt}, 1\ns_cbranch_scc1 L_pollok")
        e(f"buffer_load_dword v8, v3, s[{sW}:{sW+3}], s{sMb} offen{xpoll}\ns_waitcnt vmcnt(0)\nv_readfirstlane_b32 s36, v8\ns_xor_b32 s3, s36, s{sCh}\ns_andn2_b32 s3, s3, 0x80\ns_cbranch_scc1 L_poll")
        e("L_pollok:")
        stamp(fin)
        e(f"buffer_load_dwordx4 v[{vG}:{vG+3}], v{vSt}, s[{sW}:{sW+3}], s{sMb} offen offset:256{xld}")
        for k in lo: e(f"buffer_load_dwordx4 v[{vTmp+4*k}:{vTmp+4*k+3}], {xaddr(k, sX, sX2)}{xld}")
        for x in pvlist(i, hi, [d+8 for d in hi]): fin.add(x)
        e(f"s_cmp_eq_u32 s36, s{sChB}\ns_cbranch_scc0 L_pollb\nL_pollbok:")
        pollb.a(f"L_pollb:\ns_sub_u32 s{sCnt}, s{sCnt}, 1\ns_cbranch_scc1 L_pollbok")
        pollb.a(f"buffer_load_dword v8, v3, s[{sW}:{sW+3}], s{sMb} offen{xpoll}\ns_waitcnt vmcnt(0)\nv_readfirstlane_b32 s36, v8\ns_nop 1\ns_cmp_eq_u32 s36, s{sChB}\ns_cbranch_scc0 L_pollb\ns_branch L_pollbok")
        for k in hi: e(f"buffer_load_dwordx4 v[{vTmp+4*k}:{vTmp+4*k+3}], {xaddr(k, sX, sX2)}{xld}")
        e(f"buffer_load_dword v2, v3, s[{sW}:{sW+3}], s{sPw} offen offset:128 sc1")
        for x in pvlist(i+1, hi): fin.add(x)
        fstamp(fin); fstamp(fin)
        for qt in range(2):
            fo, fx, t = vG+4+2*qt, vG+8+2*qt, vG+12+qt
            e(f"v_min_f32 v{t}, v{4+qt}, v{vG+qt}\nv_sub_f32 v{fo}, v{t}, v{4+qt}\nv_sub_f32 v{fx}, v{t}, v{vG+qt}\nv_exp_f32 v{fo}, v{fo}\nv_exp_f32 v{fx}, v{fx}")
        for qt in range(2):
            fo, fx, t = vG+4+2*qt, vG+8+2*qt, vG+12+qt
            e(f"v_mul_f32 v{t}, v{fo}, v{6+qt}\nv_fma_f32 v{t}, v{fx}, v{vG+2+qt}, v{t}\nv_rcp_f32 v{t}, v{t}")
        for qt in range(2):
            fo, fx, t = vG+4+2*qt, vG+8+2*qt, vG+12+qt
            e(f"v_mul_f32 v{fo}, v{fo}, v{t}\nv_mul_f32 v{fx}, v{fx}, v{t}")
        stq = []
        for n_, (h, qt) in enumerate(((0, 0), (0, 1), (1, 0), (1, 1))):
            fo, fx = vG+4+2*qt, vG+8+2*qt
            for k, dt in enumerate(range(4*h, 4*h+4)):
                o = vO + 8*dt + 4*qt; p = vTmp + 4*dt + 2*qt; u = 48 + 4*((2*dt+qt) % 4)
                e(f"v_lshlrev_b32 v{u}, 16, v{p}\nv_and_b32 v{u+1}, 0xffff0000, v{p}\nv_lshlrev_b32 v{u+2}, 16, v{p+1}\nv_and_b32 v{u+3}, 0xffff0000, v{p+1}")
                for x in range(4): e(f"v_mul_f32 v{o+x}, v{fo}, v{o+x}")
                for x in range(4): e(f"v_fmac_f32 v{o+x}, v{fx}, v{u+x}")
                e(f"v_cvt_pk_bf16_f32 v{o}, v{o}, v{o+1}\nv_cvt_pk_bf16_f32 v{o+1}, v{o+2}, v{o+3}")
                if k in (1, 2) and stq: e(stq.pop(0))
            for dt in range(4*h, 4*h+4):
                o = vO + 8*dt + 4*qt
                e(f"ds_write_b64 v{vEw}, v[{o}:{o+1}] offset:{4352*qt+32*dt}")
            for m in range(2):
                r = 192 + 8*n_ + 4*m
                e(f"ds_read_b128 v[{r}:{r+3}], v{vEr} offset:{272*(16*qt+8*m)+128*h}")
                stq.append(f"buffer_store_dwordx4 v[{r}:{r+3}], v21, s[{sO}:{sO+3}], s{sX2 if m else sX} offen offset:{512*qt+128*h}{polO}")
        fstamp(fin)
        for x in stq: e(x)
        e(f"v_readfirstlane_b32 s3, v2\ns_cmp_eq_u32 s3, s{sT1}\ns_cbranch_scc1 L_tagok")
        e(f"v_xor_b32 v2, 0x80, v2\nbuffer_wbl2 sc1\ns_waitcnt vmcnt(0)\nbuffer_store_dword v2, v3, s[{sW}:{sW+3}], s{sPw} offen sc1")
        e("L_tagok:")
        fstamp(fin)
    else:
        sends = []
        if fast: e(f"s_cmp_eq_u32 s3, s{sXcc}\ns_cbranch_scc1 L_sendfast")
        for var in (("slow", " sc1"), ("fast", xst)) if fast else (("slow", " sc1"),):
            sg = Seg("send_"+var[0]); sends.append(sg)
            if var[0] == "fast": sg.a("L_sendfast:")
            st = mergeops() + [parse(t) for t in (f"v_mov_b32 v6, v{vL}", f"v_mov_b32 v7, v{vL+1}", f"v_mov_b32 v4, v{vCn}", f"v_mov_b32 v5, v{vCn+4}",
                  f"v_permlane16_swap_b32 v6, v{vL}", f"v_permlane16_swap_b32 v7, v{vL+1}", f"v_add_f32 v{vL}, v6, v{vL}", f"v_add_f32 v{vL+1}, v7, v{vL+1}",
                  f"v_mov_b32 v6, v{vL}", f"v_mov_b32 v7, v{vL+1}", "s_nop 0", f"v_permlane32_swap_b32 v6, v{vL}", f"v_permlane32_swap_b32 v7, v{vL+1}",
                  f"v_add_f32 v6, v6, v{vL}", f"v_add_f32 v7, v7, v{vL+1}",
                  f"buffer_store_dwordx4 v[4:7], v{vSt}, s[{sW}:{sW+3}], s{sPw} offen offset:256{var[1]}")]
            q = []
            for k in range(8):
                o = vO + 8*(8+k); g0 = 2*k + 1 + 3
                for x in range(4): q.append((parse(f"v_cvt_pk_bf16_f32 v{vTmp+4*k+x}, v{o+2*x}, v{o+2*x+1}"), g0-2, g0))
                q.append((parse(f"buffer_store_dwordx4 v[{vTmp+4*k}:{vTmp+4*k+3}], {xa(k)}{var[1]}"), g0-2, g0))
                if k % 2 == 1 and k < 7: q.append((parse(f"s_add_u32 s{sOo}, s{sOo}, 4096"), g0-2, g0))
            rd = spread([vread(i, dt, kt, dt+8) for dt in own for kt in range(2)], 1, 20)
            rd += [(y, t, 17) for (y, t, _) in spread([vread(i+1, dt, kt) for dt in own for kt in range(2)], 21, 38)]
            mf = pvlist(i+1, snd, own) + pvlist(i, own, snd) + pvlist(i+1, own)
            if var[0] == "slow": nf0 = nf[0]; st0 = nst[0]
            nf[0] = nf0; nst[0] = st0
            tg = Seg("x"); fstamp(tg); tg.a("s_waitcnt vmcnt(0)"); stamp(tg)
            tg.a(f"buffer_store_dword v2, v3, s[{sW}:{sW+3}], s{sPw} offen{var[1]}")
            if dfr:
                mf = pvlist(i+1, snd, own) + pvlist(i-2, own, snd) + pvlist(i-1, own) + pvlist(i, own, snd) + pvlist(i+1, own)
                rows = {g: [] for g in range(80)}
                nst_ = len(st) - 1
                for k, x in enumerate(st[:-1]): rows[min(3, k*4//nst_)].append(x)
                rows[0].insert(0, parse(f"v_add_u32 v1, s{sDV}, v{vVa}"))
                rows[4].append(st[-1])
                rb = [[vread(i-2+n_, dt, kt, dt + (8 if n_ % 2 == 0 else 0), 1 if n_ < 2 else vVa) for dt in own for kt in range(2)] for n_ in range(4)]
                for k in range(8):
                    o = vO + 8*(8+k)
                    rows[2*k+4] += [parse(f"v_cvt_pk_bf16_f32 v{o+x}, v{o+2*x}, v{o+2*x+1}") for x in range(4)]
                    rows[2*k+5] += [parse(f"buffer_store_dwordx4 v[{o}:{o+3}], {xa(k)}{var[1]}")] + rb[0][2*k:2*k+2]
                    if k % 2 == 1 and k < 7: rows[2*k+5].append(parse(f"s_add_u32 s{sOo}, s{sOo}, 4096"))
                for k, x in enumerate(rb[1]): rows[20 + k*10//16].append(x)
                for k, x in enumerate(rb[2]): rows[34 + k*13//16].append(x)
                for k, x in enumerate(rb[3]): rows[50 + k*13//16].append(x)
                rows[dtag] += tg.ins
                for g in range(80):
                    sg.add(mf[g])
                    for x in rows[g]: sg.add(x)
            elif y2:
                rows = {g: [] for g in range(48)}
                r14 = [vread(i, dt, kt, dt+8) for dt in own for kt in range(2)]; r15 = [vread(i+1, dt, kt) for dt in own for kt in range(2)]
                nst_ = len(st) - 1
                for k, x in enumerate(st[:-1]): rows[min(3, k*4//nst_)].append(x)
                tiles = [[y[0] for y in q[a_:b_]] for a_, b_ in zip([0,5,11,16,22,27,33,38], [5,11,16,22,27,33,38,43])]
                for k in range(8):
                    rows[2*k+4] += tiles[k][:4]
                    rows[2*k+5] += tiles[k][4:5] + r14[2*k:2*k+2] + tiles[k][5:]
                rows[1] = r14[:0] + rows[1]
                rows[4] = [st[-1]] + rows[4]
                for k, x in enumerate(r15): rows[20 + k].append(x)
                rows[tagg] += tg.ins
                for g in range(48):
                    sg.add(mf[g])
                    for x in rows[g]: sg.add(x)
            else:
                sca = {tagg: [post(x) for x in tg.ins]}
                schedule(sg, mf, [rd, q, spread(st, 0, 4)], sca, label="YZ", cap=3)
            fstamp(sg)
            if var[0] == "slow" and fast: sg.a("s_branch L_sent")
        fin = Seg("final"); e = fin.a
        e("L_sent:")
        e(f"s_mov_b32 s{sCnt}, 0x200000")
        e("L_poll:")
        e(f"s_sub_u32 s{sCnt}, s{sCnt}, 1\ns_cbranch_scc1 L_pollok")
        e(f"buffer_load_dword v8, v3, s[{sW}:{sW+3}], s{sMb} offen{xpoll}\ns_waitcnt vmcnt(0)\nv_readfirstlane_b32 s3, v8\ns_cmp_lg_u32 s3, s{sCh}\ns_cbranch_scc1 L_poll")
        e("L_pollok:")
        stamp(fin)
        e(f"s_mov_b32 s{sOo}, s{sX}")
        def xloads(pol):
            e(f"buffer_load_dwordx4 v[32:35], v{vSt}, s[{sW}:{sW+3}], s{sMb} offen offset:256{pol}")
            for k in range(8):
                e(f"buffer_load_dwordx4 v[{rcv(k)}:{rcv(k)+3}], {xa(k)}{pol}")
                if k % 2 == 1 and k < 7: e(f"s_add_u32 s{sOo}, s{sOo}, 4096")
        xloads(xld)
        e(f"buffer_load_dword v2, v3, s[{sW}:{sW+3}], s{sPw} offen offset:128 sc1")
        fstamp(fin, 9); fstamp(fin, 0)
        for qt in range(2):
            fo, fx, t = 36+2*qt, 40+2*qt, 44+qt
            e(f"v_min_f32 v{t}, v{4+qt}, v{32+qt}\nv_sub_f32 v{fo}, v{t}, v{4+qt}\nv_sub_f32 v{fx}, v{t}, v{32+qt}\nv_exp_f32 v{fo}, v{fo}\nv_exp_f32 v{fx}, v{fx}")
        for qt in range(2):
            fo, fx, t = 36+2*qt, 40+2*qt, 44+qt
            e(f"v_mul_f32 v{t}, v{fo}, v{6+qt}\nv_fma_f32 v{t}, v{fx}, v{34+qt}, v{t}\nv_rcp_f32 v{t}, v{t}")
        for qt in range(2):
            fo, fx, t = 36+2*qt, 40+2*qt, 44+qt
            e(f"v_mul_f32 v{fo}, v{fo}, v{t}\nv_mul_f32 v{fx}, v{fx}, v{t}")
        for r in range(0, 64, 2):
            fo = 36 + 2*((r//4) % 2)
            e(f"v_pk_mul_f32 v[{vO+r}:{vO+r+1}], v[{vO+r}:{vO+r+1}], v[{fo}:{fo+1}] op_sel_hi:[1,0]")
        def comb(dt, qt):
            o = vO + 8*dt + 4*qt; p = rcv(dt) + 2*qt; u = 48 + 4*((2*dt+qt) % 4); fx = 40+2*qt
            e(f"v_lshlrev_b32 v{u}, 16, v{p}\nv_and_b32 v{u+1}, 0xffff0000, v{p}\nv_lshlrev_b32 v{u+2}, 16, v{p+1}\nv_and_b32 v{u+3}, 0xffff0000, v{p+1}")
            e(f"v_pk_fma_f32 v[{o}:{o+1}], v[{u}:{u+1}], v[{fx}:{fx+1}], v[{o}:{o+1}] op_sel_hi:[1,0,1]")
            e(f"v_pk_fma_f32 v[{o+2}:{o+3}], v[{u+2}:{u+3}], v[{fx}:{fx+1}], v[{o+2}:{o+3}] op_sel_hi:[1,0,1]")
            e(f"v_cvt_pk_bf16_f32 v{o}, v{o}, v{o+1}\nv_cvt_pk_bf16_f32 v{o+1}, v{o+2}, v{o+3}")
        def dsw(dt, qt):
            o = vO + 8*dt + 4*qt
            e(f"ds_write_b64 v{vEw}, v[{o}:{o+1}] offset:{4352*qt+32*dt}")
        def retag():
            e(f"v_readfirstlane_b32 s3, v2\ns_cmp_eq_u32 s3, s{sT1}\ns_cbranch_scc1 L_tagok")
            e(f"buffer_wbl2 sc1\ns_waitcnt vmcnt(0)\nbuffer_store_dword v2, v3, s[{sW}:{sW+3}], s{sPw} offen sc1")
            e("L_tagok:")
        if q4:
            e(f"s_add_u32 s{sOo}, s{sX}, 8192")
            stq = []
            for n_, (h, qt) in enumerate(((0, 0), (0, 1), (1, 0), (1, 1))):
                for k, dt in enumerate(range(4*h, 4*h+4)):
                    comb(dt, qt)
                    if k in (1, 2) and stq: e(stq.pop(0))
                for dt in range(4*h, 4*h+4): dsw(dt, qt)
                for m in range(2):
                    r = 192 + 8*n_ + 4*m
                    e(f"ds_read_b128 v[{r}:{r+3}], v{vEr} offset:{272*(16*qt+8*m)+128*h}")
                    stq.append(f"buffer_store_dwordx4 v[{r}:{r+3}], v21, s[{sO}:{sO+3}], s{sOo if m else sX} offen offset:{512*qt+128*h}{polO}")
                if n_ == 0: e("s_waitcnt vmcnt(1)")
            fstamp(fin)
            for x in stq: e(x)
            retag()
        else:
            for dt in range(8):
                for qt in range(2):
                    comb(dt, qt)
                    if qt == 1 and dt % 2 == 1:
                        for d2 in (dt-1, dt):
                            for q2 in range(2): dsw(d2, q2)
            fstamp(fin)
            korder = [0, 4, 1, 5, 2, 6, 3, 7]
            for n_, k in enumerate(korder): e(f"ds_read_b128 v[{192+4*n_}:{192+4*n_+3}], v{vEr} offset:{1088*k}")
            retag()
            for k in range(8):
                e(f"buffer_store_dwordx4 v[{192+4*k}:{192+4*k+3}], v{vOg}, s[{sO}:{sO+3}], s{sX} offen offset:{512*(k%2)}{polO}")
                if k % 2 == 1 and k < 7: e(f"s_add_u32 s{sX}, s{sX}, 4096")
        fstamp(fin)
    endseg = Seg("end"); e = endseg.a
    if stamps:
        e("s_waitcnt vmcnt(0)")
        stamp(endseg)
        e(f"s_lshl_b32 s3, s2, 2\ns_add_u32 s3, s3, s{sWv}\ns_lshl_b32 s3, s3, 9\nv_lshlrev_b32 v{vSt}, 3, v0")
        e(f"buffer_store_dwordx2 v[10:11], v{vSt}, s[{sW}:{sW+3}], s3 offen")
    if probe is not None:
        e("s_waitcnt vmcnt(0)")
        stamp(endseg)
        e(f"s_sub_u32 s94, s94, s96\ns_add_u32 s94, s94, 2500\nL_pad:\ns_memrealtime s[98:99]\ns_waitcnt lgkmcnt(0)\ns_sub_u32 s3, s98, s96\ns_cmp_lt_u32 s3, s94\ns_cbranch_scc1 L_pad")
    if padto:
        e(f"s_waitcnt vmcnt(0)\nL_pad:\ns_memrealtime s[98:99]\ns_waitcnt lgkmcnt(0)\ns_sub_u32 s3, s98, s96\ns_cmp_lt_u32 s3, {int(padto*100)}\ns_cbranch_scc1 L_pad")
    e("L_end:\ns_endpgm")
    rares = []
    for ret, i in ((0, 0), (1, 1), (2, NB-2), (3, NB-4), (4, NB-3))[:5 if peel else 3] + tuple((5+k, k) for k in range(nser if tpl else 0)):
        r = Seg(f"rare{ret}"); e = r.a
        S = vS[(i+1)%2]; S2 = vS[i%2]
        e(f"L_rare{ret}:")
        rowmax(r, S, True)
        e("v_exp_f32 v6, -v1\nv_exp_f32 v7, -v4")
        for qt, d, al in ((0, 1, 6), (1, 4, 7)):
            for k in range(4): e(f"v_sub_f32 v{vCn+4*qt+k}, v{vCn+4*qt+k}, v{d}")
            for k in range(8): e(f"v_sub_f32 v{S+8*qt+k}, v{S+8*qt+k}, v{d}")
            if ret != 2:
                for k in range(8): e(f"v_sub_f32 v{S2+8*qt+k}, v{S2+8*qt+k}, v{d}")
            e(f"v_mul_f32 v{vL+qt}, v{al}, v{vL+qt}")
        pend = [NB-2] if ret == 2 else []
        if dfr and ret in (2, 3, 4): pend = list(range(NB-4, i+1))
        for n in pend:
            for k in range(8):
                p = Pbuf(n) + k; al = 6 + k//4
                e(f"v_lshlrev_b32 v{vPf}, 16, v{p}\nv_and_b32 v{vPf+1}, 0xffff0000, v{p}\nv_mul_f32 v{vPf}, v{al}, v{vPf}\nv_mul_f32 v{vPf+1}, v{al}, v{vPf+1}\nv_cvt_pk_bf16_f32 v{p}, v{vPf}, v{vPf+1}")
        for x in softmax_q(i+1, merge=False, pipe=True): r.add(x)
        for k in range(128): e(f"v_mul_f32 v{vO+k}, v{6+(k//4)%2}, v{vO+k}")
        e(f"s_nop 1\ns_branch L_back{ret}")
        rares.append(r)
    if "oob" in exp: pro.a(f"s_mov_b32 s{sK+2}, 0\ns_mov_b32 s{sV+2}, 0")
    if "l2hot" in exp:
        for x in body.ins:
            if x.text.startswith(f"s_add_u32 s{sOK}, s{sOK}, 16384") or x.text.startswith(f"s_add_u32 s{sOV}, s{sOV}, 16384"): x.text = "s_nop 0"
    if exp:
        nb = []
        for x in body.ins:
            if "nolds" in exp and x.kind == "dsr": continue
            if "novalu" in exp and x.kind in ("valu","trans") and not x.text.startswith("v_add_u32") and not x.text.startswith("v_cmp") and not x.text.startswith("v_writelane"): continue
            if "nodma" in exp and x.kind == "dma": continue
            if "nomfma" in exp and x.kind == "mfma": continue
            if "nobar" in exp and (x.kind == "barrier" or (x.kind == "wait" and x.vm is not None)): continue
            if "nomax" in exp and x.text.startswith("v_max"): continue
            nb.append(x)
        body.ins = nb
    order = [pro, warm, body, tail] + sends + [fin, endseg, pollb, zseg] + rares
    traces = [[pro, warm, body, body, body, tail, s, fin, endseg] for s in sends]
    fix_waits(traces, verbose)
    for s in order: merge_waits(s)
    fix_waits(traces, verbose)
    def upto(seg, lab):
        s = Seg(seg.name+"_pre"); k = [i.text for i in seg.ins].index(lab); s.ins = seg.ins[:k]
        s2 = Seg(seg.name+"_post"); s2.ins = seg.ins[k:]; return s, s2
    pw = [pro, warm]
    cases = [(0, body, pw+[body], [body]), (1, body, pw+[body], [body]), (1, body, pw+[body], [tail]), (2, tail, pw+[body], [sends[0]])]
    if peel: cases += [(3, tail, pw+[body], []), (4, tail, pw+[body], [])]
    cases += [(5+k, warm, [pro], [body]) for k in range(nser if tpl else 0)]
    for ret, seg, prev, nxt in cases:
        p, q = upto(seg, f"L_back{ret}:")
        n0 = [len(x.ins) for x in [p, q] + nxt]
        fix_waits([prev + [p, rares[ret], q] + nxt], verbose)
        assert exp or [len(x.ins) for x in [p, q] + nxt] == n0, "rare path needs extra waits outside"
    if zseg.ins and not xpad2:
        labs = [k for k, x in enumerate(zseg.ins) if x.kind == "label" and x.text.startswith("L_zero") and not x.text.endswith("b:")] + [len(zseg.ins)]
        parts = []
        for n_ in range(len(labs)-1):
            zp = Seg(f"zero{n_}"); zp.ins = zseg.ins[labs[n_]:labs[n_+1]]; parts.append(zp)
            p, q = upto(body, f"L_zback{n_}:")
            n0 = [len(p.ins), len(q.ins)]
            fix_waits([[pro, warm, p, zp, q]], verbose)
            assert exp or [len(p.ins), len(q.ins)] == n0, "zero block needs extra waits outside"
        zseg.ins = [x for zp in parts for x in zp.ins]
    lds = SPARE + KS
    txt = header + f"; @launch grid=(256,1,1) block=(256,1,1) lds={lds}\n"
    txt += f'.amdgcn_target "amdgcn-amd-amdhsa--gfx950"\n.text\n.globl {KN}\n.p2align 8\n.type {KN},@function\n{KN}:\n'
    body_txt = emit(order)
    notes = {
      "prologue": "ids, descriptors, first K/V/Q fetches; Q is scaled by log2(e)/16 group by group as it lands; S(0)=K0 Q^T, S(1), true row max of block 0",
      "warm": "iterations 0..3: same data flow as the loop, but each block's softmax (and, in iteration 0, the accumulator clear) runs between the MFMAs in one piece",
      "loop": "iterations 4..11, two per trip: QK(i+2) | softmax(i+1) | PV(i), one barrier per key block",
      "tail": "iterations 12, 13 and PV(14) for the half of O that goes to the partner; softmax(15)",
      "send_slow": "partner on another XCD: PV(15), write-through of the sent half + (max, sum), own half of PV(12..15), then the tag",
      "send_fast": "partner on this XCD: the same through L2",
      "final": "wait for the partner's tag, merge the two partial results, transpose through LDS, store; re-tag if the challenge read earlier was an older launch's",
    }
    for k_, v_ in notes.items(): body_txt = body_txt.replace(f"; ---- {k_}\n", f"; ---- {k_}: {v_}\n")
    body_txt = re.sub(r"; ---- (rare\d+)\n", r"; ---- \1: a block sum passed 2^8: move to the true running max, rescale O, l, pending P, redo this block's softmax\n", body_txt)
    body_txt = body_txt.replace("; ---- pollb\n", "").replace("; ---- zero\n", "")
    if align is not None:
        body_txt = body_txt.replace("L_loop:\n", f".p2align {align[0]}\n" + "  s_nop 0\n"*align[1] + "L_loop:\n")
    txt += body_txt + "\nL_codeend:\n"
    txt += f'''.section .rodata,"a"
.p2align 6
.amdhsa_kernel {KN}
  .amdhsa_next_free_vgpr 452
  .amdhsa_next_free_sgpr 102
  .amdhsa_accum_offset 256
  .amdhsa_group_segment_fixed_size 0
  .amdhsa_kernarg_size 48
  .amdhsa_user_sgpr_count 2
  .amdhsa_user_sgpr_kernarg_segment_ptr 1
  .amdhsa_system_sgpr_workgroup_id_x 1
.end_amdhsa_kernel
'''
    return txt
if __name__ == "__main__":
    kw = eval("dict(" + (sys.argv[1] if len(sys.argv) > 1 else "") + ")")
    print(gen(**kw))
```

```python
import sys, math, struct
from asmlib import *
KN = "standalone__gqa_softmax__near_ridge_kernel"
def f2u(x): return struct.unpack("<I", struct.pack("<f", x))[0]
RS = 1056; KS = VS = 16*RS
KB = [i*KS for i in range(4)]
VB = [4*KS + i*VS for i in range(4)]
SPARE = 8*KS
C_SCALE = math.log2(math.e)/16.0
NB = 16
vOg, vEw, vEr, vSt = 12, 13, 14, 15
vKa, vVa, vDma, vDmaV, vMx = 16, 17, 18, 19, 20
vL = 22
vLb = 8
vPf = 80
vCn = 24
vP = [32, 40]; vS = [48, 64]; vTmp = 96; vO = 128
aQ, aKF, aVF = 0, 64, 128
sQ, sK, sV, sO, sW = 16, 20, 24, 28, 32
sWv, sOK, sOV, sMK, sMV, sCnt, sC, sDK, sDV, sXcc, sKh, sT0, sT1, sOo, sX = 40,41,42,43,44,45,46,47,48,49,50,51,52,53,54
sDK2, sDV2, sPw, sMb, sCh = 55, 56, 57, 58, 59
XBASE = 1 << 20

def gen(polK=" nt", polV=" nt", polQ="", ndef=0, polO="", stamps=False, T=8.0, verbose=False, header="", padto=0, exp=(),
        fast=True, pxor=16, bg=53, dmagaps=(57,1,9,17,25,33,41,49), npre=5, wgrp=2, smend=60, late=1.6, xld=' sc1', xpoll=' sc1', fine=False, xpad=None, xstag=0, probe=None, cpf=True, btx=7, tagg=36, nq0=11, zsplit=(0,0,0), zgap=(30,46), otouch=False, peel=True, mergeb=False, prefmode=1, stag=None, p2=True, xdelay=None, dfr=True, dpf=13, n12=0, qsc=False, xst='', dbg_=33, dtag=68, xsw=False, prefw=None, h2=False, tga=21,  k1late=True, k4late=0, kcatch=0, k1bar=2, y2=True, nser=4, sergap=(60,)*8, cskip=('L_end','L_end'), ttouch=0, tpl=True, tE=(0,4,8,12,16,20,24,28,32,36,40,43,46,50,53,56), tD=(54,2,9,17,25,33,38,45), tbg=49, tdbl=(14,30), tzs=(30,42), align=None, pref13=True, q4=True, ilv=None, dsm0=True, lazy=0, pref12=False, xpad2=None, st256=True, ptrips=(4,3,2), pcont=False, ppol=''):
    nst = [0]
    def stamp(seg):
        if probe is not None:
            if nst[0] == probe: seg.a("s_waitcnt lgkmcnt(0)\ns_memrealtime s[94:95]\ns_waitcnt lgkmcnt(0)")
            nst[0] += 1
        if stamps:
            seg.a(f"s_waitcnt lgkmcnt(0)\ns_memtime s[64:65]\ns_memrealtime s[66:67]\ns_waitcnt lgkmcnt(0)\nv_writelane_b32 v10, s64, {nst[0]}\nv_writelane_b32 v11, s66, {nst[0]}"); nst[0] += 1
    nf = [32]
    def fstamp(seg, vm=None):
        if stamps and fine:
            if vm is not None: seg.a(f"s_waitcnt vmcnt({vm})")
            sv = nst[0]; nst[0] = nf[0]; stamp(seg); nf[0] += 1; nst[0] = sv
    pro = Seg("prologue"); a = pro.a
    a(f"s_cmp_ge_u32 s2, 256\ns_cbranch_scc1 L_end")
    a("s_load_dwordx8 s[4:11], s[0:1], 0\ns_load_dwordx2 s[14:15], s[0:1], 40")
    if padto or probe is not None: a("s_memrealtime s[96:97]")
    stamp(pro)
    if xdelay is not None:
        a(f"s_bitcmp1_b32 s2, {xdelay}\ns_cbranch_scc0 L_nodly\ns_mov_b32 s3, 12\nL_dly:\ns_sleep 127\ns_sub_u32 s3, s3, 1\ns_cbranch_scc0 L_dly\nL_nodly:")
    if xstag:
        a(f"s_bitcmp1_b32 s2, 5\ns_cbranch_scc0 L_nostag\ns_sleep {xstag}\nL_nostag:")
    a("v_lshrrev_b32 v1, 6, v0\nv_and_b32 v0, 63, v0")
    a(f"v_readfirstlane_b32 s{sWv}, v1")
    if cpf:
        a(f"s_getpc_b64 s[36:37]\ns_lshr_b32 s3, s2, 3\ns_lshl_b32 s3, s3, 2\nv_add_u32 v4, s3, v1\nv_lshlrev_b32 v4, 1, v4\nv_add_u32 v4, v4, v0\nv_lshlrev_b32 v4, 7, v4")
        if cskip and cskip[0] != cskip[1]:
            a(f"v_mov_b32 v5, {cskip[1]}-{cskip[0]}\nv_cmp_le_u32 vcc, {cskip[0]}-{KN}, v4\nv_cndmask_b32 v5, 0, v5, vcc\nv_add_u32 v4, v4, v5")
        a(f"v_min_u32 v4, {'L_end' if cskip else 'L_codeend'}-{KN}-256, v4\nv_mov_b32 v5, s37\nv_add_co_u32 v4, vcc, s36, v4\ns_nop 1\nv_addc_co_u32 v5, vcc, 0, v5, vcc")
        a("s_mov_b64 exec, 3")
        y = I("global_load_dword a192, v[4:5], off", "vld", rd=["v4", "v5"]); pro.add(y)
        a("s_mov_b64 exec, -1")
    a(f"v_lshlrev_b32 v{vDma}, 4, v0")
    if pxor == 16:
        a(f"s_mov_b32 s{sX}, s2")
    else:
        a(f"s_and_b32 s{sX}, s2, 0xee\ns_bfe_u32 s3, s2, 0x10004\ns_or_b32 s{sX}, s{sX}, s3\ns_and_b32 s3, s2, 1\ns_lshl_b32 s3, s3, 4\ns_or_b32 s{sX}, s{sX}, s3")
    a(f"s_and_b32 s{sT0}, s{sX}, 7\ns_lshr_b32 s{sT1}, s{sX}, 3\ns_lshl_b32 s{sT0}, s{sT0}, 3")
    a(f"s_lshr_b32 s3, s{sT1}, 2\ns_add_u32 s{sT0}, s{sT0}, s3")
    a(f"s_bfe_u32 s{sKh}, s{sT1}, 0x10001")
    a(f"s_and_b32 s{sT1}, s{sT1}, 1\ns_lshl_b32 s3, s{sT0}, 1\ns_add_u32 s{sT1}, s{sT1}, s3")
    a(f"s_lshl_b32 s{sT1}, s{sT1}, 16")
    a(f"s_lshl_b32 s{sT0}, s{sT0}, 19\ns_lshl_b32 s3, s{sKh}, 18\ns_add_u32 s{sT0}, s{sT0}, s3")
    a(f"s_mov_b32 s{sX}, {KB[3]}\ns_cmp_eq_u32 s{sWv}, 1\ns_cselect_b32 s{sX}, {VB[2]}, s{sX}")
    a(f"s_cmp_eq_u32 s{sWv}, 2\ns_cselect_b32 s{sX}, {VB[3]}, s{sX}\ns_cmp_eq_u32 s{sWv}, 3\ns_cselect_b32 s{sX}, {SPARE}, s{sX}")
    a(f"s_lshl_b32 s{sOo}, s{sWv}, 14")
    a(f"s_lshl_b32 s{sOK}, s{sWv}, 12\ns_mov_b32 s{sOV}, s{sOK}")
    a(f"s_mul_i32 s{sMK}, s{sWv}, {4*RS}\ns_add_u32 s{sMV}, s{sMK}, {VB[0]}")
    a(f"s_mov_b32 s{sQ+2}, 65536\ns_mov_b32 s{sQ+3}, 0x20000\ns_mov_b32 s{sK+2}, {NB*16384}\ns_mov_b32 s{sK+3}, 0x20000\ns_mov_b32 m0, s{sMK}")
    a(f"s_mov_b32 s{sDK2}, {2*KS}\ns_mov_b32 s{sDV2}, {2*VS}\ns_mov_b32 s{sDK}, {2*KS}\ns_mov_b32 s{sDV}, {2*VS}")
    a(f"s_lshl_b32 s{sMb}, s2, 2\ns_add_u32 s{sMb}, s{sMb}, s{sWv}\ns_lshl_b32 s{sMb}, s{sMb}, 11\ns_add_u32 s{sMb}, s{sMb}, {XBASE}")
    a(f"s_mov_b32 s{sW+2}, {3*XBASE}\ns_mov_b32 s{sW+3}, 0x20000\nv_lshlrev_b32 v3, 7, v0")
    a(f"s_getreg_b32 s{sXcc}, hwreg(HW_REG_XCC_ID)\ns_and_b32 s{sXcc}, s{sXcc}, 15")
    a("v_lshrrev_b32 v6, 3, v0\nv_and_b32 v7, 6, v6\nv_xor_b32 v7, v7, v0\nv_and_b32 v7, 7, v7\nv_lshlrev_b32 v7, 4, v7\nv_lshl_add_u32 v6, v6, 9, v7\nv_xor_b32 v7, 0x200, v6")
    a("s_waitcnt lgkmcnt(0)")
    fstamp(pro)
    def epi_addr(a):
        a(f"v_and_b32 v1, 15, v0\nv_lshrrev_b32 v4, 4, v0\ns_mul_i32 s3, s{sWv}, 8704")
        a(f"v_mul_u32_u24 v5, 272, v1\nv_lshlrev_b32 v21, 3, v4\nv_add3_u32 v{vEw}, v5, v21, s3")
        a(f"v_lshlrev_b32 v21, 4, v1\nv_mul_u32_u24 v5, 272, v4\nv_add3_u32 v{vEr}, v5, v21, s3")
        a(f"v_lshl_add_u32 v{vOg}, v4, 10, v21\nv_mov_b32 v{vSt}, " + ("v21" if st256 else f"v{vDma}"))
        if q4:
            a(f"v_lshrrev_b32 v5, 3, v0\nv_and_b32 v21, 7, v0\nv_lshlrev_b32 v21, 4, v21\nv_mul_u32_u24 v{vEr}, 272, v5\nv_add3_u32 v{vEr}, v{vEr}, v21, s3\nv_lshl_add_u32 v21, v5, 10, v21")
    def setup():
        a(f"s_lshl_b32 s3, s{sKh}, 8\nv_xor_b32 v{vDmaV}, s3, v{vDma}")
        a(f"v_and_b32 v1, 15, v0\nv_lshrrev_b32 v4, 4, v0")
        a(f"v_mul_u32_u24 v2, {RS}, v1\nv_lshl_add_u32 v{vKa}, v4, 4, v2")
        a(f"v_lshrrev_b32 v2, 2, v0\nv_mul_u32_u24 v2, {RS}, v2\nv_and_b32 v3, 3, v0\nv_lshl_add_u32 v2, v3, 3, v2\nv_add_u32 v{vVa}, {VB[0]}, v2")
        a(f"v_lshlrev_b32 v3, 1, v3\nv_lshrrev_b32 v2, 2, v1\nv_and_b32 v5, 1, v2\nv_xor_b32 v5, v5, v3\nv_lshlrev_b32 v5, 7, v5\nv_lshl_add_u32 v5, v2, 10, v5")
        a(f"v_xor_b32 v3, v3, v4\nv_lshl_add_u32 v5, v3, 4, v5")
        a(f"v_add_u32 v28, s{sX}, v5\nv_xor_b32 v3, 128, v5\nv_add_u32 v29, s{sX}, v3\nv_xor_b32 v3, 64, v5\nv_add_u32 v30, s{sX}, v3\nv_xor_b32 v3, 0xc0, v5\nv_add_u32 v31, s{sX}, v3")
        epi_addr(a)
        a(f"s_mov_b32 s{sC}, {f2u(C_SCALE):#x}")
        a(f"v_mov_b32 v{vL}, 0\nv_mov_b32 v{vL+1}, 0\nv_mov_b32 v2, s{sC}")
        for r in range(zsplit[0]): a(f"v_mov_b32 v{vO+r}, 0")
    early = [ndef]
    def dmaK(n, j): return [parse(f"s_add_u32 m0, s{sMK}, {(n%2)*KS+32*j}"),
                            parse(f"buffer_load_dwordx4 v{vDma}, s[{sK}:{sK+3}], s{sOK} offen offset:{1024*j}{'' if n < early[0] else polK} lds")]
    def dmaV(n, j): return [parse(f"s_add_u32 m0, s{sMV}, {(2 if dfr and n == NB-1 else n%2)*VS+32*j}"),
                            parse(f"buffer_load_dwordx4 v{vDmaV}, s[{sV}:{sV+3}], s{sOV} offen offset:{1024*j}{'' if n < early[0] - 3 else polV} lds")]
    def advK(n):
        L = [parse(f"s_add_u32 s{sOK}, s{sOK}, 16384")]
        if n % 2 == 1: L += [parse(f"s_add_u32 s{sMK}, s{sMK}, s{sDK2}"), parse(f"s_sub_u32 s{sDK2}, 0, s{sDK2}")]
        return L
    def advV(n):
        L = [parse(f"s_add_u32 s{sOV}, s{sOV}, 16384")]
        if n % 2 == 1: L += [parse(f"s_add_u32 s{sMV}, s{sMV}, s{sDV2}"), parse(f"s_sub_u32 s{sDV2}, 0, s{sDV2}")]
        return L
    def block(seg, f, adv, n):
        for j in range(4):
            x = f(n, j); seg.add(x[0]); seg.a("s_nop 0"); seg.add(x[1])
        for x in adv(n): seg.add(x)
    def Pbuf(n): return (112, 120)[n-(NB-2)] if dfr and n >= NB-2 else vP[n%2]
    def kread(n, j): return parse(f"ds_read_b128 a[{aKF+4*j}:{aKF+4*j+3}], v{vKa} offset:{(n%2)*KS+64*(j//2)+512*(j%2)}")
    def vread(n, dt, kt, slot=None, va=vVa):
        r = aVF + 4*(dt if slot is None else slot) + 2*kt
        return parse(f"ds_read_b64_tr_b16 a[{r}:{r+1}], v{va} offset:{(2 if dfr and n == NB-1 else n%2)*VS+512*kt+32*dt}")
    def qk(n, g, first0=False):
        j, qt = g//2, g % 2; t, kt = j//2, j % 2
        S = vS[n%2] + 8*qt + 4*kt; f = aKF+4*j; qf = aQ + 4*(2*t+qt)
        c = f"v[{S}:{S+3}]" if t else ("0" if first0 else f"v[{vCn+4*qt}:{vCn+4*qt+3}]")
        i = parse(f"v_mfma_f32_16x16x32_bf16 v[{S}:{S+3}], a[{f}:{f+3}], a[{qf}:{qf+3}], {c}")
        if g % (2*wgrp) == 0: i.extra = set(R("a", f, 4*wgrp))
        return i
    def pv(n, dt, qt, grp=None, slot=None):
        f = aVF+4*(dt if slot is None else slot); o = vO+8*dt+4*qt; p = Pbuf(n)+4*qt
        i = parse(f"v_mfma_f32_16x16x32_bf16 v[{o}:{o+3}], a[{f}:{f+3}], v[{p}:{p+3}], v[{o}:{o+3}]")
        for d2 in (grp or ()): i.extra |= set(R("a", aVF+4*d2, 4))
        return i
    def pvlist(n, dts, slots=None):
        L = []; slots = slots or dts
        for k, dt in enumerate(dts):
            L.append(pv(n, dt, 0, slots[k:k+wgrp] if k % wgrp == 0 else None, slots[k])); L.append(pv(n, dt, 1, None, slots[k]))
        return L
    def checkops():
        return [parse(f"v_max_f32 v{vMx}, v{vLb}, v{vLb+1}"), parse(f"v_cmp_lt_f32 vcc, {f2u(2.0**T):#x}, v{vMx}")]
    def mergeops(): return [parse(f"v_add_f32 v{vL+qt}, v{vL+qt}, v{vLb+qt}") for qt in range(2)]
    def softmax_q(n, merge=True, pipe=False):
        S = vS[n%2]; P = Pbuf(n)
        E = lambda r: parse(f"v_exp_f32 v{vPf+r}, v{S+r}")
        def A(r):
            if r % 8 == 1: return parse(f"v_add_f32 v{vLb+r//8}, v{vPf+r-1}, v{vPf+r}")
            return parse(f"v_add_f32 v{vLb+r//8}, v{vLb+r//8}, v{vPf+r}")
        Cv = lambda p: parse(f"v_cvt_pk_bf16_f32 v{P+p}, v{vPf+2*p}, v{vPf+2*p+1}")
        q = []
        if pipe:
            for r in range(17):
                if r < 16: q.append(E(r))
                if r >= 1 and (r-1) % 8: q.append(A(r-1))
                if r >= 2 and r % 2 == 0: q.append(Cv(r//2-1))
            return q
        mg = mergeops() if merge else []
        for r in range(16):
            q.append(E(r))
            if r % 8 == 0:
                if mg: q.append(mg.pop(0))
            else: q.append(A(r))
            if r % 2 == 1: q.append(Cv(r//2))
        return q
    def spread(ops, g0, g1):
        tot = sum(x.cost for x in ops); c = 0; out = []
        for x in ops:
            out.append((x, g0 + (g1-g0)*c/max(tot-ops[-1].cost, 1), g0)); c += x.cost
        return out
    def post(x): x.tag = "post"; return x
    def schedule(seg, mf, streams, sca, label="", cap=2, lastempty=False):
        n = len(mf); streams = [list(s) for s in streams if s]
        nm = n
        if lastempty: n -= 1
        for g in range(nm):
            seg.add(mf[g])
            s_ = sca.get(g, [])
            pre = [x for x in s_ if x.tag != "post"]; pst = [x for x in s_ if x.tag == "post"]
            wsh = 1 if (g+1 < nm and mf[g+1].extra) else 0
            free = cap - max(0, len(pre)+wsh-1) - len([x for x in pst if x.kind != "label"])
            mem = []; val = []
            while True:
                cands = [s for s in streams if s and s[0][2] <= g]
                if val: cands = [s for s in cands if s[0][0].kind not in ("dsr","dsw","dma","vst","vld")] + [s for s in cands if s[0][0].kind in ("dsr","dsw","dma","vst","vld")]
                cands.sort(key=lambda s: s[0][1])
                pick = None
                for s in cands:
                    x, tg, _ = s[0]
                    if g < n-1 and tg > g + 1.0 and (mem or val): continue
                    if g < n-1 and tg > g + 2.0: continue
                    if val and val[-1].kind == "trans" and (x.rd & val[-1].wr) and g < n-1: continue
                    if x.cost <= free or tg <= g - late or g == n-1: pick = s; break
                if pick is None: break
                x = pick.pop(0)[0]; free -= x.cost
                (mem if x.kind in ("dsr","dsw","dma","vld") else val).append(x)
            row = pre + mem + val + pst
            for x in row: seg.add(x)
            if verbose: print(f"; {label} gap{g}: " + "".join({"dsr":"t","dma":"d","trans":"e","valu":"v","salu":"s","wait":"w","barrier":"B","vst":"S"}.get(x.kind, "?") for x in row))
        assert not any(streams)
    def addf(d, g, *xs): d.setdefault(g, []).extend(xs)
    def rowmax(seg, S, zero):
        for qt, d, t in ((0, 1, 6), (1, 4, 7)):
            b = S + 8*qt
            seg.a(f"v_max3_f32 v{d}, v{b}, v{b+1}, v{b+2}\nv_max3_f32 v{d}, v{d}, v{b+3}, v{b+4}\nv_max3_f32 v{d}, v{d}, v{b+5}, v{b+6}")
            seg.a(f"v_max3_f32 v{d}, v{d}, v{b+7}, 0" if zero else f"v_max_f32 v{d}, v{d}, v{b+7}")
        seg.a("v_mov_b32 v6, v1\nv_mov_b32 v7, v4\nv_permlane16_swap_b32 v6, v1\nv_permlane16_swap_b32 v7, v4\nv_max_f32 v1, v1, v6\nv_max_f32 v4, v4, v7")
        seg.a("v_mov_b32 v6, v1\nv_mov_b32 v7, v4\nv_permlane32_swap_b32 v6, v1\nv_permlane32_swap_b32 v7, v4\nv_max_f32 v1, v1, v6\nv_max_f32 v4, v4, v7")
    NV0 = 4 if tpl else 3
    NK0 = 8 if tpl else 5 if ilv else 6
    def nosh(g):
        while g % (2*wgrp) == 2*wgrp-1: g += 1
        return g
    def iteration(seg, i, ret, do_pv=True, loopend=False, pref=False):
        sca = {}; dm = []
        mf = [qk(i+2, g) for g in range(32)]
        tK = [parse(f"v_add_u32 v{vKa}, s{sDK}, v{vKa}"), parse(f"s_sub_u32 s{sDK}, 0, s{sDK}")]
        tV = [parse(f"v_add_u32 v{vVa}, s{sDV}, v{vVa}"), parse(f"s_sub_u32 s{sDV}, 0, s{sDV}")]
        def place(g, xs):
            for x in xs:
                g = nosh(g)
                while g in sca: g = nosh(g+1)
                addf(sca, g, x); g += 1
            return g
        if do_pv:
            mf += pvlist(i, list(range(16)))
            mf[63].extra = set(R("a", aKF, 4*wgrp))
            mf[0].extra = set()
            dp = dmagaps
            nvm = 12
            if pref and pref12 and prefmode == 1: nvm = 13 if i == NB-3 else 17
            if pref and pref13 and prefmode == 1: nvm = 12 if i == NB-3 else 8
            addf(sca, bg, parse(f"s_waitcnt vmcnt({nvm})"), parse("s_barrier"))
            if loopend:
                addf(sca, 60, parse(f"s_sub_u32 s{sCnt}, s{sCnt}, 1"))
                if ilv: addf(sca, 63, parse(f"s_cmp_lg_u32 s{sCnt}, 0"))
                else: addf(sca, 61, parse(f"s_cmp_lg_u32 s{sCnt}, 0"))
            last = i == NB-3
            for k in range(1, 8):
                if pref and k >= 4 and prefmode == 1:
                    if pref12 or pref13:
                        kks = [] if last != pref13 else [(2*(k-4), dp[k]-4), (2*(k-4)+1, dp[k])]
                    else: kks = [(4*(i % 2) + k - 4, dp[k])]
                    for kk, gg in kks:
                        y = parse(f"buffer_load_dwordx4 a[192:195], v{vOg}, s[{sO}:{sO+3}], s{sT0} offen offset:{512*(kk%2)}{ppol}"); y.wr = set()
                        if kk % 2 == 1: addf(sca, gg+1, parse(f"s_add_u32 s{sT0}, s{sT0}, 4096"))
                        dm.append((y, gg-3, gg))
                    if pref12 and not last and k == 7:
                        y = parse(f"buffer_load_dwordx4 a[192:195], v{vSt}, s[{sW}:{sW+3}], s{sMb} offen offset:256"); y.wr = set()
                        dm.append((y, dp[k]-1, dp[k]+2))
                    continue
                x = dmaV(i+2, k) if k < 4 else dmaK(i+5, k-4)
                addf(sca, dp[k]-1, x[0]); dm.append((x[1], dp[k]-3, dp[k]))
            if last:
                if not (pref12 and prefmode == 1):
                    y = parse(f"buffer_load_dwordx4 a[192:195], v{vSt}, s[{sW}:{sW+3}], s{sMb} offen offset:256"); y.wr = set()
                    dm.append((y, dp[0]-3, dp[0]))
            else:
                x = dmaV(i+3, 0); addf(sca, dp[0]-1, x[0]); dm.append((x[1], dp[0]-3, dp[0]))
            if not last: assert place(dp[3]+1, advV(i+2)) < dp[0]
            if not (pref and prefmode == 1): assert place(dp[7]+1, advK(i+5)) <= 60
            r1 = [kread(i+2, j) for j in range(NK0, 16)] + [vread(i, dt, kt) for dt in range(16) for kt in range(2)]
            nxt = [vread(i+1, dt, kt) for dt in range(8, 8+NV0) for kt in range(2)] if last else [kread(i+3, j) for j in range(NK0)]
            if last: mf[63].extra = set(R("a", aVF+32, 4*wgrp))
            rd = spread(r1, 0, bg-1) + [(y, t, bg+(2 if last else 1)) for (y, t, _) in spread(nxt, bg+1, 61)]
            rdv = []
            if ilv:
                lead = 64 - (bg+1)
                rd = [(kread(i+2, j), 2*j - lead, 0) for j in range(NK0, 16)]
                k_end = 30 - lead
                nslow = int(k_end * ilv[0])
                vr = [vread(i, dt, kt) for dt in range(16) for kt in range(2)]
                rdv = spread(vr[:nslow], 1, k_end) + [(y, t, 0) for (y, t, _) in spread(vr[nslow:], k_end+1, ilv[1])]
                if last: rdv += [(y, t, bg+2) for (y, t, _) in spread(nxt, ilv[1]+1.5, 62)]
                else: rd += [(y, bg+1+2*j, bg+1) for j, y in enumerate(nxt)]
            tg = []
            if i % 2 == 1:
                if ilv: tg = [(tK[0], 26, 26), (tV[0], ilv[1], ilv[1]+1)]; place(29, [tK[1]]); addf(sca, 62, post(tV[1]))
                else: tg = [(tK[0], 16, 16), (tV[0], bg-1, bg+1)]; place(21, [tK[1]]); assert place(bg+4, [tV[1]]) <= 60
            n0 = len(seg.ins)
            schedule(seg, mf, [dm, rd, rdv, tg, spread(softmax_q(i+1) + checkops(), 0, smend)], sca, label=f"it{i}", lastempty=True)
            tx = [x.text for x in seg.ins[n0:]]
            if i % 2 == 1:
                assert tx.index(kread(i+2, 15).text) < tx.index(tK[0].text) < tx.index(tK[1].text) < tx.index(nxt[0].text)
                assert tx.index(vread(i, 15, 1).text) < tx.index(tV[0].text) < tx.index(tV[1].text)
                if last: assert tx.index(tV[0].text) < tx.index(nxt[0].text)
            assert tx.index("s_barrier") < len(tx) - 1 - tx[::-1].index(nxt[0].text)
            seg.a(f"s_cbranch_vccnz L_rare{ret}\nL_back{ret}:")
        else:
            for k, g in enumerate((1, 5, 9, 13, 17, 21, 25, 29)):
                x = dmaV(i+2, k) if k < 4 else dmaK(i+5, k-4)
                addf(sca, g-1, x[0]); dm.append((x[1], g-3, g))
            place(14, advV(i+2)); place(30, advK(i+5))
            rd = spread([kread(i+2, j) for j in range(NK0, 16)], 0, 16)
            schedule(seg, mf, [dm, rd, spread(softmax_q(i+1, merge=False), 0, 31)], sca, label=f"it{i}")
            seg.add(tK[0]); seg.add(tK[1])
            seg.a("s_waitcnt vmcnt(12)\ns_barrier")
            for j in range(NK0): seg.add(kread(i+3, j))
            x = dmaV(i+3, 0); seg.add(x[0]); seg.a(f"buffer_load_dword v2, v3, s[{sW}:{sW+3}], s{sPw} offen offset:128 sc1"); seg.add(x[1])
            if otouch:
                y = parse(f"buffer_load_dword a192, v3, s[{sO}:{sO+3}], s{sOo} offen"); y.wr = set(); seg.add(y)
            seg.a(f"s_waitcnt lgkmcnt({NK0-wgrp})")
    sThr, sThr2 = 60, 61
    nV0 = len([g for g in tD[:4] if g > tbg])
    def iteration2(seg, i, ret, loopend=False, pref=False, zsites=False, serial=None, inl=None, xk=(), kl=5):
        last = i == NB-3; bg_ = tbg
        mf = [qk(i+2, g) for g in range(32)] + pvlist(i, list(range(16)))
        mf[63].extra = set(R("a", aVF+32 if last else aKF, 4*wgrp)); mf[0].extra = set()
        sh = {g: [] for g in range(64)}; mem = {g: [] for g in range(64)}; val = {g: [] for g in range(64)}
        resv = {g for g in range(63) if mf[g+1].extra}
        def place(g, xs):
            for x in xs:
                while g in resv or sh[g] or g == bg_: g += 1
                assert g < 63
                sh[g].append(x); g += 1
            return g
        nvm = 12
        if pref and prefmode == 1: nvm = 12 if last else 8
        if pref and prefw is not None: nvm = 4 if last else 8
        if serial is not None and i == prefw: nvm = 21
        if kl == 4: nvm = 8
        assert bg_-1 not in resv or True
        sh[bg_ if (bg_-1) in resv else bg_-1].append(parse(f"s_waitcnt vmcnt({nvm})")); sh[bg_].append(parse("s_barrier"))
        if zsites:
            for n_, zg in enumerate(tzs):
                assert zg not in resv and zg-1 not in resv and zg not in tD and zg-1 not in tD
                sh[zg-1].append(parse(f"s_cmp_eq_u32 s{sCnt}, {NTRIP-1}")); sh[zg] += [parse(f"s_cbranch_scc1 L_zero{n_}"), parse(f"L_zback{n_}:")]
        nxt = [vread(i+1, dt, kt) for dt in range(8, 8+NV0) for kt in range(2)] if last else [kread(i+3, j) for j in range(NK0)]
        reads = [kread(i+2, j) for j in range(NK0, 16)] + [vread(i, dt, kt) for dt in range(16) for kt in range(2)] + nxt
        slots = []
        for g in range(63):
            if g not in tE and g != bg_: slots += [g, g] if g in tdbl else [g]
        assert len(slots) == len(reads), (len(slots), len(reads))
        for g, x in zip(slots, reads): mem[g].append(x)
        gpos = {x.text: g for g, x in zip(slots[:40], reads[:40])}
        assert slots[40] > bg_
        def putv(g, y): mem[g].append(y)
        for k in range(8):
            g = tD[k]; assert g not in resv and g not in tE and not sh[g]
            if k < nV0:
                assert g > bg_
                if last and (prefw is not None or k > 0): pass
                elif last:
                    y = parse(f"buffer_load_dwordx4 a[192:195], v{vSt}, s[{sW}:{sW+3}], s{sMb} offen offset:256"); y.wr = set(); putv(g, y)
                else: x = dmaV(i+3, k); sh[g].append(x[0]); putv(g, x[1])
            elif k >= 4 and pref and prefmode == 1:
                pass
            else:
                x = dmaV(i+2, k) if k < 4 else dmaK(i+kl, k-4); sh[g].append(x[0]); putv(g, x[1])
        g = 1
        for n in xk:
            for j in range(4):
                while g in resv or sh[g] or g in tD or len(mem[g]) != 1: g += 1
                x = dmaK(n, j); sh[g].append(x[0]); putv(g, x[1]); g += 1
            g = place(g, advK(n))
        assert g <= tD[4]
        thr = f"s{sThr}"
        if loopend:
            g = 56 if nV0 == 1 else 36
            while g in resv or sh[g] or g+1 in resv or sh[g+1]: g += 1
            sh[g].append(parse(f"s_sub_u32 s{sCnt}, s{sCnt}, 1")); sh[g+1].append(parse(f"s_cselect_b32 s{sThr2}, -1.0, s{sThr}")); thr = f"s{sThr2}"
        if not last: assert place(tD[3]+1 if nV0 < 4 else 1, advV(i+2)) <= tD[0]
        if not (pref and prefmode == 1): assert place(tD[7]+1, advK(i+kl)) <= 63
        q = softmax_q(i+1) + [parse(f"v_max_f32 v{vMx}, v{vLb}, v{vLb+1}"), parse(f"v_cmp_lt_f32 vcc, {thr}, v{vMx}")]
        blk = []
        if serial is not None:
            blk = mergeops() + softmax_q(i+1, merge=False, pipe=True) + q[-2:]; q = []
        ex = [x for x in q if x.kind == "trans"]; ot = []; ne = 0
        for x in q:
            if x.kind == "trans": ne += 1
            else: ot.append((x, tE[ne-1]+1))
        for g, x in zip(tE, ex): val[g].append(x)
        if i % 2 == 1:
            tK = [parse(f"v_add_u32 v{vKa}, s{sDK}, v{vKa}"), parse(f"s_sub_u32 s{sDK}, 0, s{sDK}")]
            tV = [parse(f"v_add_u32 v{vVa}, s{sDV}, v{vVa}"), parse(f"s_sub_u32 s{sDV}, 0, s{sDV}")]
            gk = gpos[kread(i+2, 15).text]; gv = slots[39]
            for t, g0 in ((tK, gk), (tV, gv)):
                g = g0
                while (g in tE or g == bg_ or len(mem[g]) + len(val[g]) >= 2) and not (t is tV and last): g += 1
                if t is tV and last: assert g < slots[40]
                val[g].append(t[0]); place(g+1, [t[1]])
        g = 0
        for x, e0 in ot:
            g = max(g, e0)
            while g in tE or g == bg_ or len(mem[g]) + len(val[g]) >= 2: g += 1
            assert g < 62, (i, x.text)
            val[g].append(x); g += 1
        if serial is not None and i == prefw:
            cand = [g for g in range(0, tD[3]) if len(mem[g]) + len(val[g]) < 2][:9]
            assert len(cand) == 9
            for kk, g in enumerate(cand):
                if kk < 8: y = parse(f"buffer_load_dwordx4 a[192:195], v{vOg}, s[{sO}:{sO+3}], s{sT0} offen offset:{512*(kk%2)}{ppol}")
                else: y = parse(f"buffer_load_dwordx4 a[192:195], v{vSt}, s[{sW}:{sW+3}], s{sMb} offen offset:256")
                y.wr = set(); putv(g, y)
                if kk % 2 == 1 and kk < 7: val[g].append(parse(f"s_add_u32 s{sT0}, s{sT0}, 4096"))
        if last and pref and prefmode == 1 and prefw is None:
            cand = [g for g in range(tD[3]+1, bg_-1) if g not in tE and len(mem[g]) + len(val[g]) < 2]
            extra = [g for g in range(tD[3]+1, bg_-1) if g not in tE and g not in cand and g not in tdbl]
            while len(cand) < 8: cand.append(extra.pop(len(extra)//2))
            cand.sort(); cand = cand[:8]
            for kk, g in enumerate(cand):
                y = parse(f"buffer_load_dwordx4 a[192:195], v{vOg}, s[{sO}:{sO+3}], s{sT0} offen offset:{512*(kk%2)}{ppol}"); y.wr = set(); putv(g, y)
                if kk % 2 == 1 and kk < 7: val[g].append(parse(f"s_add_u32 s{sT0}, s{sT0}, 4096"))
        for g in range(64):
            seg.add(mf[g])
            row = sh[g] + [x for x in mem[g] if x.kind == "dsr"] + [x for x in mem[g] if x.kind != "dsr"] + val[g] + (blk if g == serial else []) + ((inl or {}).get(g) or [])
            for x in row: seg.add(x)
            if verbose: print(f"; it{i} gap{g}: " + ("w" if g in resv else "") + "".join({"dsr":"t","dma":"d","vld":"d","trans":"e","valu":"v","salu":"s","wait":"W","barrier":"B","branch":"x","label":""}.get(x.kind, "?") for x in row))
        if loopend:
            seg.a(f"s_cbranch_vccz L_loop\nv_cmp_lt_f32 vcc, s{sThr}, v{vMx}\ns_cmp_lt_i32 s{sCnt}, 0\ns_cbranch_vccnz L_rare{ret}\nL_back{ret}:\ns_cbranch_scc0 L_loop")
        else: seg.a(f"s_cbranch_vccnz L_rare{ret}\nL_back{ret}:")
    def iteration3(seg, i, ret):
        last = i == NB-3; snd = list(range(8, 16)); bg_ = dbg_
        mf = [qk(i+2, g) for g in range(32)] + pvlist(i, snd)
        mf[47].extra = set(R("a", aVF+32 if last else aKF, 4*wgrp)); mf[0].extra = set()
        sca = {}; dm = []
        if not last:
            for k in range(nV0, 8):
                g = 2*k - 1 + (1 if k >= 4 else 0)
                x = dmaV(i+2 + k//4, k % 4); addf(sca, g-1, x[0]); dm.append((x[1], g-3, g))
            addf(sca, 6, *advV(i+2))
        late_dm = []
        if i == dpf or n12:
            for kk in (range(n12, 9) if last else range(n12) if n12 else range(9)):
                if kk < 8: y = parse(f"buffer_load_dwordx4 a[192:195], v{vOg}, s[{sO}:{sO+3}], s{sT0} offen offset:{512*(kk%2)}{ppol}")
                else: y = parse(f"buffer_load_dwordx4 a[192:195], v{vSt}, s[{sW}:{sW+3}], s{sMb} offen offset:256")
                g = (1 + 3*(kk-n12)) if last else (bg_ + 1 + (12*kk)//n12) if n12 else (16 + 2*kk); y.wr = set()
                (late_dm if n12 and not last else dm).append((y, g-3, g))
                if kk % 2 == 1 and kk < 7: (late_dm if n12 and not last else dm).append((parse(f"s_add_u32 s{sT0}, s{sT0}, 4096"), g-3, g))
        addf(sca, bg_, parse(f"s_waitcnt vmcnt({(9 if dpf > 0 else 0) if last else 21 if i == dpf else 12})"), parse("s_barrier"))
        nxt = [vread(i+1, dt, kt) for dt in range(8, 8+NV0) for kt in range(2)] if last else [kread(i+3, j) for j in range(NK0)]
        rd = spread([kread(i+2, j) for j in range(NK0, 16)] + [vread(i, dt, kt) for dt in snd for kt in range(2)], 0, bg_-1)
        if last: rd += [(y, max(bg_+4, 34+2*(k//2)) + k*0.6, max(bg_+4, 34+2*(k//2))) for k, y in enumerate(nxt)]
        else: rd += [(y, t, bg_+1) for (y, t, _) in spread(nxt, bg_+1, 45)]
        tg = []
        if last:
            tV = [parse(f"v_add_u32 v{vVa}, s{sDV}, v{vVa}"), parse(f"s_sub_u32 s{sDV}, 0, s{sDV}")]
            tg = [(tV[0], bg_, bg_+2)]; addf(sca, bg_+5, tV[1])
        q = softmax_q(i+1) + [parse(f"v_max_f32 v{vMx}, v{vLb}, v{vLb+1}"), parse(f"v_cmp_lt_f32 vcc, s{sThr}, v{vMx}")]
        n0 = len(seg.ins)
        schedule(seg, mf, [dm + late_dm, rd, tg, spread(q, 0, 44)], sca, label=f"it{i}", lastempty=True)
        tx = [x.text for x in seg.ins[n0:]]
        if last: assert tx.index(vread(i, 15, 1).text) < tx.index(tV[0].text) < tx.index(nxt[0].text) and tx.index(tV[0].text) < tx.index(tV[1].text)
        assert tx.index("s_barrier") < len(tx) - 1 - tx[::-1].index(nxt[0].text)
        assert all(seg.ins.index(y[0]) < n0 + tx.index("s_barrier") for y in dm)
        seg.a(f"s_cbranch_vccnz L_rare{ret}\nL_back{ret}:")
    vm = []
    def vmwait(name, extra=""):
        k = max(j for j, x in enumerate(vm) if x == name)
        a(f"s_waitcnt vmcnt({len(vm)-1-k}){extra}")
    fill = [f"s_add_u32 s{sQ}, s4, s{sT1}\ns_addc_u32 s{sQ+1}, s5, 0", f"s_mov_b32 s{sW}, s14\ns_mov_b32 s{sW+1}, s15",
            f"s_add_u32 s{sV}, s8, s{sT0}\ns_addc_u32 s{sV+1}, s9, 0", f"s_mov_b32 s{sV+2}, {NB*16384}\ns_mov_b32 s{sV+3}, 0x20000",
            f"s_add_u32 s{sO}, s10, s{sT1}\ns_addc_u32 s{sO+1}, s11, 0", f"s_mov_b32 s{sO+2}, 65536\ns_mov_b32 s{sO+3}, 0x20000",
            f"s_xor_b32 s{sPw}, s{sMb}, {pxor*8192}"]
    a(f"s_add_u32 s{sK}, s6, s{sT0}\ns_addc_u32 s{sK+1}, s7, 0")
    def publish(t0, t1):
        a(f"v_readlane_b32 s{t0}, v8, 0\nv_readlane_b32 s{t1}, v8, 1\nv_mov_b32 v9, 0")
        a(f"s_and_b32 s{t1}, s{t1}, 0xffffff00\ns_add_u32 s{t1}, s{t1}, 0x100\ns_or_b32 s{t1}, s{t1}, s{sXcc}")
        a(f"s_xor_b32 s3, s{t1}, s{t0}\ns_cmp_lt_u32 s3, 0x100\ns_cselect_b32 s3, 0x100, 0\ns_add_u32 s{sCh}, s{t1}, s3\nv_mov_b32 v8, s{sCh}")
        a(f"buffer_store_dword v8, v9, s[{sW}:{sW+3}], s{sMb} offen offset:128 sc1")
    mbload = f"s_mov_b64 exec, 3\nbuffer_load_dword v8, v3, s[{sW}:{sW+3}], s{sMb} offen sc1\ns_mov_b64 exec, -1"
    if stag is not None:
        a(f"s_mov_b32 s{sW}, s14\ns_mov_b32 s{sW+1}, s15"); a(mbload); vm.append("mb")
        a(f"s_bitcmp1_b32 s2, {stag}\ns_cbranch_scc0 L_early\ns_waitcnt vmcnt(0)"); publish(36, 37); a("L_early:")
    def kvblock(f, adv, n, name, filler=None):
        for j in range(4):
            x = f(n, j)
            if not (name == "K0" and j == 0): pro.add(x[0]); (filler() if filler else a("s_nop 0"))
            pro.add(x[1]); vm.append(name)
        for x in adv(n): pro.add(x)
    def qdma(c, u):
        return [parse(f"s_add_u32 m0, s{sX}, {1024*(4*c+u)}"), parse(f"s_add_u32 s3, s{sOo}, {4096*u+128*c}"),
                parse(f"buffer_load_dwordx4 v{6+u%2}, s[{sQ}:{sQ+3}], s3 offen{polQ} lds")]
    def qblock(c):
        for u in range(4):
            for x in qdma(c, u): pro.add(x)
            vm.append(f"Q{c}")
    if ttouch:
        a("\n".join(fill)); fill = ["s_nop 0"]*7
        a("s_mov_b64 exec, 1")
        for srd, so in ((sK, sOK), (sQ, sOo), (sV, sOV), (sO, sOo))[:ttouch]:
            y = parse(f"buffer_load_dword a192, v{vDma}, s[{srd}:{srd+3}], s{so} offen{polK}"); y.wr = set(); pro.add(y); vm.append("tt")
        a("s_mov_b64 exec, -1")
    kvblock(dmaK, advK, 0, "K0", lambda: a(fill.pop(0)))
    if k1late:
        a("\n".join(fill)); fill = []
    else: kvblock(dmaK, advK, 1, "K1", lambda: a(fill.pop(0)))
    assert not fill
    if stag is None: a(mbload); vm.append("mb")
    qblock(0)
    if k1late: qblock(1)
    setup()
    qblock(2 if k1late else 1)
    fstamp(pro)
    vmwait("mb" if stag is None else "K0" if k1late else "K1"); a("s_barrier")
    stamp(pro)
    def k01read(n, j):
        r = (aKF if n == 0 else aVF) + 4*j
        return parse(f"ds_read_b128 a[{r}:{r+3}], v{vKa} offset:{n*KS+64*(j//2)+512*(j%2)}")
    def kgrp(c): return [k01read(n, j) for j in range(4*c, 4*c+4) for n in range(1 if k1late else 2)]
    def qraw(f): return 96 + 16*((f//4) % 2) + 4*(f % 4)
    def qgrp(c): return [parse(f"ds_read_b128 v[{qraw(f)}:{qraw(f)+3}], v{28+2*((f//2)%2)+f%2} offset:{4096*c}") for f in range(4*c, 4*c+4)]
    def presc(r):
        x = 32 + 2*(r % 8); q = qraw(r//4) + r % 4
        return [parse(t) for t in (f"v_lshlrev_b32 v{x}, 16, v{q}", f"v_and_b32 v{x+1}, 0xffff0000, v{q}",
                f"v_pk_mul_f32 v[{x}:{x+1}], v[{x}:{x+1}], v[2:3] op_sel_hi:[1,0]",
                f"v_cvt_pk_bf16_f32 v{x}, v{x}, v{x+1}", f"v_accvgpr_write_b32 a{aQ+r}, v{x}")]
    def mgrp(c, blocks=(0, 1)):
        L = []
        for t in (2*c, 2*c+1):
            for kt in range(2):
                for n in blocks:
                    for qt in range(2):
                        S = vS[n] + 8*qt + 4*kt; f = (aKF if n == 0 else aVF) + 4*(2*t+kt); qf = aQ + 4*(2*t+qt)
                        L.append(parse(f"v_mfma_f32_16x16x32_bf16 v[{S}:{S+3}], a[{f}:{f+3}], a[{qf}:{qf+3}], " + (f"v[{S}:{S+3}]" if t else "0")))
        return L
    for x in kgrp(0): pro.add(x)
    if not k1late: qblock(2)
    if stag is None: publish(sT0, sT1); vm.append("pub")
    else:
        a(f"s_bitcmp1_b32 s2, {stag}\ns_cbranch_scc1 L_pubdone"); publish(sT0, sT1); a("L_pubdone:")
    a("v_mov_b32 v3, 0")
    items = [("Q3", lambda j: qdma(3, j), []), ("K2", lambda j: dmaK(2, j), advK(2)), ("V0", lambda j: dmaV(0, j), advV(0)),
             ("V1", lambda j: dmaV(1, j), advV(1)) if lazy < 2 else (None, None, []), (None, None, [])]
    if k1late: items = [items[0], ("K1", lambda j: dmaK(1, j), advK(1)), items[1], items[2]]
    zq = [parse(f"v_mov_b32 v{vO+r}, 0") for r in range(zsplit[0], zsplit[1])]
    for c in range(4 if p2 else 5):
        name, f_, adv = items[c]
        if c < 4:
            vmwait(f"Q{c}")
            if c in (0, 3): fstamp(pro)
            for x in qgrp(c): pro.add(x)
            pq = [x for r in range(16*c, 16*c+16) for x in presc(r)]
        else: pq = zq
        kr = kgrp(c+1) if c < 3 else []
        if c == 0:
            for j in range(4):
                x = f_(j)
                for y in x[:-1]: pro.add(y)
                for y in kr[len(kr)//4*j:len(kr)//4*(j+1)]: pro.add(y)
                for _ in range(20): pro.add(pq.pop(0))
                pro.add(x[-1]); vm.append(name)
        else:
            sca = {}; dm = []; st = 2 if p2 else 4
            for j in range(4 if name else 0):
                x = f_(j); addf(sca, st*j, *x[:-1]); dm.append((x[-1], st*j-2, st*j+1)); vm.append(name)
            mf = mgrp(c-1, (0,)) if p2 else mgrp(c-1)
            schedule(pro, mf, [dm, spread(kr, 0, len(mf)-2) if kr else [], spread(pq, 0, len(mf)-1) if pq else []], sca, label=f"S{c}", cap=12 if p2 else 6)
        for x in adv: pro.add(x)
    fstamp(pro)
    NTRIP = ((NB-4)//2 if peel else (NB-2)//2) - (nser//2 if tpl else 0)
    scal = Seg("x")
    scal.a(f"s_mov_b32 s{sCnt}, {NTRIP-1 if tpl else NTRIP}")
    if tpl: a(f"s_mov_b32 s{sThr}, {f2u(2.0**T):#x}")
    scal.a(f"s_lshl_b32 s{sX}, s{sKh}, 8\ns_add_u32 s{sX}, s{sOo}, s{sX}\ns_xor_b32 s{sOo}, s{sX}, 256")
    if pcont: scal.a(f"s_lshl_b32 s{sT0}, s{sKh}, 15\ns_lshl_b32 s3, s{sWv}, 13\ns_add_u32 s{sT0}, s{sT0}, s3")
    else: scal.a(f"s_mov_b32 s{sT0}, s{sX}")
    post_ops = Seg("x"); post2 = Seg("x")
    rowmax(post_ops, vS[0], False)
    for qt, d in ((0, 1), (1, 4)):
        for r in range(8): post_ops.a(f"v_sub_f32 v{(vTmp if dsm0 else vS[0])+8*qt+r}, v{vS[0]+8*qt+r}, v{d}")
    if dsm0: post_ops.a(f"v_mov_b32 v{vLb}, 0\nv_mov_b32 v{vLb+1}, 0")
    else:
        for x in softmax_q(0, merge=False, pipe=True): post_ops.add(x)
    for qt, d in ((0, 1), (1, 4)):
        for r in range(4): post_ops.a(f"v_sub_f32 v{vCn+4*qt+r}, 0, v{d}")
        for r in range(8): post2.a(f"v_sub_f32 v{vS[1]+8*qt+r}, v{vS[1]+8*qt+r}, v{d}")
    tK = [parse(f"v_add_u32 v{vKa}, s{sDK}, v{vKa}"), parse(f"s_sub_u32 s{sDK}, 0, s{sDK}")]
    if p2:
        mf = mgrp(3, (0,)) + [x for c in range(4) for x in mgrp(c, (1,))]
        sca = {}; dm = []
        for k, x in enumerate(scal.ins): addf(sca, min(k, k1bar-1 if k1late else 3), x)
        k1r = []
        if k1late:
            kk_ = max(j for j, x in enumerate(vm) if x == "K1")
            addf(sca, k1bar, parse(f"s_waitcnt vmcnt({len(vm)-1-kk_}) lgkmcnt(0)"), parse("s_barrier"))
            k1r = [(k01read(1, j), k1bar + 1 + (j if j < 4 else 2*j-4), k1bar+1) for j in range(16)]
            for g_ in range(8, 40, 4): mf[g_].extra = set(R("a", aVF + 4*((g_-8)//2), 8))
            nd = 12 - 4*k4late; stp = 3 if nd == 12 else 4 if nd == 8 else 8
            for k in range(nd):
                x = dmaV(1, k) if k < 4 else dmaK(3 + (k-4)//4, k % 4); g = k1bar + 3 + stp*k
                addf(sca, g-1, x[0]); dm.append((x[1], g-3, g)); vm.append("V1" if k < 4 else "K3" if k < 8 else "K4")
            addf(sca, k1bar+3+stp*3+1, *advV(1))
            if nd >= 8: addf(sca, k1bar+3+stp*7+1, *advK(3))
            if nd == 12: addf(sca, 39, *[post(y) for y in advK(4)])
        elif not lazy:
            addf(sca, 4, parse("s_waitcnt lgkmcnt(0)"), parse("s_barrier"))
            for k in range(8):
                x = dmaK(3 + k//4, k % 4); g = 6 + 4*k
                addf(sca, g-1, x[0]); dm.append((x[1], g-3, g)); vm.append("K3" if k < 4 else "K4")
            addf(sca, 19, *advK(3)); addf(sca, 36, *advK(4))
        schedule(pro, mf, [dm, k1r, [(x, 0, 0) for x in zq], spread(post_ops.ins, 10, 39)], sca, label="S4", cap=5)
        stamp(pro)
        for x in tK: pro.add(x)
        vmwait("V0"); a("s_barrier")
        po = post2.ins
    else:
        for x in scal.ins + tK: pro.add(x)
        po = post_ops.ins + post2.ins
        if not mergeb:
            a("s_barrier")
            stamp(pro)
            def take(n):
                for _ in range(min(n, len(po))): pro.add(po.pop(0))
            kvblock(dmaK, advK, 3, "K3", lambda: take(12))
            kvblock(dmaK, advK, 4, "K4", lambda: take(12))
            take(1000)
            vmwait("V0"); a("s_barrier")
        else:
            stamp(pro)
            for x in po: pro.add(x)
            po = []
            vmwait("V0"); a("s_barrier")
    for j in range(NK0): pro.add(kread(2, j))
    if lazy >= 2: kvblock(dmaV, advV, 1, "V1")
    if mergeb or lazy:
        kvblock(dmaK, advK, 3, "K3"); kvblock(dmaK, advK, 4, "K4")
    if prefmode == 2:
        for kk in range(8):
            y = parse(f"buffer_load_dwordx4 a[192:195], v{vOg}, s[{sO}:{sO+3}], s{sT0} offen offset:{512*(kk%2)}{ppol}"); y.wr = set(); pro.add(y)
            if kk % 2: a(f"s_add_u32 s{sT0}, s{sT0}, 4096")
    x = dmaV(2, 0); pro.add(x[0]); a(f"buffer_load_dword v2, v3, s[{sW}:{sW+3}], s{sPw} offen offset:128 sc1"); pro.add(x[1])
    for k in range(1, nV0 if tpl else 1):
        x = dmaV(2, k); pro.add(x[0]); a("s_nop 0"); pro.add(x[1])
    for x in po: pro.add(x)
    for r in range(zsplit[1], zsplit[2]): a(f"v_mov_b32 v{vO+r}, 0")
    a(f"s_waitcnt lgkmcnt({NK0-wgrp})")
    fstamp(pro)
    stamp(pro)
    def sm0_block(zs):
        X, E_ = vTmp, vTmp+16
        for r in range(17):
            if r < 16: zs.a(f"v_exp_f32 v{E_+r}, v{X+r}")
            if r >= 1: zs.a(f"v_add_f32 v{vL+(r-1)//8}, v{vL+(r-1)//8}, v{E_+r-1}" if r < 16 else f"s_nop 0\nv_add_f32 v{vL+1}, v{vL+1}, v{E_+15}")
            if r >= 2 and r % 2 == 0: zs.a(f"v_cvt_pk_bf16_f32 v{vP[0]+r//2-1}, v{E_+r-2}, v{E_+r-1}")
    warm = Seg("warm")
    if tpl:
        inl0 = {}
        if nser and zsplit[2] < 128:
            per = (128 - zsplit[2]) // len(tzs)
            for n_, zg in enumerate(tzs):
                zs = Seg("x"); r0 = zsplit[2] + n_*per
                assert zg < 32 + 2*(r0//8)
                if n_ == 0 and dsm0: sm0_block(zs)
                for r in range(r0, r0+per): zs.a(f"v_mov_b32 v{vO+r}, 0")
                inl0[zg] = zs.ins
        for i in range(nser): iteration2(warm, i, 5+i, serial=sergap[i], inl=inl0 if i == 0 else None, xk=(i+4,) if i == kcatch and k1late and k4late else (), kl=4 if i < kcatch and k1late and k4late else 5)
    early[0] = 0
    body = Seg("loop"); body.a("L_loop:")
    if tpl: iteration2(body, 0, 0, zsites=zsplit[2] < 128 and not nser); iteration2(body, 1, 1, loopend=True)
    else: iteration(body, 0, 0); iteration(body, 1, 1, loopend=True)
    if stamps == 2:
        body.a(f"s_waitcnt lgkmcnt(0)\ns_memtime s[64:65]\ns_memrealtime s[66:67]\ns_sub_u32 m0, {15+NTRIP}, s{sCnt}\ns_cmp_lg_u32 s{sCnt}, 0\ns_waitcnt lgkmcnt(0)\nv_writelane_b32 v10, s64, m0\nv_writelane_b32 v11, s66, m0")
    zseg = Seg("zero")
    if zsplit[2] < 128 and not (tpl and nser):
        zgs = tzs if tpl else zgap if isinstance(zgap, tuple) else (zgap,)
        per = (128 - zsplit[2]) // len(zgs)
        for n_, zg in enumerate(zgs):
            r0 = zsplit[2] + n_*per
            assert zg < 32 + 2*(r0//8)
            if not tpl:
                mi = [k for k, x in enumerate(body.ins) if x.kind == "mfma"]
                k = mi[zg]
                body.ins[k+1:k+1] = [parse(f"s_cbranch_scc1 L_zero{n_}"), parse(f"L_zback{n_}:")]
                k = mi[zg-1]
                for y in body.ins[k+1:mi[zg]]: assert y.kind != "salu"
            if n_ == 0 and not peel:
                mask = (1 << NTRIP) | sum(1 << t for t in ptrips)
                body.ins[k+1:k+1] = [parse(f"s_bitcmp1_b32 {mask}, s{sCnt}")]
                zseg.a(f"L_zero{n_}:\ns_cmp_eq_u32 s{sCnt}, {NTRIP}\ns_cbranch_scc1 L_zero{n_}b")
                for kk in range(3):
                    y = parse(f"buffer_load_dwordx4 a[192:195], v{vDma if pcont else vOg}, s[{sO}:{sO+3}], s{sT0} offen{ppol}"); y.wr = set(); zseg.add(y)
                    if pcont: zseg.a(f"s_add_u32 s{sT0}, s{sT0}, 1024")
                    else: zseg.a(f"s_xor_b32 s{sT0}, s{sT0}, 512\ns_bitcmp1_b32 s{sT0}, 9\ns_cselect_b32 s3, 0, 4096\ns_add_u32 s{sT0}, s{sT0}, s3")
                    if kk == 1:
                        zseg.a(f"s_cmp_lg_u32 s{sCnt}, {ptrips[-1]}\ns_cbranch_scc1 L_pf3")
                        y = parse(f"buffer_load_dwordx4 a[192:195], v{vSt}, s[{sW}:{sW+3}], s{sMb} offen offset:256"); y.wr = set(); zseg.add(y)
                        zseg.a(f"s_branch L_zback{n_}\nL_pf3:")
                zseg.a(f"s_branch L_zback{n_}\nL_zero{n_}b:")
            else:
                if not tpl: body.ins[k+1:k+1] = [parse(f"s_cmp_eq_u32 s{sCnt}, {NTRIP}")]
                zseg.a(f"L_zero{n_}:")
            if n_ == 0 and dsm0: sm0_block(zseg)
            for r in range(r0, r0+per): zseg.a(f"v_mov_b32 v{vO+r}, 0")
            zseg.a(f"s_nop 1\ns_branch L_zback{n_}")
    if xpad2:
        for n_, (trip, gi, nn) in enumerate(xpad2):
            mi = [k for k, x in enumerate(body.ins) if x.kind == "mfma"]
            k = mi[gi]
            body.ins[k+1:k+1] = [parse(f"s_cmp_eq_u32 s{sCnt}, {NTRIP-trip-(1 if tpl else 0)}"), parse(f"s_cbranch_scc1 L_xq{n_}"), parse(f"L_xqb{n_}:")]
            zseg.a(f"L_xq{n_}:")
            for _ in range(nn): zseg.a("s_nop 15")
            zseg.a(f"s_branch L_xqb{n_}")
    if xpad:
        nb = []; mcount = 0; lab = 0
        for x in body.ins:
            nb.append(x)
            if x.kind == "mfma":
                it = mcount // 64; g = mcount % 64; mcount += 1
                step = 64 // xpad[3]
                if g % step == step//2 - 2:
                    thr = xpad[it]
                    nb += [parse(f"s_cmp_ge_u32 s{sCnt}, {thr}"), parse(f"s_cbranch_scc0 L_xp{lab}")] + [parse("s_nop 15") for _ in range(xpad[2])] + [parse(f"L_xp{lab}:")]
                    lab += 1
        body.ins = nb
    if not tpl: body.a(f"s_cbranch_scc1 L_loop")
    tail = Seg("tail"); e = tail.a
    e("L_tail:")
    if dfr: iteration3(tail, NB-4, 3); iteration3(tail, NB-3, 4)
    elif tpl: iteration2(tail, NB-4, 3, pref=True); iteration2(tail, NB-3, 4, pref=True)
    elif peel: iteration(tail, NB-4, 3, pref=True); iteration(tail, NB-3, 4, pref=True)
    stamp(tail)
    i = NB-2
    snd = list(range(8, 16)); own = list(range(8))
    sq15 = softmax_q(i+1) + checkops()
    if not peel:
        for dt in range(8, 8+NV0):
            for kt in range(2): tail.add(vread(i, dt, kt))
        for x in (sq15[0], sq15[1], sq15[2], sq15[5], sq15[3], sq15[4]): tail.add(x)
        sq15 = sq15[6:]
    rd = spread([vread(i, dt, kt) for dt in range(8+NV0, 16) for kt in range(2)], 0, 6)
    rd += [(y, t, btx+1) for (y, t, _) in spread([vread(i+1, dt, kt, dt-8) for dt in snd for kt in range(2)], btx+1, 15)]
    sca = {btx: [parse("s_waitcnt vmcnt(0)" if prefw is not None else "s_waitcnt vmcnt(9)" if pref13 else "s_waitcnt vmcnt(5)" if peel and not (pref12 and prefmode == 1) else "s_waitcnt vmcnt(0)"), parse("s_barrier")]}
    if dfr:
        sca = {btx: []}
        rd = spread([vread(i, dt, kt) for dt in range(8+NV0, 16) for kt in range(2)] + [vread(i+1, dt, kt, dt-8) for dt in snd for kt in range(2)], 0, 14)
    if stamps and fine:
        t1 = Seg("x"); fstamp(t1); t2 = Seg("x"); fstamp(t2)
        sca[btx] = t1.ins + sca[btx] + t2.ins
    mf = pvlist(i, snd)
    if peel: mf[0].extra = set()
    schedule(tail, mf, [rd, spread(sq15, 0, 15)], sca, label="X", cap=5)
    e(f"v_readfirstlane_b32 s{sT1}, v2\ns_cbranch_vccnz L_rare2\nL_back2:")
    fstamp(tail)
    e(f"s_and_b32 s3, s{sT1}, 0xff")
    def rcv(k): return vTmp + 4*k
    def xa(k):
        if xsw: return f"v{(vOg, 1)[k % 2]}, s[{sO}:{sO+3}], s{sOo} offen"
        return f"v{vOg}, s[{sO}:{sO+3}], s{sOo} offen offset:{512*(k%2)}"
    if xsw: e(f"s_and_b32 s36, s{sWv}, 1\ns_lshl_b32 s36, s36, 9\nv_add_u32 v{vOg}, s36, v{vOg}\nv_xor_b32 v1, 0x200, v{vOg}")
    pollb = Seg("pollb")
    if h2:
        sOo2, sX2, sChB = 62, 63, 38
        vG = 64
        def xaddr(k, b0, b1): return f"v21, s[{sO}:{sO+3}], s{b1 if (k % 4) >> 1 else b0} offen offset:{512*(k & 1) + 128*(k//4)}"
        e(f"s_add_u32 s{sOo2}, s{sOo}, 8192\ns_add_u32 s{sX2}, s{sX}, 8192\ns_xor_b32 s{sChB}, s{sCh}, 0x80\nv_xor_b32 v1, 0x80, v2")
        sends = []
        if fast: e(f"s_cmp_eq_u32 s3, s{sXcc}\ns_cbranch_scc1 L_sendfast")
        lo, hi = [0, 1, 2, 3], [4, 5, 6, 7]
        for var in (("slow", " sc1"), ("fast", xst)) if fast else (("slow", " sc1"),):
            sg = Seg("send_"+var[0]); sends.append(sg)
            if var[0] == "fast": sg.a("L_sendfast:")
            st = mergeops() + [parse(t) for t in (f"v_mov_b32 v6, v{vL}", f"v_mov_b32 v7, v{vL+1}", f"v_mov_b32 v4, v{vCn}", f"v_mov_b32 v5, v{vCn+4}",
                  f"v_permlane16_swap_b32 v6, v{vL}", f"v_permlane16_swap_b32 v7, v{vL+1}", f"v_add_f32 v{vL}, v6, v{vL}", f"v_add_f32 v{vL+1}, v7, v{vL+1}",
                  f"v_mov_b32 v6, v{vL}", f"v_mov_b32 v7, v{vL+1}", "s_nop 0", f"v_permlane32_swap_b32 v6, v{vL}", f"v_permlane32_swap_b32 v7, v{vL+1}",
                  f"v_add_f32 v6, v6, v{vL}", f"v_add_f32 v7, v7, v{vL+1}")]
            mf = pvlist(i+1, snd, own) + pvlist(i, lo, [d+8 for d in lo]) + pvlist(i+1, lo)
            rows = {g: [] for g in range(32)}
            for k, x in enumerate(st): rows[min(3, k*4//len(st))].append(x)
            rows[4].append(parse(f"buffer_store_dwordx4 v[4:7], v{vSt}, s[{sW}:{sW+3}], s{sPw} offen offset:256{var[1]}"))
            rr = [vread(i, dt, kt, dt+8) for dt in lo for kt in range(2)] + [vread(i+1, dt, kt) for dt in lo for kt in range(2)]
            r2 = [vread(i, dt, kt, dt+8) for dt in hi for kt in range(2)] + [vread(i+1, dt, kt) for dt in hi for kt in range(2)]
            for k in range(8):
                o = vO + 8*(8+k)
                rows[2*k+4] += [parse(f"v_cvt_pk_bf16_f32 v{vTmp+4*k+x}, v{o+2*x}, v{o+2*x+1}") for x in range(4)]
                rows[2*k+5] += [parse(f"buffer_store_dwordx4 v[{vTmp+4*k}:{vTmp+4*k+3}], {xaddr(k, sOo, sOo2)}{var[1]}")] + rr[2*k:2*k+2]
            for k, x in enumerate(r2): rows[20 + k*12//16].append(x)
            if var[0] == "slow": nf0 = nf[0]; st0 = nst[0]
            nf[0] = nf0; nst[0] = st0
            tg = Seg("x"); tg.a(f"s_waitcnt vmcnt(4)\nbuffer_store_dword v2, v3, s[{sW}:{sW+3}], s{sPw} offen{var[1]}")
            rows[tga] = tg.ins + rows[tga]
            for g in range(32):
                sg.add(mf[g])
                for x in rows[g]: sg.add(x)
            fstamp(sg); sg.a("s_waitcnt vmcnt(0)"); stamp(sg)
            sg.a(f"buffer_store_dword v1, v3, s[{sW}:{sW+3}], s{sPw} offen{var[1]}")
            fstamp(sg)
            if var[0] == "slow" and fast: sg.a("s_branch L_sent")
        fin = Seg("final"); e = fin.a
        e("L_sent:")
        e(f"s_mov_b32 s{sCnt}, 0x200000")
        e("L_poll:")
        e(f"s_sub_u32 s{sCnt}, s{sCnt}, 1\ns_cbranch_scc1 L_pollok")
        e(f"buffer_load_dword v8, v3, s[{sW}:{sW+3}], s{sMb} offen{xpoll}\ns_waitcnt vmcnt(0)\nv_readfirstlane_b32 s36, v8\ns_xor_b32 s3, s36, s{sCh}\ns_andn2_b32 s3, s3, 0x80\ns_cbranch_scc1 L_poll")
        e("L_pollok:")
        stamp(fin)
        e(f"buffer_load_dwordx4 v[{vG}:{vG+3}], v{vSt}, s[{sW}:{sW+3}], s{sMb} offen offset:256{xld}")
        for k in lo: e(f"buffer_load_dwordx4 v[{vTmp+4*k}:{vTmp+4*k+3}], {xaddr(k, sX, sX2)}{xld}")
        for x in pvlist(i, hi, [d+8 for d in hi]): fin.add(x)
        e(f"s_cmp_eq_u32 s36, s{sChB}\ns_cbranch_scc0 L_pollb\nL_pollbok:")
        pollb.a(f"L_pollb:\ns_sub_u32 s{sCnt}, s{sCnt}, 1\ns_cbranch_scc1 L_pollbok")
        pollb.a(f"buffer_load_dword v8, v3, s[{sW}:{sW+3}], s{sMb} offen{xpoll}\ns_waitcnt vmcnt(0)\nv_readfirstlane_b32 s36, v8\ns_nop 1\ns_cmp_eq_u32 s36, s{sChB}\ns_cbranch_scc0 L_pollb\ns_branch L_pollbok")
        for k in hi: e(f"buffer_load_dwordx4 v[{vTmp+4*k}:{vTmp+4*k+3}], {xaddr(k, sX, sX2)}{xld}")
        e(f"buffer_load_dword v2, v3, s[{sW}:{sW+3}], s{sPw} offen offset:128 sc1")
        for x in pvlist(i+1, hi): fin.add(x)
        fstamp(fin); fstamp(fin)
        for qt in range(2):
            fo, fx, t = vG+4+2*qt, vG+8+2*qt, vG+12+qt
            e(f"v_min_f32 v{t}, v{4+qt}, v{vG+qt}\nv_sub_f32 v{fo}, v{t}, v{4+qt}\nv_sub_f32 v{fx}, v{t}, v{vG+qt}\nv_exp_f32 v{fo}, v{fo}\nv_exp_f32 v{fx}, v{fx}")
        for qt in range(2):
            fo, fx, t = vG+4+2*qt, vG+8+2*qt, vG+12+qt
            e(f"v_mul_f32 v{t}, v{fo}, v{6+qt}\nv_fma_f32 v{t}, v{fx}, v{vG+2+qt}, v{t}\nv_rcp_f32 v{t}, v{t}")
        for qt in range(2):
            fo, fx, t = vG+4+2*qt, vG+8+2*qt, vG+12+qt
            e(f"v_mul_f32 v{fo}, v{fo}, v{t}\nv_mul_f32 v{fx}, v{fx}, v{t}")
        stq = []
        for n_, (h, qt) in enumerate(((0, 0), (0, 1), (1, 0), (1, 1))):
            fo, fx = vG+4+2*qt, vG+8+2*qt
            for k, dt in enumerate(range(4*h, 4*h+4)):
                o = vO + 8*dt + 4*qt; p = vTmp + 4*dt + 2*qt; u = 48 + 4*((2*dt+qt) % 4)
                e(f"v_lshlrev_b32 v{u}, 16, v{p}\nv_and_b32 v{u+1}, 0xffff0000, v{p}\nv_lshlrev_b32 v{u+2}, 16, v{p+1}\nv_and_b32 v{u+3}, 0xffff0000, v{p+1}")
                for x in range(4): e(f"v_mul_f32 v{o+x}, v{fo}, v{o+x}")
                for x in range(4): e(f"v_fmac_f32 v{o+x}, v{fx}, v{u+x}")
                e(f"v_cvt_pk_bf16_f32 v{o}, v{o}, v{o+1}\nv_cvt_pk_bf16_f32 v{o+1}, v{o+2}, v{o+3}")
                if k in (1, 2) and stq: e(stq.pop(0))
            for dt in range(4*h, 4*h+4):
                o = vO + 8*dt + 4*qt
                e(f"ds_write_b64 v{vEw}, v[{o}:{o+1}] offset:{4352*qt+32*dt}")
            for m in range(2):
                r = 192 + 8*n_ + 4*m
                e(f"ds_read_b128 v[{r}:{r+3}], v{vEr} offset:{272*(16*qt+8*m)+128*h}")
                stq.append(f"buffer_store_dwordx4 v[{r}:{r+3}], v21, s[{sO}:{sO+3}], s{sX2 if m else sX} offen offset:{512*qt+128*h}{polO}")
        fstamp(fin)
        for x in stq: e(x)
        e(f"v_readfirstlane_b32 s3, v2\ns_cmp_eq_u32 s3, s{sT1}\ns_cbranch_scc1 L_tagok")
        e(f"v_xor_b32 v2, 0x80, v2\nbuffer_wbl2 sc1\ns_waitcnt vmcnt(0)\nbuffer_store_dword v2, v3, s[{sW}:{sW+3}], s{sPw} offen sc1")
        e("L_tagok:")
        fstamp(fin)
    else:
        sends = []
        if fast: e(f"s_cmp_eq_u32 s3, s{sXcc}\ns_cbranch_scc1 L_sendfast")
        for var in (("slow", " sc1"), ("fast", xst)) if fast else (("slow", " sc1"),):
            sg = Seg("send_"+var[0]); sends.append(sg)
            if var[0] == "fast": sg.a("L_sendfast:")
            st = mergeops() + [parse(t) for t in (f"v_mov_b32 v6, v{vL}", f"v_mov_b32 v7, v{vL+1}", f"v_mov_b32 v4, v{vCn}", f"v_mov_b32 v5, v{vCn+4}",
                  f"v_permlane16_swap_b32 v6, v{vL}", f"v_permlane16_swap_b32 v7, v{vL+1}", f"v_add_f32 v{vL}, v6, v{vL}", f"v_add_f32 v{vL+1}, v7, v{vL+1}",
                  f"v_mov_b32 v6, v{vL}", f"v_mov_b32 v7, v{vL+1}", "s_nop 0", f"v_permlane32_swap_b32 v6, v{vL}", f"v_permlane32_swap_b32 v7, v{vL+1}",
                  f"v_add_f32 v6, v6, v{vL}", f"v_add_f32 v7, v7, v{vL+1}",
                  f"buffer_store_dwordx4 v[4:7], v{vSt}, s[{sW}:{sW+3}], s{sPw} offen offset:256{var[1]}")]
            q = []
            for k in range(8):
                o = vO + 8*(8+k); g0 = 2*k + 1 + 3
                for x in range(4): q.append((parse(f"v_cvt_pk_bf16_f32 v{vTmp+4*k+x}, v{o+2*x}, v{o+2*x+1}"), g0-2, g0))
                q.append((parse(f"buffer_store_dwordx4 v[{vTmp+4*k}:{vTmp+4*k+3}], {xa(k)}{var[1]}"), g0-2, g0))
                if k % 2 == 1 and k < 7: q.append((parse(f"s_add_u32 s{sOo}, s{sOo}, 4096"), g0-2, g0))
            rd = spread([vread(i, dt, kt, dt+8) for dt in own for kt in range(2)], 1, 20)
            rd += [(y, t, 17) for (y, t, _) in spread([vread(i+1, dt, kt) for dt in own for kt in range(2)], 21, 38)]
            mf = pvlist(i+1, snd, own) + pvlist(i, own, snd) + pvlist(i+1, own)
            if var[0] == "slow": nf0 = nf[0]; st0 = nst[0]
            nf[0] = nf0; nst[0] = st0
            tg = Seg("x"); fstamp(tg); tg.a("s_waitcnt vmcnt(0)"); stamp(tg)
            tg.a(f"buffer_store_dword v2, v3, s[{sW}:{sW+3}], s{sPw} offen{var[1]}")
            if dfr:
                mf = pvlist(i+1, snd, own) + pvlist(i-2, own, snd) + pvlist(i-1, own) + pvlist(i, own, snd) + pvlist(i+1, own)
                rows = {g: [] for g in range(80)}
                nst_ = len(st) - 1
                for k, x in enumerate(st[:-1]): rows[min(3, k*4//nst_)].append(x)
                rows[0].insert(0, parse(f"v_add_u32 v1, s{sDV}, v{vVa}"))
                rows[4].append(st[-1])
                rb = [[vread(i-2+n_, dt, kt, dt + (8 if n_ % 2 == 0 else 0), 1 if n_ < 2 else vVa) for dt in own for kt in range(2)] for n_ in range(4)]
                for k in range(8):
                    o = vO + 8*(8+k)
                    rows[2*k+4] += [parse(f"v_cvt_pk_bf16_f32 v{o+x}, v{o+2*x}, v{o+2*x+1}") for x in range(4)]
                    rows[2*k+5] += [parse(f"buffer_store_dwordx4 v[{o}:{o+3}], {xa(k)}{var[1]}")] + rb[0][2*k:2*k+2]
                    if k % 2 == 1 and k < 7: rows[2*k+5].append(parse(f"s_add_u32 s{sOo}, s{sOo}, 4096"))
                for k, x in enumerate(rb[1]): rows[20 + k*10//16].append(x)
                for k, x in enumerate(rb[2]): rows[34 + k*13//16].append(x)
                for k, x in enumerate(rb[3]): rows[50 + k*13//16].append(x)
                rows[dtag] += tg.ins
                for g in range(80):
                    sg.add(mf[g])
                    for x in rows[g]: sg.add(x)
            elif y2:
                rows = {g: [] for g in range(48)}
                r14 = [vread(i, dt, kt, dt+8) for dt in own for kt in range(2)]; r15 = [vread(i+1, dt, kt) for dt in own for kt in range(2)]
                nst_ = len(st) - 1
                for k, x in enumerate(st[:-1]): rows[min(3, k*4//nst_)].append(x)
                tiles = [[y[0] for y in q[a_:b_]] for a_, b_ in zip([0,5,11,16,22,27,33,38], [5,11,16,22,27,33,38,43])]
                for k in range(8):
                    rows[2*k+4] += tiles[k][:4]
                    rows[2*k+5] += tiles[k][4:5] + r14[2*k:2*k+2] + tiles[k][5:]
                rows[1] = r14[:0] + rows[1]
                rows[4] = [st[-1]] + rows[4]
                for k, x in enumerate(r15): rows[20 + k].append(x)
                rows[tagg] += tg.ins
                for g in range(48):
                    sg.add(mf[g])
                    for x in rows[g]: sg.add(x)
            else:
                sca = {tagg: [post(x) for x in tg.ins]}
                schedule(sg, mf, [rd, q, spread(st, 0, 4)], sca, label="YZ", cap=3)
            fstamp(sg)
            if var[0] == "slow" and fast: sg.a("s_branch L_sent")
        fin = Seg("final"); e = fin.a
        e("L_sent:")
        e(f"s_mov_b32 s{sCnt}, 0x200000")
        e("L_poll:")
        e(f"s_sub_u32 s{sCnt}, s{sCnt}, 1\ns_cbranch_scc1 L_pollok")
        e(f"buffer_load_dword v8, v3, s[{sW}:{sW+3}], s{sMb} offen{xpoll}\ns_waitcnt vmcnt(0)\nv_readfirstlane_b32 s3, v8\ns_cmp_lg_u32 s3, s{sCh}\ns_cbranch_scc1 L_poll")
        e("L_pollok:")
        stamp(fin)
        e(f"s_mov_b32 s{sOo}, s{sX}")
        def xloads(pol):
            e(f"buffer_load_dwordx4 v[32:35], v{vSt}, s[{sW}:{sW+3}], s{sMb} offen offset:256{pol}")
            for k in range(8):
                e(f"buffer_load_dwordx4 v[{rcv(k)}:{rcv(k)+3}], {xa(k)}{pol}")
                if k % 2 == 1 and k < 7: e(f"s_add_u32 s{sOo}, s{sOo}, 4096")
        xloads(xld)
        e(f"buffer_load_dword v2, v3, s[{sW}:{sW+3}], s{sPw} offen offset:128 sc1")
        fstamp(fin, 9); fstamp(fin, 0)
        for qt in range(2):
            fo, fx, t = 36+2*qt, 40+2*qt, 44+qt
            e(f"v_min_f32 v{t}, v{4+qt}, v{32+qt}\nv_sub_f32 v{fo}, v{t}, v{4+qt}\nv_sub_f32 v{fx}, v{t}, v{32+qt}\nv_exp_f32 v{fo}, v{fo}\nv_exp_f32 v{fx}, v{fx}")
        for qt in range(2):
            fo, fx, t = 36+2*qt, 40+2*qt, 44+qt
            e(f"v_mul_f32 v{t}, v{fo}, v{6+qt}\nv_fma_f32 v{t}, v{fx}, v{34+qt}, v{t}\nv_rcp_f32 v{t}, v{t}")
        for qt in range(2):
            fo, fx, t = 36+2*qt, 40+2*qt, 44+qt
            e(f"v_mul_f32 v{fo}, v{fo}, v{t}\nv_mul_f32 v{fx}, v{fx}, v{t}")
        def oscale(dt, qt):
            o = vO + 8*dt + 4*qt; fo = 36 + 2*qt
            for r in (o, o+2): e(f"v_pk_mul_f32 v[{r}:{r+1}], v[{r}:{r+1}], v[{fo}:{fo+1}] op_sel_hi:[1,0]")
        for dt in range(8):
            for qt in range(2):
                if not (qsc and q4) or (dt < 4 and qt == 0): oscale(dt, qt)
        def comb(dt, qt):
            o = vO + 8*dt + 4*qt; p = rcv(dt) + 2*qt; u = 48 + 4*((2*dt+qt) % 4); fx = 40+2*qt
            e(f"v_lshlrev_b32 v{u}, 16, v{p}\nv_and_b32 v{u+1}, 0xffff0000, v{p}\nv_lshlrev_b32 v{u+2}, 16, v{p+1}\nv_and_b32 v{u+3}, 0xffff0000, v{p+1}")
            e(f"v_pk_fma_f32 v[{o}:{o+1}], v[{u}:{u+1}], v[{fx}:{fx+1}], v[{o}:{o+1}] op_sel_hi:[1,0,1]")
            e(f"v_pk_fma_f32 v[{o+2}:{o+3}], v[{u+2}:{u+3}], v[{fx}:{fx+1}], v[{o+2}:{o+3}] op_sel_hi:[1,0,1]")
            e(f"v_cvt_pk_bf16_f32 v{o}, v{o}, v{o+1}\nv_cvt_pk_bf16_f32 v{o+1}, v{o+2}, v{o+3}")
        def dsw(dt, qt):
            o = vO + 8*dt + 4*qt
            e(f"ds_write_b64 v{vEw}, v[{o}:{o+1}] offset:{4352*qt+32*dt}")
        def retag():
            e(f"v_readfirstlane_b32 s3, v2\ns_cmp_eq_u32 s3, s{sT1}\ns_cbranch_scc1 L_tagok")
            e(f"buffer_wbl2 sc1\ns_waitcnt vmcnt(0)\nbuffer_store_dword v2, v3, s[{sW}:{sW+3}], s{sPw} offen sc1")
            e("L_tagok:")
        if q4:
            e(f"s_add_u32 s{sOo}, s{sX}, 8192")
            stq = []
            for n_, (h, qt) in enumerate(((0, 0), (0, 1), (1, 0), (1, 1))):
                for k, dt in enumerate(range(4*h, 4*h+4)):
                    if qsc and n_: oscale(dt, qt)
                    comb(dt, qt)
                    if k in ((0, 1) if qsc else (1, 2)) and stq: e(stq.pop(0))
                for dt in range(4*h, 4*h+4): dsw(dt, qt)
                for m in range(2):
                    r = 192 + 8*n_ + 4*m
                    e(f"ds_read_b128 v[{r}:{r+3}], v{vEr} offset:{272*(16*qt+8*m)+128*h}")
                    stq.append(f"buffer_store_dwordx4 v[{r}:{r+3}], v21, s[{sO}:{sO+3}], s{sOo if m else sX} offen offset:{512*qt+128*h}{polO}")
                if n_ == 0: e("s_waitcnt vmcnt(1)")
            fstamp(fin)
            for x in stq: e(x)
            retag()
        else:
            for dt in range(8):
                for qt in range(2):
                    comb(dt, qt)
                    if qt == 1 and dt % 2 == 1:
                        for d2 in (dt-1, dt):
                            for q2 in range(2): dsw(d2, q2)
            fstamp(fin)
            korder = [0, 4, 1, 5, 2, 6, 3, 7]
            for n_, k in enumerate(korder): e(f"ds_read_b128 v[{192+4*n_}:{192+4*n_+3}], v{vEr} offset:{1088*k}")
            retag()
            for k in range(8):
                e(f"buffer_store_dwordx4 v[{192+4*k}:{192+4*k+3}], v{vOg}, s[{sO}:{sO+3}], s{sX} offen offset:{512*(k%2)}{polO}")
                if k % 2 == 1 and k < 7: e(f"s_add_u32 s{sX}, s{sX}, 4096")
        fstamp(fin)
    endseg = Seg("end"); e = endseg.a
    if stamps:
        e("s_waitcnt vmcnt(0)")
        stamp(endseg)
        e(f"s_lshl_b32 s3, s2, 2\ns_add_u32 s3, s3, s{sWv}\ns_lshl_b32 s3, s3, 9\nv_lshlrev_b32 v{vSt}, 3, v0")
        e(f"buffer_store_dwordx2 v[10:11], v{vSt}, s[{sW}:{sW+3}], s3 offen")
    if probe is not None:
        e("s_waitcnt vmcnt(0)")
        stamp(endseg)
        e(f"s_sub_u32 s94, s94, s96\ns_add_u32 s94, s94, 2500\nL_pad:\ns_memrealtime s[98:99]\ns_waitcnt lgkmcnt(0)\ns_sub_u32 s3, s98, s96\ns_cmp_lt_u32 s3, s94\ns_cbranch_scc1 L_pad")
    if padto:
        e(f"s_waitcnt vmcnt(0)\nL_pad:\ns_memrealtime s[98:99]\ns_waitcnt lgkmcnt(0)\ns_sub_u32 s3, s98, s96\ns_cmp_lt_u32 s3, {int(padto*100)}\ns_cbranch_scc1 L_pad")
    e("L_end:\ns_endpgm")
    rares = []
    for ret, i in ((0, 0), (1, 1), (2, NB-2), (3, NB-4), (4, NB-3))[:5 if peel else 3] + tuple((5+k, k) for k in range(nser if tpl else 0)):
        r = Seg(f"rare{ret}"); e = r.a
        S = vS[(i+1)%2]; S2 = vS[i%2]
        e(f"L_rare{ret}:")
        rowmax(r, S, True)
        e("v_exp_f32 v6, -v1\nv_exp_f32 v7, -v4")
        for qt, d, al in ((0, 1, 6), (1, 4, 7)):
            for k in range(4): e(f"v_sub_f32 v{vCn+4*qt+k}, v{vCn+4*qt+k}, v{d}")
            for k in range(8): e(f"v_sub_f32 v{S+8*qt+k}, v{S+8*qt+k}, v{d}")
            if ret != 2:
                for k in range(8): e(f"v_sub_f32 v{S2+8*qt+k}, v{S2+8*qt+k}, v{d}")
            e(f"v_mul_f32 v{vL+qt}, v{al}, v{vL+qt}")
        pend = [NB-2] if ret == 2 else []
        if dfr and ret in (2, 3, 4): pend = list(range(NB-4, i+1))
        for n in pend:
            for k in range(8):
                p = Pbuf(n) + k; al = 6 + k//4
                e(f"v_lshlrev_b32 v{vPf}, 16, v{p}\nv_and_b32 v{vPf+1}, 0xffff0000, v{p}\nv_mul_f32 v{vPf}, v{al}, v{vPf}\nv_mul_f32 v{vPf+1}, v{al}, v{vPf+1}\nv_cvt_pk_bf16_f32 v{p}, v{vPf}, v{vPf+1}")
        for x in softmax_q(i+1, merge=False, pipe=True): r.add(x)
        for k in range(128): e(f"v_mul_f32 v{vO+k}, v{6+(k//4)%2}, v{vO+k}")
        e(f"s_nop 1\ns_branch L_back{ret}")
        rares.append(r)
    if "oob" in exp: pro.a(f"s_mov_b32 s{sK+2}, 0\ns_mov_b32 s{sV+2}, 0")
    if "l2hot" in exp:
        for x in body.ins:
            if x.text.startswith(f"s_add_u32 s{sOK}, s{sOK}, 16384") or x.text.startswith(f"s_add_u32 s{sOV}, s{sOV}, 16384"): x.text = "s_nop 0"
    if exp:
        nb = []
        for x in body.ins:
            if "nolds" in exp and x.kind == "dsr": continue
            if "novalu" in exp and x.kind in ("valu","trans") and not x.text.startswith("v_add_u32") and not x.text.startswith("v_cmp") and not x.text.startswith("v_writelane"): continue
            if "nodma" in exp and x.kind == "dma": continue
            if "nomfma" in exp and x.kind == "mfma": continue
            if "nobar" in exp and (x.kind == "barrier" or (x.kind == "wait" and x.vm is not None)): continue
            if "nomax" in exp and x.text.startswith("v_max"): continue
            nb.append(x)
        body.ins = nb
    order = [pro, warm, body, tail] + sends + [fin, endseg, pollb, zseg] + rares
    traces = [[pro, warm, body, body, body, tail, s, fin, endseg] for s in sends]
    fix_waits(traces, verbose)
    for s in order: merge_waits(s)
    fix_waits(traces, verbose)
    def upto(seg, lab):
        s = Seg(seg.name+"_pre"); k = [i.text for i in seg.ins].index(lab); s.ins = seg.ins[:k]
        s2 = Seg(seg.name+"_post"); s2.ins = seg.ins[k:]; return s, s2
    pw = [pro, warm]
    cases = [(0, body, pw+[body], [body]), (1, body, pw+[body], [body]), (1, body, pw+[body], [tail]), (2, tail, pw+[body], [sends[0]])]
    if peel: cases += [(3, tail, pw+[body], []), (4, tail, pw+[body], [])]
    cases += [(5+k, warm, [pro], [body]) for k in range(nser if tpl else 0)]
    for ret, seg, prev, nxt in cases:
        p, q = upto(seg, f"L_back{ret}:")
        n0 = [len(x.ins) for x in [p, q] + nxt]
        fix_waits([prev + [p, rares[ret], q] + nxt], verbose)
        assert exp or [len(x.ins) for x in [p, q] + nxt] == n0, "rare path needs extra waits outside"
    if zseg.ins and not xpad2:
        labs = [k for k, x in enumerate(zseg.ins) if x.kind == "label" and x.text.startswith("L_zero") and not x.text.endswith("b:")] + [len(zseg.ins)]
        parts = []
        for n_ in range(len(labs)-1):
            zp = Seg(f"zero{n_}"); zp.ins = zseg.ins[labs[n_]:labs[n_+1]]; parts.append(zp)
            p, q = upto(body, f"L_zback{n_}:")
            n0 = [len(p.ins), len(q.ins)]
            fix_waits([[pro, warm, p, zp, q]], verbose)
            assert exp or [len(p.ins), len(q.ins)] == n0, "zero block needs extra waits outside"
        zseg.ins = [x for zp in parts for x in zp.ins]
    lds = SPARE + KS
    txt = header + f"; @launch grid=(256,1,1) block=(256,1,1) lds={lds}\n"
    txt += f'.amdgcn_target "amdgcn-amd-amdhsa--gfx950"\n.text\n.globl {KN}\n.p2align 8\n.type {KN},@function\n{KN}:\n'
    body_txt = emit(order)
    notes = {
      "prologue": "ids, descriptors, first K/V/Q fetches; Q is scaled by log2(e)/16 group by group as it lands; S(0)=K0 Q^T, S(1), true row max of block 0",
      "warm": "iterations 0..3: same data flow as the loop, but each block's softmax (and, in iteration 0, the accumulator clear) runs between the MFMAs in one piece",
      "loop": "iterations 4..11, two per trip: QK(i+2) | softmax(i+1) | PV(i), one barrier per key block",
      "tail": "iterations 12, 13 and PV(14) for the half of O that goes to the partner; softmax(15)",
      "send_slow": "partner on another XCD: PV(15), write-through of the sent half + (max, sum), own half of PV(12..15), then the tag",
      "send_fast": "partner on this XCD: the same through L2",
      "final": "wait for the partner's tag, merge the two partial results, transpose through LDS, store; re-tag if the challenge read earlier was an older launch's",
    }
    for k_, v_ in notes.items(): body_txt = body_txt.replace(f"; ---- {k_}\n", f"; ---- {k_}: {v_}\n")
    body_txt = re.sub(r"; ---- (rare\d+)\n", r"; ---- \1: a block sum passed 2^8: move to the true running max, rescale O, l, pending P, redo this block's softmax\n", body_txt)
    body_txt = body_txt.replace("; ---- pollb\n", "").replace("; ---- zero\n", "")
    if align is not None:
        body_txt = body_txt.replace("L_loop:\n", f".p2align {align[0]}\n" + "  s_nop 0\n"*align[1] + "L_loop:\n")
    txt += body_txt + "\nL_codeend:\n"
    txt += f'''.section .rodata,"a"
.p2align 6
.amdhsa_kernel {KN}
  .amdhsa_next_free_vgpr 452
  .amdhsa_next_free_sgpr 102
  .amdhsa_accum_offset 256
  .amdhsa_group_segment_fixed_size 0
  .amdhsa_kernarg_size 48
  .amdhsa_user_sgpr_count 2
  .amdhsa_user_sgpr_kernarg_segment_ptr 1
  .amdhsa_system_sgpr_workgroup_id_x 1
.end_amdhsa_kernel
'''
    return txt
if __name__ == "__main__":
    kw = eval("dict(" + (sys.argv[1] if len(sys.argv) > 1 else "") + ")")
    print(gen(**kw))
```

```python
import sys, math, struct
from asmlib import *
KN = "standalone__gqa_softmax__near_ridge_kernel"
def f2u(x): return struct.unpack("<I", struct.pack("<f", x))[0]
RS = 1056; KS = VS = 16*RS
KB = [i*KS for i in range(4)]
VB = [4*KS + i*VS for i in range(4)]
SPARE = 8*KS
C_SCALE = math.log2(math.e)/16.0
NB = 16
vOg, vEw, vEr, vSt = 12, 13, 14, 15
vKa, vVa, vDma, vDmaV, vMx = 16, 17, 18, 19, 20
vL = 22
vLb = 8
vPf = 80
vCn = 24
vP = [32, 40]; vS = [48, 64]; vTmp = 96; vO = 128
aQ, aKF, aVF = 0, 64, 128
sQ, sK, sV, sO, sW = 16, 20, 24, 28, 32
sWv, sOK, sOV, sMK, sMV, sCnt, sC, sDK, sDV, sXcc, sKh, sT0, sT1, sOo, sX = 40,41,42,43,44,45,46,47,48,49,50,51,52,53,54
sDK2, sDV2, sPw, sMb, sCh = 55, 56, 57, 58, 59
XBASE = 1 << 20

def gen(polK=" nt", polV=" nt", polQ="", ndef=0, polO="", stamps=False, T=8.0, verbose=False, header="", padto=0, exp=(),
        fast=True, pxor=16, bg=53, dmagaps=(57,1,9,17,25,33,41,49), npre=5, wgrp=2, smend=60, late=1.6, xld=' sc1', xpoll=' sc1', fine=False, xpad=None, xstag=0, probe=None, cpf=True, btx=7, tagg=36, nq0=11, zsplit=(0,0,0), zgap=(30,46), otouch=False, peel=True, mergeb=False, prefmode=1, stag=None, p2=True, xdelay=None, dfr=True, dpf=13, n12=0, otw=None, fastart=False, qsc=False, xst='', dbg_=33, dtag=68, xsw=False, prefw=None, h2=False, tga=21,  k1late=True, k4late=0, kcatch=0, k1bar=2, y2=True, nser=4, sergap=(60,)*8, cskip=('L_end','L_end'), ttouch=0, tpl=True, tE=(0,4,8,12,16,20,24,28,32,36,40,43,46,50,53,56), tD=(54,2,9,17,25,33,38,45), tbg=49, tdbl=(14,30), tzs=(30,42), align=None, pref13=True, q4=True, ilv=None, dsm0=True, lazy=0, pref12=False, xpad2=None, st256=True, ptrips=(4,3,2), pcont=False, ppol=''):
    nst = [0]
    def stamp(seg):
        if probe is not None:
            if nst[0] == probe: seg.a("s_waitcnt lgkmcnt(0)\ns_memrealtime s[94:95]\ns_waitcnt lgkmcnt(0)")
            nst[0] += 1
        if stamps:
            seg.a(f"s_waitcnt lgkmcnt(0)\ns_memtime s[64:65]\ns_memrealtime s[66:67]\ns_waitcnt lgkmcnt(0)\nv_writelane_b32 v10, s64, {nst[0]}\nv_writelane_b32 v11, s66, {nst[0]}"); nst[0] += 1
    nf = [32]
    def fstamp(seg, vm=None):
        if stamps and fine:
            if vm is not None: seg.a(f"s_waitcnt vmcnt({vm})")
            sv = nst[0]; nst[0] = nf[0]; stamp(seg); nf[0] += 1; nst[0] = sv
    pro = Seg("prologue"); a = pro.a
    a(f"s_cmp_ge_u32 s2, 256\ns_cbranch_scc1 L_end")
    a("s_load_dwordx8 s[4:11], s[0:1], 0\ns_load_dwordx2 s[14:15], s[0:1], 40")
    if padto or probe is not None: a("s_memrealtime s[96:97]")
    stamp(pro)
    if xdelay is not None:
        a(f"s_bitcmp1_b32 s2, {xdelay}\ns_cbranch_scc0 L_nodly\ns_mov_b32 s3, 12\nL_dly:\ns_sleep 127\ns_sub_u32 s3, s3, 1\ns_cbranch_scc0 L_dly\nL_nodly:")
    if xstag:
        a(f"s_bitcmp1_b32 s2, 5\ns_cbranch_scc0 L_nostag\ns_sleep {xstag}\nL_nostag:")
    a("v_lshrrev_b32 v1, 6, v0\nv_and_b32 v0, 63, v0")
    a(f"v_readfirstlane_b32 s{sWv}, v1")
    late0 = Seg("x"); b_ = late0.a if fastart else a
    if cpf:
        b_(f"s_getpc_b64 s[36:37]\ns_lshr_b32 s3, s2, 3\ns_lshl_b32 s3, s3, 2\nv_add_u32 v4, s3, v1\nv_lshlrev_b32 v4, 1, v4\nv_add_u32 v4, v4, v0\nv_lshlrev_b32 v4, 7, v4")
        if cskip and cskip[0] != cskip[1]:
            b_(f"v_mov_b32 v5, {cskip[1]}-{cskip[0]}\nv_cmp_le_u32 vcc, {cskip[0]}-{KN}, v4\nv_cndmask_b32 v5, 0, v5, vcc\nv_add_u32 v4, v4, v5")
        b_(f"v_min_u32 v4, {'L_end' if cskip else 'L_codeend'}-{KN}-512, v4\nv_mov_b32 v5, s37\nv_add_co_u32 v4, vcc, s36, v4\ns_nop 1\nv_addc_co_u32 v5, vcc, 0, v5, vcc")
        b_("s_mov_b64 exec, 3")
        y = I("global_load_dword a192, v[4:5], off", "vld", rd=["v4", "v5"]); (late0 if fastart else pro).add(y)
        b_("s_mov_b64 exec, -1")
    a(f"v_lshlrev_b32 v{vDma}, 4, v0")
    if pxor == 16:
        a(f"s_and_b32 s{sT0}, s2, 7\ns_lshr_b32 s{sT1}, s2, 3")
    else:
        a(f"s_and_b32 s{sX}, s2, 0xee\ns_bfe_u32 s3, s2, 0x10004\ns_or_b32 s{sX}, s{sX}, s3\ns_and_b32 s3, s2, 1\ns_lshl_b32 s3, s3, 4\ns_or_b32 s{sX}, s{sX}, s3")
        a(f"s_and_b32 s{sT0}, s{sX}, 7\ns_lshr_b32 s{sT1}, s{sX}, 3")
    a(f"s_lshl_b32 s{sT0}, s{sT0}, 3\ns_lshr_b32 s3, s{sT1}, 2\ns_add_u32 s{sT0}, s{sT0}, s3")
    a(f"s_bfe_u32 s{sKh}, s{sT1}, 0x10001")
    a(f"s_and_b32 s{sT1}, s{sT1}, 1\ns_lshl_b32 s3, s{sT0}, 1\ns_add_u32 s{sT1}, s{sT1}, s3")
    a(f"s_lshl_b32 s{sT1}, s{sT1}, 16")
    a(f"s_lshl_b32 s{sT0}, s{sT0}, 19\ns_lshl_b32 s3, s{sKh}, 18\ns_add_u32 s{sT0}, s{sT0}, s3")
    a(f"s_lshl_b32 s{sOK}, s{sWv}, 12\ns_mul_i32 s{sMK}, s{sWv}, {4*RS}")
    a(f"s_mov_b32 s{sK+2}, {NB*16384}\ns_mov_b32 s{sK+3}, 0x20000\ns_mov_b32 m0, s{sMK}")
    a(f"s_mov_b32 s{sX}, {KB[3]}\ns_cmp_eq_u32 s{sWv}, 1\ns_cselect_b32 s{sX}, {VB[2]}, s{sX}")
    a(f"s_cmp_eq_u32 s{sWv}, 2\ns_cselect_b32 s{sX}, {VB[3]}, s{sX}\ns_cmp_eq_u32 s{sWv}, 3\ns_cselect_b32 s{sX}, {SPARE}, s{sX}")
    a(f"s_lshl_b32 s{sOo}, s{sWv}, 14\ns_mov_b32 s{sQ+2}, 65536\ns_mov_b32 s{sQ+3}, 0x20000")
    a("v_lshrrev_b32 v6, 3, v0\nv_and_b32 v7, 6, v6\nv_xor_b32 v7, v7, v0\nv_and_b32 v7, 7, v7\nv_lshlrev_b32 v7, 4, v7\nv_lshl_add_u32 v6, v6, 9, v7\nv_xor_b32 v7, 0x200, v6")
    mb0 = Seg("x"); c_ = mb0.a if fastart else a
    c_(f"s_lshl_b32 s{sMb}, s2, 2\ns_add_u32 s{sMb}, s{sMb}, s{sWv}\ns_lshl_b32 s{sMb}, s{sMb}, 11\ns_add_u32 s{sMb}, s{sMb}, {XBASE}")
    c_(f"s_mov_b32 s{sW+2}, {3*XBASE}\ns_mov_b32 s{sW+3}, 0x20000\nv_lshlrev_b32 v3, 7, v0")
    b_(f"s_lshl_b32 s{sOV}, s{sWv}, 12\ns_mul_i32 s{sMV}, s{sWv}, {4*RS}\ns_add_u32 s{sMV}, s{sMV}, {VB[0]}")
    b_(f"s_mov_b32 s{sDK2}, {2*KS}\ns_mov_b32 s{sDV2}, {2*VS}\ns_mov_b32 s{sDK}, {2*KS}\ns_mov_b32 s{sDV}, {2*VS}")
    b_(f"s_getreg_b32 s{sXcc}, hwreg(HW_REG_XCC_ID)\ns_and_b32 s{sXcc}, s{sXcc}, 15")
    a("s_waitcnt lgkmcnt(0)")
    fstamp(pro)
    def epi_addr(a):
        a(f"v_and_b32 v1, 15, v0\nv_lshrrev_b32 v4, 4, v0\ns_mul_i32 s3, s{sWv}, 8704")
        a(f"v_mul_u32_u24 v5, 272, v1\nv_lshlrev_b32 v21, 3, v4\nv_add3_u32 v{vEw}, v5, v21, s3")
        a(f"v_lshlrev_b32 v21, 4, v1\nv_mul_u32_u24 v5, 272, v4\nv_add3_u32 v{vEr}, v5, v21, s3")
        a(f"v_lshl_add_u32 v{vOg}, v4, 10, v21\nv_mov_b32 v{vSt}, " + ("v21" if st256 else f"v{vDma}"))
        if q4:
            a(f"v_lshrrev_b32 v5, 3, v0\nv_and_b32 v21, 7, v0\nv_lshlrev_b32 v21, 4, v21\nv_mul_u32_u24 v{vEr}, 272, v5\nv_add3_u32 v{vEr}, v{vEr}, v21, s3\nv_lshl_add_u32 v21, v5, 10, v21")
    def setup():
        a(f"s_lshl_b32 s3, s{sKh}, 8\nv_xor_b32 v{vDmaV}, s3, v{vDma}")
        a(f"v_and_b32 v1, 15, v0\nv_lshrrev_b32 v4, 4, v0")
        a(f"v_mul_u32_u24 v2, {RS}, v1\nv_lshl_add_u32 v{vKa}, v4, 4, v2")
        a(f"v_lshrrev_b32 v2, 2, v0\nv_mul_u32_u24 v2, {RS}, v2\nv_and_b32 v3, 3, v0\nv_lshl_add_u32 v2, v3, 3, v2\nv_add_u32 v{vVa}, {VB[0]}, v2")
        a(f"v_lshlrev_b32 v3, 1, v3\nv_lshrrev_b32 v2, 2, v1\nv_and_b32 v5, 1, v2\nv_xor_b32 v5, v5, v3\nv_lshlrev_b32 v5, 7, v5\nv_lshl_add_u32 v5, v2, 10, v5")
        a(f"v_xor_b32 v3, v3, v4\nv_lshl_add_u32 v5, v3, 4, v5")
        a(f"v_add_u32 v28, s{sX}, v5\nv_xor_b32 v3, 128, v5\nv_add_u32 v29, s{sX}, v3\nv_xor_b32 v3, 64, v5\nv_add_u32 v30, s{sX}, v3\nv_xor_b32 v3, 0xc0, v5\nv_add_u32 v31, s{sX}, v3")
        epi_addr(a)
        a(f"s_mov_b32 s{sC}, {f2u(C_SCALE):#x}")
        a(f"v_mov_b32 v{vL}, 0\nv_mov_b32 v{vL+1}, 0\nv_mov_b32 v2, s{sC}")
        for r in range(zsplit[0]): a(f"v_mov_b32 v{vO+r}, 0")
    early = [ndef]
    def dmaK(n, j): return [parse(f"s_add_u32 m0, s{sMK}, {(n%2)*KS+32*j}"),
                            parse(f"buffer_load_dwordx4 v{vDma}, s[{sK}:{sK+3}], s{sOK} offen offset:{1024*j}{'' if n < early[0] else polK} lds")]
    def dmaV(n, j): return [parse(f"s_add_u32 m0, s{sMV}, {(2 if dfr and n == NB-1 else n%2)*VS+32*j}"),
                            parse(f"buffer_load_dwordx4 v{vDmaV}, s[{sV}:{sV+3}], s{sOV} offen offset:{1024*j}{'' if n < early[0] - 3 else polV} lds")]
    def advK(n):
        L = [parse(f"s_add_u32 s{sOK}, s{sOK}, 16384")]
        if n % 2 == 1: L += [parse(f"s_add_u32 s{sMK}, s{sMK}, s{sDK2}"), parse(f"s_sub_u32 s{sDK2}, 0, s{sDK2}")]
        return L
    def advV(n):
        L = [parse(f"s_add_u32 s{sOV}, s{sOV}, 16384")]
        if n % 2 == 1: L += [parse(f"s_add_u32 s{sMV}, s{sMV}, s{sDV2}"), parse(f"s_sub_u32 s{sDV2}, 0, s{sDV2}")]
        return L
    def block(seg, f, adv, n):
        for j in range(4):
            x = f(n, j); seg.add(x[0]); seg.a("s_nop 0"); seg.add(x[1])
        for x in adv(n): seg.add(x)
    def Pbuf(n): return (112, 120)[n-(NB-2)] if dfr and n >= NB-2 else vP[n%2]
    def kread(n, j): return parse(f"ds_read_b128 a[{aKF+4*j}:{aKF+4*j+3}], v{vKa} offset:{(n%2)*KS+64*(j//2)+512*(j%2)}")
    def vread(n, dt, kt, slot=None, va=vVa):
        r = aVF + 4*(dt if slot is None else slot) + 2*kt
        return parse(f"ds_read_b64_tr_b16 a[{r}:{r+1}], v{va} offset:{(2 if dfr and n == NB-1 else n%2)*VS+512*kt+32*dt}")
    def qk(n, g, first0=False):
        j, qt = g//2, g % 2; t, kt = j//2, j % 2
        S = vS[n%2] + 8*qt + 4*kt; f = aKF+4*j; qf = aQ + 4*(2*t+qt)
        c = f"v[{S}:{S+3}]" if t else ("0" if first0 else f"v[{vCn+4*qt}:{vCn+4*qt+3}]")
        i = parse(f"v_mfma_f32_16x16x32_bf16 v[{S}:{S+3}], a[{f}:{f+3}], a[{qf}:{qf+3}], {c}")
        if g % (2*wgrp) == 0: i.extra = set(R("a", f, 4*wgrp))
        return i
    def pv(n, dt, qt, grp=None, slot=None):
        f = aVF+4*(dt if slot is None else slot); o = vO+8*dt+4*qt; p = Pbuf(n)+4*qt
        i = parse(f"v_mfma_f32_16x16x32_bf16 v[{o}:{o+3}], a[{f}:{f+3}], v[{p}:{p+3}], v[{o}:{o+3}]")
        for d2 in (grp or ()): i.extra |= set(R("a", aVF+4*d2, 4))
        return i
    def pvlist(n, dts, slots=None):
        L = []; slots = slots or dts
        for k, dt in enumerate(dts):
            L.append(pv(n, dt, 0, slots[k:k+wgrp] if k % wgrp == 0 else None, slots[k])); L.append(pv(n, dt, 1, None, slots[k]))
        return L
    def checkops():
        return [parse(f"v_max_f32 v{vMx}, v{vLb}, v{vLb+1}"), parse(f"v_cmp_lt_f32 vcc, {f2u(2.0**T):#x}, v{vMx}")]
    def mergeops(): return [parse(f"v_add_f32 v{vL+qt}, v{vL+qt}, v{vLb+qt}") for qt in range(2)]
    def softmax_q(n, merge=True, pipe=False):
        S = vS[n%2]; P = Pbuf(n)
        E = lambda r: parse(f"v_exp_f32 v{vPf+r}, v{S+r}")
        def A(r):
            if r % 8 == 1: return parse(f"v_add_f32 v{vLb+r//8}, v{vPf+r-1}, v{vPf+r}")
            return parse(f"v_add_f32 v{vLb+r//8}, v{vLb+r//8}, v{vPf+r}")
        Cv = lambda p: parse(f"v_cvt_pk_bf16_f32 v{P+p}, v{vPf+2*p}, v{vPf+2*p+1}")
        q = []
        if pipe:
            for r in range(17):
                if r < 16: q.append(E(r))
                if r >= 1 and (r-1) % 8: q.append(A(r-1))
                if r >= 2 and r % 2 == 0: q.append(Cv(r//2-1))
            return q
        mg = mergeops() if merge else []
        for r in range(16):
            q.append(E(r))
            if r % 8 == 0:
                if mg: q.append(mg.pop(0))
            else: q.append(A(r))
            if r % 2 == 1: q.append(Cv(r//2))
        return q
    def spread(ops, g0, g1):
        tot = sum(x.cost for x in ops); c = 0; out = []
        for x in ops:
            out.append((x, g0 + (g1-g0)*c/max(tot-ops[-1].cost, 1), g0)); c += x.cost
        return out
    def post(x): x.tag = "post"; return x
    def schedule(seg, mf, streams, sca, label="", cap=2, lastempty=False):
        n = len(mf); streams = [list(s) for s in streams if s]
        nm = n
        if lastempty: n -= 1
        for g in range(nm):
            seg.add(mf[g])
            s_ = sca.get(g, [])
            pre = [x for x in s_ if x.tag != "post"]; pst = [x for x in s_ if x.tag == "post"]
            wsh = 1 if (g+1 < nm and mf[g+1].extra) else 0
            free = cap - max(0, len(pre)+wsh-1) - len([x for x in pst if x.kind != "label"])
            mem = []; val = []
            while True:
                cands = [s for s in streams if s and s[0][2] <= g]
                if val: cands = [s for s in cands if s[0][0].kind not in ("dsr","dsw","dma","vst","vld")] + [s for s in cands if s[0][0].kind in ("dsr","dsw","dma","vst","vld")]
                cands.sort(key=lambda s: s[0][1])
                pick = None
                for s in cands:
                    x, tg, _ = s[0]
                    if g < n-1 and tg > g + 1.0 and (mem or val): continue
                    if g < n-1 and tg > g + 2.0: continue
                    if val and val[-1].kind == "trans" and (x.rd & val[-1].wr) and g < n-1: continue
                    if x.cost <= free or tg <= g - late or g == n-1: pick = s; break
                if pick is None: break
                x = pick.pop(0)[0]; free -= x.cost
                (mem if x.kind in ("dsr","dsw","dma","vld") else val).append(x)
            row = pre + mem + val + pst
            for x in row: seg.add(x)
            if verbose: print(f"; {label} gap{g}: " + "".join({"dsr":"t","dma":"d","trans":"e","valu":"v","salu":"s","wait":"w","barrier":"B","vst":"S"}.get(x.kind, "?") for x in row))
        assert not any(streams)
    def addf(d, g, *xs): d.setdefault(g, []).extend(xs)
    def rowmax(seg, S, zero):
        for qt, d, t in ((0, 1, 6), (1, 4, 7)):
            b = S + 8*qt
            seg.a(f"v_max3_f32 v{d}, v{b}, v{b+1}, v{b+2}\nv_max3_f32 v{d}, v{d}, v{b+3}, v{b+4}\nv_max3_f32 v{d}, v{d}, v{b+5}, v{b+6}")
            seg.a(f"v_max3_f32 v{d}, v{d}, v{b+7}, 0" if zero else f"v_max_f32 v{d}, v{d}, v{b+7}")
        seg.a("v_mov_b32 v6, v1\nv_mov_b32 v7, v4\nv_permlane16_swap_b32 v6, v1\nv_permlane16_swap_b32 v7, v4\nv_max_f32 v1, v1, v6\nv_max_f32 v4, v4, v7")
        seg.a("v_mov_b32 v6, v1\nv_mov_b32 v7, v4\nv_permlane32_swap_b32 v6, v1\nv_permlane32_swap_b32 v7, v4\nv_max_f32 v1, v1, v6\nv_max_f32 v4, v4, v7")
    NV0 = 4 if tpl else 3
    NK0 = 8 if tpl else 5 if ilv else 6
    def nosh(g):
        while g % (2*wgrp) == 2*wgrp-1: g += 1
        return g
    def iteration(seg, i, ret, do_pv=True, loopend=False, pref=False):
        sca = {}; dm = []
        mf = [qk(i+2, g) for g in range(32)]
        tK = [parse(f"v_add_u32 v{vKa}, s{sDK}, v{vKa}"), parse(f"s_sub_u32 s{sDK}, 0, s{sDK}")]
        tV = [parse(f"v_add_u32 v{vVa}, s{sDV}, v{vVa}"), parse(f"s_sub_u32 s{sDV}, 0, s{sDV}")]
        def place(g, xs):
            for x in xs:
                g = nosh(g)
                while g in sca: g = nosh(g+1)
                addf(sca, g, x); g += 1
            return g
        if do_pv:
            mf += pvlist(i, list(range(16)))
            mf[63].extra = set(R("a", aKF, 4*wgrp))
            mf[0].extra = set()
            dp = dmagaps
            nvm = 12
            if pref and pref12 and prefmode == 1: nvm = 13 if i == NB-3 else 17
            if pref and pref13 and prefmode == 1: nvm = 12 if i == NB-3 else 8
            addf(sca, bg, parse(f"s_waitcnt vmcnt({nvm})"), parse("s_barrier"))
            if loopend:
                addf(sca, 60, parse(f"s_sub_u32 s{sCnt}, s{sCnt}, 1"))
                if ilv: addf(sca, 63, parse(f"s_cmp_lg_u32 s{sCnt}, 0"))
                else: addf(sca, 61, parse(f"s_cmp_lg_u32 s{sCnt}, 0"))
            last = i == NB-3
            for k in range(1, 8):
                if pref and k >= 4 and prefmode == 1:
                    if pref12 or pref13:
                        kks = [] if last != pref13 else [(2*(k-4), dp[k]-4), (2*(k-4)+1, dp[k])]
                    else: kks = [(4*(i % 2) + k - 4, dp[k])]
                    for kk, gg in kks:
                        y = parse(f"buffer_load_dwordx4 a[192:195], v{vOg}, s[{sO}:{sO+3}], s{sT0} offen offset:{512*(kk%2)}{ppol}"); y.wr = set()
                        if kk % 2 == 1: addf(sca, gg+1, parse(f"s_add_u32 s{sT0}, s{sT0}, 4096"))
                        dm.append((y, gg-3, gg))
                    if pref12 and not last and k == 7:
                        y = parse(f"buffer_load_dwordx4 a[192:195], v{vSt}, s[{sW}:{sW+3}], s{sMb} offen offset:256"); y.wr = set()
                        dm.append((y, dp[k]-1, dp[k]+2))
                    continue
                x = dmaV(i+2, k) if k < 4 else dmaK(i+5, k-4)
                addf(sca, dp[k]-1, x[0]); dm.append((x[1], dp[k]-3, dp[k]))
            if last:
                if not (pref12 and prefmode == 1):
                    y = parse(f"buffer_load_dwordx4 a[192:195], v{vSt}, s[{sW}:{sW+3}], s{sMb} offen offset:256"); y.wr = set()
                    dm.append((y, dp[0]-3, dp[0]))
            else:
                x = dmaV(i+3, 0); addf(sca, dp[0]-1, x[0]); dm.append((x[1], dp[0]-3, dp[0]))
            if not last: assert place(dp[3]+1, advV(i+2)) < dp[0]
            if not (pref and prefmode == 1): assert place(dp[7]+1, advK(i+5)) <= 60
            r1 = [kread(i+2, j) for j in range(NK0, 16)] + [vread(i, dt, kt) for dt in range(16) for kt in range(2)]
            nxt = [vread(i+1, dt, kt) for dt in range(8, 8+NV0) for kt in range(2)] if last else [kread(i+3, j) for j in range(NK0)]
            if last: mf[63].extra = set(R("a", aVF+32, 4*wgrp))
            rd = spread(r1, 0, bg-1) + [(y, t, bg+(2 if last else 1)) for (y, t, _) in spread(nxt, bg+1, 61)]
            rdv = []
            if ilv:
                lead = 64 - (bg+1)
                rd = [(kread(i+2, j), 2*j - lead, 0) for j in range(NK0, 16)]
                k_end = 30 - lead
                nslow = int(k_end * ilv[0])
                vr = [vread(i, dt, kt) for dt in range(16) for kt in range(2)]
                rdv = spread(vr[:nslow], 1, k_end) + [(y, t, 0) for (y, t, _) in spread(vr[nslow:], k_end+1, ilv[1])]
                if last: rdv += [(y, t, bg+2) for (y, t, _) in spread(nxt, ilv[1]+1.5, 62)]
                else: rd += [(y, bg+1+2*j, bg+1) for j, y in enumerate(nxt)]
            tg = []
            if i % 2 == 1:
                if ilv: tg = [(tK[0], 26, 26), (tV[0], ilv[1], ilv[1]+1)]; place(29, [tK[1]]); addf(sca, 62, post(tV[1]))
                else: tg = [(tK[0], 16, 16), (tV[0], bg-1, bg+1)]; place(21, [tK[1]]); assert place(bg+4, [tV[1]]) <= 60
            n0 = len(seg.ins)
            schedule(seg, mf, [dm, rd, rdv, tg, spread(softmax_q(i+1) + checkops(), 0, smend)], sca, label=f"it{i}", lastempty=True)
            tx = [x.text for x in seg.ins[n0:]]
            if i % 2 == 1:
                assert tx.index(kread(i+2, 15).text) < tx.index(tK[0].text) < tx.index(tK[1].text) < tx.index(nxt[0].text)
                assert tx.index(vread(i, 15, 1).text) < tx.index(tV[0].text) < tx.index(tV[1].text)
                if last: assert tx.index(tV[0].text) < tx.index(nxt[0].text)
            assert tx.index("s_barrier") < len(tx) - 1 - tx[::-1].index(nxt[0].text)
            seg.a(f"s_cbranch_vccnz L_rare{ret}\nL_back{ret}:")
        else:
            for k, g in enumerate((1, 5, 9, 13, 17, 21, 25, 29)):
                x = dmaV(i+2, k) if k < 4 else dmaK(i+5, k-4)
                addf(sca, g-1, x[0]); dm.append((x[1], g-3, g))
            place(14, advV(i+2)); place(30, advK(i+5))
            rd = spread([kread(i+2, j) for j in range(NK0, 16)], 0, 16)
            schedule(seg, mf, [dm, rd, spread(softmax_q(i+1, merge=False), 0, 31)], sca, label=f"it{i}")
            seg.add(tK[0]); seg.add(tK[1])
            seg.a("s_waitcnt vmcnt(12)\ns_barrier")
            for j in range(NK0): seg.add(kread(i+3, j))
            x = dmaV(i+3, 0); seg.add(x[0]); seg.a(f"buffer_load_dword v2, v3, s[{sW}:{sW+3}], s{sPw} offen offset:128 sc1"); seg.add(x[1])
            if otouch:
                y = parse(f"buffer_load_dword a192, v3, s[{sO}:{sO+3}], s{sOo} offen"); y.wr = set(); seg.add(y)
            seg.a(f"s_waitcnt lgkmcnt({NK0-wgrp})")
    warm = Seg("warm")
    sThr, sThr2 = 60, 61
    nV0 = len([g for g in tD[:4] if g > tbg])
    def iteration2(seg, i, ret, loopend=False, pref=False, zsites=False, serial=None, inl=None, xk=(), kl=5):
        last = i == NB-3; bg_ = tbg
        mf = [qk(i+2, g) for g in range(32)] + pvlist(i, list(range(16)))
        mf[63].extra = set(R("a", aVF+32 if last else aKF, 4*wgrp)); mf[0].extra = set()
        sh = {g: [] for g in range(64)}; mem = {g: [] for g in range(64)}; val = {g: [] for g in range(64)}
        resv = {g for g in range(63) if mf[g+1].extra}
        def place(g, xs):
            for x in xs:
                while g in resv or sh[g] or g == bg_: g += 1
                assert g < 63
                sh[g].append(x); g += 1
            return g
        nvm = 12
        if pref and prefmode == 1: nvm = 12 if last else 8
        if pref and prefw is not None: nvm = 4 if last else 8
        if serial is not None and i == prefw: nvm = 21
        if kl == 4: nvm = 8
        if otw is not None and i == otw and seg is warm: nvm += 1
        assert bg_-1 not in resv or True
        sh[bg_ if (bg_-1) in resv else bg_-1].append(parse(f"s_waitcnt vmcnt({nvm})")); sh[bg_].append(parse("s_barrier"))
        if zsites:
            for n_, zg in enumerate(tzs):
                assert zg not in resv and zg-1 not in resv and zg not in tD and zg-1 not in tD
                sh[zg-1].append(parse(f"s_cmp_eq_u32 s{sCnt}, {NTRIP-1}")); sh[zg] += [parse(f"s_cbranch_scc1 L_zero{n_}"), parse(f"L_zback{n_}:")]
        nxt = [vread(i+1, dt, kt) for dt in range(8, 8+NV0) for kt in range(2)] if last else [kread(i+3, j) for j in range(NK0)]
        reads = [kread(i+2, j) for j in range(NK0, 16)] + [vread(i, dt, kt) for dt in range(16) for kt in range(2)] + nxt
        slots = []
        for g in range(63):
            if g not in tE and g != bg_: slots += [g, g] if g in tdbl else [g]
        assert len(slots) == len(reads), (len(slots), len(reads))
        for g, x in zip(slots, reads): mem[g].append(x)
        gpos = {x.text: g for g, x in zip(slots[:40], reads[:40])}
        assert slots[40] > bg_
        def putv(g, y): mem[g].append(y)
        for k in range(8):
            g = tD[k]; assert g not in resv and g not in tE and not sh[g]
            if k < nV0:
                assert g > bg_
                if last and (prefw is not None or k > 0): pass
                elif last:
                    y = parse(f"buffer_load_dwordx4 a[192:195], v{vSt}, s[{sW}:{sW+3}], s{sMb} offen offset:256"); y.wr = set(); putv(g, y)
                else: x = dmaV(i+3, k); sh[g].append(x[0]); putv(g, x[1])
            elif k >= 4 and pref and prefmode == 1:
                pass
            else:
                x = dmaV(i+2, k) if k < 4 else dmaK(i+kl, k-4); sh[g].append(x[0]); putv(g, x[1])
        if otw is not None and i == otw and seg is warm:
            y = parse(f"buffer_load_dword a192, v3, s[{sO}:{sO+3}], s{sX} offen"); y.wr = set(); putv(3, y)
        g = 1
        for n in xk:
            for j in range(4):
                while g in resv or sh[g] or g in tD or len(mem[g]) != 1: g += 1
                x = dmaK(n, j); sh[g].append(x[0]); putv(g, x[1]); g += 1
            g = place(g, advK(n))
        assert g <= tD[4]
        thr = f"s{sThr}"
        if loopend:
            g = 56 if nV0 == 1 else 36
            while g in resv or sh[g] or g+1 in resv or sh[g+1]: g += 1
            sh[g].append(parse(f"s_sub_u32 s{sCnt}, s{sCnt}, 1")); sh[g+1].append(parse(f"s_cselect_b32 s{sThr2}, -1.0, s{sThr}")); thr = f"s{sThr2}"
        if not last: assert place(tD[3]+1 if nV0 < 4 else 1, advV(i+2)) <= tD[0]
        if not (pref and prefmode == 1): assert place(tD[7]+1, advK(i+kl)) <= 63
        q = softmax_q(i+1) + [parse(f"v_max_f32 v{vMx}, v{vLb}, v{vLb+1}"), parse(f"v_cmp_lt_f32 vcc, {thr}, v{vMx}")]
        blk = []
        if serial is not None:
            blk = mergeops() + softmax_q(i+1, merge=False, pipe=True) + q[-2:]; q = []
        ex = [x for x in q if x.kind == "trans"]; ot = []; ne = 0
        for x in q:
            if x.kind == "trans": ne += 1
            else: ot.append((x, tE[ne-1]+1))
        for g, x in zip(tE, ex): val[g].append(x)
        if i % 2 == 1:
            tK = [parse(f"v_add_u32 v{vKa}, s{sDK}, v{vKa}"), parse(f"s_sub_u32 s{sDK}, 0, s{sDK}")]
            tV = [parse(f"v_add_u32 v{vVa}, s{sDV}, v{vVa}"), parse(f"s_sub_u32 s{sDV}, 0, s{sDV}")]
            gk = gpos[kread(i+2, 15).text]; gv = slots[39]
            for t, g0 in ((tK, gk), (tV, gv)):
                g = g0
                while (g in tE or g == bg_ or len(mem[g]) + len(val[g]) >= 2) and not (t is tV and last): g += 1
                if t is tV and last: assert g < slots[40]
                val[g].append(t[0]); place(g+1, [t[1]])
        g = 0
        for x, e0 in ot:
            g = max(g, e0)
            while g in tE or g == bg_ or len(mem[g]) + len(val[g]) >= 2: g += 1
            assert g < 62, (i, x.text)
            val[g].append(x); g += 1
        if serial is not None and i == prefw:
            cand = [g for g in range(0, tD[3]) if len(mem[g]) + len(val[g]) < 2][:9]
            assert len(cand) == 9
            for kk, g in enumerate(cand):
                if kk < 8: y = parse(f"buffer_load_dwordx4 a[192:195], v{vOg}, s[{sO}:{sO+3}], s{sT0} offen offset:{512*(kk%2)}{ppol}")
                else: y = parse(f"buffer_load_dwordx4 a[192:195], v{vSt}, s[{sW}:{sW+3}], s{sMb} offen offset:256")
                y.wr = set(); putv(g, y)
                if kk % 2 == 1 and kk < 7: val[g].append(parse(f"s_add_u32 s{sT0}, s{sT0}, 4096"))
        if last and pref and prefmode == 1 and prefw is None:
            cand = [g for g in range(tD[3]+1, bg_-1) if g not in tE and len(mem[g]) + len(val[g]) < 2]
            extra = [g for g in range(tD[3]+1, bg_-1) if g not in tE and g not in cand and g not in tdbl]
            while len(cand) < 8: cand.append(extra.pop(len(extra)//2))
            cand.sort(); cand = cand[:8]
            for kk, g in enumerate(cand):
                y = parse(f"buffer_load_dwordx4 a[192:195], v{vOg}, s[{sO}:{sO+3}], s{sT0} offen offset:{512*(kk%2)}{ppol}"); y.wr = set(); putv(g, y)
                if kk % 2 == 1 and kk < 7: val[g].append(parse(f"s_add_u32 s{sT0}, s{sT0}, 4096"))
        for g in range(64):
            seg.add(mf[g])
            row = sh[g] + [x for x in mem[g] if x.kind == "dsr"] + [x for x in mem[g] if x.kind != "dsr"] + val[g] + (blk if g == serial else []) + ((inl or {}).get(g) or [])
            for x in row: seg.add(x)
            if verbose: print(f"; it{i} gap{g}: " + ("w" if g in resv else "") + "".join({"dsr":"t","dma":"d","vld":"d","trans":"e","valu":"v","salu":"s","wait":"W","barrier":"B","branch":"x","label":""}.get(x.kind, "?") for x in row))
        if loopend:
            seg.a(f"s_cbranch_vccz L_loop\nv_cmp_lt_f32 vcc, s{sThr}, v{vMx}\ns_cmp_lt_i32 s{sCnt}, 0\ns_cbranch_vccnz L_rare{ret}\nL_back{ret}:\ns_cbranch_scc0 L_loop")
        else: seg.a(f"s_cbranch_vccnz L_rare{ret}\nL_back{ret}:")
    def iteration3(seg, i, ret):
        last = i == NB-3; snd = list(range(8, 16)); bg_ = dbg_
        mf = [qk(i+2, g) for g in range(32)] + pvlist(i, snd)
        mf[47].extra = set(R("a", aVF+32 if last else aKF, 4*wgrp)); mf[0].extra = set()
        sca = {}; dm = []
        if not last:
            for k in range(nV0, 8):
                g = 2*k - 1 + (1 if k >= 4 else 0)
                x = dmaV(i+2 + k//4, k % 4); addf(sca, g-1, x[0]); dm.append((x[1], g-3, g))
            addf(sca, 6, *advV(i+2))
        late_dm = []
        if i == dpf or n12:
            for kk in (range(n12, 9) if last else range(n12) if n12 else range(9)):
                if kk < 8: y = parse(f"buffer_load_dwordx4 a[192:195], v{vOg}, s[{sO}:{sO+3}], s{sT0} offen offset:{512*(kk%2)}{ppol}")
                else: y = parse(f"buffer_load_dwordx4 a[192:195], v{vSt}, s[{sW}:{sW+3}], s{sMb} offen offset:256")
                g = (1 + 3*(kk-n12)) if last else (bg_ + 1 + (12*kk)//n12) if n12 else (16 + 2*kk); y.wr = set()
                (late_dm if n12 and not last else dm).append((y, g-3, g))
                if kk % 2 == 1 and kk < 7: (late_dm if n12 and not last else dm).append((parse(f"s_add_u32 s{sT0}, s{sT0}, 4096"), g-3, g))
        addf(sca, bg_, parse(f"s_waitcnt vmcnt({(9 if dpf > 0 else 0) if last else 21 if i == dpf else 12})"), parse("s_barrier"))
        nxt = [vread(i+1, dt, kt) for dt in range(8, 8+NV0) for kt in range(2)] if last else [kread(i+3, j) for j in range(NK0)]
        rd = spread([kread(i+2, j) for j in range(NK0, 16)] + [vread(i, dt, kt) for dt in snd for kt in range(2)], 0, bg_-1)
        if last: rd += [(y, max(bg_+4, 34+2*(k//2)) + k*0.6, max(bg_+4, 34+2*(k//2))) for k, y in enumerate(nxt)]
        else: rd += [(y, t, bg_+1) for (y, t, _) in spread(nxt, bg_+1, 45)]
        tg = []
        if last:
            tV = [parse(f"v_add_u32 v{vVa}, s{sDV}, v{vVa}"), parse(f"s_sub_u32 s{sDV}, 0, s{sDV}")]
            tg = [(tV[0], bg_, bg_+2)]; addf(sca, bg_+5, tV[1])
        q = softmax_q(i+1) + [parse(f"v_max_f32 v{vMx}, v{vLb}, v{vLb+1}"), parse(f"v_cmp_lt_f32 vcc, s{sThr}, v{vMx}")]
        n0 = len(seg.ins)
        schedule(seg, mf, [dm + late_dm, rd, tg, spread(q, 0, 44)], sca, label=f"it{i}", lastempty=True)
        tx = [x.text for x in seg.ins[n0:]]
        if last: assert tx.index(vread(i, 15, 1).text) < tx.index(tV[0].text) < tx.index(nxt[0].text) and tx.index(tV[0].text) < tx.index(tV[1].text)
        assert tx.index("s_barrier") < len(tx) - 1 - tx[::-1].index(nxt[0].text)
        assert all(seg.ins.index(y[0]) < n0 + tx.index("s_barrier") for y in dm)
        seg.a(f"s_cbranch_vccnz L_rare{ret}\nL_back{ret}:")
    vm = []
    def vmwait(name, extra=""):
        k = max(j for j, x in enumerate(vm) if x == name)
        a(f"s_waitcnt vmcnt({len(vm)-1-k}){extra}")
    fill = [f"s_add_u32 s{sQ}, s4, s{sT1}\ns_addc_u32 s{sQ+1}, s5, 0", f"s_mov_b32 s{sW}, s14\ns_mov_b32 s{sW+1}, s15",
            f"s_add_u32 s{sV}, s8, s{sT0}\ns_addc_u32 s{sV+1}, s9, 0", f"s_mov_b32 s{sV+2}, {NB*16384}\ns_mov_b32 s{sV+3}, 0x20000",
            f"s_add_u32 s{sO}, s10, s{sT1}\ns_addc_u32 s{sO+1}, s11, 0", f"s_mov_b32 s{sO+2}, 65536\ns_mov_b32 s{sO+3}, 0x20000",
            f"s_xor_b32 s{sPw}, s{sMb}, {pxor*8192}"]
    a(f"s_add_u32 s{sK}, s6, s{sT0}\ns_addc_u32 s{sK+1}, s7, 0")
    def publish(t0, t1):
        a(f"v_readlane_b32 s{t0}, v8, 0\nv_readlane_b32 s{t1}, v8, 1\nv_mov_b32 v9, 0")
        a(f"s_and_b32 s{t1}, s{t1}, 0xffffff00\ns_add_u32 s{t1}, s{t1}, 0x100\ns_or_b32 s{t1}, s{t1}, s{sXcc}")
        a(f"s_xor_b32 s3, s{t1}, s{t0}\ns_cmp_lt_u32 s3, 0x100\ns_cselect_b32 s3, 0x100, 0\ns_add_u32 s{sCh}, s{t1}, s3\nv_mov_b32 v8, s{sCh}")
        a(f"buffer_store_dword v8, v9, s[{sW}:{sW+3}], s{sMb} offen offset:128 sc1")
    mbload = f"s_mov_b64 exec, 3\nbuffer_load_dword v8, v3, s[{sW}:{sW+3}], s{sMb} offen sc1\ns_mov_b64 exec, -1"
    if stag is not None:
        a(f"s_mov_b32 s{sW}, s14\ns_mov_b32 s{sW+1}, s15"); a(mbload); vm.append("mb")
        a(f"s_bitcmp1_b32 s2, {stag}\ns_cbranch_scc0 L_early\ns_waitcnt vmcnt(0)"); publish(36, 37); a("L_early:")
    def kvblock(f, adv, n, name, filler=None):
        for j in range(4):
            x = f(n, j)
            if not (name == "K0" and j == 0): pro.add(x[0]); (filler() if filler else a("s_nop 0"))
            pro.add(x[1]); vm.append(name)
        for x in adv(n): pro.add(x)
    def qdma(c, u):
        return [parse(f"s_add_u32 m0, s{sX}, {1024*(4*c+u)}"), parse(f"s_add_u32 s3, s{sOo}, {4096*u+128*c}"),
                parse(f"buffer_load_dwordx4 v{6+u%2}, s[{sQ}:{sQ+3}], s3 offen{polQ} lds")]
    def qblock(c):
        for u in range(4):
            for x in qdma(c, u): pro.add(x)
            vm.append(f"Q{c}")
    if ttouch:
        a("\n".join(fill)); fill = ["s_nop 0"]*7
        a("s_mov_b64 exec, 1")
        for srd, so in ((sK, sOK), (sQ, sOo), (sV, sOV), (sO, sOo))[:ttouch]:
            y = parse(f"buffer_load_dword a192, v{vDma}, s[{srd}:{srd+3}], s{so} offen{polK}"); y.wr = set(); pro.add(y); vm.append("tt")
        a("s_mov_b64 exec, -1")
    kvblock(dmaK, advK, 0, "K0", lambda: a(fill.pop(0)))
    if fastart:
        assert k1late and stag is None and not ttouch
        qblock(0)
        for x in mb0.ins: pro.add(x)
        a("\n".join(fill)); fill = []
        a(mbload); vm.append("mb")
        qblock(1)
        for x in late0.ins: pro.add(x)
        if cpf: vm.append("cpf")
        setup()
        qblock(2)
    else:
        if k1late:
            a("\n".join(fill)); fill = []
        else: kvblock(dmaK, advK, 1, "K1", lambda: a(fill.pop(0)))
        assert not fill
        if stag is None: a(mbload); vm.append("mb")
        qblock(0)
        if k1late: qblock(1)
        setup()
        qblock(2 if k1late else 1)
    fstamp(pro)
    vmwait("K0" if fastart else "mb" if stag is None else "K0" if k1late else "K1"); a("s_barrier")
    stamp(pro)
    def k01read(n, j):
        r = (aKF if n == 0 else aVF) + 4*j
        return parse(f"ds_read_b128 a[{r}:{r+3}], v{vKa} offset:{n*KS+64*(j//2)+512*(j%2)}")
    def kgrp(c): return [k01read(n, j) for j in range(4*c, 4*c+4) for n in range(1 if k1late else 2)]
    def qraw(f): return 96 + 16*((f//4) % 2) + 4*(f % 4)
    def qgrp(c): return [parse(f"ds_read_b128 v[{qraw(f)}:{qraw(f)+3}], v{28+2*((f//2)%2)+f%2} offset:{4096*c}") for f in range(4*c, 4*c+4)]
    def presc(r):
        x = 32 + 2*(r % 8); q = qraw(r//4) + r % 4
        return [parse(t) for t in (f"v_lshlrev_b32 v{x}, 16, v{q}", f"v_and_b32 v{x+1}, 0xffff0000, v{q}",
                f"v_pk_mul_f32 v[{x}:{x+1}], v[{x}:{x+1}], v[2:3] op_sel_hi:[1,0]",
                f"v_cvt_pk_bf16_f32 v{x}, v{x}, v{x+1}", f"v_accvgpr_write_b32 a{aQ+r}, v{x}")]
    def mgrp(c, blocks=(0, 1)):
        L = []
        for t in (2*c, 2*c+1):
            for kt in range(2):
                for n in blocks:
                    for qt in range(2):
                        S = vS[n] + 8*qt + 4*kt; f = (aKF if n == 0 else aVF) + 4*(2*t+kt); qf = aQ + 4*(2*t+qt)
                        L.append(parse(f"v_mfma_f32_16x16x32_bf16 v[{S}:{S+3}], a[{f}:{f+3}], a[{qf}:{qf+3}], " + (f"v[{S}:{S+3}]" if t else "0")))
        return L
    for x in kgrp(0): pro.add(x)
    if not k1late: qblock(2)
    if fastart: pass
    elif stag is None: publish(sT0, sT1); vm.append("pub")
    else:
        a(f"s_bitcmp1_b32 s2, {stag}\ns_cbranch_scc1 L_pubdone"); publish(sT0, sT1); a("L_pubdone:")
    a("v_mov_b32 v3, 0")
    items = [("Q3", lambda j: qdma(3, j), []), ("K2", lambda j: dmaK(2, j), advK(2)), ("V0", lambda j: dmaV(0, j), advV(0)),
             ("V1", lambda j: dmaV(1, j), advV(1)) if lazy < 2 else (None, None, []), (None, None, [])]
    if k1late: items = [items[0], ("K1", lambda j: dmaK(1, j), advK(1)), items[1], items[2]]
    zq = [parse(f"v_mov_b32 v{vO+r}, 0") for r in range(zsplit[0], zsplit[1])]
    for c in range(4 if p2 else 5):
        name, f_, adv = items[c]
        if c < 4:
            vmwait("mb" if fastart and c == 0 else f"Q{c}")
            if c in (0, 3): fstamp(pro)
            for x in qgrp(c): pro.add(x)
            if fastart and c == 0: publish(sT0, sT1); vm.append("pub")
            pq = [x for r in range(16*c, 16*c+16) for x in presc(r)]
        else: pq = zq
        kr = kgrp(c+1) if c < 3 else []
        if c == 0:
            for j in range(4):
                x = f_(j)
                for y in x[:-1]: pro.add(y)
                for y in kr[len(kr)//4*j:len(kr)//4*(j+1)]: pro.add(y)
                for _ in range(20): pro.add(pq.pop(0))
                pro.add(x[-1]); vm.append(name)
        else:
            sca = {}; dm = []; st = 2 if p2 else 4
            for j in range(4 if name else 0):
                x = f_(j); addf(sca, st*j, *x[:-1]); dm.append((x[-1], st*j-2, st*j+1)); vm.append(name)
            mf = mgrp(c-1, (0,)) if p2 else mgrp(c-1)
            schedule(pro, mf, [dm, spread(kr, 0, len(mf)-2) if kr else [], spread(pq, 0, len(mf)-1) if pq else []], sca, label=f"S{c}", cap=12 if p2 else 6)
        for x in adv: pro.add(x)
    fstamp(pro)
    NTRIP = ((NB-4)//2 if peel else (NB-2)//2) - (nser//2 if tpl else 0)
    scal = Seg("x")
    scal.a(f"s_mov_b32 s{sCnt}, {NTRIP-1 if tpl else NTRIP}")
    if tpl: a(f"s_mov_b32 s{sThr}, {f2u(2.0**T):#x}")
    scal.a(f"s_lshl_b32 s{sX}, s{sKh}, 8\ns_add_u32 s{sX}, s{sOo}, s{sX}\ns_xor_b32 s{sOo}, s{sX}, 256")
    if pcont: scal.a(f"s_lshl_b32 s{sT0}, s{sKh}, 15\ns_lshl_b32 s3, s{sWv}, 13\ns_add_u32 s{sT0}, s{sT0}, s3")
    else: scal.a(f"s_mov_b32 s{sT0}, s{sX}")
    post_ops = Seg("x"); post2 = Seg("x")
    rowmax(post_ops, vS[0], False)
    for qt, d in ((0, 1), (1, 4)):
        for r in range(8): post_ops.a(f"v_sub_f32 v{(vTmp if dsm0 else vS[0])+8*qt+r}, v{vS[0]+8*qt+r}, v{d}")
    if dsm0: post_ops.a(f"v_mov_b32 v{vLb}, 0\nv_mov_b32 v{vLb+1}, 0")
    else:
        for x in softmax_q(0, merge=False, pipe=True): post_ops.add(x)
    for qt, d in ((0, 1), (1, 4)):
        for r in range(4): post_ops.a(f"v_sub_f32 v{vCn+4*qt+r}, 0, v{d}")
        for r in range(8): post2.a(f"v_sub_f32 v{vS[1]+8*qt+r}, v{vS[1]+8*qt+r}, v{d}")
    tK = [parse(f"v_add_u32 v{vKa}, s{sDK}, v{vKa}"), parse(f"s_sub_u32 s{sDK}, 0, s{sDK}")]
    if p2:
        mf = mgrp(3, (0,)) + [x for c in range(4) for x in mgrp(c, (1,))]
        sca = {}; dm = []
        for k, x in enumerate(scal.ins): addf(sca, min(k, k1bar-1 if k1late else 3), x)
        k1r = []
        if k1late:
            kk_ = max(j for j, x in enumerate(vm) if x == "K1")
            addf(sca, k1bar, parse(f"s_waitcnt vmcnt({len(vm)-1-kk_}) lgkmcnt(0)"), parse("s_barrier"))
            k1r = [(k01read(1, j), k1bar + 1 + (j if j < 4 else 2*j-4), k1bar+1) for j in range(16)]
            for g_ in range(8, 40, 4): mf[g_].extra = set(R("a", aVF + 4*((g_-8)//2), 8))
            nd = 12 - 4*k4late; stp = 3 if nd == 12 else 4 if nd == 8 else 8
            for k in range(nd):
                x = dmaV(1, k) if k < 4 else dmaK(3 + (k-4)//4, k % 4); g = k1bar + 3 + stp*k
                addf(sca, g-1, x[0]); dm.append((x[1], g-3, g)); vm.append("V1" if k < 4 else "K3" if k < 8 else "K4")
            addf(sca, k1bar+3+stp*3+1, *advV(1))
            if nd >= 8: addf(sca, k1bar+3+stp*7+1, *advK(3))
            if nd == 12: addf(sca, 39, *[post(y) for y in advK(4)])
        elif not lazy:
            addf(sca, 4, parse("s_waitcnt lgkmcnt(0)"), parse("s_barrier"))
            for k in range(8):
                x = dmaK(3 + k//4, k % 4); g = 6 + 4*k
                addf(sca, g-1, x[0]); dm.append((x[1], g-3, g)); vm.append("K3" if k < 4 else "K4")
            addf(sca, 19, *advK(3)); addf(sca, 36, *advK(4))
        schedule(pro, mf, [dm, k1r, [(x, 0, 0) for x in zq], spread(post_ops.ins, 10, 39)], sca, label="S4", cap=5)
        stamp(pro)
        for x in tK: pro.add(x)
        vmwait("V0"); a("s_barrier")
        po = post2.ins
    else:
        for x in scal.ins + tK: pro.add(x)
        po = post_ops.ins + post2.ins
        if not mergeb:
            a("s_barrier")
            stamp(pro)
            def take(n):
                for _ in range(min(n, len(po))): pro.add(po.pop(0))
            kvblock(dmaK, advK, 3, "K3", lambda: take(12))
            kvblock(dmaK, advK, 4, "K4", lambda: take(12))
            take(1000)
            vmwait("V0"); a("s_barrier")
        else:
            stamp(pro)
            for x in po: pro.add(x)
            po = []
            vmwait("V0"); a("s_barrier")
    for j in range(NK0): pro.add(kread(2, j))
    if lazy >= 2: kvblock(dmaV, advV, 1, "V1")
    if mergeb or lazy:
        kvblock(dmaK, advK, 3, "K3"); kvblock(dmaK, advK, 4, "K4")
    if prefmode == 2:
        for kk in range(8):
            y = parse(f"buffer_load_dwordx4 a[192:195], v{vOg}, s[{sO}:{sO+3}], s{sT0} offen offset:{512*(kk%2)}{ppol}"); y.wr = set(); pro.add(y)
            if kk % 2: a(f"s_add_u32 s{sT0}, s{sT0}, 4096")
    x = dmaV(2, 0); pro.add(x[0]); a(f"buffer_load_dword v2, v3, s[{sW}:{sW+3}], s{sPw} offen offset:128 sc1"); pro.add(x[1])
    for k in range(1, nV0 if tpl else 1):
        x = dmaV(2, k); pro.add(x[0]); a("s_nop 0"); pro.add(x[1])
    for x in po: pro.add(x)
    for r in range(zsplit[1], zsplit[2]): a(f"v_mov_b32 v{vO+r}, 0")
    a(f"s_waitcnt lgkmcnt({NK0-wgrp})")
    fstamp(pro)
    stamp(pro)
    def sm0_block(zs):
        X, E_ = vTmp, vTmp+16
        for r in range(17):
            if r < 16: zs.a(f"v_exp_f32 v{E_+r}, v{X+r}")
            if r >= 1: zs.a(f"v_add_f32 v{vL+(r-1)//8}, v{vL+(r-1)//8}, v{E_+r-1}" if r < 16 else f"s_nop 0\nv_add_f32 v{vL+1}, v{vL+1}, v{E_+15}")
            if r >= 2 and r % 2 == 0: zs.a(f"v_cvt_pk_bf16_f32 v{vP[0]+r//2-1}, v{E_+r-2}, v{E_+r-1}")
    if tpl:
        inl0 = {}
        if nser and zsplit[2] < 128:
            per = (128 - zsplit[2]) // len(tzs)
            for n_, zg in enumerate(tzs):
                zs = Seg("x"); r0 = zsplit[2] + n_*per
                assert zg < 32 + 2*(r0//8)
                if n_ == 0 and dsm0: sm0_block(zs)
                for r in range(r0, r0+per): zs.a(f"v_mov_b32 v{vO+r}, 0")
                inl0[zg] = zs.ins
        for i in range(nser): iteration2(warm, i, 5+i, serial=sergap[i], inl=inl0 if i == 0 else None, xk=(i+4,) if i == kcatch and k1late and k4late else (), kl=4 if i < kcatch and k1late and k4late else 5)
    early[0] = 0
    body = Seg("loop"); body.a("L_loop:")
    if tpl: iteration2(body, 0, 0, zsites=zsplit[2] < 128 and not nser); iteration2(body, 1, 1, loopend=True)
    else: iteration(body, 0, 0); iteration(body, 1, 1, loopend=True)
    if stamps == 2:
        body.a(f"s_waitcnt lgkmcnt(0)\ns_memtime s[64:65]\ns_memrealtime s[66:67]\ns_sub_u32 m0, {15+NTRIP}, s{sCnt}\ns_cmp_lg_u32 s{sCnt}, 0\ns_waitcnt lgkmcnt(0)\nv_writelane_b32 v10, s64, m0\nv_writelane_b32 v11, s66, m0")
    zseg = Seg("zero")
    if zsplit[2] < 128 and not (tpl and nser):
        zgs = tzs if tpl else zgap if isinstance(zgap, tuple) else (zgap,)
        per = (128 - zsplit[2]) // len(zgs)
        for n_, zg in enumerate(zgs):
            r0 = zsplit[2] + n_*per
            assert zg < 32 + 2*(r0//8)
            if not tpl:
                mi = [k for k, x in enumerate(body.ins) if x.kind == "mfma"]
                k = mi[zg]
                body.ins[k+1:k+1] = [parse(f"s_cbranch_scc1 L_zero{n_}"), parse(f"L_zback{n_}:")]
                k = mi[zg-1]
                for y in body.ins[k+1:mi[zg]]: assert y.kind != "salu"
            if n_ == 0 and not peel:
                mask = (1 << NTRIP) | sum(1 << t for t in ptrips)
                body.ins[k+1:k+1] = [parse(f"s_bitcmp1_b32 {mask}, s{sCnt}")]
                zseg.a(f"L_zero{n_}:\ns_cmp_eq_u32 s{sCnt}, {NTRIP}\ns_cbranch_scc1 L_zero{n_}b")
                for kk in range(3):
                    y = parse(f"buffer_load_dwordx4 a[192:195], v{vDma if pcont else vOg}, s[{sO}:{sO+3}], s{sT0} offen{ppol}"); y.wr = set(); zseg.add(y)
                    if pcont: zseg.a(f"s_add_u32 s{sT0}, s{sT0}, 1024")
                    else: zseg.a(f"s_xor_b32 s{sT0}, s{sT0}, 512\ns_bitcmp1_b32 s{sT0}, 9\ns_cselect_b32 s3, 0, 4096\ns_add_u32 s{sT0}, s{sT0}, s3")
                    if kk == 1:
                        zseg.a(f"s_cmp_lg_u32 s{sCnt}, {ptrips[-1]}\ns_cbranch_scc1 L_pf3")
                        y = parse(f"buffer_load_dwordx4 a[192:195], v{vSt}, s[{sW}:{sW+3}], s{sMb} offen offset:256"); y.wr = set(); zseg.add(y)
                        zseg.a(f"s_branch L_zback{n_}\nL_pf3:")
                zseg.a(f"s_branch L_zback{n_}\nL_zero{n_}b:")
            else:
                if not tpl: body.ins[k+1:k+1] = [parse(f"s_cmp_eq_u32 s{sCnt}, {NTRIP}")]
                zseg.a(f"L_zero{n_}:")
            if n_ == 0 and dsm0: sm0_block(zseg)
            for r in range(r0, r0+per): zseg.a(f"v_mov_b32 v{vO+r}, 0")
            zseg.a(f"s_nop 1\ns_branch L_zback{n_}")
    if xpad2:
        for n_, (trip, gi, nn) in enumerate(xpad2):
            mi = [k for k, x in enumerate(body.ins) if x.kind == "mfma"]
            k = mi[gi]
            body.ins[k+1:k+1] = [parse(f"s_cmp_eq_u32 s{sCnt}, {NTRIP-trip-(1 if tpl else 0)}"), parse(f"s_cbranch_scc1 L_xq{n_}"), parse(f"L_xqb{n_}:")]
            zseg.a(f"L_xq{n_}:")
            for _ in range(nn): zseg.a("s_nop 15")
            zseg.a(f"s_branch L_xqb{n_}")
    if xpad:
        nb = []; mcount = 0; lab = 0
        for x in body.ins:
            nb.append(x)
            if x.kind == "mfma":
                it = mcount // 64; g = mcount % 64; mcount += 1
                step = 64 // xpad[3]
                if g % step == step//2 - 2:
                    thr = xpad[it]
                    nb += [parse(f"s_cmp_ge_u32 s{sCnt}, {thr}"), parse(f"s_cbranch_scc0 L_xp{lab}")] + [parse("s_nop 15") for _ in range(xpad[2])] + [parse(f"L_xp{lab}:")]
                    lab += 1
        body.ins = nb
    if not tpl: body.a(f"s_cbranch_scc1 L_loop")
    tail = Seg("tail"); e = tail.a
    e("L_tail:")
    if dfr: iteration3(tail, NB-4, 3); iteration3(tail, NB-3, 4)
    elif tpl: iteration2(tail, NB-4, 3, pref=True); iteration2(tail, NB-3, 4, pref=True)
    elif peel: iteration(tail, NB-4, 3, pref=True); iteration(tail, NB-3, 4, pref=True)
    stamp(tail)
    i = NB-2
    snd = list(range(8, 16)); own = list(range(8))
    sq15 = softmax_q(i+1) + checkops()
    if not peel:
        for dt in range(8, 8+NV0):
            for kt in range(2): tail.add(vread(i, dt, kt))
        for x in (sq15[0], sq15[1], sq15[2], sq15[5], sq15[3], sq15[4]): tail.add(x)
        sq15 = sq15[6:]
    rd = spread([vread(i, dt, kt) for dt in range(8+NV0, 16) for kt in range(2)], 0, 6)
    rd += [(y, t, btx+1) for (y, t, _) in spread([vread(i+1, dt, kt, dt-8) for dt in snd for kt in range(2)], btx+1, 15)]
    sca = {btx: [parse("s_waitcnt vmcnt(0)" if prefw is not None else "s_waitcnt vmcnt(9)" if pref13 else "s_waitcnt vmcnt(5)" if peel and not (pref12 and prefmode == 1) else "s_waitcnt vmcnt(0)"), parse("s_barrier")]}
    if dfr:
        sca = {btx: []}
        rd = spread([vread(i, dt, kt) for dt in range(8+NV0, 16) for kt in range(2)] + [vread(i+1, dt, kt, dt-8) for dt in snd for kt in range(2)], 0, 14)
    if stamps and fine:
        t1 = Seg("x"); fstamp(t1); t2 = Seg("x"); fstamp(t2)
        sca[btx] = t1.ins + sca[btx] + t2.ins
    mf = pvlist(i, snd)
    if peel: mf[0].extra = set()
    schedule(tail, mf, [rd, spread(sq15, 0, 15)], sca, label="X", cap=5)
    e(f"v_readfirstlane_b32 s{sT1}, v2\ns_cbranch_vccnz L_rare2\nL_back2:")
    fstamp(tail)
    e(f"s_and_b32 s3, s{sT1}, 0xff")
    def rcv(k): return vTmp + 4*k
    def xa(k):
        if xsw: return f"v{(vOg, 1)[k % 2]}, s[{sO}:{sO+3}], s{sOo} offen"
        return f"v{vOg}, s[{sO}:{sO+3}], s{sOo} offen offset:{512*(k%2)}"
    if xsw: e(f"s_and_b32 s36, s{sWv}, 1\ns_lshl_b32 s36, s36, 9\nv_add_u32 v{vOg}, s36, v{vOg}\nv_xor_b32 v1, 0x200, v{vOg}")
    pollb = Seg("pollb")
    if h2:
        sOo2, sX2, sChB = 62, 63, 38
        vG = 64
        def xaddr(k, b0, b1): return f"v21, s[{sO}:{sO+3}], s{b1 if (k % 4) >> 1 else b0} offen offset:{512*(k & 1) + 128*(k//4)}"
        e(f"s_add_u32 s{sOo2}, s{sOo}, 8192\ns_add_u32 s{sX2}, s{sX}, 8192\ns_xor_b32 s{sChB}, s{sCh}, 0x80\nv_xor_b32 v1, 0x80, v2")
        sends = []
        if fast: e(f"s_cmp_eq_u32 s3, s{sXcc}\ns_cbranch_scc1 L_sendfast")
        lo, hi = [0, 1, 2, 3], [4, 5, 6, 7]
        for var in (("slow", " sc1"), ("fast", xst)) if fast else (("slow", " sc1"),):
            sg = Seg("send_"+var[0]); sends.append(sg)
            if var[0] == "fast": sg.a("L_sendfast:")
            st = mergeops() + [parse(t) for t in (f"v_mov_b32 v6, v{vL}", f"v_mov_b32 v7, v{vL+1}", f"v_mov_b32 v4, v{vCn}", f"v_mov_b32 v5, v{vCn+4}",
                  f"v_permlane16_swap_b32 v6, v{vL}", f"v_permlane16_swap_b32 v7, v{vL+1}", f"v_add_f32 v{vL}, v6, v{vL}", f"v_add_f32 v{vL+1}, v7, v{vL+1}",
                  f"v_mov_b32 v6, v{vL}", f"v_mov_b32 v7, v{vL+1}", "s_nop 0", f"v_permlane32_swap_b32 v6, v{vL}", f"v_permlane32_swap_b32 v7, v{vL+1}",
                  f"v_add_f32 v6, v6, v{vL}", f"v_add_f32 v7, v7, v{vL+1}")]
            mf = pvlist(i+1, snd, own) + pvlist(i, lo, [d+8 for d in lo]) + pvlist(i+1, lo)
            rows = {g: [] for g in range(32)}
            for k, x in enumerate(st): rows[min(3, k*4//len(st))].append(x)
            rows[4].append(parse(f"buffer_store_dwordx4 v[4:7], v{vSt}, s[{sW}:{sW+3}], s{sPw} offen offset:256{var[1]}"))
            rr = [vread(i, dt, kt, dt+8) for dt in lo for kt in range(2)] + [vread(i+1, dt, kt) for dt in lo for kt in range(2)]
            r2 = [vread(i, dt, kt, dt+8) for dt in hi for kt in range(2)] + [vread(i+1, dt, kt) for dt in hi for kt in range(2)]
            for k in range(8):
                o = vO + 8*(8+k)
                rows[2*k+4] += [parse(f"v_cvt_pk_bf16_f32 v{vTmp+4*k+x}, v{o+2*x}, v{o+2*x+1}") for x in range(4)]
                rows[2*k+5] += [parse(f"buffer_store_dwordx4 v[{vTmp+4*k}:{vTmp+4*k+3}], {xaddr(k, sOo, sOo2)}{var[1]}")] + rr[2*k:2*k+2]
            for k, x in enumerate(r2): rows[20 + k*12//16].append(x)
            if var[0] == "slow": nf0 = nf[0]; st0 = nst[0]
            nf[0] = nf0; nst[0] = st0
            tg = Seg("x"); tg.a(f"s_waitcnt vmcnt(4)\nbuffer_store_dword v2, v3, s[{sW}:{sW+3}], s{sPw} offen{var[1]}")
            rows[tga] = tg.ins + rows[tga]
            for g in range(32):
                sg.add(mf[g])
                for x in rows[g]: sg.add(x)
            fstamp(sg); sg.a("s_waitcnt vmcnt(0)"); stamp(sg)
            sg.a(f"buffer_store_dword v1, v3, s[{sW}:{sW+3}], s{sPw} offen{var[1]}")
            fstamp(sg)
            if var[0] == "slow" and fast: sg.a("s_branch L_sent")
        fin = Seg("final"); e = fin.a
        e("L_sent:")
        e(f"s_mov_b32 s{sCnt}, 0x200000")
        e("L_poll:")
        e(f"s_sub_u32 s{sCnt}, s{sCnt}, 1\ns_cbranch_scc1 L_pollok")
        e(f"buffer_load_dword v8, v3, s[{sW}:{sW+3}], s{sMb} offen{xpoll}\ns_waitcnt vmcnt(0)\nv_readfirstlane_b32 s36, v8\ns_xor_b32 s3, s36, s{sCh}\ns_andn2_b32 s3, s3, 0x80\ns_cbranch_scc1 L_poll")
        e("L_pollok:")
        stamp(fin)
        e(f"buffer_load_dwordx4 v[{vG}:{vG+3}], v{vSt}, s[{sW}:{sW+3}], s{sMb} offen offset:256{xld}")
        for k in lo: e(f"buffer_load_dwordx4 v[{vTmp+4*k}:{vTmp+4*k+3}], {xaddr(k, sX, sX2)}{xld}")
        for x in pvlist(i, hi, [d+8 for d in hi]): fin.add(x)
        e(f"s_cmp_eq_u32 s36, s{sChB}\ns_cbranch_scc0 L_pollb\nL_pollbok:")
        pollb.a(f"L_pollb:\ns_sub_u32 s{sCnt}, s{sCnt}, 1\ns_cbranch_scc1 L_pollbok")
        pollb.a(f"buffer_load_dword v8, v3, s[{sW}:{sW+3}], s{sMb} offen{xpoll}\ns_waitcnt vmcnt(0)\nv_readfirstlane_b32 s36, v8\ns_nop 1\ns_cmp_eq_u32 s36, s{sChB}\ns_cbranch_scc0 L_pollb\ns_branch L_pollbok")
        for k in hi: e(f"buffer_load_dwordx4 v[{vTmp+4*k}:{vTmp+4*k+3}], {xaddr(k, sX, sX2)}{xld}")
        e(f"buffer_load_dword v2, v3, s[{sW}:{sW+3}], s{sPw} offen offset:128 sc1")
        for x in pvlist(i+1, hi): fin.add(x)
        fstamp(fin); fstamp(fin)
        for qt in range(2):
            fo, fx, t = vG+4+2*qt, vG+8+2*qt, vG+12+qt
            e(f"v_min_f32 v{t}, v{4+qt}, v{vG+qt}\nv_sub_f32 v{fo}, v{t}, v{4+qt}\nv_sub_f32 v{fx}, v{t}, v{vG+qt}\nv_exp_f32 v{fo}, v{fo}\nv_exp_f32 v{fx}, v{fx}")
        for qt in range(2):
            fo, fx, t = vG+4+2*qt, vG+8+2*qt, vG+12+qt
            e(f"v_mul_f32 v{t}, v{fo}, v{6+qt}\nv_fma_f32 v{t}, v{fx}, v{vG+2+qt}, v{t}\nv_rcp_f32 v{t}, v{t}")
        for qt in range(2):
            fo, fx, t = vG+4+2*qt, vG+8+2*qt, vG+12+qt
            e(f"v_mul_f32 v{fo}, v{fo}, v{t}\nv_mul_f32 v{fx}, v{fx}, v{t}")
        stq = []
        for n_, (h, qt) in enumerate(((0, 0), (0, 1), (1, 0), (1, 1))):
            fo, fx = vG+4+2*qt, vG+8+2*qt
            for k, dt in enumerate(range(4*h, 4*h+4)):
                o = vO + 8*dt + 4*qt; p = vTmp + 4*dt + 2*qt; u = 48 + 4*((2*dt+qt) % 4)
                e(f"v_lshlrev_b32 v{u}, 16, v{p}\nv_and_b32 v{u+1}, 0xffff0000, v{p}\nv_lshlrev_b32 v{u+2}, 16, v{p+1}\nv_and_b32 v{u+3}, 0xffff0000, v{p+1}")
                for x in range(4): e(f"v_mul_f32 v{o+x}, v{fo}, v{o+x}")
                for x in range(4): e(f"v_fmac_f32 v{o+x}, v{fx}, v{u+x}")
                e(f"v_cvt_pk_bf16_f32 v{o}, v{o}, v{o+1}\nv_cvt_pk_bf16_f32 v{o+1}, v{o+2}, v{o+3}")
                if k in (1, 2) and stq: e(stq.pop(0))
            for dt in range(4*h, 4*h+4):
                o = vO + 8*dt + 4*qt
                e(f"ds_write_b64 v{vEw}, v[{o}:{o+1}] offset:{4352*qt+32*dt}")
            for m in range(2):
                r = 192 + 8*n_ + 4*m
                e(f"ds_read_b128 v[{r}:{r+3}], v{vEr} offset:{272*(16*qt+8*m)+128*h}")
                stq.append(f"buffer_store_dwordx4 v[{r}:{r+3}], v21, s[{sO}:{sO+3}], s{sX2 if m else sX} offen offset:{512*qt+128*h}{polO}")
        fstamp(fin)
        for x in stq: e(x)
        e(f"v_readfirstlane_b32 s3, v2\ns_cmp_eq_u32 s3, s{sT1}\ns_cbranch_scc1 L_tagok")
        e(f"v_xor_b32 v2, 0x80, v2\nbuffer_wbl2 sc1\ns_waitcnt vmcnt(0)\nbuffer_store_dword v2, v3, s[{sW}:{sW+3}], s{sPw} offen sc1")
        e("L_tagok:")
        fstamp(fin)
    else:
        sends = []
        if fast: e(f"s_cmp_eq_u32 s3, s{sXcc}\ns_cbranch_scc1 L_sendfast")
        for var in (("slow", " sc1"), ("fast", xst)) if fast else (("slow", " sc1"),):
            sg = Seg("send_"+var[0]); sends.append(sg)
            if var[0] == "fast": sg.a("L_sendfast:")
            st = mergeops() + [parse(t) for t in (f"v_mov_b32 v6, v{vL}", f"v_mov_b32 v7, v{vL+1}", f"v_mov_b32 v4, v{vCn}", f"v_mov_b32 v5, v{vCn+4}",
                  f"v_permlane16_swap_b32 v6, v{vL}", f"v_permlane16_swap_b32 v7, v{vL+1}", f"v_add_f32 v{vL}, v6, v{vL}", f"v_add_f32 v{vL+1}, v7, v{vL+1}",
                  f"v_mov_b32 v6, v{vL}", f"v_mov_b32 v7, v{vL+1}", "s_nop 0", f"v_permlane32_swap_b32 v6, v{vL}", f"v_permlane32_swap_b32 v7, v{vL+1}",
                  f"v_add_f32 v6, v6, v{vL}", f"v_add_f32 v7, v7, v{vL+1}",
                  f"buffer_store_dwordx4 v[4:7], v{vSt}, s[{sW}:{sW+3}], s{sPw} offen offset:256{var[1]}")]
            q = []
            for k in range(8):
                o = vO + 8*(8+k); g0 = 2*k + 1 + 3
                for x in range(4): q.append((parse(f"v_cvt_pk_bf16_f32 v{vTmp+4*k+x}, v{o+2*x}, v{o+2*x+1}"), g0-2, g0))
                q.append((parse(f"buffer_store_dwordx4 v[{vTmp+4*k}:{vTmp+4*k+3}], {xa(k)}{var[1]}"), g0-2, g0))
                if k % 2 == 1 and k < 7: q.append((parse(f"s_add_u32 s{sOo}, s{sOo}, 4096"), g0-2, g0))
            rd = spread([vread(i, dt, kt, dt+8) for dt in own for kt in range(2)], 1, 20)
            rd += [(y, t, 17) for (y, t, _) in spread([vread(i+1, dt, kt) for dt in own for kt in range(2)], 21, 38)]
            mf = pvlist(i+1, snd, own) + pvlist(i, own, snd) + pvlist(i+1, own)
            if var[0] == "slow": nf0 = nf[0]; st0 = nst[0]
            nf[0] = nf0; nst[0] = st0
            tg = Seg("x"); fstamp(tg); tg.a("s_waitcnt vmcnt(0)"); stamp(tg)
            tg.a(f"buffer_store_dword v2, v3, s[{sW}:{sW+3}], s{sPw} offen{var[1]}")
            if dfr:
                mf = pvlist(i+1, snd, own) + pvlist(i-2, own, snd) + pvlist(i-1, own) + pvlist(i, own, snd) + pvlist(i+1, own)
                rows = {g: [] for g in range(80)}
                nst_ = len(st) - 1
                for k, x in enumerate(st[:-1]): rows[min(3, k*4//nst_)].append(x)
                rows[0].insert(0, parse(f"v_add_u32 v1, s{sDV}, v{vVa}"))
                rows[4].append(st[-1])
                rb = [[vread(i-2+n_, dt, kt, dt + (8 if n_ % 2 == 0 else 0), 1 if n_ < 2 else vVa) for dt in own for kt in range(2)] for n_ in range(4)]
                for k in range(8):
                    o = vO + 8*(8+k)
                    rows[2*k+4] += [parse(f"v_cvt_pk_bf16_f32 v{o+x}, v{o+2*x}, v{o+2*x+1}") for x in range(4)]
                    rows[2*k+5] += [parse(f"buffer_store_dwordx4 v[{o}:{o+3}], {xa(k)}{var[1]}")] + rb[0][2*k:2*k+2]
                    if k % 2 == 1 and k < 7: rows[2*k+5].append(parse(f"s_add_u32 s{sOo}, s{sOo}, 4096"))
                for k, x in enumerate(rb[1]): rows[20 + k*10//16].append(x)
                for k, x in enumerate(rb[2]): rows[34 + k*13//16].append(x)
                for k, x in enumerate(rb[3]): rows[50 + k*13//16].append(x)
                rows[dtag] += tg.ins
                for g in range(80):
                    sg.add(mf[g])
                    for x in rows[g]: sg.add(x)
            elif y2:
                rows = {g: [] for g in range(48)}
                r14 = [vread(i, dt, kt, dt+8) for dt in own for kt in range(2)]; r15 = [vread(i+1, dt, kt) for dt in own for kt in range(2)]
                nst_ = len(st) - 1
                for k, x in enumerate(st[:-1]): rows[min(3, k*4//nst_)].append(x)
                tiles = [[y[0] for y in q[a_:b_]] for a_, b_ in zip([0,5,11,16,22,27,33,38], [5,11,16,22,27,33,38,43])]
                for k in range(8):
                    rows[2*k+4] += tiles[k][:4]
                    rows[2*k+5] += tiles[k][4:5] + r14[2*k:2*k+2] + tiles[k][5:]
                rows[1] = r14[:0] + rows[1]
                rows[4] = [st[-1]] + rows[4]
                for k, x in enumerate(r15): rows[20 + k].append(x)
                rows[tagg] += tg.ins
                for g in range(48):
                    sg.add(mf[g])
                    for x in rows[g]: sg.add(x)
            else:
                sca = {tagg: [post(x) for x in tg.ins]}
                schedule(sg, mf, [rd, q, spread(st, 0, 4)], sca, label="YZ", cap=3)
            fstamp(sg)
            if var[0] == "slow" and fast: sg.a("s_branch L_sent")
        fin = Seg("final"); e = fin.a
        e("L_sent:")
        e(f"s_mov_b32 s{sCnt}, 0x200000")
        e("L_poll:")
        e(f"s_sub_u32 s{sCnt}, s{sCnt}, 1\ns_cbranch_scc1 L_pollok")
        e(f"buffer_load_dword v8, v3, s[{sW}:{sW+3}], s{sMb} offen{xpoll}\ns_waitcnt vmcnt(0)\nv_readfirstlane_b32 s3, v8\ns_cmp_lg_u32 s3, s{sCh}\ns_cbranch_scc1 L_poll")
        e("L_pollok:")
        stamp(fin)
        e(f"s_mov_b32 s{sOo}, s{sX}")
        def xloads(pol):
            e(f"buffer_load_dwordx4 v[32:35], v{vSt}, s[{sW}:{sW+3}], s{sMb} offen offset:256{pol}")
            for k in range(8):
                e(f"buffer_load_dwordx4 v[{rcv(k)}:{rcv(k)+3}], {xa(k)}{pol}")
                if k % 2 == 1 and k < 7: e(f"s_add_u32 s{sOo}, s{sOo}, 4096")
        xloads(xld)
        e(f"buffer_load_dword v2, v3, s[{sW}:{sW+3}], s{sPw} offen offset:128 sc1")
        fstamp(fin, 9); fstamp(fin, 0)
        for qt in range(2):
            fo, fx, t = 36+2*qt, 40+2*qt, 44+qt
            e(f"v_min_f32 v{t}, v{4+qt}, v{32+qt}\nv_sub_f32 v{fo}, v{t}, v{4+qt}\nv_sub_f32 v{fx}, v{t}, v{32+qt}\nv_exp_f32 v{fo}, v{fo}\nv_exp_f32 v{fx}, v{fx}")
        for qt in range(2):
            fo, fx, t = 36+2*qt, 40+2*qt, 44+qt
            e(f"v_mul_f32 v{t}, v{fo}, v{6+qt}\nv_fma_f32 v{t}, v{fx}, v{34+qt}, v{t}\nv_rcp_f32 v{t}, v{t}")
        for qt in range(2):
            fo, fx, t = 36+2*qt, 40+2*qt, 44+qt
            e(f"v_mul_f32 v{fo}, v{fo}, v{t}\nv_mul_f32 v{fx}, v{fx}, v{t}")
        def oscale(dt, qt):
            o = vO + 8*dt + 4*qt; fo = 36 + 2*qt
            for r in (o, o+2): e(f"v_pk_mul_f32 v[{r}:{r+1}], v[{r}:{r+1}], v[{fo}:{fo+1}] op_sel_hi:[1,0]")
        for dt in range(8):
            for qt in range(2):
                if not (qsc and q4) or (dt < 4 and qt == 0): oscale(dt, qt)
        def comb(dt, qt):
            o = vO + 8*dt + 4*qt; p = rcv(dt) + 2*qt; u = 48 + 4*((2*dt+qt) % 4); fx = 40+2*qt
            e(f"v_lshlrev_b32 v{u}, 16, v{p}\nv_and_b32 v{u+1}, 0xffff0000, v{p}\nv_lshlrev_b32 v{u+2}, 16, v{p+1}\nv_and_b32 v{u+3}, 0xffff0000, v{p+1}")
            e(f"v_pk_fma_f32 v[{o}:{o+1}], v[{u}:{u+1}], v[{fx}:{fx+1}], v[{o}:{o+1}] op_sel_hi:[1,0,1]")
            e(f"v_pk_fma_f32 v[{o+2}:{o+3}], v[{u+2}:{u+3}], v[{fx}:{fx+1}], v[{o+2}:{o+3}] op_sel_hi:[1,0,1]")
            e(f"v_cvt_pk_bf16_f32 v{o}, v{o}, v{o+1}\nv_cvt_pk_bf16_f32 v{o+1}, v{o+2}, v{o+3}")
        def dsw(dt, qt):
            o = vO + 8*dt + 4*qt
            e(f"ds_write_b64 v{vEw}, v[{o}:{o+1}] offset:{4352*qt+32*dt}")
        def retag():
            e(f"v_readfirstlane_b32 s3, v2\ns_cmp_eq_u32 s3, s{sT1}\ns_cbranch_scc1 L_tagok")
            e(f"buffer_wbl2 sc1\ns_waitcnt vmcnt(0)\nbuffer_store_dword v2, v3, s[{sW}:{sW+3}], s{sPw} offen sc1")
            e("L_tagok:")
        if q4:
            e(f"s_add_u32 s{sOo}, s{sX}, 8192")
            stq = []
            for n_, (h, qt) in enumerate(((0, 0), (0, 1), (1, 0), (1, 1))):
                for k, dt in enumerate(range(4*h, 4*h+4)):
                    if qsc and n_: oscale(dt, qt)
                    comb(dt, qt)
                    if k in ((0, 1) if qsc else (1, 2)) and stq: e(stq.pop(0))
                for dt in range(4*h, 4*h+4): dsw(dt, qt)
                for m in range(2):
                    r = 192 + 8*n_ + 4*m
                    e(f"ds_read_b128 v[{r}:{r+3}], v{vEr} offset:{272*(16*qt+8*m)+128*h}")
                    stq.append(f"buffer_store_dwordx4 v[{r}:{r+3}], v21, s[{sO}:{sO+3}], s{sOo if m else sX} offen offset:{512*qt+128*h}{polO}")
                if n_ == 0: e("s_waitcnt vmcnt(1)")
            fstamp(fin)
            for x in stq: e(x)
            retag()
        else:
            for dt in range(8):
                for qt in range(2):
                    comb(dt, qt)
                    if qt == 1 and dt % 2 == 1:
                        for d2 in (dt-1, dt):
                            for q2 in range(2): dsw(d2, q2)
            fstamp(fin)
            korder = [0, 4, 1, 5, 2, 6, 3, 7]
            for n_, k in enumerate(korder): e(f"ds_read_b128 v[{192+4*n_}:{192+4*n_+3}], v{vEr} offset:{1088*k}")
            retag()
            for k in range(8):
                e(f"buffer_store_dwordx4 v[{192+4*k}:{192+4*k+3}], v{vOg}, s[{sO}:{sO+3}], s{sX} offen offset:{512*(k%2)}{polO}")
                if k % 2 == 1 and k < 7: e(f"s_add_u32 s{sX}, s{sX}, 4096")
        fstamp(fin)
    endseg = Seg("end"); e = endseg.a
    if stamps:
        e("s_waitcnt vmcnt(0)")
        stamp(endseg)
        e(f"s_lshl_b32 s3, s2, 2\ns_add_u32 s3, s3, s{sWv}\ns_lshl_b32 s3, s3, 9\nv_lshlrev_b32 v{vSt}, 3, v0")
        e(f"buffer_store_dwordx2 v[10:11], v{vSt}, s[{sW}:{sW+3}], s3 offen")
    if probe is not None:
        e("s_waitcnt vmcnt(0)")
        stamp(endseg)
        e(f"s_sub_u32 s94, s94, s96\ns_add_u32 s94, s94, 2500\nL_pad:\ns_memrealtime s[98:99]\ns_waitcnt lgkmcnt(0)\ns_sub_u32 s3, s98, s96\ns_cmp_lt_u32 s3, s94\ns_cbranch_scc1 L_pad")
    if padto:
        e(f"s_waitcnt vmcnt(0)\nL_pad:\ns_memrealtime s[98:99]\ns_waitcnt lgkmcnt(0)\ns_sub_u32 s3, s98, s96\ns_cmp_lt_u32 s3, {int(padto*100)}\ns_cbranch_scc1 L_pad")
    e("L_end:\ns_endpgm")
    rares = []
    for ret, i in ((0, 0), (1, 1), (2, NB-2), (3, NB-4), (4, NB-3))[:5 if peel else 3] + tuple((5+k, k) for k in range(nser if tpl else 0)):
        r = Seg(f"rare{ret}"); e = r.a
        S = vS[(i+1)%2]; S2 = vS[i%2]
        e(f"L_rare{ret}:")
        rowmax(r, S, True)
        e("v_exp_f32 v6, -v1\nv_exp_f32 v7, -v4")
        for qt, d, al in ((0, 1, 6), (1, 4, 7)):
            for k in range(4): e(f"v_sub_f32 v{vCn+4*qt+k}, v{vCn+4*qt+k}, v{d}")
            for k in range(8): e(f"v_sub_f32 v{S+8*qt+k}, v{S+8*qt+k}, v{d}")
            if ret != 2:
                for k in range(8): e(f"v_sub_f32 v{S2+8*qt+k}, v{S2+8*qt+k}, v{d}")
            e(f"v_mul_f32 v{vL+qt}, v{al}, v{vL+qt}")
        pend = [NB-2] if ret == 2 else []
        if dfr and ret in (2, 3, 4): pend = list(range(NB-4, i+1))
        for n in pend:
            for k in range(8):
                p = Pbuf(n) + k; al = 6 + k//4
                e(f"v_lshlrev_b32 v{vPf}, 16, v{p}\nv_and_b32 v{vPf+1}, 0xffff0000, v{p}\nv_mul_f32 v{vPf}, v{al}, v{vPf}\nv_mul_f32 v{vPf+1}, v{al}, v{vPf+1}\nv_cvt_pk_bf16_f32 v{p}, v{vPf}, v{vPf+1}")
        for x in softmax_q(i+1, merge=False, pipe=True): r.add(x)
        for k in range(128): e(f"v_mul_f32 v{vO+k}, v{6+(k//4)%2}, v{vO+k}")
        e(f"s_nop 1\ns_branch L_back{ret}")
        rares.append(r)
    if "oob" in exp: pro.a(f"s_mov_b32 s{sK+2}, 0\ns_mov_b32 s{sV+2}, 0")
    if "l2hot" in exp:
        for x in body.ins:
            if x.text.startswith(f"s_add_u32 s{sOK}, s{sOK}, 16384") or x.text.startswith(f"s_add_u32 s{sOV}, s{sOV}, 16384"): x.text = "s_nop 0"
    if exp:
        nb = []
        for x in body.ins:
            if "nolds" in exp and x.kind == "dsr": continue
            if "novalu" in exp and x.kind in ("valu","trans") and not x.text.startswith("v_add_u32") and not x.text.startswith("v_cmp") and not x.text.startswith("v_writelane"): continue
            if "nodma" in exp and x.kind == "dma": continue
            if "nomfma" in exp and x.kind == "mfma": continue
            if "nobar" in exp and (x.kind == "barrier" or (x.kind == "wait" and x.vm is not None)): continue
            if "nomax" in exp and x.text.startswith("v_max"): continue
            nb.append(x)
        body.ins = nb
    order = [pro, warm, body, tail] + sends + [fin, endseg, pollb, zseg] + rares
    traces = [[pro, warm, body, body, body, tail, s, fin, endseg] for s in sends]
    fix_waits(traces, verbose)
    for s in order: merge_waits(s)
    fix_waits(traces, verbose)
    def upto(seg, lab):
        s = Seg(seg.name+"_pre"); k = [i.text for i in seg.ins].index(lab); s.ins = seg.ins[:k]
        s2 = Seg(seg.name+"_post"); s2.ins = seg.ins[k:]; return s, s2
    pw = [pro, warm]
    cases = [(0, body, pw+[body], [body]), (1, body, pw+[body], [body]), (1, body, pw+[body], [tail]), (2, tail, pw+[body], [sends[0]])]
    if peel: cases += [(3, tail, pw+[body], []), (4, tail, pw+[body], [])]
    cases += [(5+k, warm, [pro], [body]) for k in range(nser if tpl else 0)]
    for ret, seg, prev, nxt in cases:
        p, q = upto(seg, f"L_back{ret}:")
        n0 = [len(x.ins) for x in [p, q] + nxt]
        fix_waits([prev + [p, rares[ret], q] + nxt], verbose)
        assert exp or [len(x.ins) for x in [p, q] + nxt] == n0, "rare path needs extra waits outside"
    if zseg.ins and not xpad2:
        labs = [k for k, x in enumerate(zseg.ins) if x.kind == "label" and x.text.startswith("L_zero") and not x.text.endswith("b:")] + [len(zseg.ins)]
        parts = []
        for n_ in range(len(labs)-1):
            zp = Seg(f"zero{n_}"); zp.ins = zseg.ins[labs[n_]:labs[n_+1]]; parts.append(zp)
            p, q = upto(body, f"L_zback{n_}:")
            n0 = [len(p.ins), len(q.ins)]
            fix_waits([[pro, warm, p, zp, q]], verbose)
            assert exp or [len(p.ins), len(q.ins)] == n0, "zero block needs extra waits outside"
        zseg.ins = [x for zp in parts for x in zp.ins]
    lds = SPARE + KS
    txt = header + f"; @launch grid=(256,1,1) block=(256,1,1) lds={lds}\n"
    txt += f'.amdgcn_target "amdgcn-amd-amdhsa--gfx950"\n.text\n.globl {KN}\n.p2align 8\n.type {KN},@function\n{KN}:\n'
    body_txt = emit(order)
    notes = {
      "prologue": "ids, descriptors, first K/V/Q fetches; Q is scaled by log2(e)/16 group by group as it lands; S(0)=K0 Q^T, S(1), true row max of block 0",
      "warm": "iterations 0..3: same data flow as the loop, but each block's softmax (and, in iteration 0, the accumulator clear) runs between the MFMAs in one piece",
      "loop": "iterations 4..11, two per trip: QK(i+2) | softmax(i+1) | PV(i), one barrier per key block",
      "tail": "iterations 12, 13 and PV(14) for the half of O that goes to the partner; softmax(15)",
      "send_slow": "partner on another XCD: PV(15), write-through of the sent half + (max, sum), own half of PV(12..15), then the tag",
      "send_fast": "partner on this XCD: the same through L2",
      "final": "wait for the partner's tag, merge the two partial results, transpose through LDS, store; re-tag if the challenge read earlier was an older launch's",
    }
    for k_, v_ in notes.items(): body_txt = body_txt.replace(f"; ---- {k_}\n", f"; ---- {k_}: {v_}\n")
    body_txt = re.sub(r"; ---- (rare\d+)\n", r"; ---- \1: a block sum passed 2^8: move to the true running max, rescale O, l, pending P, redo this block's softmax\n", body_txt)
    body_txt = body_txt.replace("; ---- pollb\n", "").replace("; ---- zero\n", "")
    if align is not None:
        body_txt = body_txt.replace("L_loop:\n", f".p2align {align[0]}\n" + "  s_nop 0\n"*align[1] + "L_loop:\n")
    txt += body_txt + "\nL_codeend:\n"
    txt += f'''.section .rodata,"a"
.p2align 6
.amdhsa_kernel {KN}
  .amdhsa_next_free_vgpr 452
  .amdhsa_next_free_sgpr 102
  .amdhsa_accum_offset 256
  .amdhsa_group_segment_fixed_size 0
  .amdhsa_kernarg_size 48
  .amdhsa_user_sgpr_count 2
  .amdhsa_user_sgpr_kernarg_segment_ptr 1
  .amdhsa_system_sgpr_workgroup_id_x 1
.end_amdhsa_kernel
'''
    return txt
if __name__ == "__main__":
    kw = eval("dict(" + (sys.argv[1] if len(sys.argv) > 1 else "") + ")")
    print(gen(**kw))
```
